```python
import torch

def _softmax(x, axis=-1):
    return torch.softmax(x, dim=axis)
def _gelu(x):
    return torch.nn.functional.gelu(x, approximate="tanh")
def _silu(x):
    return torch.nn.functional.silu(x)
def _sigmoid(x):
    return torch.sigmoid(x)
def _layernorm(x, axis=-1, eps=1e-5):
    m = x.mean(dim=axis, keepdim=True)
    v = x.var(dim=axis, keepdim=True, unbiased=False)
    return (x - m) / torch.sqrt(v + eps)
def _scatter_add(tgt, idx, src, axis=0):
    return tgt.clone().index_add_(axis, idx, src)
def _segment_sum(src, seg, n):
    out = torch.zeros((n,) + src.shape[1:], dtype=src.dtype)
    return out.index_add_(0, seg, src)
def _pad(x, pw):
    flat = tuple(v for pair in reversed(pw) for v in pair)
    return torch.nn.functional.pad(x, flat)

kernel_name = 'interleave_layers__sliding_block__glu_gated_geglu__prompt'

def setup_inputs():

    _w = (lambda a: (lambda t: t.to(torch.bfloat16) if t.is_floating_point() else t)(torch.as_tensor(a)))
    def _A_setup():
        B, S, D = 1, 2048, 640
        return {
            "x": _w((lambda *s: torch.randn(*s, dtype=torch.bfloat16) * 0.05)(B, S, D)),
            "wqkv": _w((lambda *s: torch.randn(*s, dtype=torch.bfloat16) * 0.05)(D, 3 * D)),
            "wo": _w((lambda *s: torch.randn(*s, dtype=torch.bfloat16) * 0.05)(D, D)),
        }
    _A_in = _A_setup()

    def _B_setup():
        B, S, Dm, Df = 1, 2048, 640, 1728
        return {
            "x": _w((lambda *s: torch.randn(*s, dtype=torch.bfloat16) * 0.05)(B, S, Dm)),
            "w_gate": _w((lambda *s: torch.randn(*s, dtype=torch.bfloat16) * 0.8)(Dm, Df) * (Dm ** -0.5)),
            "w_up": _w((lambda *s: torch.randn(*s, dtype=torch.bfloat16) * 0.8)(Dm, Df) * (Dm ** -0.5)),
            "w_down": _w((lambda *s: torch.randn(*s, dtype=torch.bfloat16) * 0.8)(Df, Dm) * (Df ** -0.5)),
        }
    _B_in = _B_setup()

    return {
        "A_x": _A_in["x"],
        "A_wqkv": _A_in["wqkv"],
        "A_wo": _A_in["wo"],
        "B_x": _B_in["x"],
        "B_w_gate": _B_in["w_gate"],
        "B_w_up": _B_in["w_up"],
        "B_w_down": _B_in["w_down"],
    }

def reference(A_x, A_wqkv, A_wo, B_x, B_w_gate, B_w_up, B_w_down):
    def _A_ref(x, wqkv, wo):
        B, S, D = x.shape
        H = 32; Dh = D // H; W = 256
        qkv = (lambda x, *d: x.permute(*d))((x @ wqkv).reshape(B, S, 3, H, Dh), 2, 0, 3, 1, 4)
        q, k, v = qkv[0], qkv[1], qkv[2]
        scores = torch.einsum("bhqd,bhkd->bhqk", q, k) * (Dh ** -0.5)
        idx = torch.arange(S)
        mask = (idx[:, None] - idx[None, :] >= 0) & (idx[:, None] - idx[None, :] < W)
        scores = torch.where(mask[None, None], scores, -1e9)
        p = _softmax(scores, axis=-1)
        o = torch.einsum("bhqk,bhkd->bhqd", p, v)
        return (lambda x, *d: x.permute(*d))(o, 0, 2, 1, 3).reshape(B, S, D) @ wo

    def _B_ref(x, w_gate, w_up, w_down):
        g = torch.einsum("bsd,df->bsf", x, w_gate)
        u = torch.einsum("bsd,df->bsf", x, w_up)
        h = _gelu(g) * u
        return torch.einsum("bsf,fd->bsd", h, w_down)

    x = A_x
    x = x + _A_ref(_layernorm(x, axis=-1), A_wqkv, A_wo)
    x = x + _B_ref(_layernorm(x, axis=-1), B_w_gate, B_w_up, B_w_down)
    x = x + _A_ref(_layernorm(x, axis=-1), A_wqkv, A_wo)
    x = x + _B_ref(_layernorm(x, axis=-1), B_w_gate, B_w_up, B_w_down)
    return x
```

```python
import re

TRANS = ("v_exp_f32", "v_log_f32", "v_rcp_f32", "v_rsq_f32", "v_sqrt_f32", "v_sin_f32", "v_cos_f32")
MFMA_PASSES = {"v_mfma_f32_32x32x16_bf16": 8, "v_mfma_f32_32x32x8_bf16": 8, "v_mfma_f32_16x16x32_bf16": 4,
               "v_mfma_f32_16x16x16_bf16": 4}
D2OTHER = {2: 5, 4: 8, 8: 12, 16: 20}
D2COVL = {2: 4, 4: 6, 8: 10, 16: 18}
CWAR = {2: 1, 4: 3, 8: 7, 16: 15}

_reg_re = re.compile(r"^(-|\|)?(abs\()?([vas])(\d+)\)?\|?$")
_rng_re = re.compile(r"^(-|\|)?([vas])\[(\d+):(\d+)\]\|?$")

def regs_of(op):
    op = op.strip()
    if op in ("vcc",): return {("s", 106), ("s", 107)}
    if op == "vcc_lo": return {("s", 106)}
    if op == "vcc_hi": return {("s", 107)}
    if op == "exec": return {("x", 0)}
    if op == "m0": return {("m", 0)}
    m = _reg_re.match(op)
    if m: return {(m.group(3), int(m.group(4)))}
    m = _rng_re.match(op)
    if m: return {(m.group(2), i) for i in range(int(m.group(3)), int(m.group(4)) + 1)}
    return set()

def v(i, n=1): return f"v{i}" if n == 1 else f"v[{i}:{i+n-1}]"
def a(i, n=1): return f"a{i}" if n == 1 else f"a[{i}:{i+n-1}]"
def s(i, n=1): return f"s{i}" if n == 1 else f"s[{i}:{i+n-1}]"

class Ins:
    __slots__ = ("text", "mn", "kind", "rd", "wr", "rdA", "rdC", "passes", "lds", "wide_data", "dpp", "states")

def split_ops(rest):
    ops = []; depth = 0; cur = ""
    for ch in rest:
        if ch in "[(": depth += 1
        if ch in "])": depth -= 1
        if ch == "," and depth == 0:
            ops.append(cur.strip()); cur = ""
        else: cur += ch
    if cur.strip(): ops.append(cur.strip())
    return ops

def parse(text):
    t = text.strip()
    i = Ins(); i.text = t
    parts = t.split(None, 1)
    mn = parts[0]; rest = parts[1] if len(parts) > 1 else ""
    mn = re.sub(r"_e(32|64)$", "", mn)
    i.mn = mn; i.rd = set(); i.wr = set(); i.rdA = set(); i.rdC = set(); i.passes = 0; i.lds = False
    i.wide_data = set(); i.dpp = False; i.states = 1
    ops = split_ops(rest)
    mods = ""
    if ops:
        sp = ops[-1].split(None, 1)
        ops[-1] = sp[0]; mods = sp[1] if len(sp) > 1 else ""
    R = [regs_of(o) for o in ops]
    if mn.startswith("v_mfma"):
        i.kind = "mfma"; i.passes = MFMA_PASSES[mn]
        i.wr = R[0]; i.rdA = R[1] | R[2]; i.rdC = R[3]; i.rd = i.rdA | i.rdC
    elif mn.startswith("v_"):
        i.kind = "trans" if mn in TRANS else "valu"
        i.dpp = mn.endswith("_dpp")
        if mn.startswith("v_permlane") and "swap" in mn:
            i.kind = "perm"; i.wr = R[0] | R[1]; i.rd = R[0] | R[1]
        elif mn.startswith(("v_add_co", "v_sub_co", "v_addc_co", "v_subb_co", "v_div_scale", "v_mad_u64")):
            i.wr = R[0] | R[1]; i.rd = set().union(*R[2:])
        else:
            i.wr = R[0]; i.rd = set().union(*R[1:]) if len(R) > 1 else set()
            if mn.startswith(("v_fmac", "v_dot2c", "v_pk_fmac")) or i.dpp: i.rd |= R[0]
            if mn == "v_cndmask_b32" and len(ops) == 3: i.rd |= regs_of("vcc")
            if mn.startswith("v_writelane"): i.rd |= R[0]
    elif mn.startswith("ds_"):
        i.kind = "ds"
        if mn.startswith(("ds_read", "ds_bpermute", "ds_permute", "ds_swizzle")):
            i.wr = R[0]; i.rd = set().union(*R[1:])
        else:
            i.rd = set().union(*R)
    elif mn.startswith(("buffer_", "global_")):
        i.kind = "vmem"
        allm = (" " + mods + " ")
        if mn in ("buffer_wbl2", "buffer_inv"):
            pass
        elif " lds " in allm or mn.startswith("global_load_lds"):
            i.lds = True; i.rd = set().union(*R) | {("m", 0)}
        elif "load" in mn:
            i.wr = R[0]; i.rd = set().union(*R[1:])
        elif "atomic" in mn:
            i.rd = set().union(*R)
            if " sc0 " in allm: i.wr = R[0]
        else:
            i.rd = set().union(*R)
            if mn.endswith(("x3", "x4")): i.wide_data = R[0] if mn.startswith("buffer") else R[1]
    elif mn.startswith("s_"):
        i.kind = "salu"
        if mn == "s_nop": i.states = int(ops[0], 0) + 1
        elif mn.startswith(("s_cmp", "s_bitcmp")): i.rd = set().union(*R)
        elif mn.startswith(("s_waitcnt", "s_barrier", "s_branch", "s_cbranch", "s_endpgm", "s_setprio", "s_sleep")): pass
        elif mn.startswith(("s_load", "s_memtime", "s_memrealtime", "s_buffer_load")):
            i.kind = "smem"; i.wr = R[0]; i.rd = set().union(*R[1:]) if len(R) > 1 else set()
        elif "saveexec" in mn:
            i.wr = R[0] | {("x", 0)}; i.rd = R[1]
        else:
            i.wr = R[0]; i.rd = set().union(*R[1:]) if len(R) > 1 else set()
    else:
        raise ValueError("unknown instruction " + t)
    return i

def need(p, c):
    n = 0
    pv = p.kind in ("valu", "trans", "perm")
    cv = c.kind in ("valu", "trans", "perm")
    if pv:
        wv = {r for r in p.wr if r[0] in "va"}
        ws = {r for r in p.wr if r[0] == "s"}
        if wv:
            if c.kind == "mfma" and wv & c.rd: n = max(n, 2)
            if c.mn.startswith(("v_readfirstlane", "v_readlane")) and wv & c.rd: n = max(n, 1)
            if c.kind == "perm" and wv & c.rd: n = max(n, 2)
            if c.dpp and wv & c.rd: n = max(n, 2)
            if p.kind == "trans" and c.kind in ("valu", "perm") and wv & c.rd: n = max(n, 1)
        if ws:
            if c.kind == "vmem" and ws & c.rd: n = max(n, 5)
            if cv and ws & c.rd:
                n = max(n, 4 if c.mn.startswith(("v_readlane", "v_writelane")) else 2)
    if p.kind == "mfma":
        if c.kind == "mfma":
            if p.wr & c.rdA: n = max(n, D2OTHER[p.passes])
            if p.wr & c.rdC:
                if not (p.wr == c.rdC and p.passes == c.passes):
                    n = max(n, D2COVL[p.passes])
            elif p.wr & c.wr: n = max(n, D2COVL[p.passes])
        elif cv or c.kind in ("vmem", "ds"):
            if p.wr & (c.rd | c.wr): n = max(n, D2OTHER[p.passes])
        if cv and p.rdC & c.wr: n = max(n, CWAR[p.passes])
    if p.kind == "salu" and ("m", 0) in p.wr and c.kind == "vmem" and c.lds: n = max(n, 1)
    if p.kind == "vmem" and p.wide_data and p.wide_data & c.wr:
        n = max(n, 2 if cv else 1)
    return n

class Asm:
    def __init__(self):
        self.lines = []
        self.hist = []
        self.vm = []
        self.lg = []
        self.nbytes = 0
        self.uid = 0
    def raw(self, t): self.lines.append(t)
    def comment(self, t): self.lines.append("    ; " + t)
    def label(self, name, fence=True):
        self.lines.append(name + ":")
    def fence(self, n=20):
        self._pad_all()
    def _pad_all(self):
        worst = 0; d = 0
        for p in reversed(self.hist):
            w = 0
            if p.kind == "mfma": w = D2OTHER[p.passes]
            elif p.kind in ("valu", "trans", "perm"):
                w = 5 if any(r[0] == "s" for r in p.wr) else 2
            elif p.kind == "vmem" and p.wide_data: w = 2
            elif p.kind == "salu" and ("m", 0) in p.wr: w = 1
            worst = max(worst, w - d)
            d += p.states
            if d > 24: break
        self._nop(worst)
    def _nop(self, n):
        while n > 0:
            k = min(n, 16)
            i = parse(f"s_nop {k-1}")
            self.lines.append("    " + i.text); self.hist.append(i); n -= k
    def I(self, text, tag=None):
        i = parse(text)
        d = 0; pad = 0
        for p in reversed(self.hist):
            pad = max(pad, need(p, i) - d)
            d += p.states
            if d > 24: break
        self._nop(pad)
        self.lines.append("    " + i.text)
        self.hist.append(i)
        if len(self.hist) > 64: self.hist = self.hist[-40:]
        if i.kind == "vmem" and i.mn not in ("buffer_wbl2", "buffer_inv"):
            self.vm.append(tag); assert len(self.vm) <= 63, "too many outstanding vmem"
        if i.kind == "ds": self.lg.append(tag)
        if i.kind == "smem": self.lg.append("SMEM")
        return i
    def __call__(self, text, tag=None):
        for ln in text.strip().split("\n"):
            ln = ln.split(";")[0].strip()
            if ln: self.I(ln, tag)
    def wait_vm(self, pred):
        last = -1
        for k, t in enumerate(self.vm):
            if pred(t): last = k
        if last < 0: return
        n = len(self.vm) - 1 - last
        self.I(f"s_waitcnt vmcnt({n})")
        self.vm = self.vm[last + 1:]
    def wait_vm_all(self):
        self.I("s_waitcnt vmcnt(0)"); self.vm = []
    def wait_lg(self, pred):
        last = -1
        for k, t in enumerate(self.lg):
            if pred(t): last = k
        if last < 0: return
        if "SMEM" in self.lg:
            self.I("s_waitcnt lgkmcnt(0)"); self.lg = []; return
        n = len(self.lg) - 1 - last
        if n > 15:
            n = 15; last = len(self.lg) - 1 - n
        self.I(f"s_waitcnt lgkmcnt({n})")
        self.lg = self.lg[last + 1:]
    def wait_lg_all(self):
        self.I("s_waitcnt lgkmcnt(0)"); self.lg = []
    def text(self): return "\n".join(self.lines) + "\n"
    def newlabel(self, base):
        self.uid += 1
        return f"L_{base}_{self.uid}"

def kernel_header(name):
    return f".globl {name}\n.p2align 8\n.type {name},@function\n{name}:\n"

def kernel_desc(name, vgpr, agpr=0, sgpr=96):
    acc = (vgpr + 3) // 4 * 4
    nfv = acc + agpr if agpr else vgpr
    return f""".amdhsa_kernel {name}
  .amdhsa_next_free_vgpr {nfv}
  .amdhsa_next_free_sgpr {sgpr}
  .amdhsa_accum_offset {acc}
  .amdhsa_group_segment_fixed_size 0
  .amdhsa_kernarg_size 80
  .amdhsa_user_sgpr_count 2
  .amdhsa_user_sgpr_kernarg_segment_ptr 1
  .amdhsa_system_sgpr_workgroup_id_x 1
.end_amdhsa_kernel
"""
```

```python
import sys, os
sys.path.insert(0, os.path.dirname(os.path.abspath(__file__)))
from asmdsl import *

NAME = "interleave_layers__sliding_block__glu_gated_geglu__prompt"
S_TOK, D, F = 2048, 640, 1728
KA_X, KA_WQKV, KA_WO, KA_WG, KA_WU, KA_WD, KA_OUT, KA_DBG, KA_WS = 0, 8, 16, 32, 40, 48, 56, 64, 72
XB = S_TOK * D * 2
WS_XIN = 0x0000000
WS_X1 = 0x0300000
WS_O = 0x0600000
WS_QKV = 0x0900000
QKV_B = 480 * 16384
WS_H = 0x1100000
H_B = S_TOK * F * 2
WS_STA = 0x1800000
WS_STB = 0x1840000
ST_B = 10 * S_TOK * 8
WS_CS = 0x1880000
CS_B = (1920 + 2 * F) * 4
OOB = 0x80000000

import struct
def f32(x): return "0x%08x" % struct.unpack("<I", struct.pack("<f", x))[0]

def srd(A, d, base, off, size):
    A(f"s_add_u32 s{d}, s{base}, {off:#x}")
    A(f"s_addc_u32 s{d+1}, s{base+1}, 0")
    A(f"s_mov_b32 s{d+2}, {size:#x}")
    A(f"s_mov_b32 s{d+3}, 0x20000")

def lane_ids(A):
    A("v_lshrrev_b32 v2, 6, v0")
    A("v_and_b32 v1, 63, v0")
    A("v_readfirstlane_b32 s20, v2")
    A("v_and_b32 v2, 31, v0")
    A("v_lshrrev_b32 v3, 5, v1")

def load_stats(A, dst, vtok_off, srd_st, tmp, tag):
    for i in range(5):
        A(f"s_mov_b32 s21, {i*16384}")
        A(f"buffer_load_dwordx2 {v(tmp+2*i,2)}, v{vtok_off}, {s(srd_st,4)}, s21 offen", tag)

def finish_stats(A, tmp, negmean, rstd, t2):
    A(f"v_pk_add_f32 {v(tmp,2)}, {v(tmp,2)}, {v(tmp+2,2)}")
    A(f"v_pk_add_f32 {v(tmp+4,2)}, {v(tmp+4,2)}, {v(tmp+6,2)}")
    A(f"v_pk_add_f32 {v(tmp,2)}, {v(tmp,2)}, {v(tmp+8,2)}")
    A(f"v_pk_add_f32 {v(tmp,2)}, {v(tmp,2)}, {v(tmp+4,2)}")
    A(f"v_mov_b32 v{t2}, v{tmp}")
    A(f"v_mov_b32 v{t2+1}, v{tmp+1}")
    A(f"v_permlane32_swap_b32 v{tmp}, v{t2}")
    A(f"v_permlane32_swap_b32 v{tmp+1}, v{t2+1}")
    A(f"v_pk_add_f32 {v(tmp,2)}, {v(tmp,2)}, {v(t2,2)}")
    A(f"v_mul_f32 v{negmean}, {f32(-1.0/D)}, v{tmp}")
    A(f"v_mul_f32 v{tmp+1}, {f32(1.0/D)}, v{tmp+1}")
    A(f"v_fma_f32 v{tmp+1}, -v{negmean}, v{negmean}, v{tmp+1}")
    A(f"v_max_f32 v{tmp+1}, 0, v{tmp+1}")
    A(f"v_add_f32 v{tmp+1}, {f32(1e-5)}, v{tmp+1}")
    A(f"v_rsq_f32 v{rstd}, v{tmp+1}")

class Gemm:
    def __init__(self, A, MT, NB, nstage, XS, WSL, slot_bytes, RB, nb_stride, acc, wf, xa,
                 vx, vwd, wd_srds, wd_lds, vtr, srd_x, w_row_stride, compute_label=None):
        self.__dict__.update(locals())

    def issue_stage(self, t, do_x=True):
        A = self.A
        if do_x:
            for st in range(4):
                for mt in range(self.MT):
                    r = self.xa + (((t % self.XS) * 4 + st) * self.MT + mt) * 4
                    A(f"buffer_load_dwordx4 {a(r,4)}, v{self.vx[mt]}, {s(self.srd_x,4)}, s30 offen offset:{st*512}", ("X", t))
        for (vreg, sr, lo) in zip(self.vwd, self.wd_srds, self.wd_lds):
            A(f"s_add_u32 m0, s32, {(t % self.WSL) * self.slot_bytes + lo}")
            A(f"buffer_load_dwordx4 v{vreg}, {s(sr,4)}, s31 offen lds", ("W", t))
        A("s_add_u32 s30, s30, 2048")
        A(f"s_add_u32 s31, s31, {64 * self.w_row_stride}")
        A(f"s_cmp_ge_u32 s30, {self.nstage * 2048}")
        A("s_cselect_b32 s30, 0, s30")
        A("s_cselect_b32 s31, 0, s31")

    def tr_reads(self, t, st, buf):
        out = []
        kb, f = st >> 1, st & 1
        slot = t % self.WSL
        per = 65536 // self.slot_bytes
        va = self.vtr[slot // per]
        base = (slot % per) * self.slot_bytes
        for nb in range(self.NB):
            for rd in range(2):
                off = base + (8 * kb + 4 * rd + 2 * f) * self.RB + nb * self.nb_stride
                r = self.wf + (buf * self.NB + nb) * 4 + rd * 2
                out.append((f"ds_read_b64_tr_b16 {v(r,2)}, v{va} offset:{off}", ("F", t, st, nb)))
        return out

    def run(self, pre_first_mfma=None, zero_init=True, do_x=True):
        A = self.A
        depth = min(self.XS, self.WSL) - 1
        depth = min(depth, self.nstage)
        for t in range(depth):
            self.issue_stage(t, do_x)
        if pre_first_mfma: pre_first_mfma()
        A.wait_vm(lambda g: g is not None and g[0] in "XW" and g[1] == 0)
        A("s_barrier")
        if self.nstage > depth:
            self.issue_stage(depth, do_x)
        nxt = depth + 1
        if not do_x:
            for t in range(self.nstage - 1):
                A.wait_vm(lambda g: g is not None and g[0] in "XW" and g[1] == t + 1)
                A("s_barrier")
                if nxt < self.nstage:
                    self.issue_stage(nxt, do_x); nxt += 1
            return
        for ins, tag in self.tr_reads(0, 0, 0): A(ins, tag)
        gstep = 0
        for t in range(self.nstage):
            for st in range(4):
                buf = gstep & 1
                last = (t == self.nstage - 1 and st == 3)
                if st == 3 and not last:
                    A.wait_lg_all()
                    A.wait_vm(lambda g: g is not None and g[0] in "XW" and g[1] == t + 1)
                    A("s_barrier")
                nreads = [] if last else (self.tr_reads(t, st + 1, buf ^ 1) if st < 3 else self.tr_reads(t + 1, 0, buf ^ 1))
                nm = self.NB * self.MT
                per = (len(nreads) + nm - 1) // nm if nreads else 0
                k = 0
                for nb in range(self.NB):
                    for mt in range(self.MT):
                        A.wait_lg(lambda g: g == ("F", t, st, nb))
                        ac = self.acc + (mt * self.NB + nb) * 16
                        xr = self.xa + (((t % self.XS) * 4 + st) * self.MT + mt) * 4
                        wr = self.wf + (buf * self.NB + nb) * 4
                        c = "0" if (zero_init and gstep == 0) else v(ac, 16)
                        A(f"v_mfma_f32_32x32x16_bf16 {v(ac,16)}, {v(wr,4)}, {a(xr,4)}, {c}")
                        for ins, tag in nreads[k:k + per]: A(ins, tag)
                        k += per
                if st == 3 and not last and nxt < self.nstage:
                    self.issue_stage(nxt, do_x); nxt += 1
                gstep += 1

def rot_init(A, nstage, w_row_stride):
    A("s_and_b32 s21, s2, 7")
    A(f"s_mul_i32 s21, s21, {nstage}")
    A("s_lshr_b32 s21, s21, 3")
    A("s_lshl_b32 s30, s21, 11")
    A(f"s_mul_i32 s31, s21, {64 * w_row_stride}")

def tr_lane_addr(A, dst, PS, RB, cg_stride, t0, t1):
    A(f"v_bfe_u32 v{t0}, v1, 2, 2")
    A(f"v_mul_u32_u24 v{dst}, {PS}, v{t0}")
    A(f"v_mul_u32_u24 v{t0}, {RB}, v3")
    A(f"v_add_u32 v{dst}, v{dst}, v{t0}")
    A(f"v_bfe_u32 v{t0}, v1, 4, 1")
    A(f"v_mul_u32_u24 v{t0}, {cg_stride}, v{t0}")
    A(f"v_add_u32 v{dst}, v{dst}, v{t0}")
    A(f"v_and_b32 v{t0}, 3, v1")
    A(f"v_lshl_add_u32 v{dst}, v{t0}, 3, v{dst}")

def cl_lane_off(A, dst, stok, tb_stride, t0):
    A(f"v_lshrrev_b32 v{t0}, 4, v2")
    A(f"s_lshr_b32 s21, s{stok}, 4")
    A(f"v_add_u32 v{t0}, s21, v{t0}")
    A(f"s_mov_b32 s21, {tb_stride}")
    A(f"v_mul_lo_u32 v{dst}, v{t0}, s21")
    A(f"v_lshl_add_u32 v{dst}, v3, 8, v{dst}")
    A(f"v_and_b32 v{t0}, 15, v2")
    A(f"v_lshl_add_u32 v{dst}, v{t0}, 4, v{dst}")

def gen_p1():
    A = Asm(); name = "p1_kernel"
    A.raw(kernel_header(name))
    A("s_cmp_ge_u32 s2, 240"); A("s_cbranch_scc1 L_p1_end")
    A(f"s_load_dwordx2 s[4:5], s[0:1], {KA_WS}")
    A(f"s_load_dwordx2 s[6:7], s[0:1], {KA_WQKV}")
    lane_ids(A)
    A("s_and_b32 s22, s2, 7"); A("s_lshl_b32 s22, s22, 8")
    A("s_lshr_b32 s23, s2, 3"); A("s_and_b32 s24, s23, 1"); A("s_lshl_b32 s24, s24, 7")
    A("s_add_u32 s22, s22, s24")
    A("s_lshl_b32 s24, s20, 5"); A("s_add_u32 s22, s22, s24")
    A("s_lshr_b32 s23, s23, 1")
    PS, RB, SLOT = 4160, 256, 16640
    VX, VWD, VTR, VST, VCS_OFF, VOUT, NM, RS = 4, 5, 9, 12, 13, 14, 16, 18
    TMP = 20
    WF = 32
    ACC = 64
    CS = 128
    cl_lane_off(A, VX, 22, 20480, TMP)
    for j in range(4):
        A(f"v_lshrrev_b32 v{TMP}, 4, v1")
        A(f"v_add_u32 v{TMP}, {4*j}, v{TMP}")
        A(f"v_lshlrev_b32 v{TMP}, 2, v{TMP}")
        A(f"v_add_u32 v{TMP}, s20, v{TMP}")
        A(f"v_mul_u32_u24 v{TMP}, 3840, v{TMP}")
        A(f"v_and_b32 v{TMP+1}, 15, v1")
        A(f"v_lshl_add_u32 v{TMP}, v{TMP+1}, 4, v{TMP}")
        A(f"s_lshl_b32 s21, s23, 8")
        A(f"v_add_u32 v{VWD+j}, s21, v{TMP}")
    tr_lane_addr(A, VTR, PS, RB, 32, TMP, TMP + 1)
    A(f"v_add_u32 v{VTR+1}, {3*SLOT}, v{VTR}")
    A(f"v_add_u32 v{VTR+2}, {6*SLOT}, v{VTR}")
    A(f"v_add_u32 v{TMP}, s22, v2")
    A(f"v_lshlrev_b32 v{VOUT}, 3, v{TMP}")
    A(f"v_mul_u32_u24 v{TMP}, {5*16384}, v3")
    A(f"v_add_u32 v{VST}, v{VOUT}, v{TMP}")
    A(f"v_lshl_add_u32 v{VOUT}, v3, 14, v{VOUT}")
    A("s_lshl_b32 s21, s23, 9")
    A(f"v_lshlrev_b32 v{TMP}, 4, v3")
    A(f"v_add_u32 v{VCS_OFF}, s21, v{TMP}")
    A(f"s_mul_i32 s32, s20, {PS}")
    rot_init(A, 10, 3840)
    A.wait_lg_all()
    srd(A, 8, 4, WS_XIN, XB)
    srd(A, 12, 6, 0, D * 1920 * 2)
    srd(A, 36, 4, WS_STA, ST_B)
    srd(A, 40, 4, WS_CS, CS_B)
    srd(A, 44, 4, WS_QKV, QKV_B)
    g = Gemm(A, 1, 4, 10, 8, 8, SLOT, RB, 64, ACC, WF, 0, [VX], [VWD + j for j in range(4)], [12] * 4,
             [1024 * j for j in range(4)], [VTR, VTR + 1, VTR + 2], 8, 3840)
    g.run()
    load_stats(A, None, VST, 36, TMP, ("S", 0))
    for nb in range(4):
        for i in range(4):
            A(f"buffer_load_dwordx4 {v(CS + nb*16 + i*4, 4)}, v{VCS_OFF}, s[40:43], 0 offen offset:{nb*128 + i*32}", ("C", 0))
    A.wait_vm(lambda g: g == ("S", 0))
    finish_stats(A, TMP, NM, RS, TMP + 10)
    A("s_cmp_lt_u32 s23, 5")
    A(f"s_cselect_b32 s21, {f32(20 ** -0.5 * 1.4426950408889634)}, 1.0")
    A(f"v_mul_f32 v{RS}, s21, v{RS}")
    A.wait_vm_all()
    A("s_lshl_b32 s24, s23, 19")
    for nb in range(4):
        for i in range(4):
            r = ACC + nb * 16 + i * 4; c = CS + nb * 16 + i * 4
            for k in (0, 2):
                A(f"v_pk_fma_f32 {v(r+k,2)}, {v(c+k,2)}, {v(NM,2)}, {v(r+k,2)} op_sel_hi:[1,0,1]")
            for k in (0, 2):
                A(f"v_pk_mul_f32 {v(r+k,2)}, {v(r+k,2)}, {v(RS,2)} op_sel_hi:[1,0]")
            A(f"v_cvt_pk_bf16_f32 v{r}, v{r}, v{r+1}")
            A(f"v_cvt_pk_bf16_f32 v{r+1}, v{r+2}, v{r+3}")
            A(f"s_add_u32 s21, s24, {(8*nb + 2*i) * 16384}")
            A(f"buffer_store_dwordx2 {v(r,2)}, v{VOUT}, s[44:47], s21 offen")
    A.label("L_p1_end"); A("s_endpgm")
    return A.text(), kernel_desc(name, 192, 128), f"kernel={name} grid=(240,1,1) block=(256,1,1) lds={8*SLOT}"

def gen_p4():
    A = Asm(); name = "p4_kernel"
    A.raw(kernel_header(name))
    A("s_cmp_ge_u32 s2, 216"); A("s_cbranch_scc1 L_p4_end")
    A(f"s_load_dwordx2 s[4:5], s[0:1], {KA_WS}")
    A(f"s_load_dwordx4 s[48:51], s[0:1], {KA_WG}")
    lane_ids(A)
    A("s_and_b32 s22, s2, 7"); A("s_lshl_b32 s22, s22, 8")
    A("s_lshl_b32 s24, s20, 6"); A("s_add_u32 s22, s22, s24")
    A("s_lshr_b32 s23, s2, 3")
    PS, RB, UOFF, SLOT = 2112, 128, 8480, 16960
    VX, VWD, VTR, VST, VCS_OFF, VOUT = 4, 6, 8, 10, 12, 13
    NM, CA, CB, IR = 16, 20, 24, 28
    TMP = 32
    WF = 56
    ACC = 88
    CS = 216
    cl_lane_off(A, VX, 22, 20480, TMP)
    A(f"v_add_u32 v{VX+1}, {2*20480}, v{VX}")
    for j in range(2):
        A(f"v_lshrrev_b32 v{TMP}, 3, v1")
        A(f"v_add_u32 v{TMP}, {8*j}, v{TMP}")
        A(f"v_lshlrev_b32 v{TMP}, 2, v{TMP}")
        A(f"v_add_u32 v{TMP}, s20, v{TMP}")
        A(f"v_mul_u32_u24 v{TMP}, {F*2}, v{TMP}")
        A(f"v_and_b32 v{TMP+1}, 7, v1")
        A(f"v_lshl_add_u32 v{TMP}, v{TMP+1}, 4, v{TMP}")
        A(f"s_lshl_b32 s21, s23, 7")
        A(f"v_add_u32 v{VWD+j}, s21, v{TMP}")
    tr_lane_addr(A, VTR, PS, RB, UOFF, TMP, TMP + 1)
    A(f"v_add_u32 v{VTR+1}, {3*SLOT}, v{VTR}")
    A(f"v_add_u32 v{TMP}, s22, v2")
    A(f"v_lshlrev_b32 v{VST}, 3, v{TMP}")
    A(f"v_mul_u32_u24 v{TMP}, {5*16384}, v3")
    A(f"v_add_u32 v{VST}, v{VST}, v{TMP}")
    A(f"v_add_u32 v{VST+1}, 256, v{VST}")
    cl_lane_off(A, VOUT, 22, 54 * 1024, TMP)
    A("s_lshl_b32 s21, s23, 11")
    A(f"v_add_u32 v{VOUT}, s21, v{VOUT}")
    A(f"v_add_u32 v{VOUT+1}, {2*54*1024}, v{VOUT}")
    A("s_lshl_b32 s21, s23, 8")
    A(f"s_add_u32 s21, s21, {1920*4}")
    A(f"v_lshlrev_b32 v{TMP}, 4, v3")
    A(f"v_add_u32 v{VCS_OFF}, s21, v{TMP}")
    A(f"s_mul_i32 s32, s20, {PS}")
    rot_init(A, 10, F * 2)
    A.wait_lg_all()
    srd(A, 8, 4, WS_X1, XB)
    srd(A, 12, 48, 0, D * F * 2)
    srd(A, 16, 50, 0, D * F * 2)
    srd(A, 36, 4, WS_STB, ST_B)
    srd(A, 40, 4, WS_CS, CS_B)
    srd(A, 44, 4, WS_H, H_B)
    g = Gemm(A, 2, 4, 10, 6, 6, SLOT, RB, 32, ACC, WF, 0, [VX, VX + 1], [VWD, VWD + 1, VWD, VWD + 1], [12, 12, 16, 16],
             [0, 1024, UOFF, UOFF + 1024], [VTR, VTR + 1], 8, F * 2)
    g.run()
    load_stats(A, None, VST, 36, TMP, ("S", 0))
    load_stats(A, None, VST + 1, 36, TMP + 12, ("S", 0))
    csreg = lambda nb: (WF + nb * 16) if nb < 2 else (CS + (nb - 2) * 16)
    A(f"s_mov_b32 s25, {F*4}")
    for nb in range(4):
        for i in range(2):
            A(f"buffer_load_dwordx4 {v(csreg(nb) + i*4, 4)}, v{VCS_OFF}, s[40:43], 0 offen offset:{nb*64 + i*32}", ("C", 0))
            A(f"buffer_load_dwordx4 {v(csreg(nb) + 8 + i*4, 4)}, v{VCS_OFF}, s[40:43], s25 offen offset:{nb*64 + i*32}", ("C", 0))
    A.wait_vm(lambda g: g == ("S", 0))
    kk = -2.0 * 1.4426950408889634 * 0.7978845608028654
    for mt in range(2):
        t = TMP + 12 * mt
        finish_stats(A, t, NM + 2 * mt, t + 2, t + 10)
        A(f"v_mov_b32 v{IR+2*mt}, v{t+1}")
        A(f"v_mul_f32 v{CB+2*mt}, {f32(kk)}, v{t+2}")
        A(f"v_mul_f32 v{t+3}, v{t+2}, v{t+2}")
        A(f"v_mul_f32 v{t+3}, {f32(0.044715)}, v{t+3}")
        A(f"v_mul_f32 v{CA+2*mt}, v{CB+2*mt}, v{t+3}")
    A.wait_vm_all()
    T = TMP
    for mt in range(2):
        nm, ca, cb, ir = NM + 2 * mt, CA + 2 * mt, CB + 2 * mt, IR + 2 * mt
        for kkb in range(2):
            for half in range(2):
                out = T + 16 + 0
                out = T + 16 + 4 * half
                for e in range(2):
                    nb = 2 * kkb + e
                    gq = ACC + (mt * 4 + nb) * 16 + 4 * half
                    uq = gq + 8
                    cg = csreg(nb) + 4 * half; cu = cg + 8
                    for k in (0, 2):
                        A(f"v_pk_fma_f32 {v(gq+k,2)}, {v(cg+k,2)}, {v(nm,2)}, {v(gq+k,2)} op_sel_hi:[1,0,1]")
                    for k in (0, 2):
                        A(f"v_pk_fma_f32 {v(uq+k,2)}, {v(cu+k,2)}, {v(nm,2)}, {v(uq+k,2)} op_sel_hi:[1,0,1]")
                    for k in (0, 2):
                        A(f"v_pk_mul_f32 {v(T+k,2)}, {v(gq+k,2)}, {v(gq+k,2)}")
                    for k in (0, 2):
                        A(f"v_pk_fma_f32 {v(T+k,2)}, {v(T+k,2)}, {v(ca,2)}, {v(cb,2)} op_sel_hi:[1,0,0]")
                    for k in (0, 2):
                        A(f"v_pk_mul_f32 {v(T+k,2)}, {v(T+k,2)}, {v(gq+k,2)}")
                    for k in range(4):
                        A(f"v_exp_f32 v{T+k}, v{T+k}")
                    for k in (0, 2):
                        A(f"v_pk_mul_f32 {v(gq+k,2)}, {v(gq+k,2)}, {v(uq+k,2)}")
                    for k in (0, 2):
                        A(f"v_pk_fma_f32 {v(T+k,2)}, {v(T+k,2)}, {v(ir,2)}, {v(ir,2)} op_sel_hi:[1,0,0]")
                    for k in range(4):
                        A(f"v_rcp_f32 v{T+k}, v{T+k}")
                    for k in (0, 2):
                        A(f"v_pk_mul_f32 {v(gq+k,2)}, {v(gq+k,2)}, {v(T+k,2)}")
                    A(f"v_cvt_pk_bf16_f32 v{out+2*e}, v{gq}, v{gq+1}")
                    A(f"v_cvt_pk_bf16_f32 v{out+2*e+1}, v{gq+2}, v{gq+3}")
                A(f"buffer_store_dwordx4 {v(out,4)}, v{VOUT+mt}, s[44:47], 0 offen offset:{kkb*1024 + half*512}")
    A.label("L_p4_end"); A("s_endpgm")
    return A.text(), kernel_desc(name, 248, 192), f"kernel={name} grid=(216,1,1) block=(256,1,1) lds={6*SLOT}"

def gen_p35(name, K, ka_w, ws_x, x_bytes, ws_res, ws_out, ws_st, final):
    A = Asm()
    A.raw(kernel_header(name))
    A("s_cmp_ge_u32 s2, 240"); A(f"s_cbranch_scc1 L_{name}_end")
    A(f"s_load_dwordx2 s[4:5], s[0:1], {KA_WS}")
    A(f"s_load_dwordx2 s[6:7], s[0:1], {ka_w}")
    if final: A(f"s_load_dwordx2 s[48:49], s[0:1], {KA_OUT}")
    lane_ids(A)
    nstage = K // 64; nkb = K // 32
    A("s_lshr_b32 s24, s2, 3")
    A("s_mul_i32 s23, s24, 171"); A("s_lshr_b32 s23, s23, 9")
    A("s_mul_i32 s25, s23, 3"); A("s_sub_u32 s24, s24, s25")
    A("s_mul_i32 s24, s24, 80")
    A("s_and_b32 s22, s2, 7"); A("s_lshl_b32 s22, s22, 8"); A("s_add_u32 s22, s22, s24")
    A("s_lshl_b32 s24, s20, 5"); A("s_add_u32 s22, s22, s24")
    PS, RB, SLOT = 2112, 128, 8448
    XS = WSL = min(10, nstage + 1)
    VX, VWD, VTR, VRES, VST, VOUT = 4, 6, 8, 10, 11, 12
    TMP = 16
    WF = 32
    ACC = 48
    RES = 80
    cl_lane_off(A, VX, 22, nkb * 1024, TMP)
    for j in range(2):
        A(f"v_lshrrev_b32 v{TMP}, 3, v1")
        A(f"v_add_u32 v{TMP}, {8*j}, v{TMP}")
        A(f"v_lshlrev_b32 v{TMP}, 2, v{TMP}")
        A(f"v_add_u32 v{TMP}, s20, v{TMP}")
        A(f"v_mul_u32_u24 v{TMP}, {D*2}, v{TMP}")
        A(f"v_and_b32 v{TMP+1}, 7, v1")
        A(f"v_lshl_add_u32 v{TMP}, v{TMP+1}, 4, v{TMP}")
        A(f"s_lshl_b32 s21, s23, 7")
        A(f"v_add_u32 v{VWD+j}, s21, v{TMP}")
    tr_lane_addr(A, VTR, PS, RB, 32, TMP, TMP + 1)
    A(f"v_add_u32 v{VTR+1}, {7*SLOT}, v{VTR}")
    cl_lane_off(A, VRES, 22, 20480, TMP)
    A("s_lshl_b32 s21, s23, 11")
    A(f"v_add_u32 v{VRES}, s21, v{VRES}")
    A(f"v_add_u32 v{TMP}, s22, v2")
    A(f"v_lshlrev_b32 v{VST}, 3, v{TMP}")
    A("s_lshl_b32 s21, s23, 14")
    A(f"v_add_u32 v{VST}, s21, v{VST}")
    if final:
        A(f"v_mul_u32_u24 v{VOUT}, {D*2}, v{TMP}")
        A("s_lshl_b32 s21, s23, 7")
        A(f"v_add_u32 v{VOUT}, s21, v{VOUT}")
        A(f"v_lshl_add_u32 v{VOUT}, v3, 3, v{VOUT}")
    A(f"s_mul_i32 s32, s20, {PS}")
    rot_init(A, nstage, D * 2)
    A.wait_lg_all()
    srd(A, 8, 4, ws_x, x_bytes)
    srd(A, 12, 6, 0, K * D * 2)
    srd(A, 36, 4, ws_res, XB)
    if final: srd(A, 40, 48, 0, XB)
    else: srd(A, 40, 4, ws_out, XB)
    srd(A, 44, 4, ws_st, ST_B)
    mk = lambda: Gemm(A, 1, 2, nstage, XS, WSL, SLOT, RB, 64, ACC, WF, 0, [VX], [VWD, VWD + 1], [12, 12],
                      [0, 1024], [VTR, VTR + 1], 8, D * 2)
    A("s_cmp_lt_u32 s20, 3"); A(f"s_cbranch_scc1 L_{name}_comp")
    mk().run(do_x=False)
    A("s_endpgm")
    A.label(f"L_{name}_comp"); A.vm = []; A.lg = []
    for nb in range(2):
        for half in range(2):
            A(f"buffer_load_dwordx4 {v(RES + (nb*2+half)*4, 4)}, v{VRES}, s[36:39], 0 offen offset:{nb*1024 + half*512}", ("R", 0))
    def init_acc():
        A.wait_vm(lambda g: g == ("R", 0))
        for nb in range(2):
            for half in range(2):
                for j in range(4):
                    src = RES + (nb * 2 + half) * 4 + j
                    dst = ACC + nb * 16 + 4 * half + (j >> 1) * 8 + (j & 1) * 2
                    A(f"v_lshlrev_b32 v{dst}, 16, v{src}")
                    A(f"v_and_b32 v{dst+1}, 0xffff0000, v{src}")
    if XS * 6 - 6 + 4 > 63: raise SystemExit("vm budget")
    mk().run(pre_first_mfma=init_acc, zero_init=False)
    for nb in range(2):
        for half in range(2):
            for j in range(4):
                dstp = RES + (nb * 2 + half) * 4 + j
                src = ACC + nb * 16 + 4 * half + (j >> 1) * 8 + (j & 1) * 2
                A(f"v_cvt_pk_bf16_f32 v{dstp}, v{src}, v{src+1}")
            p = RES + (nb * 2 + half) * 4
            if final:
                A(f"buffer_store_dwordx2 {v(p,2)}, v{VOUT}, s[40:43], 0 offen offset:{(32*nb + 8*half)*2}")
                A(f"buffer_store_dwordx2 {v(p+2,2)}, v{VOUT}, s[40:43], 0 offen offset:{(32*nb + 16 + 8*half)*2}")
            else:
                A(f"buffer_store_dwordx4 {v(p,4)}, v{VRES}, s[40:43], 0 offen offset:{nb*1024 + half*512}")
    if not final:
        A(f"v_mov_b32 v{TMP}, 0"); A(f"v_mov_b32 v{TMP+1}, 0"); A(f"v_mov_b32 v{TMP+2}, 0"); A(f"v_mov_b32 v{TMP+3}, 0")
        A(f"v_mov_b32 v{TMP+4}, 0x3f803f80")
        for j in range(16):
            o = 2 * (j & 1)
            A(f"v_dot2_f32_bf16 v{TMP+o}, v{RES+j}, v{TMP+4}, v{TMP+o}")
            A(f"v_dot2_f32_bf16 v{TMP+o+1}, v{RES+j}, v{RES+j}, v{TMP+o+1}")
        A("s_nop 3")
        A(f"v_pk_add_f32 {v(TMP,2)}, {v(TMP,2)}, {v(TMP+2,2)}")
        A(f"v_mov_b32 v{TMP+2}, v{TMP}"); A(f"v_mov_b32 v{TMP+3}, v{TMP+1}")
        A(f"v_permlane32_swap_b32 v{TMP}, v{TMP+2}")
        A(f"v_permlane32_swap_b32 v{TMP+1}, v{TMP+3}")
        A(f"v_pk_add_f32 {v(TMP,2)}, {v(TMP,2)}, {v(TMP+2,2)}")
        A(f"buffer_store_dwordx2 {v(TMP,2)}, v{VST}, s[44:47], 0 offen")
    A.label(f"L_{name}_end"); A("s_endpgm")
    return A.text(), kernel_desc(name, 96, XS * 16), f"kernel={name} grid=(240,1,1) block=(256,1,1) lds={WSL*SLOT}"

def gen_p2():
    A = Asm(); name = "p2_kernel"
    A.raw(kernel_header(name))
    A("s_cmp_ge_u32 s2, 256"); A("s_cbranch_scc1 L_p2_end")
    A(f"s_load_dwordx2 s[4:5], s[0:1], {KA_WS}")
    lane_ids(A)
    PSK, PSV = 4096, 4128
    KOFF, VOFF = 0, 5 * 4096
    LDS = VOFF + 6 * PSV
    A("s_lshr_b32 s23, s2, 3")
    A("s_and_b32 s24, s2, 7")
    A("s_mul_i32 s25, s23, 5")
    A("s_and_b32 s26, s20, 3"); A("s_lshr_b32 s27, s20, 2")
    A("s_mul_i32 s28, s27, 160"); A("s_add_u32 s28, s28, 160"); A("s_add_u32 s28, s28, s25"); A("s_lshl_b32 s28, s28, 14")
    A("s_lshl_b32 s29, s24, 1"); A("s_add_u32 s29, s29, s26")
    A("s_lshl_b32 s30, s29, 10"); A("s_add_u32 s28, s28, s30"); A("s_sub_u32 s28, s28, 2048")
    A("s_cmp_lt_u32 s29, 2"); A(f"s_cselect_b32 s28, {OOB:#x}, s28")
    A(f"s_cselect_b32 s33, 0, 16384")
    A(f"s_mul_i32 s31, s27, {VOFF}"); A("s_lshl_b32 s30, s26, 10"); A("s_add_u32 s31, s31, s30")
    A("s_lshl_b32 s32, s27, 5"); A("s_add_u32 s32, s32, 4096")
    VL16, VQ, VQ2, VK1, VK2, VV, VO = 4, 5, 6, 7, 8, 9, 10
    TMP = 14
    Q1, Q2 = 20, 24
    MSK = 26
    KF = 34
    VF = 52
    O = 68
    PB = 84
    S = 100
    MX = 244
    A(f"v_lshlrev_b32 v{VL16}, 4, v1")
    A("s_lshl_b32 s22, s24, 8"); A("s_lshl_b32 s21, s20, 5"); A("s_add_u32 s22, s22, s21")
    A(f"v_add_u32 v{TMP}, s22, v2")
    A(f"v_lshlrev_b32 v{VQ2}, 3, v{TMP}")
    A(f"v_lshl_add_u32 v{VQ}, v3, 14, v{VQ2}")
    A(f"v_lshl_add_u32 v{VQ2}, v3, 31, v{VQ2}")
    A.wait_lg_all()
    srd(A, 8, 4, WS_QKV, QKV_B)
    srd(A, 12, 4, WS_O, XB)
    for i in range(5):
        A("s_mov_b32 m0, s31")
        A(f"buffer_load_dwordx4 v{VL16}, s[8:11], s28 offen lds", "KV")
        A("s_add_u32 s31, s31, s32"); A("s_add_u32 s28, s28, s33")
    A("s_lshl_b32 s21, s25, 14")
    A(f"buffer_load_dwordx2 {v(Q1,2)}, v{VQ}, s[8:11], s21 offen", "Q")
    A(f"s_add_u32 s21, s21, {2*16384}")
    A(f"buffer_load_dwordx2 {v(Q1+2,2)}, v{VQ}, s[8:11], s21 offen", "Q")
    A(f"s_add_u32 s21, s21, {2*16384}")
    A(f"buffer_load_dwordx2 {v(Q2,2)}, v{VQ2}, s[8:11], s21 offen", "Q")
    A(f"v_mov_b32 v{TMP+2}, 0x3f803f80"); A(f"v_mov_b32 v{TMP+3}, 0x3f803f80")
    A(f"v_lshlrev_b32 v{TMP+1}, 3, v0")
    A(f"ds_write_b64 v{TMP+1}, {v(TMP+2,2)} offset:{VOFF + 5*PSV}")
    A("s_lshl_b32 s21, s20, 8")
    A(f"v_lshlrev_b32 v{VK2}, 3, v2"); A(f"v_add_u32 v{VK2}, s21, v{VK2}")
    A(f"v_lshl_add_u32 v{VK1}, v3, 12, v{VK2}")
    A(f"v_bfe_u32 v{TMP+1}, v1, 4, 1"); A(f"v_and_b32 v{TMP+4}, 3, v1")
    A(f"v_lshl_add_u32 v{TMP+1}, v{TMP+1}, 2, v{TMP+4}"); A(f"v_min_u32 v{TMP+1}, 5, v{TMP+1}")
    A(f"v_mul_u32_u24 v{VV}, {PSV}, v{TMP+1}")
    A(f"v_bfe_u32 v{TMP+1}, v1, 2, 2"); A(f"v_lshl_add_u32 v{TMP+1}, v3, 2, v{TMP+1}")
    A(f"v_lshl_add_u32 v{VV}, v{TMP+1}, 3, v{VV}"); A(f"v_add_u32 v{VV}, s21, v{VV}")
    A(f"v_lshrrev_b32 v{TMP+1}, 4, v{TMP}"); A(f"v_mul_u32_u24 v{TMP+1}, 20480, v{TMP+1}")
    A(f"v_and_b32 v{TMP+4}, 15, v{TMP}"); A(f"v_lshl_add_u32 v{TMP+1}, v{TMP+4}, 4, v{TMP+1}")
    for i in range(3):
        A(f"s_add_u32 s21, s25, {2*i}")
        A(f"v_add_u32 v{TMP+4}, s21, v3")
        A(f"v_lshrrev_b32 v{TMP+5}, 3, v{TMP+4}"); A(f"v_lshl_add_u32 v{VO+i}, v{TMP+5}, 10, v{TMP+1}")
        A(f"v_and_b32 v{TMP+5}, 3, v{TMP+4}"); A(f"v_lshl_add_u32 v{VO+i}, v{TMP+5}, 8, v{VO+i}")
        A(f"v_bfe_u32 v{TMP+5}, v{TMP+4}, 2, 1"); A(f"v_lshl_add_u32 v{VO+i}, v{TMP+5}, 3, v{VO+i}")
    A(f"v_lshl_add_u32 v{VO+2}, v3, 31, v{VO+2}")
    for r in range(16):
        k0 = 8 * (r >> 2) + (r & 3)
        A(f"s_mov_b32 s{40+2*r}, {(0xFFFFFFFF << k0) & 0xFFFFFFFF:#x}")
        A(f"s_mov_b32 s{41+2*r}, {(0xFFFFFFFF << (k0+4)) & 0xFFFFFFFF:#x}")
    A(f"v_mov_b32 v{TMP+4}, 0xffff"); A(f"v_mov_b32 v{TMP+5}, 0xffff0000")
    for j in range(8):
        A(f"v_cndmask_b32 v{MSK+j}, 0, v{TMP+4}, {s(40+4*j,2)}")
        A(f"v_cndmask_b32 v{TMP+1}, 0, v{TMP+5}, {s(42+4*j,2)}")
        A(f"v_or_b32 v{MSK+j}, v{MSK+j}, v{TMP+1}")
    A.wait_vm_all(); A.wait_lg_all()
    A("s_barrier")
    def kreads(d):
        b = KF + (d % 3) * 6
        A(f"ds_read_b64 {v(b,2)}, v{VK1} offset:{KOFF + d*256}", ("K", d))
        A(f"ds_read_b64 {v(b+2,2)}, v{VK1} offset:{KOFF + 2*PSK + d*256}", ("K", d))
        A(f"ds_read_b64 {v(b+4,2)}, v{VK2} offset:{KOFF + 4*PSK + d*256}", ("K", d))
    kreads(0); kreads(1)
    for d in range(9):
        if d + 2 < 9: kreads(d + 2)
        A.wait_lg(lambda g: g == ("K", d))
        b = KF + (d % 3) * 6
        A(f"v_mfma_f32_32x32x16_bf16 {v(S+16*d,16)}, {v(b,4)}, {v(Q1,4)}, 0")
        A(f"v_mfma_f32_32x32x8_bf16 {v(S+16*d,16)}, {v(b+4,2)}, {v(Q2,2)}, {v(S+16*d,16)}")
    def vreads(d, buf):
        for u in range(2):
            for rd in range(2):
                A(f"ds_read_b64_tr_b16 {v(VF + buf*8 + u*4 + rd*2, 2)}, v{VV} offset:{VOFF + d*256 + u*128 + rd*64}", ("V", d))
    vreads(1, 0)
    A.fence()
    A("s_cmp_lg_u32 s24, 0"); A("s_cbranch_scc1 L_p2_nofix")
    for d in range(8):
        if d > 0:
            A(f"s_cmp_ge_u32 s20, {8-d}"); A("s_cbranch_scc1 L_p2_nofix")
        for r in range(16): A(f"v_mov_b32 v{S+16*d+r}, {f32(-1e30)}")
    A.label("L_p2_nofix")
    for r in range(16):
        A(f"v_cndmask_b32 v{S+r}, v{S+r}, v{S+128+r}, {s(40+2*r,2)}")
    for c in range(4):
        A(f"v_max3_f32 v{MX+c}, v{S+32*c}, v{S+32*c+1}, v{S+32*c+2}")
    for k in range(3, 31, 2):
        for c in range(4):
            A(f"v_max3_f32 v{MX+c}, v{MX+c}, v{S+32*c+k}, v{S+32*c+k+1}")
    for c in range(4):
        A(f"v_max_f32 v{MX+c}, v{MX+c}, v{S+32*c+31}")
    A(f"v_max3_f32 v{MX}, v{MX}, v{MX+1}, v{MX+2}")
    A(f"v_max_f32 v{MX}, v{MX}, v{MX+3}")
    A(f"v_mov_b32 v{MX+1}, v{MX}")
    A(f"v_permlane32_swap_b32 v{MX}, v{MX+1}")
    A(f"v_max_f32 v{MX}, v{MX}, v{MX+1}")
    order = [1, 2, 3, 4, 5, 6, 7, 0]
    first = True
    for n, d in enumerate(order):
        buf = n & 1
        sb = S + 16 * d; pb = PB + buf * 8
        if d != 0:
            nd = order[n + 1]
            vreads(nd, buf ^ 1)
        for r in range(16): A(f"v_sub_f32 v{sb+r}, v{sb+r}, v{MX}")
        for r in range(16): A(f"v_exp_f32 v{sb+r}, v{sb+r}")
        for j in range(8): A(f"v_cvt_pk_bf16_f32 v{pb+j}, v{sb+2*j}, v{sb+2*j+1}")
        if d != 0:
            A.wait_lg(lambda g: g == ("V", d))
            for u in range(2):
                c = "0" if first else v(O, 16); first = False
                A(f"v_mfma_f32_32x32x16_bf16 {v(O,16)}, {v(VF+buf*8+u*4,4)}, {v(pb+u*4,4)}, {c}")
        else:
            vreads(8, buf ^ 1)
            pd = PB + (buf ^ 1) * 8
            for j in range(8): A(f"v_and_b32 v{pd+j}, v{pb+j}, v{MSK+j}")
            for j in range(8): A(f"v_bfi_b32 v{pb+j}, v{MSK+j}, 0, v{pb+j}")
            A.wait_lg(lambda g: g == ("V", 0))
            for u in range(2):
                A(f"v_mfma_f32_32x32x16_bf16 {v(O,16)}, {v(VF+buf*8+u*4,4)}, {v(pb+u*4,4)}, {v(O,16)}")
            A.wait_lg(lambda g: g == ("V", 8))
            for u in range(2):
                A(f"v_mfma_f32_32x32x16_bf16 {v(O,16)}, {v(VF+(buf^1)*8+u*4,4)}, {v(pd+u*4,4)}, {v(O,16)}")
    A(f"v_rcp_f32 v{MX}, v{O+12}")
    for k in range(0, 12, 2):
        A(f"v_pk_mul_f32 {v(O+k,2)}, {v(O+k,2)}, {v(MX,2)} op_sel_hi:[1,0]")
    for i in range(3):
        A(f"v_cvt_pk_bf16_f32 v{TMP+2*i}, v{O+4*i}, v{O+4*i+1}")
        A(f"v_cvt_pk_bf16_f32 v{TMP+2*i+1}, v{O+4*i+2}, v{O+4*i+3}")
        A(f"buffer_store_dwordx2 {v(TMP+2*i,2)}, v{VO+i}, s[12:15], 0 offen")
    A.label("L_p2_end"); A("s_endpgm")
    return A.text(), kernel_desc(name, 248, 0), f"kernel={name} grid=(256,1,1) block=(512,1,1) lds={LDS}"

def gen_p0():
    A = Asm(); name = "p0_kernel"
    A.raw(kernel_header(name))
    A("s_cmp_ge_u32 s2, 212"); A("s_cbranch_scc1 L_p0_end")
    A(f"s_load_dwordx2 s[4:5], s[0:1], {KA_WS}")
    A(f"s_load_dwordx4 s[48:51], s[0:1], {KA_X}")
    A(f"s_load_dwordx4 s[52:55], s[0:1], {KA_WG}")
    lane_ids(A)
    A.wait_lg_all()
    srd(A, 8, 48, 0, XB)
    srd(A, 12, 4, WS_XIN, XB)
    srd(A, 16, 4, WS_STA, ST_B)
    srd(A, 40, 4, WS_CS, CS_B)
    A("s_cmp_ge_u32 s2, 128"); A("s_cbranch_scc1 L_p0_cs")
    A("v_and_b32 v4, 15, v1"); A("v_lshrrev_b32 v5, 4, v1")
    A("s_lshl_b32 s21, s2, 4"); A("v_add_u32 v6, s21, v4")
    A("v_mul_u32_u24 v7, 1280, v6"); A("v_lshl_add_u32 v7, v5, 3, v7")
    A("s_lshl_b32 s21, s20, 6"); A("v_add_u32 v7, s21, v7")
    A("s_mul_i32 s21, s2, 20480"); A("s_lshl_b32 s22, s20, 10"); A("s_add_u32 s21, s21, s22")
    A("v_lshlrev_b32 v8, 4, v1"); A("v_add_u32 v8, s21, v8")
    for j in range(5):
        A(f"buffer_load_dwordx2 {v(16+4*j,2)}, v7, s[8:11], 0 offen offset:{j*256}")
        A(f"buffer_load_dwordx2 {v(18+4*j,2)}, v7, s[8:11], 0 offen offset:{j*256+32}")
    A("v_mov_b32 v10, 0"); A("v_mov_b32 v11, 0"); A("v_mov_b32 v12, 0x3f803f80")
    A.wait_vm_all()
    for j in range(5):
        A(f"s_mov_b32 s21, {j*4096}")
        A(f"buffer_store_dwordx4 {v(16+4*j,4)}, v8, s[12:15], s21 offen")
    for j in range(20):
        A(f"v_dot2_f32_bf16 v10, v{16+j}, v12, v10")
        A(f"v_dot2_f32_bf16 v11, v{16+j}, v{16+j}, v11")
    A("s_nop 3")
    for sw in ("v_permlane16_swap_b32", "v_permlane32_swap_b32"):
        A("v_mov_b32 v14, v10"); A("v_mov_b32 v15, v11")
        A(f"{sw} v10, v14"); A(f"{sw} v11, v15")
        A("v_pk_add_f32 v[10:11], v[10:11], v[14:15]")
    A("v_and_b32 v13, 3, v5")
    A("v_cmp_eq_u32 vcc, 3, v5")
    A("v_cndmask_b32 v13, v13, 0, vcc")
    A("v_cmp_eq_u32 vcc, 0, v13")
    A("v_cndmask_b32 v10, 0, v10, vcc"); A("v_cndmask_b32 v11, 0, v11, vcc")
    A("v_lshlrev_b32 v13, 2, v13"); A("v_add_u32 v13, s20, v13"); A("v_lshlrev_b32 v13, 14, v13")
    A("v_lshl_add_u32 v13, v6, 3, v13")
    A("buffer_store_dwordx2 v[10:11], v13, s[16:19], 0 offen")
    A("s_endpgm")
    A.label("L_p0_cs"); A.vm = []; A.lg = []
    A("s_sub_u32 s22, s2, 128")
    A("s_mov_b32 s8, s50"); A("s_mov_b32 s9, s51"); A(f"s_mov_b32 s10, {D*1920*2}"); A("s_mov_b32 s23, 3840"); A("s_mov_b32 s24, s22")
    A("s_cmp_lt_u32 s22, 30"); A("s_cbranch_scc1 L_p0_go")
    A("s_mov_b32 s8, s52"); A("s_mov_b32 s9, s53"); A(f"s_mov_b32 s10, {D*F*2}"); A(f"s_mov_b32 s23, {F*2}"); A("s_sub_u32 s24, s22, 30")
    A("s_cmp_lt_u32 s22, 57"); A("s_cbranch_scc1 L_p0_go")
    A("s_mov_b32 s8, s54"); A("s_mov_b32 s9, s55"); A("s_sub_u32 s24, s22, 57")
    A.label("L_p0_go")
    A("v_lshrrev_b32 v4, 3, v0"); A("v_mul_lo_u32 v4, v4, s23")
    A("v_and_b32 v5, 7, v0"); A("v_lshl_add_u32 v4, v5, 4, v4")
    A("s_lshl_b32 s21, s24, 7"); A("v_add_u32 v4, s21, v4")
    A("s_lshl_b32 s25, s23, 5"); A("s_mov_b32 s26, 0")
    for j in range(20):
        A(f"buffer_load_dwordx4 {v(16+4*j,4)}, v4, s[8:11], s26 offen", j)
        A("s_add_u32 s26, s26, s25")
    for k in range(8): A(f"v_mov_b32 v{100+k}, 0")
    for j in range(20):
        A.wait_vm(lambda g: g == j)
        for k in range(4):
            A(f"v_lshlrev_b32 v6, 16, v{16+4*j+k}"); A(f"v_and_b32 v7, 0xffff0000, v{16+4*j+k}")
            A(f"v_pk_add_f32 {v(100+2*k,2)}, {v(100+2*k,2)}, v[6:7]")
    A("v_lshlrev_b32 v8, 5, v0")
    A("ds_write_b128 v8, v[100:103]"); A("ds_write_b128 v8, v[104:107] offset:16")
    A.wait_lg_all(); A("s_barrier")
    A("s_cmp_lg_u32 s20, 0"); A("s_cbranch_scc1 L_p0_end")
    A("v_lshlrev_b32 v8, 2, v1")
    for j in range(32):
        A(f"ds_read_b32 v{16+j}, v8 offset:{j*256}")
        if j % 8 == 7: A.wait_lg_all()
    for j in range(1, 32): A(f"v_add_f32 v16, v16, v{16+j}")
    A("s_lshl_b32 s21, s22, 8"); A("v_add_u32 v8, s21, v8")
    A("buffer_store_dword v16, v8, s[40:43], 0 offen")
    A.label("L_p0_end"); A("s_endpgm")
    return A.text(), kernel_desc(name, 108, 0), f"kernel={name} grid=(212,1,1) block=(256,1,1) lds=8192"

def main(out_path):
    ks = {}
    ks["p0"] = gen_p0(); ks["p1"] = gen_p1(); ks["p2"] = gen_p2(); ks["p4"] = gen_p4()
    ks["p3"] = gen_p35("p3_kernel", D, KA_WO, WS_O, XB, WS_XIN, WS_X1, WS_STB, False)
    ks["p5a"] = gen_p35("p5a_kernel", F, KA_WD, WS_H, H_B, WS_X1, WS_XIN, WS_STA, False)
    ks["p5b"] = gen_p35("p5b_kernel", F, KA_WD, WS_H, H_B, WS_X1, WS_XIN, WS_STA, True)
    order = ["p0", "p1", "p2", "p3", "p4", "p5a", "p1", "p2", "p3", "p4", "p5b"]
    hdr = open(os.path.join(os.path.dirname(os.path.abspath(__file__)), "..", "cdna_kernels", NAME + ".s.ref")).read().split("; Override")[0]
    t = hdr
    for k in order: t += f"; @launch {ks[k][2]}\n"
    t += '.amdgcn_target "amdgcn-amd-amdhsa--gfx950"\n.text\n'
    for k in ks: t += ks[k][0]
    t += '.section .rodata,"a"\n'
    for k in ks: t += ".p2align 6\n" + ks[k][1]
    open(out_path, "w").write(t)

if __name__ == "__main__":
    main(sys.argv[1] if len(sys.argv) > 1 else f"cdna_kernels/{NAME}.s")
```

```python
import sys, os, struct
sys.path.insert(0, os.path.dirname(os.path.abspath(__file__)))
from asmdsl import *

NAME = "interleave_layers__sliding_block__glu_gated_geglu__prompt"
S_TOK, D, F = 2048, 640, 1728
XB = S_TOK * D * 2
WS_XIN = 0x0000000
WS_X1 = 0x0300000
WS_O = 0x0600000
WS_H = 0x0900000
H_B = S_TOK * F * 2
WS_QKV = 0x1000000
QKV_B = 480 * 16384
WS_HALO = 0x2800000
WS_STA = 0x2000000
WS_STB = 0x2040000
ST_B = 10 * S_TOK * 8
WS_FL = 0x2080000
FL_B = 0x20000
WS_DBG = 0x4000000
OOB = 0x80000000
LDS_TOTAL = 163840
RSV = LDS_TOTAL - 3072
CS_PART, CS1, CS4, L_MODE = RSV, RSV + 1024, RSV + 1536, RSV + 2048
P3W = RSV - 10 * 8448
SDBG, SWS, SX, SWQKV, SWO, SWG, SWU, SWD, SOUT = 4, 6, 84, 86, 88, 92, 94, 96, 98
SFL = 72
SPIN_MAX = 1 << 20
def env(n, d): return int(os.environ.get(n, str(d)))
def f32(x): return "0x%08x" % struct.unpack("<I", struct.pack("<f", x))[0]
STAMP = env("STAMP", 0)
FORCE_SLOW = env("FORCE_SLOW", 0)
STF = " sc1" if env("ST_SC1", 1) else ""
PRET = env("PRET", 0)

def stamp(A, i):
    if STAMP:
        A("s_memtime s[100:101]"); A.wait_lg_all()
        A("s_sub_u32 s100, s100, s90")
        A(f"v_writelane_b32 v255, s100, {i}")

def srd(A, d, base, off, size, soff=None):
    A(f"s_add_u32 s{d}, s{base}, {off:#x}")
    A(f"s_addc_u32 s{d+1}, s{base+1}, 0")
    if soff is not None:
        A(f"s_add_u32 s{d}, s{d}, s{soff}")
        A(f"s_addc_u32 s{d+1}, s{d+1}, 0")
    A(f"s_mov_b32 s{d+2}, {size:#x}")
    A(f"s_mov_b32 s{d+3}, 0x20000")

def join(A, label):
    A.fence(); A.label(label)

def spin(A, body, name, sleep=1):
    lp = A.newlabel(name); out = A.newlabel(name + "x")
    A("s_mov_b32 s35, 0")
    A.fence(); A.label(lp)
    body()
    A("s_add_u32 s35, s35, 1")
    A(f"s_cmp_gt_u32 s35, {SPIN_MAX}"); A(f"s_cbranch_scc1 {out}")
    A(f"s_cbranch_vccz {out}")
    if sleep: A(f"s_sleep {sleep}")
    A(f"s_branch {lp}")
    A.fence(); A.label(out)

def acquire_if_slow(A):
    l = A.newlabel("acq")
    A("s_cmp_lg_u32 s17, 0"); A(f"s_cbranch_scc1 {l}")
    A("buffer_inv sc1"); A("s_waitcnt vmcnt(0)")
    A.label(l)

def signal_local(A, k, t0, nowait=False):
    if not nowait: A.wait_vm_all()
    A("s_lshl_b32 s21, s16, 3"); A(f"s_add_u32 s21, s21, {k}"); A("s_lshl_b32 s21, s21, 3"); A("s_add_u32 s21, s21, s18")
    A("s_lshl_b32 s21, s21, 5"); A("s_add_u32 s21, s21, s19"); A("s_lshl_b32 s21, s21, 3"); A("s_add_u32 s21, s21, s20")
    A(f"v_mov_b32 v{t0}, s21"); A(f"v_mov_b32 v{t0+1}, 1")
    slow = A.newlabel("sigslow"); done = A.newlabel("sigdone")
    A("s_mov_b64 exec, 1")
    A("s_cmp_eq_u32 s17, 0"); A(f"s_cbranch_scc1 {slow}")
    A(f"buffer_store_byte v{t0+1}, v{t0}, {s(SFL,4)}, 0 offen")
    A(f"s_branch {done}")
    A.label(slow)
    A("buffer_wbl2 sc1"); A("s_waitcnt vmcnt(0)")
    A(f"buffer_store_byte v{t0+1}, v{t0}, {s(SFL,4)}, 0 offen sc1")
    A.label(done)
    A("s_mov_b64 exec, -1")
    A.vm = [None]

def wait_local(A, k, nwg, wavemask, t0, layer_delta=0, sleep=1):
    lo = sum(1 << (8 * i) for i in range(4) if wavemask >> i & 1)
    hi = sum(1 << (8 * i) for i in range(4) if wavemask >> (4 + i) & 1)
    A(f"v_and_b32 v{t0}, 1, v1"); A(f"v_cmp_eq_u32 vcc, 1, v{t0}")
    A(f"v_mov_b32 v{t0}, {lo:#x}"); A(f"v_mov_b32 v{t0+1}, {hi:#x}")
    A(f"v_cndmask_b32 v{t0}, v{t0}, v{t0+1}, vcc")
    A(f"v_cmp_gt_u32 vcc, {2*nwg}, v1")
    A(f"v_cndmask_b32 v{t0}, 0, v{t0}, vcc")
    A(f"v_lshlrev_b32 v{t0+1}, 2, v1")
    A(f"s_add_u32 s21, s16, {layer_delta & 0xffffffff:#x}")
    A("s_lshl_b32 s21, s21, 3"); A(f"s_add_u32 s21, s21, {k}"); A("s_lshl_b32 s21, s21, 3"); A("s_add_u32 s21, s21, s18"); A("s_lshl_b32 s21, s21, 8")
    def body():
        A(f"buffer_load_dword v{t0+2}, v{t0+1}, {s(SFL,4)}, s21 offen sc1")
        A.wait_vm_all()
        A(f"v_and_b32 v{t0+2}, v{t0+2}, v{t0}")
        A(f"v_cmp_ne_u32 vcc, v{t0+2}, v{t0}")
    spin(A, body, "wl", sleep)
    acquire_if_slow(A)

def census_wait(A, t0, sleep=8):
    srd(A, 76, SDBG, 0, 256)
    A("s_sub_u32 s21, s18, 1"); A("s_max_i32 s21, s21, 0")
    A(f"v_mov_b32 v{t0}, s18"); A(f"v_mov_b32 v{t0+1}, s21")
    A("v_cmp_eq_u32 vcc, 0, v1")
    A(f"v_cndmask_b32 v{t0}, v{t0+1}, v{t0}, vcc")
    A(f"v_lshlrev_b32 v{t0}, 5, v{t0}")
    def body():
        A(f"buffer_load_dwordx2 {v(t0+2,2)}, v{t0}, s[76:79], 0 offen sc1")
        A.wait_vm_all()
        A(f"v_sad_u8 v{t0+1}, v{t0+2}, 0, 0")
        A(f"v_sad_u8 v{t0+1}, v{t0+3}, 0, v{t0+1}")
        A(f"v_cmp_ne_u32 vcc, 32, v{t0+1}")
    spin(A, body, "cen", sleep)
    A(f"v_readfirstlane_b32 s22, v{t0+2}"); A(f"v_readfirstlane_b32 s23, v{t0+3}")
    A("s_bcnt1_i32_b64 s21, s[22:23]")
    A("s_cmp_eq_u32 s21, 1"); A(f"s_cselect_b32 s17, {0 if FORCE_SLOW else 1}, 0")
    A(f"v_mov_b32 v{t0}, {L_MODE}"); A(f"v_mov_b32 v{t0+1}, s17")
    A(f"ds_write_b32 v{t0}, v{t0+1}")

def read_mode(A, t0):
    A(f"v_mov_b32 v{t0}, {L_MODE}")
    A(f"ds_read_b32 v{t0}, v{t0}", "mode")
    A.wait_lg(lambda g: g == "mode")
    A(f"v_readfirstlane_b32 s17, v{t0}")

def flags_zero(A, t0):
    A(f"v_mov_b32 v{t0}, 0"); A(f"v_mov_b32 v{t0+1}, 0")
    A("s_lshl_b32 s21, s18, 8"); A("s_lshl_b32 s22, s19, 3"); A("s_add_u32 s21, s21, s22")
    A(f"v_lshlrev_b32 v{t0+2}, 11, v1"); A(f"v_add_u32 v{t0+2}, s21, v{t0+2}")
    A("s_lshl_b32 s21, s18, 5"); A("s_add_u32 s21, s21, s19"); A("s_lshl_b32 s21, s21, 7"); A(f"s_add_u32 s21, s21, {(0x10000 - 16*32768) & 0xffffffff:#x}")
    A(f"v_lshlrev_b32 v{t0+3}, 15, v1"); A(f"v_add_u32 v{t0+3}, s21, v{t0+3}")
    A("v_cmp_gt_u32 vcc, 16, v1"); A(f"v_cndmask_b32 v{t0+2}, v{t0+3}, v{t0+2}, vcc")
    A("s_lshl_b32 s21, s16, 3"); A("s_add_u32 s21, s21, s20")
    A("s_cmp_eq_u32 s21, 4"); A("s_cselect_b32 s22, 0x3ffff, 0"); A("s_mov_b32 s23, 0")
    A(f"v_mov_b32 v{t0+3}, {OOB:#x}")
    A(f"v_cndmask_b32 v{t0+2}, v{t0+3}, v{t0+2}, s[22:23]")
    A(f"buffer_store_dwordx2 {v(t0,2)}, v{t0+2}, {s(SFL,4)}, 0 offen sc1", "fz")

def census_post(A, t0):
    srd(A, 76, SDBG, 0, 256)
    A("s_getreg_b32 s21, hwreg(HW_REG_XCC_ID)"); A("s_and_b32 s21, s21, 7"); A("s_lshl_b32 s21, s21, 3")
    A("s_mov_b64 s[22:23], 1"); A("s_lshl_b64 s[22:23], s[22:23], s21")
    A(f"v_mov_b32 v{t0}, s22"); A(f"v_mov_b32 v{t0+1}, s23")
    A("s_lshl_b32 s21, s16, 3"); A("s_add_u32 s21, s21, s20"); A("s_lshl_b32 s22, s18, 5")
    A("s_cmp_eq_u32 s21, 4"); A(f"s_cselect_b32 s21, s22, {OOB:#x}")
    A(f"v_mov_b32 v{t0+2}, s21")
    A("s_mov_b64 exec, 1")
    A(f"buffer_atomic_add_x2 {v(t0,2)}, v{t0+2}, s[76:79], 0 offen sc1")
    A("s_mov_b64 exec, -1")

def stats_items(A, vtok_off, srd_st, tmp, sbase=None):
    def mk(i):
        def f():
            A(f"s_mov_b32 s21, {i*2048}" if sbase is None else f"s_add_u32 s21, s{sbase}, {i*2048}")
            A(f"buffer_load_dwordx2 {v(tmp+2*i,2)}, v{vtok_off}, {s(srd_st,4)}, s21 offen sc1", ("S",))
        return f
    return [mk(i) for i in range(5)]

def finish_stats(A, tmp, negmean, rstd, t2):
    A(f"v_pk_add_f32 {v(tmp,2)}, {v(tmp,2)}, {v(tmp+2,2)}")
    A(f"v_pk_add_f32 {v(tmp+4,2)}, {v(tmp+4,2)}, {v(tmp+6,2)}")
    A(f"v_pk_add_f32 {v(tmp,2)}, {v(tmp,2)}, {v(tmp+8,2)}")
    A(f"v_pk_add_f32 {v(tmp,2)}, {v(tmp,2)}, {v(tmp+4,2)}")
    A(f"v_mov_b32 v{t2}, v{tmp}")
    A(f"v_mov_b32 v{t2+1}, v{tmp+1}")
    A(f"v_permlane32_swap_b32 v{tmp}, v{t2}")
    A(f"v_permlane32_swap_b32 v{tmp+1}, v{t2+1}")
    A(f"v_pk_add_f32 {v(tmp,2)}, {v(tmp,2)}, {v(t2,2)}")
    A(f"v_mul_f32 v{negmean}, {f32(-1.0/D)}, v{tmp}")
    A(f"v_mul_f32 v{tmp+1}, {f32(1.0/D)}, v{tmp+1}")
    A(f"v_fma_f32 v{tmp+1}, -v{negmean}, v{negmean}, v{tmp+1}")
    A(f"v_max_f32 v{tmp+1}, 0, v{tmp+1}")
    A(f"v_add_f32 v{tmp+1}, {f32(1e-5)}, v{tmp+1}")
    A(f"v_rsq_f32 v{rstd}, v{tmp+1}")

class Gemm:
    def __init__(self, A, NB, nstage, XS, WSL, slot_bytes, RB, nb_stride, acc, wf, xa,
                 vx, vwd, wd_srds, wd_lds, vtr, srd_x, w_row_stride, PRE, LA, npre=0):
        self.__dict__.update(locals())
        self.nbar = npre; self.issued = set()

    def load_list(self, do_x, do_w, wlead=0):
        L = []
        n = len(self.vwd)
        for t in range(self.nstage + wlead):
            tw = t
            if do_w and self.npre <= tw < self.nstage:
                for j in range(n): L.append(("W", tw, j, j == n - 1))
            tx = t - wlead
            if do_x and 0 <= tx:
                for st in range(4): L.append(("X", tx, st, st == 3))
        return L

    def issue(self, item):
        A = self.A
        if callable(item): return item()
        kind, t, j, last = item
        self.issued.add((kind, t, j))
        if kind == "X":
            st = j
            assert t - self.XS < self.cur_stage or (t - self.XS == self.cur_stage and st < self.cur_step), (t, self.cur_stage)
            r = self.xa + ((t % self.XS) * 4 + st) * 4
            if self.xdyn:
                A(f"buffer_load_dwordx4 {v(r,4)}, v{self.vx + st}, {s(self.srd_x,4)}, s30 offen", ("X", t, st))
            else:
                A(f"buffer_load_dwordx4 {v(r,4)}, v{self.vx}, {s(self.srd_x,4)}, s30 offen offset:{st*512} sc1", ("X", t, st))
            if last and t < self.nstage - 1:
                A("s_add_u32 s30, s30, s33" if self.xdyn else "s_add_u32 s30, s30, 2048")
                A("s_cmp_ge_u32 s30, s34" if self.xdyn else f"s_cmp_ge_u32 s30, {self.nstage * 2048}")
                A("s_cselect_b32 s30, 0, s30")
        else:
            assert t < self.WSL or self.realbar >= t - self.WSL + 2, (t, self.realbar)
            A(f"s_add_u32 m0, s32, {(t % self.WSL) * self.slot_bytes + self.wd_lds[j]}")
            A(f"buffer_load_dwordx4 v{self.vwd[j]}, {s(self.wd_srds[j],4)}, s31 offen lds", ("W", t))
            if last and t < self.nstage - 1: self.adv_w()

    def adv_w(self):
        A = self.A
        A(f"s_add_u32 s31, s31, {64 * self.w_row_stride}")
        A(f"s_cmp_ge_u32 s31, {self.nstage * 64 * self.w_row_stride}")
        A("s_cselect_b32 s31, 0, s31")

    def tr_reads(self, t, st, buf):
        out = []
        kb, f = st >> 1, st & 1
        slot = t % self.WSL
        per = 65536 // self.slot_bytes
        va = self.vtr[slot // per]
        base = (slot % per) * self.slot_bytes
        for nb in range(self.NB):
            for rd in range(2):
                off = base + (8 * kb + 4 * rd + 2 * f) * self.RB + nb * self.nb_stride
                r = self.wf + (buf * self.NB + nb) * 4 + rd * 2
                out.append((f"ds_read_b64_tr_b16 {v(r,2)}, v{va} offset:{off}", ("F", t, st, nb)))
        return out

    realbar = -1
    xdyn = False
    def barrier(self, t):
        if t < self.npre: return
        assert not self.do_w or ("W", t, len(self.vwd) - 1) in self.issued
        self.A.wait_vm(lambda g: g == ("W", t))
        self.A("s_barrier")
        self.realbar = t

    def run_idle(self):
        for t in range(self.npre, self.nstage): self.A("s_barrier")

    def prefetch(self, n):
        self.do_w = True; self.cur_stage, self.cur_step = -1, 0
        for it in self.load_list(False, True):
            if it[1] < n: self.issue(it)

    def run_loader(self, after_bar=None):
        L = self.load_list(False, True); self.do_w = True
        self.cur_stage, self.cur_step = -1, 0
        k = 0
        for t in range(self.nstage):
            lim = max(self.LA, min(t + self.WSL - 2, t + self.LA))
            while k < len(L) and L[k][1] < lim and (L[k][1] < self.WSL or self.realbar >= L[k][1] - self.WSL + 2):
                self.issue(L[k]); k += 1
            self.barrier(t)
            if after_bar: after_bar(t)
        assert k == len(L)

    def run(self, zero_init=True, do_w=True, extra=(), extra_at=3, side=None, wlead=0, sb=0, stage_end=None):
        A = self.A
        L = self.load_list(True, do_w, wlead); self.do_w = do_w
        pos = next(i for i, it in enumerate(L) if it[0] == "X" and it[1] == extra_at)
        L[pos:pos] = list(extra)
        self.cur_stage, self.cur_step = -1, 0
        k = min(self.PRE, len(L))
        for it in L[:k]: self.issue(it)
        self.barrier(0)
        stamp(A, sb + 1)
        for ins, tag in self.tr_reads(0, 0, 0): A(ins, tag)
        gstep = 0
        nm = self.NB
        per_stage = 4 + (len(self.vwd) if do_w else 0)
        rate = per_stage / (4.0 * nm)
        credit = 0.0
        for t in range(self.nstage):
            fill = list(side(t)) if side else []
            fper = -(-len(fill) // (4 * nm - 1)) if fill else 0
            for st in range(4):
                self.cur_stage, self.cur_step = t, st
                buf = gstep & 1
                last = (t == self.nstage - 1 and st == 3)
                if st == 3 and not last: self.barrier(t + 1)
                nreads = [] if last else (self.tr_reads(t, st + 1, buf ^ 1) if st < 3 else self.tr_reads(t + 1, 0, buf ^ 1))
                assert ("X", t, st) in self.issued
                A.wait_vm(lambda g: g == ("X", t, st))
                for nb in range(self.NB):
                    A.wait_lg(lambda g: g == ("F", t, st, nb))
                    ac = self.acc + nb * 16
                    xr = self.xa + ((t % self.XS) * 4 + st) * 4
                    wr = self.wf + (buf * self.NB + nb) * 4
                    c = "0" if (zero_init and gstep == 0) else v(ac, 16)
                    A(f"v_mfma_f32_32x32x16_bf16 {v(ac,16)}, {v(wr,4)}, {v(xr,4)}, {c}")
                    for ins, tag in nreads[2 * nb:2 * nb + 2]: A(ins, tag)
                    for _ in range(fper):
                        if fill: fill.pop(0)()
                    credit += rate
                    while credit >= 1.0 - 1e-9 and k < len(L):
                        it = L[k]
                        if not callable(it):
                            if it[0] == "X" and not (it[1] - self.XS < t or (not stage_end and it[1] - self.XS == t and it[2] < st)): break
                            if it[0] == "W" and not (it[1] < self.WSL or self.realbar >= it[1] - self.WSL + 2): break
                            credit -= 1.0
                        else: credit -= 0.25
                        self.issue(it); k += 1
                gstep += 1
            if stage_end: stage_end(t)
            assert not fill
        assert k == len(L), (k, len(L))
        stamp(A, sb + 2)

def rot_init(A, nstage, w_row_stride, wskip=0):
    A(f"s_mul_i32 s21, s18, {nstage}")
    A("s_lshr_b32 s21, s21, 3")
    A("s_lshl_b32 s30, s21, 11")
    if wskip:
        A(f"s_add_u32 s21, s21, {wskip}"); A(f"s_cmp_ge_u32 s21, {nstage}"); A(f"s_cselect_b32 s22, {nstage}, 0"); A("s_sub_u32 s21, s21, s22")
    A(f"s_mul_i32 s31, s21, {64 * w_row_stride}")

def tr_lane_addr(A, dst, PS, RB, cg_stride, t0, base=0):
    A(f"v_bfe_u32 v{t0}, v1, 2, 2")
    A(f"v_mul_u32_u24 v{dst}, {PS}, v{t0}")
    A(f"v_mul_u32_u24 v{t0}, {RB}, v3")
    A(f"v_add_u32 v{dst}, v{dst}, v{t0}")
    A(f"v_bfe_u32 v{t0}, v1, 4, 1")
    A(f"v_mul_u32_u24 v{t0}, {cg_stride}, v{t0}")
    A(f"v_add_u32 v{dst}, v{dst}, v{t0}")
    A(f"v_and_b32 v{t0}, 3, v1")
    A(f"v_lshl_add_u32 v{dst}, v{t0}, 3, v{dst}")
    if base: A(f"v_add_u32 v{dst}, {base}, v{dst}")

def cl_lane_off(A, dst, stok, tb_stride, t0):
    A(f"v_lshrrev_b32 v{t0}, 4, v2")
    A(f"s_lshr_b32 s21, s{stok}, 4")
    A(f"v_add_u32 v{t0}, s21, v{t0}")
    A(f"s_mov_b32 s21, {tb_stride}")
    A(f"v_mul_lo_u32 v{dst}, v{t0}, s21")
    A(f"v_lshl_add_u32 v{dst}, v3, 8, v{dst}")
    A(f"v_and_b32 v{t0}, 15, v2")
    A(f"v_lshl_add_u32 v{dst}, v{t0}, 4, v{dst}")

def wdma_off(A, dst, n, lanes_per_row, row_stride, scol, splane, t0):
    sh = {8: 3, 16: 4}[lanes_per_row]; R = 64 // lanes_per_row
    A(f"v_lshrrev_b32 v{t0}, {sh}, v1")
    A(f"v_lshlrev_b32 v{t0}, 2, v{t0}")
    A(f"v_add_u32 v{t0}, s{splane}, v{t0}")
    A(f"v_mul_u32_u24 v{t0}, {row_stride}, v{t0}")
    A(f"v_and_b32 v{t0+1}, {lanes_per_row-1}, v1")
    A(f"v_lshl_add_u32 v{t0}, v{t0+1}, 4, v{t0}")
    A(f"v_add_u32 v{dst}, s{scol}, v{t0}")
    for j in range(1, n): A(f"v_add_u32 v{dst+j}, {4*R*j*row_stride}, v{dst}")

def stats_off(A, dst, stok_local, t0):
    A(f"v_add_u32 v{t0}, s{stok_local}, v2")
    A(f"v_lshlrev_b32 v{dst}, 3, v{t0}")
    A(f"v_mul_u32_u24 v{t0}, 10240, v3")
    A(f"v_add_u32 v{dst}, v{dst}, v{t0}")
    A("s_mul_i32 s21, s18, 20480")
    A(f"v_add_u32 v{dst}, s21, v{dst}")

def l0_only(A, fn, name):
    l = A.newlabel(name)
    A("s_cmp_lg_u32 s16, 0"); A(f"s_cbranch_scc1 {l}")
    h = list(A.hist)
    fn()
    A.fence(); A.label(l)
    A.hist = h

def reset(A): A.vm = []; A.lg = []

def phase1(A):
    A("s_cmp_lt_u32 s19, 30"); A("s_cbranch_scc1 L_p1_go")
    def idle():
        flags_zero(A, 4); A.wait_vm_all(); census_post(A, 4)
        l = A.newlabel("cw")
        A("s_cmp_lg_u32 s20, 4"); A(f"s_cbranch_scc1 {l}")
        census_wait(A, 4, 64); A.wait_lg_all()
        join(A, l)
        A("s_barrier")
        read_mode(A, 4)
    l0_only(A, idle, "p1idle")
    A("s_branch L_p1_done")
    A.label("L_p1_go"); reset(A)
    A("s_and_b32 s26, s20, 3")
    A("s_and_b32 s24, s19, 1"); A("s_lshl_b32 s24, s24, 7")
    A("s_lshl_b32 s25, s26, 5"); A("s_add_u32 s24, s24, s25")
    A("s_lshl_b32 s27, s18, 8"); A("s_add_u32 s27, s27, s24")
    A("s_lshr_b32 s28, s19, 1")
    PS, RB, SLOT = 4160, 256, 16640
    WSL, XS = env("WSL1", 9), 6
    VX, VWD, VTR, VST, VCS, VOUT, NM, RS = 4, 4, 9, 12, 13, 14, 16, 18
    TMP = 20; WF = 32; ACC = 64; CS = 128; XA = 144; SA = 240; ONE = 244
    rot_init(A, 10, 3840)
    def mk():
        g = Gemm(A, 4, 10, XS, WSL, SLOT, RB, 64, ACC, WF, XA, VX, [VWD + j for j in range(4)], [12] * 4,
                 [1024 * j for j in range(4)], [VTR, VTR + 1, VTR + 2], 8, 3840, env("PRE1", 8), env("LA1", 3))
        g.xdyn = True
        return g
    tr_lane_addr(A, VTR, PS, RB, 32, TMP)
    A(f"v_mov_b32 v{ONE}, 0x3f803f80")
    for k in range(4): A(f"v_mov_b32 v{SA+k}, 0")
    A("s_cmp_lt_u32 s20, 4"); A("s_cbranch_scc1 L_p1_comp")
    srd(A, 12, SWQKV, 0, D * 1920 * 2)
    A("s_cmp_eq_u32 s16, 0"); A("s_cselect_b32 s22, 3, 2"); A("s_cselect_b32 s23, 4, 16")
    A(f"v_lshrrev_b32 v{TMP}, 4, v1"); A(f"v_lshlrev_b32 v{TMP}, s22, v{TMP}"); A(f"v_add_u32 v{TMP}, s26, v{TMP}")
    A(f"v_mul_u32_u24 v{TMP}, 3840, v{TMP}")
    A(f"v_and_b32 v{TMP+1}, 15, v1"); A(f"v_lshl_add_u32 v{TMP}, v{TMP+1}, 4, v{TMP}")
    A("s_lshl_b32 s25, s28, 8"); A(f"v_add_u32 v{VWD}, s25, v{TMP}")
    A(f"s_mul_i32 s22, s23, 3840")
    A(f"v_add_u32 v{VWD+1}, s22, v{VWD}"); A(f"v_add_u32 v{VWD+2}, {32*3840}, v{VWD}"); A(f"v_add_u32 v{VWD+3}, {32*3840}, v{VWD+1}")
    A(f"s_mul_i32 s32, s26, {PS}")
    flags_zero(A, TMP)
    A("s_lshl_b32 s21, s26, 6"); A(f"v_add_u32 v{VTR}, s21, v{VTR}")
    A(f"v_add_u32 v{VTR+1}, {3*SLOT}, v{VTR}"); A(f"v_add_u32 v{VTR+2}, {6*SLOT}, v{VTR}")
    srd(A, 80, SWS, WS_QKV, QKV_B)
    def after(t):
        if t == 0: census_post(A, TMP)
        if PRET and t == env("PT1AT", 5):
            A("s_mul_i32 s24, s18, 480"); A("s_lshl_b32 s25, s28, 5"); A("s_add_u32 s24, s24, s25"); A("s_lshl_b32 s25, s26, 3"); A("s_add_u32 s24, s24, s25")
            A("s_lshl_b32 s24, s24, 11"); A("s_and_b32 s25, s19, 1"); A("s_lshl_b32 s25, s25, 10"); A("s_add_u32 s24, s24, s25")
            A(f"v_lshlrev_b32 v{TMP+4}, 4, v1")
            for q in range(8):
                A(f"buffer_load_dwordx4 {v(ACC, 4)}, v{TMP+4}, s[80:83], s24 offen sc1")
                A("s_add_u32 s24, s24, 2048")
        slot = t % WSL
        def cs():
            for q in range(8):
                A(f"ds_read_b64_tr_b16 {v(WF + 2*q, 2)}, v{VTR + slot // 3} offset:{(slot % 3) * SLOT + 2 * q * RB}")
            A.wait_lg_all()
            for q in range(16): A(f"v_dot2_f32_bf16 v{SA + (q & 3)}, v{WF+q}, v{ONE}, v{SA + (q & 3)}")
        l0_only(A, cs, "p1cs")
    mk().run_loader(after_bar=after)
    def fin():
        A("s_nop 3")
        A(f"v_add_f32 v{SA}, v{SA}, v{SA+1}"); A(f"v_add_f32 v{SA+2}, v{SA+2}, v{SA+3}"); A(f"v_add_f32 v{SA}, v{SA}, v{SA+2}")
        A(f"v_mov_b32 v{SA+1}, v{SA}"); A(f"v_permlane32_swap_b32 v{SA}, v{SA+1}"); A(f"v_add_f32 v{SA}, v{SA}, v{SA+1}")
        A("s_lshl_b32 s21, s26, 7"); A(f"s_add_u32 s21, s21, {CS1}")
        A(f"v_lshlrev_b32 v{TMP}, 2, v2"); A(f"v_add_u32 v{TMP}, s21, v{TMP}")
        A(f"ds_write_b32 v{TMP}, v{SA}")
        l = A.newlabel("cw")
        A("s_cmp_lg_u32 s20, 4"); A(f"s_cbranch_scc1 {l}")
        census_wait(A, TMP, 8)
        join(A, l)
        A.wait_lg_all()
    l0_only(A, fin, "p1fin")
    A("s_barrier")
    read_mode(A, TMP)
    A("s_branch L_p1_done")
    A.label("L_p1_comp"); reset(A)
    A(f"v_add_u32 v{VTR+1}, {3*SLOT}, v{VTR}")
    A(f"v_add_u32 v{VTR+2}, {6*SLOT}, v{VTR}")
    stats_off(A, VST, 24, TMP)
    A(f"v_add_u32 v{TMP}, s24, v2"); A(f"v_lshlrev_b32 v{VOUT}, 3, v{TMP}"); A(f"v_lshl_add_u32 v{VOUT}, v3, 11, v{VOUT}")
    A(f"v_lshlrev_b32 v{VCS}, 4, v3"); A(f"v_add_u32 v{VCS}, {CS1}, v{VCS}")
    srd(A, 36, SWS, WS_STA, ST_B)
    srd(A, 80, SWS, WS_QKV, QKV_B)
    A("s_lshl_b32 s21, s16, 23")
    srd(A, 76, SWS, WS_HALO, QKV_B, soff=21)
    A("s_cmp_eq_u32 s16, 0"); A("s_cbranch_scc1 L_p1_l0")
    cl_lane_off(A, VX, 27, 20480, TMP)
    for st in range(1, 4): A(f"v_add_u32 v{VX+st}, {st*512}, v{VX}")
    srd(A, 8, SWS, WS_XIN, XB)
    A("s_mov_b32 s33, 2048"); A("s_mov_b32 s34, 20480"); A("s_mov_b32 s29, 0")
    wait_local(A, 3, 30, 0x07, TMP, layer_delta=-1)
    A("s_branch L_p1_run")
    A.label("L_p1_l0")
    A(f"v_add_u32 v{TMP}, s27, v2"); A(f"v_mul_u32_u24 v{VX}, 1280, v{TMP}"); A(f"v_lshl_add_u32 v{VX}, v3, 4, v{VX}")
    for st in range(1, 4): A(f"v_add_u32 v{VX+st}, {st*32}, v{VX}")
    srd(A, 8, SX, 0, XB)
    A("s_lshr_b32 s30, s30, 4"); A("s_mov_b32 s33, 128"); A("s_mov_b32 s34, 1280"); A(f"s_mov_b32 s29, {OOB:#x}")
    join(A, "L_p1_run"); reset(A)
    stamp(A, 1)
    def xstats(t):
        def f():
            for q in range(16):
                r = XA + (t % XS) * 16 + q
                A(f"v_dot2_f32_bf16 v{SA + 2*(q & 1)}, v{r}, v{ONE}, v{SA + 2*(q & 1)}")
                A(f"v_dot2_f32_bf16 v{SA + 2*(q & 1) + 1}, v{r}, v{r}, v{SA + 2*(q & 1) + 1}")
        l0_only(A, f, "xst")
    g = mk(); g.XS_hold = True
    g.run(do_w=False, extra=stats_items(A, VST, 36, TMP, 29), sb=1, stage_end=xstats)
    A("s_nop 3")
    A(f"v_pk_add_f32 {v(SA,2)}, {v(SA,2)}, {v(SA+2,2)}")
    A(f"v_pk_add_f32 {v(TMP,2)}, {v(TMP,2)}, {v(SA,2)}")
    finish_stats(A, TMP, NM, RS, TMP + 10)
    A("s_cmp_lt_u32 s28, 5")
    A(f"s_cselect_b32 s21, {f32(20 ** -0.5 * 1.4426950408889634)}, 1.0")
    A(f"s_cselect_b32 s29, {OOB:#x}, 0")
    A(f"v_mul_f32 v{RS}, s21, v{RS}")
    A("s_cmp_eq_u32 s18, 7"); A(f"s_cselect_b32 s29, {OOB:#x}, s29")
    A(f"v_add_u32 v{VST}, s29, v{VOUT}")
    A("s_barrier")
    csr = lambda nb: (WF + (nb & 1) * 16) if nb != 0 else CS
    def csread(nb):
        for i in range(4): A(f"ds_read_b128 {v(csr(nb) + i*4, 4)}, v{VCS} offset:{nb*128 + i*32}", ("C", nb, i))
    csread(0); csread(1); csread(2)
    A("s_mul_i32 s24, s18, 480"); A("s_lshl_b32 s25, s28, 5"); A("s_add_u32 s24, s24, s25"); A("s_lshl_b32 s24, s24, 11")
    for nb in range(4):
        if nb == 2: csread(3)
        for i in range(4):
            r = ACC + nb * 16 + i * 4; c = csr(nb) + i * 4
            A.wait_lg(lambda g: g == ("C", nb, i))
            for k in (0, 2):
                A(f"v_pk_fma_f32 {v(r+k,2)}, {v(c+k,2)}, {v(NM,2)}, {v(r+k,2)} op_sel_hi:[1,0,1]")
            for k in (0, 2):
                A(f"v_pk_mul_f32 {v(r+k,2)}, {v(r+k,2)}, {v(RS,2)} op_sel_hi:[1,0]")
            A(f"v_cvt_pk_bf16_f32 v{r}, v{r}, v{r+1}")
            A(f"v_cvt_pk_bf16_f32 v{r+1}, v{r+2}, v{r+3}")
            A(f"s_add_u32 s21, s24, {(8*nb + 2*i) * 2048}")
            A(f"buffer_store_dwordx2 {v(r,2)}, v{VST}, s[76:79], s21 offen sc1")
            A(f"buffer_store_dwordx2 {v(r,2)}, v{VOUT}, s[80:83], s21 offen")
    read_mode(A, TMP)
    stamp(A, 4)
    A.wait_vm_all()
    A("s_lshl_b32 s21, s16, 3"); A("s_add_u32 s21, s21, s18"); A("s_lshl_b32 s21, s21, 5"); A("s_add_u32 s21, s21, s19")
    A("s_lshl_b32 s21, s21, 7"); A("s_add_u32 s21, s21, s20"); A("s_add_u32 s21, s21, 0x10000")
    A(f"v_mov_b32 v{TMP}, s21"); A(f"v_mov_b32 v{TMP+1}, 1")
    A("s_mov_b64 exec, 1")
    A(f"buffer_store_byte v{TMP+1}, v{TMP}, {s(SFL,4)}, 0 offen sc1")
    A("s_mov_b64 exec, -1")
    signal_local(A, 4, TMP + 2, nowait=True)
    stamp(A, 5)
    join(A, "L_p1_done"); reset(A)

P35 = dict(PS=2112, RB=128, SLOT=8448)
def p35_ids(A):
    A("s_mul_i32 s28, s19, 171"); A("s_lshr_b32 s28, s28, 9")
    A("s_mul_i32 s25, s28, 3"); A("s_sub_u32 s24, s19, s25")
    A("s_mul_i32 s24, s24, 80")
    A("s_and_b32 s26, s20, 3")
    A("s_lshl_b32 s25, s26, 5"); A("s_add_u32 s24, s24, s25")
    A("s_lshl_b32 s27, s18, 8"); A("s_add_u32 s27, s27, s24")

def p35_gemm(A, nstage, WSL, PRE, LA, npre):
    return Gemm(A, 2, nstage, 9, WSL, 8448, 128, 64, 48, 32, 96, 4, [6, 7], [12] * 2,
                [0, 1024], [8, 9, 13], 8, D * 2, PRE, LA, npre)

def p35_loader_setup(A, sw, K, base):
    A("s_lshl_b32 s25, s28, 7")
    wdma_off(A, 6, 2, 8, D * 2, 25, 26, 16)
    A(f"s_mul_i32 s32, s26, 2112")
    if base: A(f"s_add_u32 s32, s32, {base}")
    srd(A, 12, sw, 0, K * D * 2)

def p35_compute(A, nstage, WSL, npre, base, ws_x, x_bytes, ws_res, ws_out, ws_st, waitf, sigk, can_final, sb, PRE):
    VX, VTR, VRES, VST, VOUT = 4, 8, 10, 11, 12
    TMP = 16; ACC = 48; RES = 80
    cl_lane_off(A, VX, 27, nstage * 2048, TMP)
    tr_lane_addr(A, VTR, 2112, 128, 32, TMP, base)
    A(f"v_add_u32 v{VTR+1}, {7*8448}, v{VTR}"); A(f"v_add_u32 v13, {14*8448}, v{VTR}")
    cl_lane_off(A, VRES, 27, 20480, TMP)
    A("s_lshl_b32 s21, s28, 11")
    A(f"v_add_u32 v{VRES}, s21, v{VRES}")
    if True:
        A(f"v_add_u32 v{TMP}, s27, v2")
        A(f"v_mul_u32_u24 v{VOUT}, {D*2}, v{TMP}")
        A("s_lshl_b32 s21, s28, 7")
        A(f"v_add_u32 v{VOUT}, s21, v{VOUT}")
        A(f"v_lshl_add_u32 v{VOUT}, v3, 3, v{VOUT}")
    A(f"v_add_u32 v{TMP}, s24, v2"); A(f"v_lshlrev_b32 v{VST}, 3, v{TMP}")
    A("s_mul_i32 s21, s18, 10"); A("s_add_u32 s21, s21, s28"); A("s_lshl_b32 s21, s21, 11")
    A(f"v_add_u32 v{VST}, s21, v{VST}")
    srd(A, 8, SWS, ws_x, x_bytes)
    srd(A, 36, SWS, ws_res, XB)
    srd(A, 76, SWS, ws_out, XB)
    srd(A, 80, SWS, ws_st, ST_B)
    if not can_final:
        A("s_cmp_lg_u32 s16, 0"); A("s_cbranch_scc1 L_p3_rescl")
        srd(A, 36, SX, 0, XB)
        for nb in range(2):
            for half in range(2):
                p = RES + (nb * 2 + half) * 4
                A(f"buffer_load_dwordx2 {v(p,2)}, v{VOUT}, s[36:39], 0 offen offset:{(32*nb + 8*half)*2}")
                A(f"buffer_load_dwordx2 {v(p+2,2)}, v{VOUT}, s[36:39], 0 offen offset:{(32*nb + 16 + 8*half)*2}")
        A("s_branch L_p3_resdone")
        A.label("L_p3_rescl")
    for nb in range(2):
        for half in range(2):
            A(f"buffer_load_dwordx4 {v(RES + (nb*2+half)*4, 4)}, v{VRES}, s[36:39], 0 offen offset:{nb*1024 + half*512} sc1", ("R",))
    if not can_final: A.label("L_p3_resdone")
    if PRET:
        for q in range(4):
            A(f"buffer_load_dwordx4 {v(240, 4)}, v{VRES}, s[76:79], 0 offen offset:{q*512} sc1")
        A(f"buffer_load_dwordx2 {v(240, 2)}, v{VST}, s[80:83], 0 offen sc1")
    waitf(TMP); reset(A)
    stamp(A, sb)
    p35_gemm(A, nstage, WSL, PRE, 0, npre).run(do_w=False, sb=sb)
    A("s_barrier")
    for nb in range(2):
        for half in range(2):
            p = RES + (nb * 2 + half) * 4
            for j in range(4):
                src = ACC + nb * 16 + 4 * half + (j >> 1) * 8 + (j & 1) * 2
                A(f"v_lshlrev_b32 v{TMP}, 16, v{p+j}")
                A(f"v_and_b32 v{TMP+1}, 0xffff0000, v{p+j}")
                A(f"v_pk_add_f32 {v(src,2)}, {v(src,2)}, {v(TMP,2)}")
                A(f"v_cvt_pk_bf16_f32 v{p+j}, v{src}, v{src+1}")
    if can_final:
        A("s_cmp_eq_u32 s16, 0"); A("s_cbranch_scc1 L_p5_notfinal")
        srd(A, 76, SOUT, 0, XB)
        for nb in range(2):
            for half in range(2):
                p = RES + (nb * 2 + half) * 4
                A(f"buffer_store_dwordx2 {v(p,2)}, v{VOUT}, s[76:79], 0 offen offset:{(32*nb + 8*half)*2}")
                A(f"buffer_store_dwordx2 {v(p+2,2)}, v{VOUT}, s[76:79], 0 offen offset:{(32*nb + 16 + 8*half)*2}")
        A("s_branch L_exit")
        A.label("L_p5_notfinal"); reset(A)
    for nb in range(2):
        for half in range(2):
            p = RES + (nb * 2 + half) * 4
            A(f"buffer_store_dwordx4 {v(p,4)}, v{VRES}, s[76:79], 0 offen offset:{nb*1024 + half*512}{STF}")
    for k in range(4): A(f"v_mov_b32 v{TMP+k}, 0")
    A(f"v_mov_b32 v{TMP+4}, 0x3f803f80")
    for j in range(16):
        o = 2 * (j & 1)
        A(f"v_dot2_f32_bf16 v{TMP+o}, v{RES+j}, v{TMP+4}, v{TMP+o}")
        A(f"v_dot2_f32_bf16 v{TMP+o+1}, v{RES+j}, v{RES+j}, v{TMP+o+1}")
    A("s_nop 3")
    A(f"v_pk_add_f32 {v(TMP,2)}, {v(TMP,2)}, {v(TMP+2,2)}")
    A(f"v_mov_b32 v{TMP+2}, v{TMP}"); A(f"v_mov_b32 v{TMP+3}, v{TMP+1}")
    A(f"v_permlane32_swap_b32 v{TMP}, v{TMP+2}")
    A(f"v_permlane32_swap_b32 v{TMP+1}, v{TMP+3}")
    A(f"v_pk_add_f32 {v(TMP,2)}, {v(TMP,2)}, {v(TMP+2,2)}")
    A(f"buffer_store_dwordx2 {v(TMP,2)}, v{VST}, s[80:83], 0 offen{STF}")
    stamp(A, sb + 3)
    signal_local(A, sigk, TMP + 4)
    stamp(A, sb + 4)

def phase2(A):
    PSK, PSV = 4096, 4128
    KOFF, VOFF = 0, 5 * 4096
    VL16, VQ, VQ2, VK1, VK2, VV, VO = 4, 5, 6, 7, 8, 9, 10
    TMP = 14; Q1, Q2 = 20, 24; MSK = 26; KF = 34; VF = 52; O = 68; PB = 84; S = 100; MX = 244
    QOFF = VOFF + 6 * PSV
    A("s_cmp_lt_u32 s20, 4"); A("s_cbranch_scc1 L_p2_a")
    A("s_cmp_ge_u32 s19, 30"); A("s_cbranch_scc1 L_p2_a")
    p35_ids(A); rot_init(A, 10, D * 2)
    p35_loader_setup(A, SWO, D, P3W)
    p35_gemm(A, 10, 10, 0, 0, 0).prefetch(10)
    join(A, "L_p2_a"); reset(A)
    A("s_mul_i32 s25, s19, 5")
    A(f"v_lshlrev_b32 v{VL16}, 4, v1")
    A("s_lshl_b32 s24, s20, 5")
    A(f"v_add_u32 v{TMP}, s24, v2")
    A(f"v_lshlrev_b32 v{VQ2}, 3, v{TMP}"); A(f"v_add_u32 v{VQ2}, {QOFF}, v{VQ2}")
    A(f"v_lshl_add_u32 v{VQ}, v3, 11, v{VQ2}")
    A("s_lshl_b32 s21, s18, 8"); A(f"v_add_u32 v{TMP}, s21, v{TMP}")
    srd(A, 12, SWS, WS_O, XB)
    A(f"v_mov_b32 v{TMP+2}, 0x3f803f80"); A(f"v_mov_b32 v{TMP+3}, 0x3f803f80")
    A(f"v_lshlrev_b32 v{TMP+1}, 3, v0")
    A(f"ds_write_b64 v{TMP+1}, {v(TMP+2,2)} offset:{VOFF + 5*PSV}")
    A("s_lshl_b32 s21, s20, 8")
    A(f"v_lshlrev_b32 v{VK2}, 3, v2"); A(f"v_add_u32 v{VK2}, s21, v{VK2}")
    A(f"v_lshl_add_u32 v{VK1}, v3, 12, v{VK2}")
    A(f"v_bfe_u32 v{TMP+1}, v1, 4, 1"); A(f"v_and_b32 v{TMP+4}, 3, v1")
    A(f"v_lshl_add_u32 v{TMP+1}, v{TMP+1}, 2, v{TMP+4}"); A(f"v_min_u32 v{TMP+1}, 5, v{TMP+1}")
    A(f"v_mul_u32_u24 v{VV}, {PSV}, v{TMP+1}")
    A(f"v_bfe_u32 v{TMP+1}, v1, 2, 2"); A(f"v_lshl_add_u32 v{TMP+1}, v3, 2, v{TMP+1}")
    A(f"v_lshl_add_u32 v{VV}, v{TMP+1}, 3, v{VV}"); A(f"v_add_u32 v{VV}, s21, v{VV}")
    A(f"v_lshrrev_b32 v{TMP+1}, 4, v{TMP}"); A(f"v_mul_u32_u24 v{TMP+1}, 20480, v{TMP+1}")
    A(f"v_and_b32 v{TMP+4}, 15, v{TMP}"); A(f"v_lshl_add_u32 v{TMP+1}, v{TMP+4}, 4, v{TMP+1}")
    for i in range(3):
        A(f"s_add_u32 s21, s25, {2*i}")
        A(f"v_add_u32 v{TMP+4}, s21, v3")
        A(f"v_lshrrev_b32 v{TMP+5}, 3, v{TMP+4}"); A(f"v_lshl_add_u32 v{VO+i}, v{TMP+5}, 10, v{TMP+1}")
        A(f"v_and_b32 v{TMP+5}, 3, v{TMP+4}"); A(f"v_lshl_add_u32 v{VO+i}, v{TMP+5}, 8, v{VO+i}")
        A(f"v_bfe_u32 v{TMP+5}, v{TMP+4}, 2, 1"); A(f"v_lshl_add_u32 v{VO+i}, v{TMP+5}, 3, v{VO+i}")
    A(f"v_lshl_add_u32 v{VO+2}, v3, 31, v{VO+2}")
    if PRET:
        for i in range(3): A(f"buffer_load_dwordx2 {v(MX,2)}, v{VO+i}, s[12:15], 0 offen sc1")
    for r in range(16):
        k0 = 8 * (r >> 2) + (r & 3)
        A(f"s_mov_b32 s{40+2*r}, {(0xFFFFFFFF << k0) & 0xFFFFFFFF:#x}")
        A(f"s_mov_b32 s{41+2*r}, {(0xFFFFFFFF << (k0+4)) & 0xFFFFFFFF:#x}")
    A(f"v_mov_b32 v{TMP+4}, 0xffff"); A(f"v_mov_b32 v{TMP+5}, 0xffff0000")
    for j in range(8):
        A(f"v_cndmask_b32 v{MSK+j}, 0, v{TMP+4}, {s(40+4*j,2)}")
        A(f"v_cndmask_b32 v{TMP+1}, 0, v{TMP+5}, {s(42+4*j,2)}")
        A(f"v_or_b32 v{MSK+j}, v{MSK+j}, v{TMP+1}")
    stamp(A, 6)
    A("s_cmp_lt_u32 s20, 4"); A("s_cbranch_scc1 L_p2_kv")
    A("s_and_b32 s27, s20, 1")
    A(f"s_mul_i32 s31, s27, {VOFF}"); A("s_lshl_b32 s32, s27, 5"); A("s_add_u32 s32, s32, 4096")
    A("s_mul_i32 s28, s18, 480"); A("s_add_u32 s28, s28, s25"); A("s_lshl_b32 s33, s28, 11")
    A("s_mul_i32 s30, s27, 160"); A("s_add_u32 s28, s28, s30"); A("s_add_u32 s28, s28, 160"); A("s_lshl_b32 s28, s28, 11")
    A("s_cmp_ge_u32 s20, 6"); A("s_cbranch_scc1 L_p2_halo")
    srd(A, 8, SWS, WS_QKV, QKV_B)
    A("s_add_u32 s31, s31, 2048")
    wait_local(A, 4, 30, 0x0f, KF)
    reset(A)
    A("s_mul_i32 s21, s27, 5120"); A("s_add_u32 s33, s33, s21"); A(f"s_add_u32 s30, s21, {QOFF}")
    for i in range(5):
        A(f"s_add_u32 m0, s30, {i*1024}")
        A(f"buffer_load_dwordx4 v{VL16}, s[8:11], s33 offen sc1 lds")
        A("s_add_u32 s33, s33, 1024")
    A("s_branch L_p2_ld")
    A.label("L_p2_halo"); reset(A)
    A("s_lshl_b32 s21, s16, 23")
    srd(A, 8, SWS, WS_HALO, QKV_B, soff=21)
    A(f"s_sub_u32 s28, s28, {480*2048}")
    A("s_cmp_eq_u32 s18, 0"); A(f"s_cselect_b32 s28, {OOB:#x}, s28"); A("s_cbranch_scc1 L_p2_ld")
    A(f"v_min_u32 v{KF}, 19, v1"); A(f"v_lshlrev_b32 v{KF}, 7, v{KF}")
    A("s_lshl_b32 s21, s16, 3"); A("s_add_u32 s21, s21, s18"); A("s_lshl_b32 s21, s21, 12"); A(f"s_add_u32 s21, s21, {0x10000 - 4096 + 10*128}")
    A(f"v_add_u32 v{KF}, s21, v{KF}")
    A(f"v_mov_b32 v{KF+1}, 0x01010101")
    def body():
        A(f"buffer_load_dword v{KF+2}, v{KF}, {s(SFL,4)}, 0 offen sc1")
        A.wait_vm_all()
        A(f"v_cmp_ne_u32 vcc, v{KF+2}, v{KF+1}")
    spin(A, body, "p1w", 1)
    join(A, "L_p2_ld"); reset(A)
    stamp(A, 7)
    for i in range(5):
        for c in range(2):
            A(f"s_add_u32 m0, s31, {c*1024}")
            A(f"buffer_load_dwordx4 v{VL16}, s[8:11], s28 offen sc1 lds")
            A("s_add_u32 s28, s28, 1024")
        A("s_add_u32 s31, s31, s32")
    join(A, "L_p2_kv"); reset(A)
    A.wait_vm_all(); A.wait_lg_all()
    A("s_barrier")
    stamp(A, 8)
    A(f"ds_read_b64 {v(Q1,2)}, v{VQ}", ("K", 0))
    A(f"ds_read_b64 {v(Q1+2,2)}, v{VQ} offset:4096", ("K", 0))
    A(f"ds_read_b64 {v(Q2,2)}, v{VQ2} offset:8192", ("K", 0))
    def kreads(d):
        b = KF + (d % 3) * 6
        A(f"ds_read_b64 {v(b,2)}, v{VK1} offset:{KOFF + d*256}", ("K", d))
        A(f"ds_read_b64 {v(b+2,2)}, v{VK1} offset:{KOFF + 2*PSK + d*256}", ("K", d))
        A(f"ds_read_b64 {v(b+4,2)}, v{VK2} offset:{KOFF + 4*PSK + d*256}", ("K", d))
    kreads(0); kreads(1)
    for d in range(9):
        if d + 2 < 9: kreads(d + 2)
        A.wait_lg(lambda g: g == ("K", d))
        b = KF + (d % 3) * 6
        if d == 0:
            A("s_mov_b32 s22, -1"); A("s_mov_b32 s23, 0")
            A(f"v_cndmask_b32 v{Q2}, 0, v{Q2}, s[22:23]"); A(f"v_cndmask_b32 v{Q2+1}, 0, v{Q2+1}, s[22:23]")
        A(f"v_mfma_f32_32x32x16_bf16 {v(S+16*d,16)}, {v(b,4)}, {v(Q1,4)}, 0")
        A(f"v_mfma_f32_32x32x8_bf16 {v(S+16*d,16)}, {v(b+4,2)}, {v(Q2,2)}, {v(S+16*d,16)}")
    def vreads(d, buf):
        for u in range(2):
            for rd in range(2):
                A(f"ds_read_b64_tr_b16 {v(VF + buf*8 + u*4 + rd*2, 2)}, v{VV} offset:{VOFF + d*256 + u*128 + rd*64}", ("V", d))
    vreads(1, 0)
    A.fence()
    A("s_cmp_lg_u32 s18, 0"); A("s_cbranch_scc1 L_p2_nofix")
    for d in range(8):
        if d > 0:
            A(f"s_cmp_ge_u32 s20, {8-d}"); A("s_cbranch_scc1 L_p2_nofix")
        for r in range(16): A(f"v_mov_b32 v{S+16*d+r}, {f32(-1e30)}")
    A.label("L_p2_nofix")
    for r in range(16):
        A(f"v_cndmask_b32 v{S+r}, v{S+r}, v{S+128+r}, {s(40+2*r,2)}")
    for c in range(4):
        A(f"v_max3_f32 v{MX+c}, v{S+32*c}, v{S+32*c+1}, v{S+32*c+2}")
    for k in range(3, 31, 2):
        for c in range(4):
            A(f"v_max3_f32 v{MX+c}, v{MX+c}, v{S+32*c+k}, v{S+32*c+k+1}")
    for c in range(4):
        A(f"v_max_f32 v{MX+c}, v{MX+c}, v{S+32*c+31}")
    A(f"v_max3_f32 v{MX}, v{MX}, v{MX+1}, v{MX+2}")
    A(f"v_max_f32 v{MX}, v{MX}, v{MX+3}")
    A(f"v_mov_b32 v{MX+1}, v{MX}")
    A(f"v_permlane32_swap_b32 v{MX}, v{MX+1}")
    A(f"v_max_f32 v{MX}, v{MX}, v{MX+1}")
    order = [1, 2, 3, 4, 5, 6, 7, 0]
    first = True
    for n, d in enumerate(order):
        buf = n & 1
        sb = S + 16 * d; pb = PB + buf * 8
        if d != 0: vreads(order[n + 1], buf ^ 1)
        for r in range(16): A(f"v_sub_f32 v{sb+r}, v{sb+r}, v{MX}")
        for r in range(16): A(f"v_exp_f32 v{sb+r}, v{sb+r}")
        for j in range(8): A(f"v_cvt_pk_bf16_f32 v{pb+j}, v{sb+2*j}, v{sb+2*j+1}")
        if d != 0:
            A.wait_lg(lambda g: g == ("V", d))
            for u in range(2):
                c = "0" if first else v(O, 16); first = False
                A(f"v_mfma_f32_32x32x16_bf16 {v(O,16)}, {v(VF+buf*8+u*4,4)}, {v(pb+u*4,4)}, {c}")
        else:
            vreads(8, buf ^ 1)
            pd = PB + (buf ^ 1) * 8
            for j in range(8): A(f"v_and_b32 v{pd+j}, v{pb+j}, v{MSK+j}")
            for j in range(8): A(f"v_bfi_b32 v{pb+j}, v{MSK+j}, 0, v{pb+j}")
            A.wait_lg(lambda g: g == ("V", 0))
            for u in range(2):
                A(f"v_mfma_f32_32x32x16_bf16 {v(O,16)}, {v(VF+buf*8+u*4,4)}, {v(pb+u*4,4)}, {v(O,16)}")
            A.wait_lg(lambda g: g == ("V", 8))
            for u in range(2):
                A(f"v_mfma_f32_32x32x16_bf16 {v(O,16)}, {v(VF+(buf^1)*8+u*4,4)}, {v(pd+u*4,4)}, {v(O,16)}")
    stamp(A, 9)
    A(f"v_rcp_f32 v{MX}, v{O+12}")
    for k in range(0, 12, 2):
        A(f"v_pk_mul_f32 {v(O+k,2)}, {v(O+k,2)}, {v(MX,2)} op_sel_hi:[1,0]")
    for i in range(3):
        A(f"v_cvt_pk_bf16_f32 v{TMP+2*i}, v{O+4*i}, v{O+4*i+1}")
        A(f"v_cvt_pk_bf16_f32 v{TMP+2*i+1}, v{O+4*i+2}, v{O+4*i+3}")
        A(f"buffer_store_dwordx2 {v(TMP+2*i,2)}, v{VO+i}, s[12:15], 0 offen{STF}")
    signal_local(A, 0, 20)
    stamp(A, 10)
    A("s_barrier")
    A.fence(); reset(A)

P4PRE = env("P4PRE", 4)
P4 = dict(PS=2112, RB=128, UOFF=8480, SLOT=16960)
def phase3(A):
    A("s_cmp_ge_u32 s19, 30"); A("s_cbranch_scc1 L_p3_done")
    A("s_cmp_lt_u32 s20, 3"); A("s_cbranch_scc1 L_p3_comp")
    A("s_cmp_eq_u32 s20, 3"); A("s_cbranch_scc1 L_p3_idle")
    A("s_cmp_ge_u32 s19, 27"); A("s_cbranch_scc1 L_p3_idle")
    A("s_and_b32 s26, s20, 3"); A("s_lshl_b32 s25, s19, 7")
    wdma_off(A, 6, 2, 8, F * 2, 25, 26, 16)
    A("s_mul_i32 s32, s26, 2112")
    rot_init(A, 10, F * 2)
    srd(A, 12, SWG, 0, D * F * 2); srd(A, 36, SWU, 0, D * F * 2)
    Gemm(A, 4, 10, 6, 9, 16960, 128, 32, 0, 0, 0, 0, [6, 7, 6, 7], [12, 12, 36, 36], [0, 1024, 8480, 8480 + 1024],
         [], 8, F * 2, 0, 0).prefetch(P4PRE)
    A.wait_vm_all()
    join(A, "L_p3_idle"); reset(A)
    A("s_barrier")
    A("s_branch L_p3_done")
    A.label("L_p3_comp"); reset(A)
    p35_ids(A); rot_init(A, 10, D * 2)
    p35_compute(A, 10, 10, 10, P3W, WS_O, XB, WS_XIN, WS_X1, WS_STB,
                lambda t0: wait_local(A, 0, 32, 0xff, t0), 1, False, 11, env("PRE3", 12))
    join(A, "L_p3_done"); reset(A)

def phase5(A):
    A("s_cmp_ge_u32 s19, 30"); A("s_cbranch_scc1 L_p5_done")
    WSL = env("WSL5", 14)
    p35_ids(A); rot_init(A, 27, D * 2)
    A("s_cmp_lt_u32 s20, 3"); A("s_cbranch_scc1 L_p5_comp")
    A("s_cmp_eq_u32 s20, 3"); A("s_cbranch_scc1 L_p5_idle")
    p35_loader_setup(A, SWD, F, 0)
    p35_gemm(A, 27, WSL, 0, env("LA5", 8), 0).run_loader()
    A("s_barrier")
    A("s_branch L_p5_done")
    A.label("L_p5_idle")
    A("s_mov_b32 s21, 0")
    A.label("L_p5_idle_loop")
    A("s_barrier"); A("s_add_u32 s21, s21, 1"); A("s_cmp_lt_u32 s21, 28"); A("s_cbranch_scc1 L_p5_idle_loop")
    A("s_branch L_p5_done")
    A.label("L_p5_comp"); reset(A)
    p35_compute(A, 27, WSL, 0, 0, WS_H, H_B, WS_X1, WS_XIN, WS_STA,
                lambda t0: wait_local(A, 2, 27, 0xff, t0), 3, True, 22, env("PRE5", 12))
    join(A, "L_p5_done"); reset(A)

def phase4(A):
    A("s_cmp_ge_u32 s19, 27"); A("s_cbranch_scc1 L_p4_done")
    A("s_lshl_b32 s24, s20, 5")
    A("s_lshl_b32 s27, s18, 8"); A("s_add_u32 s27, s27, s24")
    A("s_and_b32 s26, s20, 3"); A("s_lshr_b32 s29, s20, 2")
    PS, RB, UOFF, SLOT = 2112, 128, 8480, 16960
    WSL, XS = 9, 5
    VX, VWD, VTR, VST, VCS, VOUT, VPL = 4, 6, 8, 11, 12, 13, 144
    NM, CA, CB, IR = 14, 16, 18, 20
    TMP = 24; WF = 40; ACC = 72; T = 136; CSA = 148; CSB = 156; CT = 164; XA = 168
    cl_lane_off(A, VX, 27, 20480, TMP)
    A("s_lshl_b32 s25, s19, 7")
    wdma_off(A, VWD, 2, 8, F * 2, 25, 26, TMP)
    tr_lane_addr(A, VTR, PS, RB, UOFF, TMP)
    A(f"v_add_u32 v{VTR+1}, {3*SLOT}, v{VTR}"); A(f"v_add_u32 v{VTR+2}, {6*SLOT}, v{VTR}")
    stats_off(A, VST, 24, TMP)
    cl_lane_off(A, VOUT, 27, 54 * 1024, TMP)
    A("s_lshl_b32 s21, s19, 11")
    A(f"v_add_u32 v{VOUT}, s21, v{VOUT}")
    A(f"v_lshlrev_b32 v{VCS}, 4, v3"); A(f"v_add_u32 v{VCS}, {CS4}, v{VCS}")
    A(f"s_mul_i32 s32, s26, {PS}"); A(f"s_mul_i32 s21, s29, {UOFF}"); A("s_add_u32 s32, s32, s21")
    A("s_lshl_b32 s21, s26, 5"); A(f"s_mul_i32 s22, s29, {8*RB}"); A("s_add_u32 s21, s21, s22")
    A(f"v_add_u32 v{VPL}, s21, v{VTR}")
    A(f"v_add_u32 v{VPL+1}, {3*SLOT}, v{VPL}"); A(f"v_add_u32 v{VPL+2}, {6*SLOT}, v{VPL}")
    for k in range(2): A(f"v_mov_b32 v{CSA+k}, 0")
    A(f"v_mov_b32 v{CT}, 0x3f803f80")
    rot_init(A, 10, F * 2, wskip=P4PRE)
    A("s_cmp_eq_u32 s29, 0")
    A(f"s_cselect_b32 s22, s{SWG}, s{SWU}"); A(f"s_cselect_b32 s23, s{SWG+1}, s{SWU+1}")
    srd(A, 12, 22, 0, D * F * 2)
    srd(A, 8, SWS, WS_X1, XB)
    srd(A, 36, SWS, WS_STB, ST_B)
    srd(A, 80, SWS, WS_H, H_B)
    A("s_cmp_lg_u32 s20, 7"); A("s_cbranch_scc1 L_p4_dep")
    wait_local(A, 1, 30, 0x07, TMP)
    join(A, "L_p4_dep"); reset(A)
    A("s_barrier")
    stamp(A, 16)
    g = Gemm(A, 4, 10, XS, WSL, SLOT, RB, 32, ACC, WF, XA, VX, [VWD, VWD + 1], [12, 12],
             [0, 1024], [VTR, VTR + 1, VTR + 2], 8, F * 2, env("PRE4", 8), 0, P4PRE)
    def csum(t):
        slot = t % WSL
        def f():
            for q in range(4):
                A(f"ds_read_b64_tr_b16 {v(CSB + 2*q, 2)}, v{VPL + slot // 3} offset:{(slot % 3) * SLOT + 2 * q * RB}")
            A("s_waitcnt lgkmcnt(0)")
            for q in range(8): A(f"v_dot2_f32_bf16 v{CSA + (q & 1)}, v{CSB+q}, v{CT}, v{CSA + (q & 1)}")
        keep = list(A.lg)
        l0_only(A, f, "p4cs")
        A.lg = keep
    pt = [(lambda q=q: A(f"buffer_load_dwordx4 {v(248, 4)}, v{VOUT}, s[80:83], 0 offen offset:{q*512} sc1")) for q in range(4)] if PRET else []
    g.run(extra=stats_items(A, VST, 36, TMP) + pt, extra_at=env("PT4AT", 6), wlead=env("WLEAD4", 2), sb=16, stage_end=csum)
    def cpart():
        A("s_nop 3")
        A(f"v_add_f32 v{CSA}, v{CSA}, v{CSA+1}")
        A(f"v_mov_b32 v{CSA+1}, v{CSA}"); A(f"v_permlane32_swap_b32 v{CSA}, v{CSA+1}"); A(f"v_add_f32 v{CSA}, v{CSA}, v{CSA+1}")
        A(f"v_bfe_u32 v{CSB}, v1, 4, 1"); A(f"v_lshlrev_b32 v{CSB}, 8, v{CSB}")
        A(f"v_and_b32 v{CSB+1}, 15, v1"); A(f"v_lshl_add_u32 v{CSB}, v{CSB+1}, 2, v{CSB}")
        A("s_lshl_b32 s21, s26, 6"); A("s_lshl_b32 s22, s29, 9"); A("s_add_u32 s21, s21, s22"); A(f"s_add_u32 s21, s21, {CS_PART}")
        A(f"v_add_u32 v{CSB}, s21, v{CSB}")
        A(f"ds_write_b32 v{CSB}, v{CSA}")
    l0_only(A, cpart, "p4cp")
    kk = -2.0 * 1.4426950408889634 * 0.7978845608028654
    t = TMP
    finish_stats(A, t, NM, t + 2, t + 10)
    A(f"v_mov_b32 v{IR}, v{t+1}")
    A(f"v_mul_f32 v{CB}, {f32(kk)}, v{t+2}")
    A(f"v_mul_f32 v{t+3}, v{t+2}, v{t+2}")
    A(f"v_mul_f32 v{t+3}, {f32(0.044715)}, v{t+3}")
    A(f"v_mul_f32 v{CA}, v{CB}, v{t+3}")
    A.wait_lg_all()
    A("s_barrier")
    def cfin():
        A(f"v_lshlrev_b32 v{CSB}, 3, v1"); A(f"v_add_u32 v{CSB}, {CS_PART}, v{CSB}")
        A(f"ds_read_b64 {v(CSB+2,2)}, v{CSB}"); A(f"ds_read_b64 {v(CSB+4,2)}, v{CSB} offset:512")
        A.wait_lg_all()
        A(f"v_pk_add_f32 {v(CSB+2,2)}, {v(CSB+2,2)}, {v(CSB+4,2)}")
        A(f"ds_write_b64 v{CSB}, {v(CSB+2,2)} offset:{CS4 - CS_PART}")
        A.wait_lg_all()
    l0_only(A, cfin, "p4cf")
    csr = lambda nb: WF + (nb & 1) * 16
    def csread(nb):
        for i in range(2):
            A(f"ds_read_b128 {v(csr(nb) + i*4, 4)}, v{VCS} offset:{nb*64 + i*32}", ("C", nb))
            A(f"ds_read_b128 {v(csr(nb) + 8 + i*4, 4)}, v{VCS} offset:{256 + nb*64 + i*32}", ("C", nb))
    csread(0); csread(1)
    for kkb in range(2):
        for e in range(2):
            nb = 2 * kkb + e
            A.wait_lg(lambda g: g == ("C", nb))
            for k in range(0, 16, 2):
                r = ACC + nb * 16 + k
                A(f"v_pk_fma_f32 {v(r,2)}, {v(csr(nb)+k,2)}, {v(NM,2)}, {v(r,2)} op_sel_hi:[1,0,1]")
        if kkb == 0: csread(2); csread(3)
        for half in range(2):
            out = TMP + 4 * ((2 * kkb + half) & 3)
            for e in range(2):
                nb = 2 * kkb + e
                gq = ACC + nb * 16 + 4 * half
                uq = gq + 8
                Tt = T + 4 * e
                for k in (0, 2): A(f"v_pk_mul_f32 {v(Tt+k,2)}, {v(gq+k,2)}, {v(gq+k,2)}")
                for k in (0, 2): A(f"v_pk_fma_f32 {v(Tt+k,2)}, {v(Tt+k,2)}, {v(CA,2)}, {v(CB,2)} op_sel_hi:[1,0,0]")
                for k in (0, 2): A(f"v_pk_mul_f32 {v(Tt+k,2)}, {v(Tt+k,2)}, {v(gq+k,2)}")
                for k in range(4): A(f"v_exp_f32 v{Tt+k}, v{Tt+k}")
                for k in (0, 2): A(f"v_pk_mul_f32 {v(gq+k,2)}, {v(gq+k,2)}, {v(uq+k,2)}")
                for k in (0, 2): A(f"v_pk_fma_f32 {v(Tt+k,2)}, {v(Tt+k,2)}, {v(IR,2)}, {v(IR,2)} op_sel_hi:[1,0,0]")
                for k in range(4): A(f"v_rcp_f32 v{Tt+k}, v{Tt+k}")
                for k in (0, 2): A(f"v_pk_mul_f32 {v(gq+k,2)}, {v(gq+k,2)}, {v(Tt+k,2)}")
                A(f"v_cvt_pk_bf16_f32 v{out+2*e}, v{gq}, v{gq+1}")
                A(f"v_cvt_pk_bf16_f32 v{out+2*e+1}, v{gq+2}, v{gq+3}")
            A(f"buffer_store_dwordx4 {v(out,4)}, v{VOUT}, s[80:83], 0 offen offset:{kkb*1024 + half*512}{STF}")
    stamp(A, 19)
    signal_local(A, 2, T)
    stamp(A, 20)
    join(A, "L_p4_done"); reset(A)

def main(out_path):
    A = Asm(); name = NAME + "_kernel"
    A.raw(kernel_header(name))
    A("s_cmp_ge_u32 s2, 256"); A("s_cbranch_scc1 L_end")
    if STAMP:
        A("s_memtime s[90:91]"); A("v_mov_b32 v255, 0"); A("v_mov_b32 v254, 0")
    A(f"s_load_dwordx4 s[4:7], s[0:1], 64")
    A(f"s_load_dwordx4 s[84:87], s[0:1], 0")
    A(f"s_load_dwordx2 s[88:89], s[0:1], 16")
    A(f"s_load_dwordx8 s[92:99], s[0:1], 32")
    A("v_lshrrev_b32 v2, 6, v0")
    A("v_and_b32 v1, 63, v0")
    A("v_readfirstlane_b32 s20, v2")
    A("v_and_b32 v2, 31, v0")
    A("v_lshrrev_b32 v3, 5, v1")
    A("s_and_b32 s18, s2, 7")
    A("s_lshr_b32 s19, s2, 3")
    A("s_mov_b32 s16, 0"); A("s_mov_b32 s17, 0")
    A.wait_lg_all()
    srd(A, SFL, SWS, WS_FL, FL_B)
    stamp(A, 0)
    A.label("L_layer")
    phase1(A); phase2(A); phase3(A); phase4(A); phase5(A)
    A("s_cmp_lg_u32 s16, 0"); A("s_cbranch_scc1 L_exit")
    A("s_mov_b32 s16, 1")
    if STAMP: A("v_mov_b32 v254, v255")
    A.fence()
    A("s_branch L_layer")
    A.label("L_exit")
    if STAMP:
        A("s_waitcnt vmcnt(0)")
        stamp(A, 31)
        srd(A, 76, SWS, WS_DBG, 0x1000000)
        A("s_lshl_b32 s21, s2, 3"); A("s_add_u32 s21, s21, s20"); A("s_lshl_b32 s21, s21, 9")
        A("v_lshlrev_b32 v4, 2, v1"); A("v_add_u32 v4, s21, v4")
        A("buffer_store_dword v254, v4, s[76:79], 0 offen")
        A("buffer_store_dword v255, v4, s[76:79], 0 offen offset:256")
    A.label("L_end"); A("s_endpgm")
    hdr = open(os.path.join(os.path.dirname(os.path.abspath(__file__)), "..", "cdna_kernels", NAME + ".s.ref")).read().split("; Override")[0]
    t = hdr + f"; @launch grid=(256,1,1) block=(512,1,1) lds={LDS_TOTAL}\n"
    t += '.amdgcn_target "amdgcn-amd-amdhsa--gfx950"\n.text\n' + A.text()
    t += '.section .rodata,"a"\n.p2align 6\n' + kernel_desc(name, 256, 0, 102)
    open(out_path, "w").write(t)

if __name__ == "__main__":
    main(sys.argv[1] if len(sys.argv) > 1 else f"cdna_kernels/{NAME}.s")
```

```python
import sys, os, struct
sys.path.insert(0, os.path.dirname(os.path.abspath(__file__)))
from asmdsl import *

NAME = "interleave_layers__sliding_block__glu_gated_geglu__prompt"
S_TOK, D, F = 2048, 640, 1728
XB = S_TOK * D * 2
LS = 0x2000000
WS_XIN = 0x0000000
WS_X1 = 0x0300000
WS_O = 0x0600000
WS_H = 0x0900000
H_B = S_TOK * F * 2
WS_QKV = 0x1000000
QKV_B = 480 * 16384
WS_STA = 0x1800000
WS_STB = 0x1840000
ST_B = 10 * S_TOK * 8
WS_FL = 0x1880000
FL_B = 0x20000
WS_QKL = 0x18a0000 + 0x60000
WS_DBG = 0x4000000
OOB = 0x80000000
LDS_TOTAL = 163840
RSV = LDS_TOTAL - 3072
CS_PART, CS1, CS4, L_MODE = RSV, RSV + 1024, RSV + 1536, RSV + 2048
P3W = RSV - 10 * 8448
SDBG, SWS, SX, SWQKV, SWO, SWG, SWU, SWD, SOUT = 4, 6, 84, 86, 88, 92, 94, 96, 98
SFL = 72
SPIN_MAX = 1 << 20
def env(n, d): return int(os.environ.get(n, str(d)))
def f32(x): return "0x%08x" % struct.unpack("<I", struct.pack("<f", x))[0]
STAMP = env("STAMP", 0)
FORCE_SLOW = env("FORCE_SLOW", 0)
PLAIN = env("PLAIN", 0)
STF = "" if PLAIN else " sc1"
NT4 = " nt" if env("NT4", 0) else ""
NTX = " nt" if env("NTX", 0) else ""

def stamp(A, i):
    if STAMP:
        A("s_memtime s[100:101]" if STAMP == 1 else "s_memrealtime s[100:101]"); A.wait_lg_all()
        if STAMP == 1: A("s_sub_u32 s100, s100, s90")
        A(f"v_writelane_b32 v255, s100, {i}")

def srd(A, d, base, off, size, soff=None):
    A(f"s_add_u32 s{d}, s{base}, {off:#x}")
    A(f"s_addc_u32 s{d+1}, s{base+1}, 0")
    if soff is not None:
        A(f"s_add_u32 s{d}, s{d}, s{soff}")
        A(f"s_addc_u32 s{d+1}, s{d+1}, 0")
    A(f"s_mov_b32 s{d+2}, {size:#x}")
    A(f"s_mov_b32 s{d+3}, 0x20000")

def join(A, label):
    A.fence(); A.label(label)

def spin(A, body, name, sleep=1):
    lp = A.newlabel(name); out = A.newlabel(name + "x")
    A("s_mov_b32 s35, 0")
    A.fence(); A.label(lp)
    body()
    A("s_add_u32 s35, s35, 1")
    A(f"s_cmp_gt_u32 s35, {SPIN_MAX}"); A(f"s_cbranch_scc1 {out}")
    A(f"s_cbranch_vccz {out}")
    if sleep: A(f"s_sleep {sleep}")
    A(f"s_branch {lp}")
    A.fence(); A.label(out)

def acquire_if_slow(A):
    l = A.newlabel("acq")
    A("s_cmp_lg_u32 s17, 0"); A(f"s_cbranch_scc1 {l}")
    A("buffer_inv sc1"); A("s_waitcnt vmcnt(0)")
    A.label(l)

def signal_local(A, k, t0, nowait=False):
    if not nowait: A.wait_vm_all()
    A("s_lshl_b32 s21, s16, 3"); A(f"s_add_u32 s21, s21, {k}"); A("s_lshl_b32 s21, s21, 3"); A("s_add_u32 s21, s21, s18")
    A("s_lshl_b32 s21, s21, 5"); A("s_add_u32 s21, s21, s19"); A("s_lshl_b32 s21, s21, 3"); A("s_add_u32 s21, s21, s20")
    A(f"v_mov_b32 v{t0}, s21"); A(f"v_mov_b32 v{t0+1}, 1")
    slow = A.newlabel("sigslow"); done = A.newlabel("sigdone")
    A("s_mov_b64 exec, 1")
    A("s_cmp_eq_u32 s17, 0"); A(f"s_cbranch_scc1 {slow}")
    A(f"buffer_store_byte v{t0+1}, v{t0}, {s(SFL,4)}, 0 offen")
    A(f"s_branch {done}")
    A.label(slow)
    if PLAIN: A("buffer_wbl2 sc1"); A("s_waitcnt vmcnt(0)")
    A(f"buffer_store_byte v{t0+1}, v{t0}, {s(SFL,4)}, 0 offen sc1")
    A.label(done)
    A("s_mov_b64 exec, -1")
    A.vm = [None]

def wait_local(A, k, nwg, wavemask, t0, layer_delta=0, sleep=1):
    lo = sum(1 << (8 * i) for i in range(4) if wavemask >> i & 1)
    hi = sum(1 << (8 * i) for i in range(4) if wavemask >> (4 + i) & 1)
    A(f"v_and_b32 v{t0}, 1, v1"); A(f"v_cmp_eq_u32 vcc, 1, v{t0}")
    A(f"v_mov_b32 v{t0}, {lo:#x}"); A(f"v_mov_b32 v{t0+1}, {hi:#x}")
    A(f"v_cndmask_b32 v{t0}, v{t0}, v{t0+1}, vcc")
    A(f"v_cmp_gt_u32 vcc, {2*nwg}, v1")
    A(f"v_cndmask_b32 v{t0}, 0, v{t0}, vcc")
    A(f"v_lshlrev_b32 v{t0+1}, 2, v1")
    A(f"s_add_u32 s21, s16, {layer_delta & 0xffffffff:#x}")
    A("s_lshl_b32 s21, s21, 3"); A(f"s_add_u32 s21, s21, {k}"); A("s_lshl_b32 s21, s21, 3"); A("s_add_u32 s21, s21, s18"); A("s_lshl_b32 s21, s21, 8")
    def body():
        A(f"buffer_load_dword v{t0+2}, v{t0+1}, {s(SFL,4)}, s21 offen sc1")
        A.wait_vm_all()
        A(f"v_and_b32 v{t0+2}, v{t0+2}, v{t0}")
        A(f"v_cmp_ne_u32 vcc, v{t0+2}, v{t0}")
    spin(A, body, "wl", sleep)
    acquire_if_slow(A)

def census_wait(A, t0, sleep=8):
    srd(A, 76, SDBG, 0, 256)
    A("s_sub_u32 s21, s18, 1"); A("s_max_i32 s21, s21, 0")
    A(f"v_mov_b32 v{t0}, s18"); A(f"v_mov_b32 v{t0+1}, s21")
    A("v_cmp_eq_u32 vcc, 0, v1")
    A(f"v_cndmask_b32 v{t0}, v{t0+1}, v{t0}, vcc")
    A(f"v_lshlrev_b32 v{t0}, 5, v{t0}")
    def body():
        A(f"buffer_load_dwordx2 {v(t0+2,2)}, v{t0}, s[76:79], 0 offen sc1")
        A.wait_vm_all()
        A(f"v_sad_u8 v{t0+1}, v{t0+2}, 0, 0")
        A(f"v_sad_u8 v{t0+1}, v{t0+3}, 0, v{t0+1}")
        A(f"v_cmp_ne_u32 vcc, 32, v{t0+1}")
    spin(A, body, "cen", sleep)
    A(f"v_readfirstlane_b32 s22, v{t0+2}"); A(f"v_readfirstlane_b32 s23, v{t0+3}")
    A("s_bcnt1_i32_b64 s21, s[22:23]")
    A("s_cmp_eq_u32 s21, 1"); A(f"s_cselect_b32 s17, {0 if FORCE_SLOW else 1}, 0")
    A(f"v_mov_b32 v{t0}, {L_MODE}"); A(f"v_mov_b32 v{t0+1}, s17")
    A(f"ds_write_b32 v{t0}, v{t0+1}")

def read_mode(A, t0):
    A(f"v_mov_b32 v{t0}, {L_MODE}")
    A(f"ds_read_b32 v{t0}, v{t0}", "mode")
    A.wait_lg(lambda g: g == "mode")
    A(f"v_readfirstlane_b32 s17, v{t0}")

def flags_zero(A, t0):
    A(f"v_mov_b32 v{t0}, 0"); A(f"v_mov_b32 v{t0+1}, 0")
    A("s_lshl_b32 s21, s18, 8"); A("s_lshl_b32 s22, s19, 3"); A("s_add_u32 s21, s21, s22")
    A(f"v_lshlrev_b32 v{t0+2}, 11, v1"); A(f"v_add_u32 v{t0+2}, s21, v{t0+2}")
    A("s_lshl_b32 s21, s18, 5"); A("s_add_u32 s21, s21, s19"); A("s_lshl_b32 s21, s21, 7"); A(f"s_add_u32 s21, s21, {(0x10000 - 16*32768) & 0xffffffff:#x}")
    A(f"v_lshlrev_b32 v{t0+3}, 15, v1"); A(f"v_add_u32 v{t0+3}, s21, v{t0+3}")
    A("v_cmp_gt_u32 vcc, 16, v1"); A(f"v_cndmask_b32 v{t0+2}, v{t0+3}, v{t0+2}, vcc")
    A("s_lshl_b32 s21, s16, 3"); A("s_add_u32 s21, s21, s20")
    A("s_cmp_eq_u32 s21, 4"); A("s_cselect_b32 s22, 0x3ffff, 0"); A("s_mov_b32 s23, 0")
    A(f"v_mov_b32 v{t0+3}, {OOB:#x}")
    A(f"v_cndmask_b32 v{t0+2}, v{t0+3}, v{t0+2}, s[22:23]")
    A(f"buffer_store_dwordx2 {v(t0,2)}, v{t0+2}, {s(SFL,4)}, 0 offen sc1", "fz")

def census_post(A, t0):
    srd(A, 76, SDBG, 0, 256)
    A("s_getreg_b32 s21, hwreg(HW_REG_XCC_ID)"); A("s_and_b32 s21, s21, 7"); A("s_lshl_b32 s21, s21, 3")
    A("s_mov_b64 s[22:23], 1"); A("s_lshl_b64 s[22:23], s[22:23], s21")
    A(f"v_mov_b32 v{t0}, s22"); A(f"v_mov_b32 v{t0+1}, s23")
    A("s_lshl_b32 s21, s16, 3"); A("s_add_u32 s21, s21, s20"); A("s_lshl_b32 s22, s18, 5")
    A("s_cmp_eq_u32 s21, 4"); A(f"s_cselect_b32 s21, s22, {OOB:#x}")
    A(f"v_mov_b32 v{t0+2}, s21")
    A("s_mov_b64 exec, 1")
    A(f"buffer_atomic_add_x2 {v(t0,2)}, v{t0+2}, s[76:79], 0 offen sc1")
    A("s_mov_b64 exec, -1")

def stats_items(A, vtok_off, srd_st, tmp, sbase=None):
    def mk(i):
        def f():
            A(f"s_mov_b32 s21, {i*2048}" if sbase is None else f"s_add_u32 s21, s{sbase}, {i*2048}")
            A(f"buffer_load_dwordx2 {v(tmp+2*i,2)}, v{vtok_off}, {s(srd_st,4)}, s21 offen sc1", ("S",))
        return f
    return [mk(i) for i in range(5)]

def finish_stats(A, tmp, negmean, rstd, t2, single=False):
    if not single:
        A(f"v_pk_add_f32 {v(tmp,2)}, {v(tmp,2)}, {v(tmp+2,2)}")
        A(f"v_pk_add_f32 {v(tmp+4,2)}, {v(tmp+4,2)}, {v(tmp+6,2)}")
        A(f"v_pk_add_f32 {v(tmp,2)}, {v(tmp,2)}, {v(tmp+8,2)}")
        A(f"v_pk_add_f32 {v(tmp,2)}, {v(tmp,2)}, {v(tmp+4,2)}")
    A(f"v_mov_b32 v{t2}, v{tmp}")
    A(f"v_mov_b32 v{t2+1}, v{tmp+1}")
    A(f"v_permlane32_swap_b32 v{tmp}, v{t2}")
    A(f"v_permlane32_swap_b32 v{tmp+1}, v{t2+1}")
    A(f"v_pk_add_f32 {v(tmp,2)}, {v(tmp,2)}, {v(t2,2)}")
    A(f"v_mul_f32 v{negmean}, {f32(-1.0/D)}, v{tmp}")
    A(f"v_mul_f32 v{tmp+1}, {f32(1.0/D)}, v{tmp+1}")
    A(f"v_fma_f32 v{tmp+1}, -v{negmean}, v{negmean}, v{tmp+1}")
    A(f"v_max_f32 v{tmp+1}, 0, v{tmp+1}")
    A(f"v_add_f32 v{tmp+1}, {f32(1e-5)}, v{tmp+1}")
    A(f"v_rsq_f32 v{rstd}, v{tmp+1}")

class Gemm:
    def __init__(self, A, NB, nstage, XS, WSL, slot_bytes, RB, nb_stride, acc, wf, xa,
                 vx, vwd, wd_srds, wd_lds, vtr, srd_x, w_row_stride, PRE, LA, npre=0):
        self.__dict__.update(locals())
        self.nbar = npre; self.issued = set()

    def load_list(self, do_x, do_w, wlead=0):
        L = []
        n = len(self.vwd)
        for t in range(self.nstage + wlead):
            tw = t
            if do_w and max(self.npre, self.nland) <= tw < self.nstage:
                for j in range(n): L.append(("W", tw, j, j == n - 1))
            tx = t - wlead
            if do_x and 0 <= tx:
                for st in range(4): L.append(("X", tx, st, st == 3))
        return L

    def issue(self, item):
        A = self.A
        if callable(item): return item()
        kind, t, j, last = item
        self.issued.add((kind, t, j))
        if kind == "X" and self.xstage:
            xs = self.xstage
            assert t - xs["nslot"] < self.cur_stage or t < xs["nslot"], (t, self.cur_stage)
            A(f"s_add_u32 m0, s33, {(t % xs['nslot']) * 4096 + j * 1024}")
            A(f"buffer_load_dwordx4 v{xs['vdma'][j]}, {s(self.srd_x,4)}, s30 offen{NTX} lds", ("X", t, j))
            if last and t < self.nstage - 1:
                A("s_add_u32 s30, s30, 128"); A(f"s_cmp_ge_u32 s30, {self.nstage * 128}"); A("s_cselect_b32 s30, 0, s30")
        elif kind == "X":
            st = j
            assert t - self.XS < self.cur_stage or (t - self.XS == self.cur_stage and st < self.cur_step), (t, self.cur_stage)
            r = self.xa + ((t % self.XS) * 4 + st) * 4
            if self.xdyn:
                A(f"buffer_load_dwordx4 {v(r,4)}, v{self.vx + st}, {s(self.srd_x,4)}, s30 offen", ("X", t, st))
            else:
                A(f"buffer_load_dwordx4 {v(r,4)}, v{self.vx}, {s(self.srd_x,4)}, s30 offen offset:{st*512} sc1", ("X", t, st))
            if last and t < self.nstage - 1:
                A("s_add_u32 s30, s30, s33" if self.xdyn else "s_add_u32 s30, s30, 2048")
                A("s_cmp_ge_u32 s30, s34" if self.xdyn else f"s_cmp_ge_u32 s30, {self.nstage * 2048}")
                A("s_cselect_b32 s30, 0, s30")
        else:
            assert t < self.WSL or self.realbar >= t - self.WSL + 2, (t, self.realbar)
            A(f"s_add_u32 m0, s32, {(t % self.WSL) * self.slot_bytes + self.wd_lds[j]}")
            A(f"buffer_load_dwordx4 v{self.vwd[j]}, {s(self.wd_srds[j],4)}, s31 offen{self.wflags} lds", ("W", t))
            if self.throttle is not None: A(f"s_waitcnt vmcnt({self.throttle})"); A.vm = A.vm[-self.throttle:] if self.throttle else []
            if last and t < self.nstage - 1: self.adv_w()

    def adv_w(self):
        A = self.A
        A(f"s_add_u32 s31, s31, {64 * self.w_row_stride}")
        A(f"s_cmp_ge_u32 s31, {self.nstage * 64 * self.w_row_stride}")
        A("s_cselect_b32 s31, 0, s31")

    def tr_reads(self, t, st, buf):
        out = []
        kb, f = st >> 1, st & 1
        slot = t % self.WSL
        per = 65536 // self.slot_bytes
        va = self.vtr[slot // per]
        base = (slot % per) * self.slot_bytes
        for nb in range(self.NB):
            for rd in range(2):
                off = base + (8 * kb + 4 * rd + 2 * f) * self.RB + nb * self.nb_stride
                r = self.wf + (buf * self.NB + nb) * 4 + rd * 2
                out.append((f"ds_read_b64_tr_b16 {v(r,2)}, v{va} offset:{off}", ("F", t, st, nb)))
        return out

    realbar = -1
    xdyn = False
    FD = 1
    xstage = None
    wflags = ""
    throttle = None
    lastbar = None
    nland = 0
    def barrier(self, t):
        if t < self.npre: return
        if self.lastbar is not None and t > self.lastbar: return
        tw = self.nstage - 1 if t == self.lastbar else t
        assert not self.do_w or tw < self.nland or ("W", tw, len(self.vwd) - 1) in self.issued, (t, tw)
        self.A.wait_vm(lambda g: g == ("W", tw))
        self.A("s_barrier")
        self.realbar = t

    def run_idle(self):
        for t in range(self.npre, self.nstage): self.A("s_barrier")

    def prefetch(self, n):
        self.do_w = True; self.cur_stage, self.cur_step = -1, 0
        for it in self.load_list(False, True):
            if it[1] < n: self.issue(it)

    def run_loader(self, after_bar=None, issue_first=False):
        L = self.load_list(False, True); self.do_w = True
        self.cur_stage, self.cur_step = -1, 0
        k = 0
        for t in range(self.nstage + 1):
            lim = max(self.LA, min(t + self.WSL - 2, t + self.LA))
            while k < len(L) and L[k][1] < lim and (L[k][1] < self.WSL or self.realbar >= L[k][1] - self.WSL + 2):
                self.issue(L[k]); k += 1
            if after_bar and t > 0: after_bar(t - 1)
            if t < self.nstage: self.barrier(t)
        assert k == len(L)

    def xread(self, t, st):
        xs = self.xstage
        r = self.xa + ((t % 2) * 4 + st) * 4
        self.A(f"ds_read_b128 {v(r,4)}, v{xs['vrd'][st]} offset:{(t % xs['nslot']) * 4096}", ("XR", t, st))

    def run(self, zero_init=True, do_w=True, extra=(), extra_at=3, wlead=0, sb=0, stage_end=None, per_mfma=None, tail=(), rate=None):
        A = self.A
        tail = list(tail)
        L = self.load_list(True, do_w, wlead); self.do_w = do_w
        pos = next(i for i, it in enumerate(L) if it[0] == "X" and it[1] == extra_at)
        L[pos:pos] = list(extra)
        self.cur_stage, self.cur_step = -1, 0
        k = min(self.PRE, len(L))
        for it in L[:k]: self.issue(it)
        self.barrier(0)
        stamp(A, sb + 1)
        xs = self.xstage
        if xs:
            A.wait_vm(lambda g: g == ("X", 0, 3))
            for st in range(4): self.xread(0, st)
        FD = self.FD
        for q in range(FD):
            for ins, tag in self.tr_reads(0, q, q): A(ins, tag)
        gstep = 0
        nm = self.NB
        per_stage = 4 + (len(self.vwd) if do_w else 0)
        rate = (rate or per_stage) / (4.0 * nm)
        credit = 0.0
        for t in range(self.nstage):
            for st in range(4):
                self.cur_stage, self.cur_step = t, st
                buf = gstep % (FD + 1)
                if st == 4 - FD and t + 1 < self.nstage: self.barrier(t + 1)
                gn = gstep + FD
                nreads = self.tr_reads(gn // 4, gn % 4, gn % (FD + 1)) if gn < 4 * self.nstage else []
                if xs:
                    xr = self.xa + ((t % 2) * 4 + st) * 4
                    if st >= 2 and t + 1 < self.nstage:
                        if st == 2:
                            assert ("X", t + 1, 3) in self.issued
                            A.wait_vm(lambda g: g == ("X", t + 1, 3))
                        self.xread(t + 1, 2 * (st - 2)); self.xread(t + 1, 2 * (st - 2) + 1)
                else:
                    xr = self.xa + ((t % self.XS) * 4 + st) * 4
                    assert ("X", t, st) in self.issued
                    A.wait_vm(lambda g: g == ("X", t, st))
                for nb in range(self.NB):
                    A.wait_lg(lambda g: g == ("F", t, st, nb) or g == ("XR", t, st))
                    ac = self.acc + nb * 16
                    wr = self.wf + (buf * self.NB + nb) * 4
                    c = "0" if (zero_init and gstep == 0) else v(ac, 16)
                    A(f"v_mfma_f32_32x32x16_bf16 {v(ac,16)}, {v(wr,4)}, {v(xr,4)}, {c}")
                    for ins, tag in nreads[2 * nb:2 * nb + 2]: A(ins, tag)
                    if per_mfma: per_mfma(xr, nb)
                    if tail and self.realbar == self.lastbar and nb == 1: tail.pop(0)()
                    credit += rate
                    while credit >= 1.0 - 1e-9 and k < len(L):
                        it = L[k]
                        if not callable(it):
                            if it[0] == "X" and xs:
                                if not (it[1] - xs["nslot"] < t or it[1] < xs["nslot"]): break
                            elif it[0] == "X" and not (it[1] - self.XS < t or (it[1] - self.XS == t and it[2] < st)): break
                            if it[0] == "W" and not (it[1] < self.WSL or self.realbar >= it[1] - self.WSL + 2): break
                            credit -= 1.0
                        else: credit -= 0.25
                        self.issue(it); k += 1
                gstep += 1
            if stage_end: stage_end(t)
        assert k == len(L), (k, len(L))
        assert not tail
        stamp(A, sb + 2)

ROT = env("ROT", 0)
def rot_calc(A, kind):
    n = 27 if kind == "p5" else 10
    A(f"s_mul_i32 s21, s18, {n}"); A("s_lshr_b32 s21, s21, 3")
    if ROT:
        if kind == "p1":
            A("s_lshr_b32 s22, s19, 1"); A("s_add_u32 s21, s21, s22")
            if ROT == 1: A("s_and_b32 s22, s19, 1"); A("s_mul_i32 s22, s22, 5"); A("s_add_u32 s21, s21, s22")
        elif kind == "p4":
            A("s_add_u32 s21, s21, s19")
        else:
            A("s_mul_i32 s22, s19, 171"); A("s_lshr_b32 s22, s22, 9")
            A("s_mul_i32 s23, s22, 3"); A("s_sub_u32 s23, s19, s23")
            if kind == "p5":
                A("s_mul_i32 s22, s22, 11"); A("s_lshr_b32 s22, s22, 2"); A("s_mul_i32 s23, s23, 9")
            else:
                A("s_mul_i32 s23, s23, 3")
            A("s_add_u32 s21, s21, s22")
            if ROT == 1: A("s_add_u32 s21, s21, s23")
        mag = (65536 + n - 1) // n
        A(f"s_mul_i32 s22, s21, {mag}"); A("s_lshr_b32 s22, s22, 16"); A(f"s_mul_i32 s22, s22, {n}"); A("s_sub_u32 s21, s21, s22")

def rot_init(A, kind, w_row_stride, wskip=0):
    nstage = 27 if kind == "p5" else 10
    rot_calc(A, kind)
    A("s_lshl_b32 s30, s21, 11")
    if wskip:
        A(f"s_add_u32 s21, s21, {wskip}"); A(f"s_cmp_ge_u32 s21, {nstage}"); A(f"s_cselect_b32 s22, {nstage}, 0"); A("s_sub_u32 s21, s21, s22")
    A(f"s_mul_i32 s31, s21, {64 * w_row_stride}")

def tr_lane_addr(A, dst, PS, RB, cg_stride, t0, base=0):
    A(f"v_bfe_u32 v{t0}, v1, 2, 2")
    A(f"v_mul_u32_u24 v{dst}, {PS}, v{t0}")
    A(f"v_mul_u32_u24 v{t0}, {RB}, v3")
    A(f"v_add_u32 v{dst}, v{dst}, v{t0}")
    A(f"v_bfe_u32 v{t0}, v1, 4, 1")
    A(f"v_mul_u32_u24 v{t0}, {cg_stride}, v{t0}")
    A(f"v_add_u32 v{dst}, v{dst}, v{t0}")
    A(f"v_and_b32 v{t0}, 3, v1")
    A(f"v_lshl_add_u32 v{dst}, v{t0}, 3, v{dst}")
    if base: A(f"v_add_u32 v{dst}, {base}, v{dst}")

def cl_lane_off(A, dst, stok, tb_stride, t0):
    A(f"v_lshrrev_b32 v{t0}, 4, v2")
    A(f"s_lshr_b32 s21, s{stok}, 4")
    A(f"v_add_u32 v{t0}, s21, v{t0}")
    A(f"s_mov_b32 s21, {tb_stride}")
    A(f"v_mul_lo_u32 v{dst}, v{t0}, s21")
    A(f"v_lshl_add_u32 v{dst}, v3, 8, v{dst}")
    A(f"v_and_b32 v{t0}, 15, v2")
    A(f"v_lshl_add_u32 v{dst}, v{t0}, 4, v{dst}")

def wdma_off(A, dst, n, lanes_per_row, row_stride, scol, splane, t0):
    sh = {8: 3, 16: 4}[lanes_per_row]; R = 64 // lanes_per_row
    A(f"v_lshrrev_b32 v{t0}, {sh}, v1")
    A(f"v_lshlrev_b32 v{t0}, 2, v{t0}")
    A(f"v_add_u32 v{t0}, s{splane}, v{t0}")
    A(f"v_mul_u32_u24 v{t0}, {row_stride}, v{t0}")
    A(f"v_and_b32 v{t0+1}, {lanes_per_row-1}, v1")
    A(f"v_lshl_add_u32 v{t0}, v{t0+1}, 4, v{t0}")
    A(f"v_add_u32 v{dst}, s{scol}, v{t0}")
    for j in range(1, n): A(f"v_add_u32 v{dst+j}, {4*R*j*row_stride}, v{dst}")

def stats_off(A, dst, stok_local, t0):
    A(f"v_add_u32 v{t0}, s{stok_local}, v2")
    A(f"v_lshlrev_b32 v{dst}, 3, v{t0}")
    A(f"v_mul_u32_u24 v{t0}, 10240, v3")
    A(f"v_add_u32 v{dst}, v{dst}, v{t0}")
    A("s_mul_i32 s21, s18, 20480")
    A(f"v_add_u32 v{dst}, s21, v{dst}")

def l0_only(A, fn, name):
    l = A.newlabel(name)
    A("s_cmp_lg_u32 s16, 0"); A(f"s_cbranch_scc1 {l}")
    h = list(A.hist)
    fn()
    A.fence(); A.label(l)
    A.hist = h

def reset(A): A.vm = []; A.lg = []

def phase1(A, L0):
    n = "p1a" if L0 else "p1b"
    PS, RB, SLOT = 4160, 256, 16640
    WSL, XS = (5, 2) if L0 else (env("WSL1", 9), 6)
    XST = 5 * SLOT
    VX, VWD, VTR, VST, VCS, VOUT, NM, RS = 4, 4, 9, 12, 13, 14, 16, 18
    TMP = 20; WF = 32; ACC = 64; CS = 128; XA = 144; SA = 240; ONE = 244; VXR = 248
    A("s_cmp_lt_u32 s19, 30"); A(f"s_cbranch_scc1 L_{n}_go")
    if L0:
        flags_zero(A, 4); A.wait_vm_all(); census_post(A, 4)
        warm_code(A)
        l = A.newlabel("cw")
        A("s_cmp_lg_u32 s20, 4"); A(f"s_cbranch_scc1 {l}")
        census_wait(A, 4, 64); A.wait_lg_all()
        join(A, l)
        A("s_barrier")
        read_mode(A, 4)
    A("s_branch L_p1_done")
    A.label(f"L_{n}_go"); reset(A)
    A("s_and_b32 s26, s20, 3")
    A("s_and_b32 s24, s19, 1"); A("s_lshl_b32 s24, s24, 7")
    A("s_lshl_b32 s25, s26, 5"); A("s_add_u32 s24, s24, s25")
    A("s_lshl_b32 s27, s18, 8"); A("s_add_u32 s27, s27, s24")
    A("s_lshr_b32 s28, s19, 1")
    rot_init(A, "p1", 3840)
    def mk():
        g = Gemm(A, 4, 10, XS, WSL, SLOT, RB, 64, ACC, WF, XA, VX, [VWD + j for j in range(4)], [12] * 4,
                 [1024 * j for j in range(4)], [VTR, VTR + 1, VTR + 2], 8, 3840,
                 env("PRE1A", 12) if L0 else env("PRE1", 8), env("LA1A", 3) if L0 else env("LA1", 7))
        if L0: g.xstage = dict(vdma=[VX + j for j in range(4)], vrd=[VXR + j for j in range(4)], nslot=4)
        return g
    A("s_cmp_lt_u32 s20, 4"); A(f"s_cbranch_scc1 L_{n}_comp")
    srd(A, 12, SWQKV, 0, D * 1920 * 2)
    A(f"v_lshrrev_b32 v{TMP}, 4, v1"); A(f"v_lshlrev_b32 v{TMP}, {3 if L0 else 2}, v{TMP}"); A(f"v_add_u32 v{TMP}, s26, v{TMP}")
    A(f"v_mul_u32_u24 v{TMP}, 3840, v{TMP}")
    A(f"v_and_b32 v{TMP+1}, 15, v1"); A(f"v_lshl_add_u32 v{TMP}, v{TMP+1}, 4, v{TMP}")
    A("s_lshl_b32 s25, s28, 8"); A(f"v_add_u32 v{VWD}, s25, v{TMP}")
    A(f"v_add_u32 v{VWD+1}, {(4 if L0 else 16)*3840}, v{VWD}"); A(f"v_add_u32 v{VWD+2}, {32*3840}, v{VWD}"); A(f"v_add_u32 v{VWD+3}, {32*3840}, v{VWD+1}")
    A(f"s_mul_i32 s32, s26, {PS}")
    if not L0:
        g = mk(); g.throttle = env("THR1", 0) or None
        if env("W1DEP", 0): A(f"s_sleep {env('W1DEP', 0)}")
        g.run_loader()
        A("s_barrier")
        A("s_branch L_p1_done")
    else:
        flags_zero(A, TMP)
        def after(t):
            if t == 0:
                census_post(A, TMP)
                tr_lane_addr(A, VTR, PS, RB, 32, TMP)
                A("s_lshl_b32 s21, s26, 6"); A(f"v_add_u32 v{VTR}, s21, v{VTR}"); A(f"v_add_u32 v{VTR+1}, {3*SLOT}, v{VTR}")
                A(f"v_mov_b32 v{ONE}, 0x3f803f80")
                for k in range(4): A(f"v_mov_b32 v{SA+k}, 0")
            slot = t % WSL
            if env("NOCS1", 0): return
            for q in range(8):
                A(f"ds_read_b64_tr_b16 {v(WF + 2*q, 2)}, v{VTR + slot // 3} offset:{(slot % 3) * SLOT + 2 * q * RB}")
            A.wait_lg_all()
            for q in range(16):
                if env("CSDOT", 1): A(f"v_dot2_f32_bf16 v{SA + (q & 3)}, v{WF+q}, v{ONE}, v{SA + (q & 3)}")
                else:
                    A(f"v_lshlrev_b32 v{TMP+4}, 16, v{WF+q}"); A(f"v_and_b32 v{TMP+5}, 0xffff0000, v{WF+q}")
                    A(f"v_add_f32 v{SA + 2*(q & 1)}, v{SA + 2*(q & 1)}, v{TMP+4}"); A(f"v_add_f32 v{SA + 2*(q & 1) + 1}, v{SA + 2*(q & 1) + 1}, v{TMP+5}")
        mk().run_loader(after_bar=after, issue_first=True)
        A("s_nop 3")
        A(f"v_add_f32 v{SA}, v{SA}, v{SA+1}"); A(f"v_add_f32 v{SA+2}, v{SA+2}, v{SA+3}"); A(f"v_add_f32 v{SA}, v{SA}, v{SA+2}")
        A(f"v_mov_b32 v{SA+1}, v{SA}"); A(f"v_permlane32_swap_b32 v{SA}, v{SA+1}"); A(f"v_add_f32 v{SA}, v{SA}, v{SA+1}")
        A("s_lshl_b32 s21, s26, 7"); A(f"s_add_u32 s21, s21, {CS1}")
        A(f"v_lshlrev_b32 v{TMP}, 2, v2"); A(f"v_add_u32 v{TMP}, s21, v{TMP}")
        A(f"ds_write_b32 v{TMP}, v{SA}")
        l = A.newlabel("cw")
        A("s_cmp_lg_u32 s20, 4"); A(f"s_cbranch_scc1 {l}")
        census_wait(A, TMP, 8)
        join(A, l)
        A.wait_lg_all()
        A("s_barrier")
        read_mode(A, TMP)
        A("s_branch L_p1_done")
    A.label(f"L_{n}_comp"); reset(A)
    if L0:
        srd(A, 8, SX, 0, XB)
        A(f"v_lshrrev_b32 v{TMP}, 3, v1"); A(f"v_add_u32 v{TMP}, s27, v{TMP}"); A(f"v_mul_u32_u24 v{TMP}, 1280, v{TMP}")
        A(f"v_lshrrev_b32 v{TMP+1}, 4, v1"); A(f"v_and_b32 v{TMP+2}, 7, v1"); A(f"v_xor_b32 v{TMP+1}, v{TMP+1}, v{TMP+2}")
        A(f"v_lshl_add_u32 v{VX}, v{TMP+1}, 4, v{TMP}")
        A(f"v_xor_b32 v{TMP+1}, 4, v{TMP+1}"); A(f"v_lshl_add_u32 v{VX+1}, v{TMP+1}, 4, v{TMP}"); A(f"v_add_u32 v{VX+1}, {8*1280}, v{VX+1}")
        A(f"v_add_u32 v{VX+2}, {16*1280}, v{VX}"); A(f"v_add_u32 v{VX+3}, {16*1280}, v{VX+1}")
        A("s_lshr_b32 s30, s30, 4")
        A("s_lshl_b32 s33, s26, 14"); A(f"s_add_u32 s33, s33, {XST}")
    else:
        cl_lane_off(A, VX, 27, 20480, TMP)
        srd(A, 8, SWS, WS_XIN, XB)
    def setup():
        tr_lane_addr(A, VTR, PS, RB, 32, TMP)
        A(f"v_add_u32 v{VTR+1}, {3*SLOT}, v{VTR}")
        A(f"v_add_u32 v{VTR+2}, {6*SLOT}, v{VTR}")
        A(f"v_and_b32 v{TMP}, 15, v1"); A(f"v_lshlrev_b32 v{VOUT}, 4, v{TMP}"); A(f"v_lshl_add_u32 v{VOUT}, v3, 11, v{VOUT}")
        A(f"v_bfe_u32 v{TMP}, v1, 4, 1"); A(f"v_lshl_add_u32 v{VOUT}, v{TMP}, 12, v{VOUT}")
        A("s_lshl_b32 s21, s24, 3"); A(f"v_add_u32 v{VOUT}, s21, v{VOUT}")
        A(f"v_lshlrev_b32 v{VCS}, 4, v3"); A(f"v_add_u32 v{VCS}, {CS1}, v{VCS}")
        srd(A, 80, SWS, WS_QKV, QKV_B)
        if L0:
            A(f"v_bfe_u32 v{TMP}, v1, 1, 3"); A(f"v_xor_b32 v{TMP}, v{TMP}, v3")
            A(f"v_lshlrev_b32 v{TMP+1}, 7, v2"); A(f"v_add_u32 v{TMP+1}, s33, v{TMP+1}")
            for st in range(4):
                A(f"v_xor_b32 v{TMP+2}, {2*st}, v{TMP}"); A(f"v_lshl_add_u32 v{VXR+st}, v{TMP+2}, 4, v{TMP+1}")
            A(f"v_mov_b32 v{ONE}, 0x3f803f80")
            for k in range(4): A(f"v_mov_b32 v{SA+k}, 0")
    if L0:
        stamp(A, 1)
        g = mk()
        def xst(xr, nb):
            if env("NOXST", 0): return
            A(f"v_dot2_f32_bf16 v{SA + 2*(nb & 1)}, v{xr+nb}, v{ONE}, v{SA + 2*(nb & 1)}")
            A(f"v_dot2_f32_bf16 v{SA + 2*(nb & 1) + 1}, v{xr+nb}, v{xr+nb}, v{SA + 2*(nb & 1) + 1}")
        g.PRE += 1
        g.run(do_w=False, extra=[setup], extra_at=(g.PRE - 1) // 4, sb=1, per_mfma=xst)
        A("s_nop 3")
        A(f"v_pk_add_f32 {v(TMP,2)}, {v(SA,2)}, {v(SA+2,2)}")
        finish_stats(A, TMP, NM, RS, TMP + 10, single=True)
        A.fence()
        A("s_branch L_p1_epi")
        return
    setup()
    stats_off(A, VST, 24, TMP)
    srd(A, 36, SWS, WS_STA, ST_B)
    wait_local(A, 3, 30, 0x07, TMP, layer_delta=-1)
    reset(A)
    stamp(A, 1)
    mk().run(do_w=False, extra=stats_items(A, VST, 36, TMP), sb=1)
    finish_stats(A, TMP, NM, RS, TMP + 10)
    join(A, "L_p1_epi"); reset(A)
    A("s_cmp_lt_u32 s28, 5")
    A(f"s_cselect_b32 s21, {f32(20 ** -0.5 * 1.4426950408889634)}, 1.0")
    A(f"v_mul_f32 v{RS}, s21, v{RS}")
    A("s_barrier")
    csr = lambda nb: (WF + (nb & 1) * 16) if nb != 0 else CS
    def csread(nb):
        for i in range(4): A(f"ds_read_b128 {v(csr(nb) + i*4, 4)}, v{VCS} offset:{nb*128 + i*32}", ("C", nb, i))
    csread(0); csread(1); csread(2)
    A("s_mul_i32 s24, s18, 480"); A("s_lshl_b32 s25, s28, 5"); A("s_add_u32 s24, s24, s25"); A("s_lshl_b32 s24, s24, 11")
    for nb in range(4):
        if nb == 2: csread(3)
        for ip in range(2):
            r = ACC + nb * 16 + ip * 8; c = csr(nb) + ip * 8
            A.wait_lg(lambda g: g == ("C", nb, 2 * ip + 1))
            for k in range(0, 8, 2):
                A(f"v_pk_fma_f32 {v(r+k,2)}, {v(c+k,2)}, {v(NM,2)}, {v(r+k,2)} op_sel_hi:[1,0,1]")
            for k in range(0, 8, 2):
                A(f"v_pk_mul_f32 {v(r+k,2)}, {v(r+k,2)}, {v(RS,2)} op_sel_hi:[1,0]")
            for k in range(4):
                A(f"v_cvt_pk_bf16_f32 v{r+k}, v{r+2*k}, v{r+2*k+1}")
            A(f"s_add_u32 s21, s24, {(8*nb + 4*ip) * 2048}")
            A(f"v_permlane16_swap_b32 v{r}, v{r+2}")
            A(f"v_permlane16_swap_b32 v{r+1}, v{r+3}")
            A(f"buffer_store_dwordx4 {v(r,4)}, v{VOUT}, s[80:83], s21 offen sc1")
    read_mode(A, TMP)
    stamp(A, 4)
    A("s_lshl_b32 s21, s16, 3"); A("s_add_u32 s21, s21, s18"); A("s_lshl_b32 s21, s21, 5"); A("s_add_u32 s21, s21, s19")
    A("s_lshl_b32 s21, s21, 7"); A("s_add_u32 s21, s21, s20"); A("s_add_u32 s21, s21, 0x10000")
    A(f"v_mov_b32 v{TMP}, s21"); A(f"v_mov_b32 v{TMP+1}, 1")
    A.wait_vm_all()
    A("s_mov_b64 exec, 1")
    A(f"buffer_store_byte v{TMP+1}, v{TMP}, {s(SFL,4)}, 0 offen sc1")
    A("s_mov_b64 exec, -1")
    signal_local(A, 4, TMP + 2, nowait=True)
    stamp(A, 5)
    join(A, "L_p1_done"); reset(A)

P35 = dict(PS=2112, RB=128, SLOT=8448)
def p35_ids(A):
    A("s_mul_i32 s28, s19, 171"); A("s_lshr_b32 s28, s28, 9")
    A("s_mul_i32 s25, s28, 3"); A("s_sub_u32 s24, s19, s25")
    A("s_mul_i32 s24, s24, 80")
    A("s_and_b32 s26, s20, 3")
    A("s_lshl_b32 s25, s26, 5"); A("s_add_u32 s24, s24, s25")
    A("s_lshl_b32 s27, s18, 8"); A("s_add_u32 s27, s27, s24")

def p35_gemm(A, nstage, WSL, PRE, LA, npre):
    g = Gemm(A, 2, nstage, 9, WSL, 8448, 128, 64, 48, 24, 96, 4, [6, 7], [12] * 2,
             [0, 1024], [8, 9, 13], 8, D * 2, PRE, LA, npre)
    g.FD = env("FD35", 2)
    return g

def p35_loader_setup(A, sw, K, base):
    A("s_lshl_b32 s25, s28, 7")
    wdma_off(A, 6, 2, 8, D * 2, 25, 26, 16)
    A(f"s_mul_i32 s32, s26, 2112")
    if base: A(f"s_add_u32 s32, s32, {base}")
    srd(A, 12, sw, 0, K * D * 2)

def p35_compute(A, nstage, WSL, npre, base, ws_x, x_bytes, ws_res, ws_out, ws_st, waitf, sigk, can_final, sb, PRE):
    VX, VTR, VRES, VST, VOUT = 4, 8, 10, 11, 12
    TMP = 16; ACC = 48; RES = 80
    cl_lane_off(A, VX, 27, nstage * 2048, TMP)
    tr_lane_addr(A, VTR, 2112, 128, 32, TMP, base)
    A(f"v_add_u32 v{VTR+1}, {7*8448}, v{VTR}"); A(f"v_add_u32 v13, {14*8448}, v{VTR}")
    cl_lane_off(A, VRES, 27, 20480, TMP)
    A("s_lshl_b32 s21, s28, 11")
    A(f"v_add_u32 v{VRES}, s21, v{VRES}")
    if True:
        A(f"v_add_u32 v{TMP}, s27, v2")
        A(f"v_mul_u32_u24 v{VOUT}, {D*2}, v{TMP}")
        A("s_lshl_b32 s21, s28, 7")
        A(f"v_add_u32 v{VOUT}, s21, v{VOUT}")
        A(f"v_lshl_add_u32 v{VOUT}, v3, {5 if can_final else 3}, v{VOUT}")
    A(f"v_add_u32 v{TMP}, s24, v2"); A(f"v_lshlrev_b32 v{VST}, 3, v{TMP}")
    A("s_mul_i32 s21, s18, 10"); A("s_add_u32 s21, s21, s28"); A("s_lshl_b32 s21, s21, 11")
    A(f"v_add_u32 v{VST}, s21, v{VST}")
    A("s_cmp_eq_u32 s24, 80"); A("s_cselect_b32 s22, 0xffff, 0"); A("s_cmp_eq_u32 s24, 160"); A("s_cselect_b32 s22, 0xffff, s22"); A("s_mov_b32 s23, s22")
    A(f"v_mov_b32 v{TMP}, {OOB:#x}")
    A(f"v_cndmask_b32 v14, v{VRES}, v{TMP}, s[22:23]"); A(f"v_cndmask_b32 v{VST}, v{VST}, v{TMP}, s[22:23]")
    if can_final: A(f"v_cndmask_b32 v{VOUT}, v{VOUT}, v{TMP}, s[22:23]")
    srd(A, 8, SWS, ws_x, x_bytes)
    srd(A, 36, SWS, ws_res, XB)
    srd(A, 76, SWS, ws_out, XB)
    srd(A, 80, SWS, ws_st, ST_B)
    if not can_final:
        A("s_cmp_lg_u32 s16, 0"); A("s_cbranch_scc1 L_p3_rescl")
        srd(A, 36, SX, 0, XB)
        for nb in range(2):
            for half in range(2):
                p = RES + (nb * 2 + half) * 4
                A(f"buffer_load_dwordx2 {v(p,2)}, v{VOUT}, s[36:39], 0 offen offset:{(32*nb + 8*half)*2}")
                A(f"buffer_load_dwordx2 {v(p+2,2)}, v{VOUT}, s[36:39], 0 offen offset:{(32*nb + 16 + 8*half)*2}")
        A("s_branch L_p3_resdone")
        A.label("L_p3_rescl")
    for nb in range(2):
        for half in range(2):
            A(f"buffer_load_dwordx4 {v(RES + (nb*2+half)*4, 4)}, v{VRES}, s[36:39], 0 offen offset:{nb*1024 + half*512} sc1", ("R",))
    if not can_final: A.label("L_p3_resdone")
    if can_final: A("s_barrier")
    waitf(TMP); reset(A)
    stamp(A, sb)
    p35_gemm(A, nstage, WSL, PRE, 0, npre).run(do_w=False, sb=sb)
    A("s_barrier")
    for nb in range(2):
        for half in range(2):
            p = RES + (nb * 2 + half) * 4
            for j in range(4):
                src = ACC + nb * 16 + 4 * half + (j >> 1) * 8 + (j & 1) * 2
                A(f"v_lshlrev_b32 v{TMP}, 16, v{p+j}")
                A(f"v_and_b32 v{TMP+1}, 0xffff0000, v{p+j}")
                A(f"v_pk_add_f32 {v(src,2)}, {v(src,2)}, {v(TMP,2)}")
                A(f"v_cvt_pk_bf16_f32 v{p+j}, v{src}, v{src+1}")
    if can_final:
        A("s_cmp_eq_u32 s16, 0"); A("s_cbranch_scc1 L_p5_notfinal")
        srd(A, 76, SOUT, 0, XB)
        for nb in range(2):
            for half in range(2):
                p = RES + (nb * 2 + half) * 4
                A(f"v_permlane32_swap_b32 v{p}, v{p+2}")
                A(f"v_permlane32_swap_b32 v{p+1}, v{p+3}")
                A(f"buffer_store_dwordx4 {v(p,4)}, v{VOUT}, s[76:79], 0 offen offset:{(32*nb + 8*half)*2}")
        A("s_branch L_exit")
        A.label("L_p5_notfinal"); reset(A)
    for nb in range(2):
        for half in range(2):
            p = RES + (nb * 2 + half) * 4
            A(f"buffer_store_dwordx4 {v(p,4)}, v14, s[76:79], 0 offen offset:{nb*1024 + half*512}{STF}")
    for k in range(4): A(f"v_mov_b32 v{TMP+k}, 0")
    A(f"v_mov_b32 v{TMP+4}, 0x3f803f80")
    for j in range(16):
        o = 2 * (j & 1)
        A(f"v_dot2_f32_bf16 v{TMP+o}, v{RES+j}, v{TMP+4}, v{TMP+o}")
        A(f"v_dot2_f32_bf16 v{TMP+o+1}, v{RES+j}, v{RES+j}, v{TMP+o+1}")
    A("s_nop 3")
    A(f"v_pk_add_f32 {v(TMP,2)}, {v(TMP,2)}, {v(TMP+2,2)}")
    A(f"v_mov_b32 v{TMP+2}, v{TMP}"); A(f"v_mov_b32 v{TMP+3}, v{TMP+1}")
    A(f"v_permlane32_swap_b32 v{TMP}, v{TMP+2}")
    A(f"v_permlane32_swap_b32 v{TMP+1}, v{TMP+3}")
    A(f"v_pk_add_f32 {v(TMP,2)}, {v(TMP,2)}, {v(TMP+2,2)}")
    A(f"buffer_store_dwordx2 {v(TMP,2)}, v{VST}, s[80:83], 0 offen{STF}")
    stamp(A, sb + 3)
    signal_local(A, sigk, TMP + 4)
    stamp(A, sb + 4)

def phase2(A):
    PSK, PSV = 4096, 4160
    KOFF, VOFF = 0, 6 * 4096
    QOFF = VOFF + 6 * PSV
    VL16, VQ, VQ2, VK1, VK2, VV, VO, VWA, VWB, VW4 = 4, 5, 6, 7, 8, 9, 10, 12, 13, 252
    TMP = 14; Q1, Q2 = 20, 24; MSK = 26; KF = 34; VF = 52; O = 68; PB = 84; S = 100; MX = 244; DUM = 248
    A("s_mul_i32 s25, s19, 5")
    A(f"v_lshlrev_b32 v{VL16}, 4, v1")
    srd(A, 8, SWS, WS_QKV, QKV_B)
    A("s_lshl_b32 s24, s20, 5")
    A(f"v_and_b32 v{TMP+4}, 15, v1"); A(f"v_bfe_u32 v{TMP+5}, v1, 4, 1")
    A(f"v_lshlrev_b32 v{VK2}, 4, v{TMP+4}"); A(f"v_lshl_add_u32 v{VK2}, v{TMP+5}, 3, v{VK2}")
    A("s_lshl_b32 s21, s20, 8"); A(f"v_add_u32 v{VK2}, s21, v{VK2}")
    A(f"v_lshl_add_u32 v{VK1}, v3, 12, v{VK2}")
    A(f"v_add_u32 v{VQ2}, {QOFF}, v{VK2}"); A(f"v_lshl_add_u32 v{VQ}, v3, 11, v{VQ2}")
    srd(A, 12, SWS, WS_O, XB)
    A(f"v_mov_b32 v{TMP+2}, 0x3f803f80"); A(f"v_mov_b32 v{TMP+3}, 0x3f803f80")
    A(f"v_lshlrev_b32 v{TMP+1}, 3, v0")
    A(f"ds_write_b64 v{TMP+1}, {v(TMP+2,2)} offset:{VOFF + 5*PSV}")
    A("s_lshr_b32 s22, s20, 2"); A("s_add_u32 s22, s22, s18"); A("s_cmp_eq_u32 s22, 0"); A("s_cselect_b32 s22, 0xf149, 0")
    A(f"v_mov_b32 v{Q1}, s22"); A(f"v_mov_b32 v{Q1+1}, 0")
    A(f"ds_write_b64 v{TMP+1}, {v(Q1,2)} offset:{KOFF + 5*PSK}")
    A(f"v_and_b32 v{TMP}, 3, v1")
    A(f"v_lshl_add_u32 v{TMP+1}, v{TMP+5}, 2, v{TMP}"); A(f"v_min_u32 v{TMP+1}, 5, v{TMP+1}")
    A(f"v_mul_u32_u24 v{VV}, {PSV}, v{TMP+1}")
    A(f"v_bfe_u32 v{TMP+1}, v1, 2, 2"); A(f"v_lshl_add_u32 v{TMP+1}, v3, 2, v{TMP+1}")
    A(f"v_lshl_add_u32 v{VV}, v{TMP+1}, 4, v{VV}"); A(f"v_add_u32 v{VV}, s21, v{VV}")
    A("s_lshl_b32 s21, s18, 4"); A("s_lshl_b32 s22, s20, 1"); A("s_add_u32 s21, s21, s22")
    A(f"v_add_u32 v{TMP+1}, s21, v{TMP+5}"); A(f"v_mul_u32_u24 v{TMP+1}, 20480, v{TMP+1}")
    A(f"v_lshl_add_u32 v{TMP+1}, v{TMP+4}, 4, v{TMP+1}")
    A("s_lshl_b32 s21, s19, 9"); A(f"v_add_u32 v{VO}, s21, v{TMP+1}"); A(f"v_lshl_add_u32 v{VO}, v3, 8, v{VO}")
    A("s_lshr_b32 s21, s19, 1"); A("s_lshl_b32 s21, s21, 8"); A("s_and_b32 s22, s19, 1"); A("s_lshl_b32 s22, s22, 3"); A("s_add_u32 s21, s21, s22"); A(f"s_add_u32 s21, s21, {64*256}")
    A(f"v_add_u32 v{VO+1}, s21, v{TMP+1}"); A(f"v_lshl_add_u32 v{VO+1}, v3, 31, v{VO+1}")
    A("s_mul_i32 s28, s19, 171"); A("s_lshr_b32 s28, s28, 9")
    A("s_and_b32 s26, s20, 3"); A("s_lshr_b32 s27, s20, 2")
    A(f"v_bfe_u32 v{TMP}, v1, 3, 1"); A(f"v_mul_u32_u24 v{TMP+1}, 5, v{TMP+5}"); A(f"v_add_u32 v{TMP}, v{TMP}, v{TMP+1}")
    A(f"v_lshl_add_u32 v{TMP}, v3, 1, v{TMP}"); A("s_mul_i32 s21, s27, 10"); A(f"v_add_u32 v{TMP}, s21, v{TMP}")
    A(f"v_bfe_u32 v{TMP+1}, v1, 3, 2"); A(f"v_mul_u32_u24 v{TMP+1}, 10, v{TMP+1}"); A(f"v_mul_u32_u24 v{TMP+2}, 5, v3"); A(f"v_add_u32 v{TMP+1}, v{TMP+1}, v{TMP+2}")
    A("s_mul_i32 s21, s27, 40"); A("s_add_u32 s21, s21, 4"); A(f"v_add_u32 v{TMP+1}, s21, v{TMP+1}")
    A(f"v_and_b32 v{TMP+2}, 7, v1"); A(f"v_lshlrev_b32 v{TMP+2}, 4, v{TMP+2}")
    A("s_mul_i32 s21, s26, 1280"); A("s_lshl_b32 s22, s28, 7"); A("s_add_u32 s21, s21, s22")
    A("s_cmp_ge_u32 s19, 30"); A(f"s_cselect_b32 s21, {OOB:#x}, s21")
    A(f"v_add_u32 v{TMP+2}, s21, v{TMP+2}")
    A(f"v_mul_u32_u24 v{VWA}, 5120, v{TMP}"); A(f"v_add_u32 v{VWA}, v{VWA}, v{TMP+2}")
    A(f"v_mul_u32_u24 v{VWB}, 5120, v{TMP+1}"); A(f"v_add_u32 v{VWB}, v{VWB}, v{TMP+2}")
    A("s_mul_i32 s32, s26, 2112"); A("s_lshl_b32 s21, s27, 10"); A("s_add_u32 s32, s32, s21"); A(f"s_add_u32 s32, s32, {P3W}")
    A(f"s_add_u32 s34, s32, {10*8448}")
    rot_calc(A, "p3")
    A("s_sub_u32 s21, 10, s21"); A("s_cmp_eq_u32 s21, 10"); A("s_cselect_b32 s21, 0, s21"); A("s_mul_i32 s21, s21, 8448"); A("s_add_u32 s29, s32, s21")
    srd(A, 36, SWO, 0, D * D * 2)
    srd(A, 76, SWS, 0, LS)
    A("s_mul_i32 s21, s18, 327680"); A("s_mul_i32 s22, s19, 10240"); A("s_add_u32 s21, s21, s22"); A("s_lshl_b32 s22, s20, 10"); A("s_add_u32 s21, s21, s22")
    A(f"v_add_u32 v{VW4}, s21, v{VL16}")
    A("s_mul_i32 s21, s18, 20480"); A("s_mul_i32 s22, s19, 640"); A("s_add_u32 s21, s21, s22")
    A(f"v_add_u32 v{VW4+1}, s21, v{VL16}")
    side = []
    for t in range(10):
        def f(t=t):
            A("s_mov_b32 m0, s29")
            A(f"s_mov_b32 s21, {t*80*1280 if t < 8 else (t-8)*320*1280}")
            A(f"buffer_load_dwordx4 v{VWA if t < 8 else VWB}, s[36:39], s21 offen lds", "wo")
            A("s_add_u32 s29, s29, 8448"); A("s_cmp_ge_u32 s29, s34"); A("s_cselect_b32 s29, s32, s29")
        side.append(f)
    if PLAIN:
        def touch(vr, off):
            def f():
                A(f"s_mov_b32 s21, {off:#x}")
                A(f"buffer_load_dwordx4 {v(DUM,4)}, v{vr}, s[76:79], s21 offen sc1", "t")
            return f
        side = [touch(VW4, WS_O), touch(VW4, WS_O + 8192), touch(VW4, WS_X1), touch(VW4, WS_X1 + 8192), touch(VW4 + 1, WS_STB)] + side
    for r in range(16):
        k0 = 8 * (r >> 2) + (r & 3)
        A(f"s_mov_b32 s{40+2*r}, {(0xFFFFFFFF << k0) & 0xFFFFFFFF:#x}")
        A(f"s_mov_b32 s{41+2*r}, {(0xFFFFFFFF << (k0+4)) & 0xFFFFFFFF:#x}")
    A(f"v_mov_b32 v{TMP+4}, 0xffff"); A(f"v_mov_b32 v{TMP+5}, 0xffff0000")
    for j in range(8):
        A(f"v_cndmask_b32 v{MSK+j}, 0, v{TMP+4}, {s(40+4*j,2)}")
        A(f"v_cndmask_b32 v{TMP+1}, 0, v{TMP+5}, {s(42+4*j,2)}")
        A(f"v_or_b32 v{MSK+j}, v{MSK+j}, v{TMP+1}")
    stamp(A, 6)
    A("s_sub_u32 s21, s20, 4"); A("s_cmp_ge_u32 s21, 3"); A("s_cbranch_scc1 L_p2_setup")
    A("s_mul_i32 s25, s19, 5"); A("s_mul_i32 s80, s18, 480"); A("s_add_u32 s80, s80, s25"); A("s_lshl_b32 s80, s80, 11")
    A(f"s_add_u32 s81, s80, {320*2048}")
    A("s_cmp_eq_u32 s20, 6"); A("s_cbranch_scc1 L_p2_halo")
    A("s_cmp_eq_u32 s20, 4")
    A(f"s_cselect_b32 s22, 0, {160*2048}"); A(f"s_cselect_b32 s82, {QOFF}, 0"); A("s_cselect_b32 s83, 0, 1")
    A("s_add_u32 s80, s80, s22"); A("s_lshl_b32 s83, s83, 11"); A("s_add_u32 s82, s82, s83"); A("s_add_u32 s83, s83, 2048")
    A(f"s_mov_b32 s33, {VOFF + 2048}")
    wait_local(A, 4, 30, 0x0f, KF)
    A("s_branch L_p2_ld")
    A.label("L_p2_halo"); reset(A)
    A(f"s_sub_u32 s80, s80, {320*2048}"); A(f"s_sub_u32 s81, s81, {480*2048}")
    A("s_mov_b32 s82, 0"); A("s_mov_b32 s83, 4096"); A(f"s_mov_b32 s33, {VOFF}")
    A("s_cmp_eq_u32 s18, 0"); A(f"s_cselect_b32 s80, {OOB:#x}, s80"); A(f"s_cselect_b32 s81, {OOB:#x}, s81"); A("s_cbranch_scc1 L_p2_ld")
    A(f"v_min_u32 v{KF}, 19, v1"); A(f"v_lshlrev_b32 v{KF}, 7, v{KF}")
    A("s_lshl_b32 s21, s16, 3"); A("s_add_u32 s21, s21, s18"); A("s_lshl_b32 s21, s21, 12"); A(f"s_add_u32 s21, s21, {0x10000 - 4096 + 10*128}")
    A(f"v_add_u32 v{KF}, s21, v{KF}")
    A(f"v_mov_b32 v{KF+1}, 0x01010101")
    def body():
        A(f"buffer_load_dword v{KF+2}, v{KF}, {s(SFL,4)}, 0 offen sc1")
        A.wait_vm_all()
        A(f"v_cmp_ne_u32 vcc, v{KF+2}, v{KF+1}")
    spin(A, body, "p1w", 1)
    join(A, "L_p2_ld"); reset(A)
    stamp(A, 7)
    for i in range(5):
        for c in range(2):
            A(f"s_add_u32 m0, s82, {c*1024}")
            A(f"buffer_load_dwordx4 v{VL16}, s[8:11], s80 offen sc1 lds")
            A("s_add_u32 s80, s80, 1024")
        A("s_add_u32 s82, s82, s83")
    A("s_cmp_eq_u32 s20, 5"); A("s_cbranch_scc1 L_p2_w5")
    for i in range(5):
        for c in range(2):
            A(f"s_add_u32 m0, s33, {i*PSV + c*1024}")
            A(f"buffer_load_dwordx4 v{VL16}, s[8:11], s81 offen sc1 lds")
            A("s_add_u32 s81, s81, 1024")
    A("s_branch L_p2_setup")
    A.label("L_p2_w5")
    A("s_waitcnt vmcnt(0)")
    join(A, "L_p2_setup"); reset(A)
    A("s_waitcnt vmcnt(10)"); A.wait_lg_all()
    A.vm = ["V"] * 10
    A("s_barrier")
    stamp(A, 8)
    A(f"ds_read_b64 {v(Q1,2)}, v{VQ}", ("K", 0))
    A(f"ds_read_b64 {v(Q1+2,2)}, v{VQ} offset:4096", ("K", 0))
    A(f"ds_read_b64 {v(Q2,2)}, v{VQ2} offset:8192", ("K", 0))
    qorder = [0, 8, 1, 2, 3, 4, 5, 6, 7]
    def kreads(n):
        d = qorder[n]; b = KF + (n % 3) * 6
        for q in range(3):
            A(f"ds_read_b64 {v(b+2*q,2)}, v{VK1} offset:{KOFF + 2*q*PSK + d*256}", ("K", n))
    work = {}
    work[1] = [f"v_cndmask_b32 v{S+r}, v{S+r}, v{S+128+r}, {s(40+2*r,2)}" for r in range(16)]
    work[1] += [f"v_max_f32 v{MX+c}, v{S+2*c}, v{S+2*c+1}" for c in range(2)]
    work[1] += [f"v_max3_f32 v{MX+(k&1)}, v{MX+(k&1)}, v{S+2*k}, v{S+2*k+1}" for k in range(2, 8)]
    for n in range(2, 9):
        sb = S + 16 * qorder[n]
        work[n] = [f"v_max3_f32 v{MX+(k&1)}, v{MX+(k&1)}, v{sb+2*k}, v{sb+2*k+1}" for k in range(8)]
    pend = []
    kreads(0); kreads(1)
    for n in range(9):
        d = qorder[n]
        if n + 2 < 9: kreads(n + 2)
        A.wait_lg(lambda g: g == ("K", n))
        b = KF + (n % 3) * 6
        if n == 0:
            A("s_mov_b32 s22, -1"); A("s_mov_b32 s23, 0"); A(f"v_mov_b32 v{MX+2}, 0x3f80")
            A(f"v_cndmask_b32 v{Q2}, v{MX+2}, v{Q2}, s[22:23]"); A(f"v_cndmask_b32 v{Q2+1}, 0, v{Q2+1}, s[22:23]")
        if n - 2 in work: pend += work[n - 2]
        A(f"v_mfma_f32_32x32x16_bf16 {v(S+16*d,16)}, {v(b,4)}, {v(Q1,4)}, 0")
        for _ in range(6):
            if pend: A(pend.pop(0))
        A(f"v_mfma_f32_32x32x8_bf16 {v(S+16*d,16)}, {v(b+4,2)}, {v(Q2,2)}, {v(S+16*d,16)}")
        for _ in range(6):
            if pend: A(pend.pop(0))
    for w_ in pend + work[7] + work[8]: A(w_)
    A(f"v_max_f32 v{MX}, v{MX}, v{MX+1}")
    A(f"v_mov_b32 v{MX+1}, v{MX}")
    A(f"v_permlane32_swap_b32 v{MX}, v{MX+1}")
    A(f"v_max_f32 v{MX}, v{MX}, v{MX+1}")
    stamp(A, 27)
    A.wait_vm_all()
    A("s_barrier")
    stamp(A, 28)
    if env("NOSIDE", 0): side = []
    vbuf = lambda k: (VF + 8 * k) if k < 2 else (PB + 8 * (k - 2))
    vseq = [0, 8, 1, 2, 3, 4, 5, 6, 7]
    def vreads(i):
        d = vseq[i]
        for u in range(2):
            for rd in range(2):
                A(f"ds_read_b64_tr_b16 {v(vbuf(i % 4) + u*4 + rd*2, 2)}, v{VV} offset:{VOFF + d*256 + rd*128 + u*8}", ("V", i))
    mq = []; st_ = dict(first=True, nv=0)
    def pv():
        if not mq: return
        i, u = mq.pop(0)
        A.wait_lg(lambda g: g == ("V", i))
        c = "0" if st_["first"] else v(O, 16); st_["first"] = False
        A(f"v_mfma_f32_32x32x16_bf16 {v(O,16)}, {v(vbuf(i % 4) + u*4, 4)}, {v(S + 16*vseq[i] + u*4, 4)}, {c}")
    vreads(0); vreads(1)
    per = -(-len(side) // 6)
    for d in range(8):
        sb = S + 16 * d
        for r in range(0, 16, 2): A(f"v_pk_add_f32 {v(sb+r,2)}, {v(sb+r,2)}, {v(MX,2)} op_sel_hi:[1,0] neg_lo:[0,1] neg_hi:[0,1]")
        q = 0
        for r in range(16):
            A(f"v_exp_f32 v{sb+r}, v{sb+r}")
            if r in (1, 6) or (r == 11 and d in (1, 2)): pv()
            if r == 13 and d + 2 < 9: vreads(d + 2)
            if r % 4 == 3 and side and q < per: side.pop(0)(); q += 1
        for j in range(8): A(f"v_cvt_pk_bf16_f32 v{sb+j}, v{sb+2*j}, v{sb+2*j+1}")
        if d == 0:
            for j in range(8): A(f"v_and_b32 v{S+128+j}, v{sb+j}, v{MSK+j}")
            for j in range(8): A(f"v_bfi_b32 v{sb+j}, v{MSK+j}, 0, v{sb+j}")
            mq += [(0, 0), (0, 1), (1, 0), (1, 1)]
        else:
            mq += [(d + 1, 0), (d + 1, 1)]
    while mq: pv()
    assert not side
    stamp(A, 9)
    A(f"v_rcp_f32 v{MX}, v{O+12}")
    for k in range(0, 12, 2):
        A(f"v_pk_mul_f32 {v(O+k,2)}, {v(O+k,2)}, {v(MX,2)} op_sel_hi:[1,0]")
    for k in range(6): A(f"v_cvt_pk_bf16_f32 v{PB+k}, v{O+2*k}, v{O+2*k+1}")
    A(f"buffer_store_dwordx4 {v(PB,4)}, v{VO}, s[12:15], 0 offen{STF}")
    A(f"buffer_store_dwordx2 {v(PB+4,2)}, v{VO+1}, s[12:15], 0 offen{STF}")
    signal_local(A, 0, 20)
    stamp(A, 10)
    A("s_barrier")
    A.fence(); reset(A)

def touch_range(A, off, grp_bytes, nwg, base_idx, depth=8):
    per = nwg * 8 * 1024
    n = -(-grp_bytes // per)
    A(f"s_mul_i32 s21, s18, {grp_bytes}")
    srd(A, 36, SWS, off, grp_bytes, soff=21)
    A(f"s_sub_u32 s31, s19, {base_idx}"); A("s_lshl_b32 s31, s31, 3"); A("s_add_u32 s31, s31, s20"); A("s_lshl_b32 s31, s31, 10")
    A("v_lshlrev_b32 v4, 4, v1")
    A("s_mov_b32 s22, 0")
    lp = A.newlabel("tr")
    A.label(lp)
    A("buffer_load_dwordx4 v[8:11], v4, s[36:39], s31 offen sc1")
    A(f"s_waitcnt vmcnt({depth})"); A.vm = []
    A(f"s_add_u32 s31, s31, {per}")
    A("s_add_u32 s22, s22, 1"); A(f"s_cmp_lt_u32 s22, {n}"); A(f"s_cbranch_scc1 {lp}")

def warm_code(A, thr=31):
    if not env("WARMC", 1): return
    skip = A.newlabel("wc"); here = A.newlabel("pc"); lp = A.newlabel("wcl")
    A(f"s_cmp_lt_u32 s19, {thr}"); A(f"s_cbranch_scc1 {skip}")
    A("s_getpc_b64 s[22:23]")
    A.label(here)
    A(f"s_sub_u32 s22, s22, {here}-{NAME}_kernel"); A("s_subb_u32 s23, s23, 0")
    A("v_lshlrev_b32 v6, 4, v0")
    A.label(lp)
    A(f"v_min_u32 v7, L_code_end-{NAME}_kernel-16, v6")
    A("v_mov_b32 v5, s23"); A("v_add_co_u32 v4, vcc, s22, v7"); A("v_addc_co_u32 v5, vcc, 0, v5, vcc")
    A("global_load_dwordx4 v[8:11], v[4:5], off"); A.vm = []
    A("v_add_u32 v6, 8192, v6")
    A("v_readfirstlane_b32 s21, v6")
    A(f"s_cmp_lt_u32 s21, L_code_end-{NAME}_kernel"); A(f"s_cbranch_scc1 {lp}")
    A("s_waitcnt vmcnt(0)")
    join(A, skip); reset(A)

def idle4(A):
    l0_only(A, lambda: warm_code(A), "wc4")
    if PLAIN:
        touch_range(A, WS_H, H_B // 8, 5, 27, env("TDEP", 4))
        A("s_waitcnt vmcnt(0)")

def idle5(A):
    def f():
        l = A.newlabel("i5")
        A("s_cmp_lg_u32 s20, 0"); A(f"s_cbranch_scc1 {l}")
        wait_local(A, 2, 27, 0xff, 4, sleep=16)
        join(A, l); reset(A)
        A("s_barrier")
        warm_code(A)
    l0_only(A, f, "i5l0")

P4PRE = env("P4PRE", 4)
P4 = dict(PS=2112, RB=128, UOFF=8480, SLOT=16960)
def phase3(A):
    A("s_cmp_ge_u32 s19, 30"); A("s_cbranch_scc1 L_p3_done")
    A("s_cmp_lt_u32 s20, 3"); A("s_cbranch_scc1 L_p3_comp")
    A("s_cmp_eq_u32 s20, 3"); A("s_cbranch_scc1 L_p3_idle")
    A("s_cmp_ge_u32 s19, 27"); A("s_cbranch_scc1 L_p3_idle")
    A("s_and_b32 s26, s20, 3"); A("s_lshl_b32 s25, s19, 7")
    wdma_off(A, 6, 2, 8, F * 2, 25, 26, 16)
    A("s_mul_i32 s32, s26, 2112")
    rot_init(A, "p4", F * 2)
    srd(A, 12, SWG, 0, D * F * 2); srd(A, 36, SWU, 0, D * F * 2)
    g = Gemm(A, 4, 10, 6, 9, 16960, 128, 32, 0, 0, 0, 0, [6, 7, 6, 7], [12, 12, 36, 36], [0, 1024, 8480, 8480 + 1024],
             [], 8, F * 2, 0, 0)
    g.throttle = env("THR3", 3) or None; g.wflags = NT4
    if env("W3DEP", 0):
        wait_local(A, 0, 32, 0xff, 16, sleep=2); reset(A)
        if env("W3DEP", 0) > 1: A(f"s_sleep {env('W3DEP', 0)}")
    g.prefetch(P4PRE)
    A.wait_vm_all()
    join(A, "L_p3_idle"); reset(A)
    A("s_barrier")
    A("s_branch L_p3_done")
    A.label("L_p3_comp"); reset(A)
    p35_ids(A); rot_init(A, "p3", D * 2)
    p35_compute(A, 10, 10, 10, P3W, WS_O, XB, WS_XIN, WS_X1, WS_STB,
                lambda t0: wait_local(A, 0, 32, 0xff, t0), 1, False, 11, env("PRE3", 12))
    join(A, "L_p3_done"); reset(A)

B5 = 16960
N5 = env("N5", 10)
def phase5(A):
    A("s_cmp_lt_u32 s19, 30"); A("s_cbranch_scc1 L_p5_go")
    idle5(A)
    A("s_branch L_p5_done")
    A.label("L_p5_go"); reset(A)
    WSL = env("WSL5", 17)
    p35_ids(A); rot_init(A, "p5", D * 2)
    A("s_cmp_lt_u32 s20, 3"); A("s_cbranch_scc1 L_p5_comp")
    A("s_cmp_eq_u32 s20, 3"); A("s_cbranch_scc1 L_p5_idle")
    p35_loader_setup(A, SWD, F, B5)
    A("s_cmp_lt_u32 s19, 27"); A("s_cbranch_scc1 L_p5_pre")
    p35_gemm(A, 27, WSL, 0, 0, 0).prefetch(N5)
    A.wait_vm_all()
    join(A, "L_p5_pre"); reset(A)
    rot_init(A, "p5", D * 2, wskip=N5)
    A("s_barrier")
    g = p35_gemm(A, 27, WSL, 0, env("LA5", 14), 0); g.nland = N5
    g.run_loader()
    A("s_barrier")
    A("s_branch L_p5_done")
    A.label("L_p5_idle")
    A("s_mov_b32 s21, 0")
    A.label("L_p5_idle_loop")
    A("s_barrier"); A("s_add_u32 s21, s21, 1"); A("s_cmp_lt_u32 s21, 29"); A("s_cbranch_scc1 L_p5_idle_loop")
    A("s_branch L_p5_done")
    A.label("L_p5_comp"); reset(A)
    p35_compute(A, 27, WSL, 0, B5, WS_H, H_B, WS_X1, WS_XIN + LS, WS_STA + LS,
                lambda t0: wait_local(A, 2, 27, 0xff, t0), 3, True, 22, env("PRE5", 12))
    join(A, "L_p5_done"); reset(A)

def phase4(A):
    A("s_cmp_lt_u32 s19, 27"); A("s_cbranch_scc1 L_p4_go")
    idle4(A)
    A("s_branch L_p4_done")
    A.label("L_p4_go"); reset(A)
    A("s_lshl_b32 s24, s20, 5")
    A("s_lshl_b32 s27, s18, 8"); A("s_add_u32 s27, s27, s24")
    A("s_and_b32 s26, s20, 3"); A("s_lshr_b32 s29, s20, 2")
    PS, RB, UOFF, SLOT = 2112, 128, 8480, 16960
    WSL, XS = 9, 5
    VX, VWD, VTR, VST, VCS, VOUT, VPL = 4, 6, 8, 11, 12, 13, 144
    NM, CA, CB, IR = 14, 16, 18, 20
    TMP = 24; WF = 40; ACC = 72; T = 136; CSA = 148; CSB = 156; CT = 164; V5 = 165; XA = 168
    cl_lane_off(A, VX, 27, 20480, TMP)
    A("s_lshl_b32 s25, s19, 7")
    wdma_off(A, VWD, 2, 8, F * 2, 25, 26, TMP)
    tr_lane_addr(A, VTR, PS, RB, UOFF, TMP)
    A(f"v_add_u32 v{VTR+1}, {3*SLOT}, v{VTR}"); A(f"v_add_u32 v{VTR+2}, {6*SLOT}, v{VTR}")
    stats_off(A, VST, 24, TMP)
    cl_lane_off(A, VOUT, 27, 54 * 1024, TMP)
    A("s_lshl_b32 s21, s19, 11")
    A(f"v_add_u32 v{VOUT}, s21, v{VOUT}")
    A(f"v_lshlrev_b32 v{VCS}, 4, v3"); A(f"v_add_u32 v{VCS}, {CS4}, v{VCS}")
    A(f"s_mul_i32 s32, s26, {PS}"); A(f"s_mul_i32 s21, s29, {UOFF}"); A("s_add_u32 s32, s32, s21")
    A("s_lshl_b32 s21, s26, 5"); A(f"s_mul_i32 s22, s29, {8*RB}"); A("s_add_u32 s21, s21, s22")
    A(f"v_add_u32 v{VPL}, s21, v{VTR}")
    A(f"v_add_u32 v{VPL+1}, {3*SLOT}, v{VPL}"); A(f"v_add_u32 v{VPL+2}, {6*SLOT}, v{VPL}")
    for k in range(2): A(f"v_mov_b32 v{CSA+k}, 0")
    A(f"v_mov_b32 v{CT}, 0x3f803f80")
    rot_init(A, "p4", F * 2, wskip=P4PRE)
    A("s_cmp_eq_u32 s29, 0")
    A(f"s_cselect_b32 s22, s{SWG}, s{SWU}"); A(f"s_cselect_b32 s23, s{SWG+1}, s{SWU+1}")
    srd(A, 12, 22, 0, D * F * 2)
    srd(A, 8, SWS, WS_X1, XB)
    srd(A, 36, SWS, WS_STB, ST_B)
    srd(A, 80, SWS, WS_H, H_B)
    A("s_mov_b32 s34, s30"); A("s_mov_b32 s25, s31")
    rot_init(A, "p5", D * 2)
    A("s_mov_b32 s33, s31"); A("s_mov_b32 s30, s34"); A("s_mov_b32 s31, s25")
    A("s_mul_i32 s25, s19, 171"); A("s_lshr_b32 s25, s25, 9"); A("s_lshl_b32 s25, s25, 7")
    A(f"s_mul_i32 s21, s29, {32*D*2}"); A("s_add_u32 s25, s25, s21")
    wdma_off(A, V5, 1, 8, D * 2, 25, 26, TMP)
    A("s_mul_i32 s34, s26, 2112"); A("s_lshl_b32 s21, s29, 10"); A("s_add_u32 s34, s34, s21"); A(f"s_add_u32 s34, s34, {B5}")
    srd(A, 76, SWD, 0, F * D * 2)
    def t5(t):
        def f():
            A(f"s_add_u32 m0, s34, {t*8448}")
            A(f"buffer_load_dwordx4 v{V5}, s[76:79], s33 offen lds", "w5")
            A(f"s_add_u32 s33, s33, {64*D*2}"); A(f"s_cmp_ge_u32 s33, {F*D*2}"); A("s_cselect_b32 s33, 0, s33")
        return f
    if env("PRIO4", 1):
        l = A.newlabel("prio")
        A("s_cmp_ge_u32 s20, 4"); A(f"s_cbranch_scc1 {l}"); A("s_setprio 1"); A.label(l)
    A("s_cmp_lg_u32 s20, 7"); A("s_cbranch_scc1 L_p4_dep")
    wait_local(A, 1, 30, 0x07, TMP)
    join(A, "L_p4_dep"); reset(A)
    A("s_barrier")
    stamp(A, 16)
    g = Gemm(A, 4, 10, XS, WSL, SLOT, RB, 32, ACC, WF, XA, VX, [VWD, VWD + 1], [12, 12],
             [0, 1024], [VTR, VTR + 1, VTR + 2], 8, F * 2, env("PRE4", 8), 0, P4PRE)
    def csum(t):
        slot = t % WSL
        def f():
            for q in range(4):
                A(f"ds_read_b64_tr_b16 {v(CSB + 2*q, 2)}, v{VPL + slot // 3} offset:{(slot % 3) * SLOT + 2 * q * RB}")
            A("s_waitcnt lgkmcnt(0)")
            for q in range(8):
                if env("CSDOT", 1): A(f"v_dot2_f32_bf16 v{CSA + (q & 1)}, v{CSB+q}, v{CT}, v{CSA + (q & 1)}")
                else:
                    A(f"v_lshlrev_b32 v{CSA+2}, 16, v{CSB+q}"); A(f"v_and_b32 v{CSA+3}, 0xffff0000, v{CSB+q}")
                    A(f"v_add_f32 v{CSA}, v{CSA}, v{CSA+2}"); A(f"v_add_f32 v{CSA+1}, v{CSA+1}, v{CSA+3}")
        keep = list(A.lg)
        l0_only(A, f, "p4cs")
        A.lg = keep
    g.wflags = NT4
    g.lastbar = env("LB4", 7)
    g.run(extra=stats_items(A, VST, 36, TMP), wlead=env("WLEAD4", 3), sb=16, stage_end=csum, tail=[t5(t) for t in range(N5)], rate=env("RATE4", 7))
    def cpart():
        A("s_nop 3")
        A(f"v_add_f32 v{CSA}, v{CSA}, v{CSA+1}")
        A(f"v_mov_b32 v{CSA+1}, v{CSA}"); A(f"v_permlane32_swap_b32 v{CSA}, v{CSA+1}"); A(f"v_add_f32 v{CSA}, v{CSA}, v{CSA+1}")
        A(f"v_bfe_u32 v{CSB}, v1, 4, 1"); A(f"v_lshlrev_b32 v{CSB}, 8, v{CSB}")
        A(f"v_and_b32 v{CSB+1}, 15, v1"); A(f"v_lshl_add_u32 v{CSB}, v{CSB+1}, 2, v{CSB}")
        A("s_lshl_b32 s21, s26, 6"); A("s_lshl_b32 s22, s29, 9"); A("s_add_u32 s21, s21, s22"); A(f"s_add_u32 s21, s21, {CS_PART}")
        A(f"v_add_u32 v{CSB}, s21, v{CSB}")
        A(f"ds_write_b32 v{CSB}, v{CSA}")
    l0_only(A, cpart, "p4cp")
    kk = -2.0 * 1.4426950408889634 * 0.7978845608028654
    t = TMP
    finish_stats(A, t, NM, t + 2, t + 10)
    A(f"v_mov_b32 v{IR}, v{t+1}")
    A(f"v_mul_f32 v{CB}, {f32(kk)}, v{t+2}")
    A(f"v_mul_f32 v{t+3}, v{t+2}, v{t+2}")
    A(f"v_mul_f32 v{t+3}, {f32(0.044715)}, v{t+3}")
    A(f"v_mul_f32 v{CA}, v{CB}, v{t+3}")
    def cfin():
        A.wait_lg_all()
        A("s_barrier")
        A(f"v_lshlrev_b32 v{CSB}, 3, v1"); A(f"v_add_u32 v{CSB}, {CS_PART}, v{CSB}")
        A(f"ds_read_b64 {v(CSB+2,2)}, v{CSB}"); A(f"ds_read_b64 {v(CSB+4,2)}, v{CSB} offset:512")
        A.wait_lg_all()
        A(f"v_pk_add_f32 {v(CSB+2,2)}, {v(CSB+2,2)}, {v(CSB+4,2)}")
        A(f"ds_write_b64 v{CSB}, {v(CSB+2,2)} offset:{CS4 - CS_PART}")
        A.wait_lg_all()
    l0_only(A, cfin, "p4cf")
    csr = lambda nb: WF + (nb & 1) * 16
    def csread(nb):
        for i in range(2):
            A(f"ds_read_b128 {v(csr(nb) + i*4, 4)}, v{VCS} offset:{nb*64 + i*32}", ("C", nb))
            A(f"ds_read_b128 {v(csr(nb) + 8 + i*4, 4)}, v{VCS} offset:{256 + nb*64 + i*32}", ("C", nb))
    csread(0); csread(1)
    for kkb in range(2):
        for e in range(2):
            nb = 2 * kkb + e
            A.wait_lg(lambda g: g == ("C", nb))
            for k in range(0, 16, 2):
                r = ACC + nb * 16 + k
                A(f"v_pk_fma_f32 {v(r,2)}, {v(csr(nb)+k,2)}, {v(NM,2)}, {v(r,2)} op_sel_hi:[1,0,1]")
        if kkb == 0: csread(2); csread(3)
        for half in range(2):
            out = TMP + 4 * ((2 * kkb + half) & 3)
            for e in range(2):
                nb = 2 * kkb + e
                gq = ACC + nb * 16 + 4 * half
                uq = gq + 8
                Tt = T + 4 * e
                for k in (0, 2): A(f"v_pk_mul_f32 {v(Tt+k,2)}, {v(gq+k,2)}, {v(gq+k,2)}")
                for k in (0, 2): A(f"v_pk_fma_f32 {v(Tt+k,2)}, {v(Tt+k,2)}, {v(CA,2)}, {v(CB,2)} op_sel_hi:[1,0,0]")
                for k in (0, 2): A(f"v_pk_mul_f32 {v(Tt+k,2)}, {v(Tt+k,2)}, {v(gq+k,2)}")
                for k in range(4): A(f"v_exp_f32 v{Tt+k}, v{Tt+k}")
                for k in (0, 2): A(f"v_pk_mul_f32 {v(gq+k,2)}, {v(gq+k,2)}, {v(uq+k,2)}")
                for k in (0, 2): A(f"v_pk_fma_f32 {v(Tt+k,2)}, {v(Tt+k,2)}, {v(IR,2)}, {v(IR,2)} op_sel_hi:[1,0,0]")
                for k in range(4): A(f"v_rcp_f32 v{Tt+k}, v{Tt+k}")
                for k in (0, 2): A(f"v_pk_mul_f32 {v(gq+k,2)}, {v(gq+k,2)}, {v(Tt+k,2)}")
                A(f"v_cvt_pk_bf16_f32 v{out+2*e}, v{gq}, v{gq+1}")
                A(f"v_cvt_pk_bf16_f32 v{out+2*e+1}, v{gq+2}, v{gq+3}")
            A(f"buffer_store_dwordx4 {v(out,4)}, v{VOUT}, s[80:83], 0 offen offset:{kkb*1024 + half*512}{STF}")
    stamp(A, 19)
    signal_local(A, 2, T)
    stamp(A, 20)
    A("s_setprio 0")
    join(A, "L_p4_done"); reset(A)

def main(out_path):
    A = Asm(); name = NAME + "_kernel"
    A.raw(kernel_header(name))
    A("s_cmp_ge_u32 s2, 256"); A("s_cbranch_scc1 L_end")
    if STAMP:
        A("s_memtime s[90:91]"); A("v_mov_b32 v255, 0"); A("v_mov_b32 v254, 0")
    A(f"s_load_dwordx4 s[4:7], s[0:1], 64")
    A(f"s_load_dwordx4 s[84:87], s[0:1], 0")
    A(f"s_load_dwordx2 s[88:89], s[0:1], 16")
    A(f"s_load_dwordx8 s[92:99], s[0:1], 32")
    A("v_lshrrev_b32 v2, 6, v0")
    A("v_and_b32 v1, 63, v0")
    A("v_readfirstlane_b32 s20, v2")
    A("v_and_b32 v2, 31, v0")
    A("v_lshrrev_b32 v3, 5, v1")
    A("s_and_b32 s18, s2, 7")
    A("s_lshr_b32 s19, s2, 3")
    A("s_mov_b32 s16, 0"); A("s_mov_b32 s17, 0")
    A.wait_lg_all()
    srd(A, SFL, SWS, WS_FL, FL_B)
    stamp(A, 0)
    phase1(A, True)
    A.label("L_layer"); reset(A)
    phase1(A, False); phase2(A); phase3(A); phase4(A); phase5(A)
    A("s_cmp_lg_u32 s16, 0"); A("s_cbranch_scc1 L_exit")
    A("s_mov_b32 s16, 1")
    A(f"s_add_u32 s{SWS}, s{SWS}, {LS:#x}"); A(f"s_addc_u32 s{SWS+1}, s{SWS+1}, 0")
    if STAMP: A("v_mov_b32 v254, v255")
    A.fence()
    A("s_branch L_layer")
    A.label("L_exit")
    if STAMP:
        A("s_waitcnt vmcnt(0)")
        stamp(A, 31)
        srd(A, 76, SWS, WS_DBG - LS, 0x1000000)
        A("s_lshl_b32 s21, s2, 3"); A("s_add_u32 s21, s21, s20"); A("s_lshl_b32 s21, s21, 9")
        A("v_lshlrev_b32 v4, 2, v1"); A("v_add_u32 v4, s21, v4")
        A("buffer_store_dword v254, v4, s[76:79], 0 offen")
        A("buffer_store_dword v255, v4, s[76:79], 0 offen offset:256")
    A.label("L_end"); A("s_endpgm")
    A.raw("    .p2align 4"); A.label("L_code_end")
    hdr = open(os.path.join(os.path.dirname(os.path.abspath(__file__)), "..", "cdna_kernels", NAME + ".s.ref")).read().split("; Override")[0]
    t = hdr + f"; @launch grid=(256,1,1) block=(512,1,1) lds={LDS_TOTAL}\n"
    t += '.amdgcn_target "amdgcn-amd-amdhsa--gfx950"\n.text\n' + A.text()
    t += '.section .rodata,"a"\n.p2align 6\n' + kernel_desc(name, 256, 0, 102)
    open(out_path, "w").write(t)

if __name__ == "__main__":
    main(sys.argv[1] if len(sys.argv) > 1 else f"cdna_kernels/{NAME}.s")
```

```python
import sys, os, struct
sys.path.insert(0, os.path.dirname(os.path.abspath(__file__)))
from asmdsl import *

NAME = "interleave_layers__sliding_block__glu_gated_geglu__prompt"
S_TOK, D, F = 2048, 640, 1728
XB = S_TOK * D * 2
LS = 0x2000000
WS_XIN = 0x0000000
WS_X1 = 0x0300000
WS_O = 0x0600000
WS_H = 0x0900000
H_B = S_TOK * F * 2
WS_QKV = 0x1000000
QKV_B = 480 * 16384
WS_STA = 0x1800000
WS_STB = 0x1840000
ST_B = 10 * S_TOK * 8
WS_FL = 0x1880000
FL_B = 0x20000
WS_QKL = 0x18a0000 + 0x60000
WS_DBG = 0x4000000
OOB = 0x80000000
LDS_TOTAL = 163840
RSV = LDS_TOTAL - 3072
CS_PART, CS1, CS4, L_MODE = RSV, RSV + 1024, RSV + 1536, RSV + 2048
P3W = RSV - 10 * 8448
SDBG, SWS, SX, SWQKV, SWO, SWG, SWU, SWD, SOUT = 4, 6, 84, 86, 88, 92, 94, 96, 98
SFL = 72
SPIN_MAX = 1 << 20
def env(n, d): return int(os.environ.get(n, str(d)))
def f32(x): return "0x%08x" % struct.unpack("<I", struct.pack("<f", x))[0]
STAMP = env("STAMP", 0)
FORCE_SLOW = env("FORCE_SLOW", 0)
PLAIN = env("PLAIN", 0)
STF = "" if PLAIN else " sc1"
NT4 = " nt" if env("NT4", 0) else ""
NTX = " nt" if env("NTX", 0) else ""

def stamp(A, i):
    if STAMP:
        A("s_memtime s[100:101]" if STAMP == 1 else "s_memrealtime s[100:101]"); A.wait_lg_all()
        if STAMP == 1: A("s_sub_u32 s100, s100, s90")
        A(f"v_writelane_b32 v255, s100, {i}")

def srd(A, d, base, off, size, soff=None):
    A(f"s_add_u32 s{d}, s{base}, {off:#x}")
    A(f"s_addc_u32 s{d+1}, s{base+1}, 0")
    if soff is not None:
        A(f"s_add_u32 s{d}, s{d}, s{soff}")
        A(f"s_addc_u32 s{d+1}, s{d+1}, 0")
    A(f"s_mov_b32 s{d+2}, {size:#x}")
    A(f"s_mov_b32 s{d+3}, 0x20000")

def join(A, label):
    A.fence(); A.label(label)

def spin(A, body, name, sleep=1):
    lp = A.newlabel(name); out = A.newlabel(name + "x")
    A("s_mov_b32 s35, 0")
    A.fence(); A.label(lp)
    body()
    A("s_add_u32 s35, s35, 1")
    A(f"s_cmp_gt_u32 s35, {SPIN_MAX}"); A(f"s_cbranch_scc1 {out}")
    A(f"s_cbranch_vccz {out}")
    if sleep: A(f"s_sleep {sleep}")
    A(f"s_branch {lp}")
    A.fence(); A.label(out)

def acquire_if_slow(A):
    l = A.newlabel("acq")
    A("s_cmp_lg_u32 s17, 0"); A(f"s_cbranch_scc1 {l}")
    A("buffer_inv sc1"); A("s_waitcnt vmcnt(0)")
    A.label(l)

def signal_local(A, k, t0, nowait=False):
    if not nowait: A.wait_vm_all()
    A("s_lshl_b32 s21, s16, 3"); A(f"s_add_u32 s21, s21, {k}"); A("s_lshl_b32 s21, s21, 3"); A("s_add_u32 s21, s21, s18")
    A("s_lshl_b32 s21, s21, 5"); A("s_add_u32 s21, s21, s19"); A("s_lshl_b32 s21, s21, 3"); A("s_add_u32 s21, s21, s20")
    A(f"v_mov_b32 v{t0}, s21"); A(f"v_mov_b32 v{t0+1}, 1")
    slow = A.newlabel("sigslow"); done = A.newlabel("sigdone")
    A("s_mov_b64 exec, 1")
    A("s_cmp_eq_u32 s17, 0"); A(f"s_cbranch_scc1 {slow}")
    A(f"buffer_store_byte v{t0+1}, v{t0}, {s(SFL,4)}, 0 offen")
    A(f"s_branch {done}")
    A.label(slow)
    if PLAIN: A("buffer_wbl2 sc1"); A("s_waitcnt vmcnt(0)")
    A(f"buffer_store_byte v{t0+1}, v{t0}, {s(SFL,4)}, 0 offen sc1")
    A.label(done)
    A("s_mov_b64 exec, -1")
    A.vm = [None]

def wait_local(A, k, nwg, wavemask, t0, layer_delta=0, sleep=1):
    lo = sum(1 << (8 * i) for i in range(4) if wavemask >> i & 1)
    hi = sum(1 << (8 * i) for i in range(4) if wavemask >> (4 + i) & 1)
    A(f"v_and_b32 v{t0}, 1, v1"); A(f"v_cmp_eq_u32 vcc, 1, v{t0}")
    A(f"v_mov_b32 v{t0}, {lo:#x}"); A(f"v_mov_b32 v{t0+1}, {hi:#x}")
    A(f"v_cndmask_b32 v{t0}, v{t0}, v{t0+1}, vcc")
    A(f"v_cmp_gt_u32 vcc, {2*nwg}, v1")
    A(f"v_cndmask_b32 v{t0}, 0, v{t0}, vcc")
    A(f"v_lshlrev_b32 v{t0+1}, 2, v1")
    A(f"s_add_u32 s21, s16, {layer_delta & 0xffffffff:#x}")
    A("s_lshl_b32 s21, s21, 3"); A(f"s_add_u32 s21, s21, {k}"); A("s_lshl_b32 s21, s21, 3"); A("s_add_u32 s21, s21, s18"); A("s_lshl_b32 s21, s21, 8")
    def body():
        A(f"buffer_load_dword v{t0+2}, v{t0+1}, {s(SFL,4)}, s21 offen sc1")
        A.wait_vm_all()
        A(f"v_and_b32 v{t0+2}, v{t0+2}, v{t0}")
        A(f"v_cmp_ne_u32 vcc, v{t0+2}, v{t0}")
    spin(A, body, "wl", sleep)
    acquire_if_slow(A)

def census_wait(A, t0, sleep=8):
    srd(A, 76, SDBG, 0, 256)
    A("s_sub_u32 s21, s18, 1"); A("s_max_i32 s21, s21, 0")
    A(f"v_mov_b32 v{t0}, s18"); A(f"v_mov_b32 v{t0+1}, s21")
    A("v_cmp_eq_u32 vcc, 0, v1")
    A(f"v_cndmask_b32 v{t0}, v{t0+1}, v{t0}, vcc")
    A(f"v_lshlrev_b32 v{t0}, 5, v{t0}")
    def body():
        A(f"buffer_load_dwordx2 {v(t0+2,2)}, v{t0}, s[76:79], 0 offen sc1")
        A.wait_vm_all()
        A(f"v_sad_u8 v{t0+1}, v{t0+2}, 0, 0")
        A(f"v_sad_u8 v{t0+1}, v{t0+3}, 0, v{t0+1}")
        A(f"v_cmp_ne_u32 vcc, 32, v{t0+1}")
    spin(A, body, "cen", sleep)
    A(f"v_readfirstlane_b32 s22, v{t0+2}"); A(f"v_readfirstlane_b32 s23, v{t0+3}")
    A("s_bcnt1_i32_b64 s21, s[22:23]")
    A("s_cmp_eq_u32 s21, 1"); A(f"s_cselect_b32 s17, {0 if FORCE_SLOW else 1}, 0")
    A(f"v_mov_b32 v{t0}, {L_MODE}"); A(f"v_mov_b32 v{t0+1}, s17")
    A(f"ds_write_b32 v{t0}, v{t0+1}")

def read_mode(A, t0):
    A(f"v_mov_b32 v{t0}, {L_MODE}")
    A(f"ds_read_b32 v{t0}, v{t0}", "mode")
    A.wait_lg(lambda g: g == "mode")
    A(f"v_readfirstlane_b32 s17, v{t0}")

def flags_zero(A, t0):
    A(f"v_mov_b32 v{t0}, 0"); A(f"v_mov_b32 v{t0+1}, 0")
    A("s_lshl_b32 s21, s18, 8"); A("s_lshl_b32 s22, s19, 3"); A("s_add_u32 s21, s21, s22")
    A(f"v_lshlrev_b32 v{t0+2}, 11, v1"); A(f"v_add_u32 v{t0+2}, s21, v{t0+2}")
    A("s_lshl_b32 s21, s18, 5"); A("s_add_u32 s21, s21, s19"); A("s_lshl_b32 s21, s21, 7"); A(f"s_add_u32 s21, s21, {(0x10000 - 16*32768) & 0xffffffff:#x}")
    A(f"v_lshlrev_b32 v{t0+3}, 15, v1"); A(f"v_add_u32 v{t0+3}, s21, v{t0+3}")
    A("v_cmp_gt_u32 vcc, 16, v1"); A(f"v_cndmask_b32 v{t0+2}, v{t0+3}, v{t0+2}, vcc")
    A("s_lshl_b32 s21, s16, 3"); A("s_add_u32 s21, s21, s20")
    A("s_cmp_eq_u32 s21, 4"); A("s_cselect_b32 s22, 0x3ffff, 0"); A("s_mov_b32 s23, 0")
    A(f"v_mov_b32 v{t0+3}, {OOB:#x}")
    A(f"v_cndmask_b32 v{t0+2}, v{t0+3}, v{t0+2}, s[22:23]")
    A(f"buffer_store_dwordx2 {v(t0,2)}, v{t0+2}, {s(SFL,4)}, 0 offen sc1", "fz")

def census_post(A, t0):
    srd(A, 76, SDBG, 0, 256)
    A("s_getreg_b32 s21, hwreg(HW_REG_XCC_ID)"); A("s_and_b32 s21, s21, 7"); A("s_lshl_b32 s21, s21, 3")
    A("s_mov_b64 s[22:23], 1"); A("s_lshl_b64 s[22:23], s[22:23], s21")
    A(f"v_mov_b32 v{t0}, s22"); A(f"v_mov_b32 v{t0+1}, s23")
    A("s_lshl_b32 s21, s16, 3"); A("s_add_u32 s21, s21, s20"); A("s_lshl_b32 s22, s18, 5")
    A("s_cmp_eq_u32 s21, 4"); A(f"s_cselect_b32 s21, s22, {OOB:#x}")
    A(f"v_mov_b32 v{t0+2}, s21")
    A("s_mov_b64 exec, 1")
    A(f"buffer_atomic_add_x2 {v(t0,2)}, v{t0+2}, s[76:79], 0 offen sc1")
    A("s_mov_b64 exec, -1")

def stats_items(A, vtok_off, srd_st, tmp, sbase=None):
    def mk(i):
        def f():
            A(f"s_mov_b32 s21, {i*2048}" if sbase is None else f"s_add_u32 s21, s{sbase}, {i*2048}")
            A(f"buffer_load_dwordx2 {v(tmp+2*i,2)}, v{vtok_off}, {s(srd_st,4)}, s21 offen sc1", ("S",))
        return f
    return [mk(i) for i in range(5)]

def finish_stats(A, tmp, negmean, rstd, t2, single=False):
    if not single:
        A(f"v_pk_add_f32 {v(tmp,2)}, {v(tmp,2)}, {v(tmp+2,2)}")
        A(f"v_pk_add_f32 {v(tmp+4,2)}, {v(tmp+4,2)}, {v(tmp+6,2)}")
        A(f"v_pk_add_f32 {v(tmp,2)}, {v(tmp,2)}, {v(tmp+8,2)}")
        A(f"v_pk_add_f32 {v(tmp,2)}, {v(tmp,2)}, {v(tmp+4,2)}")
    A(f"v_mov_b32 v{t2}, v{tmp}")
    A(f"v_mov_b32 v{t2+1}, v{tmp+1}")
    A(f"v_permlane32_swap_b32 v{tmp}, v{t2}")
    A(f"v_permlane32_swap_b32 v{tmp+1}, v{t2+1}")
    A(f"v_pk_add_f32 {v(tmp,2)}, {v(tmp,2)}, {v(t2,2)}")
    A(f"v_mul_f32 v{negmean}, {f32(-1.0/D)}, v{tmp}")
    A(f"v_mul_f32 v{tmp+1}, {f32(1.0/D)}, v{tmp+1}")
    A(f"v_fma_f32 v{tmp+1}, -v{negmean}, v{negmean}, v{tmp+1}")
    A(f"v_max_f32 v{tmp+1}, 0, v{tmp+1}")
    A(f"v_add_f32 v{tmp+1}, {f32(1e-5)}, v{tmp+1}")
    A(f"v_rsq_f32 v{rstd}, v{tmp+1}")

class Gemm:
    def __init__(self, A, NB, nstage, XS, WSL, slot_bytes, RB, nb_stride, acc, wf, xa,
                 vx, vwd, wd_srds, wd_lds, vtr, srd_x, w_row_stride, PRE, LA, npre=0):
        self.__dict__.update(locals())
        self.nbar = npre; self.issued = set()

    def load_list(self, do_x, do_w, wlead=0):
        L = []
        n = len(self.vwd)
        for t in range(self.nstage + wlead):
            tw = t
            if do_w and max(self.npre, self.nland) <= tw < self.nstage:
                for j in range(n): L.append(("W", tw, j, j == n - 1))
            tx = t - wlead
            if do_x and 0 <= tx:
                for st in range(4): L.append(("X", tx, st, st == 3))
        return L

    def issue(self, item):
        A = self.A
        if callable(item): return item()
        kind, t, j, last = item
        self.issued.add((kind, t, j))
        if kind == "X" and self.xstage:
            xs = self.xstage
            assert t - xs["nslot"] < self.cur_stage or t < xs["nslot"], (t, self.cur_stage)
            A(f"s_add_u32 m0, s33, {(t % xs['nslot']) * 4096 + j * 1024}")
            A(f"buffer_load_dwordx4 v{xs['vdma'][j]}, {s(self.srd_x,4)}, s30 offen{NTX} lds", ("X", t, j))
            if last and t < self.nstage - 1:
                A("s_add_u32 s30, s30, 128"); A(f"s_cmp_ge_u32 s30, {self.nstage * 128}"); A("s_cselect_b32 s30, 0, s30")
        elif kind == "X":
            st = j
            assert t - self.XS < self.cur_stage or (t - self.XS == self.cur_stage and st < self.cur_step), (t, self.cur_stage)
            r = self.xa + ((t % self.XS) * 4 + st) * 4
            if self.xdyn:
                A(f"buffer_load_dwordx4 {v(r,4)}, v{self.vx + st}, {s(self.srd_x,4)}, s30 offen", ("X", t, st))
            else:
                A(f"buffer_load_dwordx4 {v(r,4)}, v{self.vx}, {s(self.srd_x,4)}, s30 offen offset:{st*512} sc1", ("X", t, st))
            if last and t < self.nstage - 1:
                A("s_add_u32 s30, s30, s33" if self.xdyn else "s_add_u32 s30, s30, 2048")
                A("s_cmp_ge_u32 s30, s34" if self.xdyn else f"s_cmp_ge_u32 s30, {self.nstage * 2048}")
                A("s_cselect_b32 s30, 0, s30")
        else:
            assert t < self.WSL or self.realbar >= t - self.WSL + 2, (t, self.realbar)
            A(f"s_add_u32 m0, s32, {(t % self.WSL) * self.slot_bytes + self.wd_lds[j]}")
            A(f"buffer_load_dwordx4 v{self.vwd[j]}, {s(self.wd_srds[j],4)}, s31 offen{self.wflags} lds", ("W", t))
            if self.throttle is not None: A(f"s_waitcnt vmcnt({self.throttle})"); A.vm = A.vm[-self.throttle:] if self.throttle else []
            if last and t < self.nstage - 1: self.adv_w()

    def adv_w(self):
        A = self.A
        A(f"s_add_u32 s31, s31, {64 * self.w_row_stride}")
        A(f"s_cmp_ge_u32 s31, {self.nstage * 64 * self.w_row_stride}")
        A("s_cselect_b32 s31, 0, s31")

    def tr_reads(self, t, st, buf):
        out = []
        kb, f = st >> 1, st & 1
        slot = t % self.WSL
        per = 65536 // self.slot_bytes
        va = self.vtr[slot // per]
        base = (slot % per) * self.slot_bytes
        for nb in range(self.NB):
            for rd in range(2):
                off = base + (8 * kb + 4 * rd + 2 * f) * self.RB + nb * self.nb_stride
                r = self.wf + (buf * self.NB + nb) * 4 + rd * 2
                out.append((f"ds_read_b64_tr_b16 {v(r,2)}, v{va} offset:{off}", ("F", t, st, nb)))
        return out

    realbar = -1
    xdyn = False
    FD = 1
    xstage = None
    wflags = ""
    throttle = None
    lastbar = None
    nland = 0
    def barrier(self, t):
        if t < self.npre: return
        if self.lastbar is not None and t > self.lastbar: return
        tw = self.nstage - 1 if t == self.lastbar else t
        assert not self.do_w or tw < self.nland or ("W", tw, len(self.vwd) - 1) in self.issued, (t, tw)
        self.A.wait_vm(lambda g: g == ("W", tw))
        self.A("s_barrier")
        self.realbar = t

    def run_idle(self):
        for t in range(self.npre, self.nstage): self.A("s_barrier")

    def prefetch(self, n):
        self.do_w = True; self.cur_stage, self.cur_step = -1, 0
        for it in self.load_list(False, True):
            if it[1] < n: self.issue(it)

    def run_loader(self, after_bar=None, issue_first=False):
        L = self.load_list(False, True); self.do_w = True
        self.cur_stage, self.cur_step = -1, 0
        k = 0
        for t in range(self.nstage + 1):
            lim = max(self.LA, min(t + self.WSL - 2, t + self.LA))
            while k < len(L) and L[k][1] < lim and (L[k][1] < self.WSL or self.realbar >= L[k][1] - self.WSL + 2):
                self.issue(L[k]); k += 1
            if after_bar and t > 0: after_bar(t - 1)
            if t < self.nstage: self.barrier(t)
        assert k == len(L)

    def xread(self, t, st):
        xs = self.xstage
        r = self.xa + ((t % 2) * 4 + st) * 4
        self.A(f"ds_read_b128 {v(r,4)}, v{xs['vrd'][st]} offset:{(t % xs['nslot']) * 4096}", ("XR", t, st))

    def run(self, zero_init=True, do_w=True, extra=(), extra_at=3, wlead=0, sb=0, stage_end=None, per_mfma=None, tail=(), rate=None):
        A = self.A
        tail = list(tail)
        L = self.load_list(True, do_w, wlead); self.do_w = do_w
        pos = next(i for i, it in enumerate(L) if it[0] == "X" and it[1] == extra_at)
        L[pos:pos] = list(extra)
        self.cur_stage, self.cur_step = -1, 0
        k = min(self.PRE, len(L))
        for it in L[:k]: self.issue(it)
        self.barrier(0)
        stamp(A, sb + 1)
        xs = self.xstage
        if xs:
            A.wait_vm(lambda g: g == ("X", 0, 3))
            for st in range(4): self.xread(0, st)
        FD = self.FD
        for q in range(FD):
            for ins, tag in self.tr_reads(0, q, q): A(ins, tag)
        gstep = 0
        nm = self.NB
        per_stage = 4 + (len(self.vwd) if do_w else 0)
        rate = (rate or per_stage) / (4.0 * nm)
        credit = 0.0
        for t in range(self.nstage):
            for st in range(4):
                self.cur_stage, self.cur_step = t, st
                buf = gstep % (FD + 1)
                if st == 4 - FD and t + 1 < self.nstage: self.barrier(t + 1)
                gn = gstep + FD
                nreads = self.tr_reads(gn // 4, gn % 4, gn % (FD + 1)) if gn < 4 * self.nstage else []
                if xs:
                    xr = self.xa + ((t % 2) * 4 + st) * 4
                    if st >= 2 and t + 1 < self.nstage:
                        if st == 2:
                            assert ("X", t + 1, 3) in self.issued
                            A.wait_vm(lambda g: g == ("X", t + 1, 3))
                        self.xread(t + 1, 2 * (st - 2)); self.xread(t + 1, 2 * (st - 2) + 1)
                else:
                    xr = self.xa + ((t % self.XS) * 4 + st) * 4
                    assert ("X", t, st) in self.issued
                    A.wait_vm(lambda g: g == ("X", t, st))
                for nb in range(self.NB):
                    A.wait_lg(lambda g: g == ("F", t, st, nb) or g == ("XR", t, st))
                    ac = self.acc + nb * 16
                    wr = self.wf + (buf * self.NB + nb) * 4
                    c = "0" if (zero_init and gstep == 0) else v(ac, 16)
                    A(f"v_mfma_f32_32x32x16_bf16 {v(ac,16)}, {v(wr,4)}, {v(xr,4)}, {c}")
                    for ins, tag in nreads[2 * nb:2 * nb + 2]: A(ins, tag)
                    if per_mfma: per_mfma(xr, nb)
                    if tail and self.realbar == self.lastbar and nb == 1: tail.pop(0)()
                    credit += rate
                    while credit >= 1.0 - 1e-9 and k < len(L):
                        it = L[k]
                        if not callable(it):
                            if it[0] == "X" and xs:
                                if not (it[1] - xs["nslot"] < t or it[1] < xs["nslot"]): break
                            elif it[0] == "X" and not (it[1] - self.XS < t or (it[1] - self.XS == t and it[2] < st)): break
                            if it[0] == "W" and not (it[1] < self.WSL or self.realbar >= it[1] - self.WSL + 2): break
                            credit -= 1.0
                        else: credit -= 0.25
                        self.issue(it); k += 1
                gstep += 1
            if stage_end: stage_end(t)
        assert k == len(L), (k, len(L))
        assert not tail
        stamp(A, sb + 2)

ROT = env("ROT", 0)
def rot_calc(A, kind):
    n = 27 if kind == "p5" else 10
    A(f"s_mul_i32 s21, s18, {n}"); A("s_lshr_b32 s21, s21, 3")
    if ROT:
        if kind == "p1":
            A("s_lshr_b32 s22, s19, 1"); A("s_add_u32 s21, s21, s22")
            if ROT == 1: A("s_and_b32 s22, s19, 1"); A("s_mul_i32 s22, s22, 5"); A("s_add_u32 s21, s21, s22")
        elif kind == "p4":
            A("s_add_u32 s21, s21, s19")
        else:
            A("s_mul_i32 s22, s19, 171"); A("s_lshr_b32 s22, s22, 9")
            A("s_mul_i32 s23, s22, 3"); A("s_sub_u32 s23, s19, s23")
            if kind == "p5":
                A("s_mul_i32 s22, s22, 11"); A("s_lshr_b32 s22, s22, 2"); A("s_mul_i32 s23, s23, 9")
            else:
                A("s_mul_i32 s23, s23, 3")
            A("s_add_u32 s21, s21, s22")
            if ROT == 1: A("s_add_u32 s21, s21, s23")
        mag = (65536 + n - 1) // n
        A(f"s_mul_i32 s22, s21, {mag}"); A("s_lshr_b32 s22, s22, 16"); A(f"s_mul_i32 s22, s22, {n}"); A("s_sub_u32 s21, s21, s22")

def rot_init(A, kind, w_row_stride, wskip=0):
    nstage = 27 if kind == "p5" else 10
    rot_calc(A, kind)
    A("s_lshl_b32 s30, s21, 11")
    if wskip:
        A(f"s_add_u32 s21, s21, {wskip}"); A(f"s_cmp_ge_u32 s21, {nstage}"); A(f"s_cselect_b32 s22, {nstage}, 0"); A("s_sub_u32 s21, s21, s22")
    A(f"s_mul_i32 s31, s21, {64 * w_row_stride}")

def tr_lane_addr(A, dst, PS, RB, cg_stride, t0, base=0):
    A(f"v_bfe_u32 v{t0}, v1, 2, 2")
    A(f"v_mul_u32_u24 v{dst}, {PS}, v{t0}")
    A(f"v_mul_u32_u24 v{t0}, {RB}, v3")
    A(f"v_add_u32 v{dst}, v{dst}, v{t0}")
    A(f"v_bfe_u32 v{t0}, v1, 4, 1")
    A(f"v_mul_u32_u24 v{t0}, {cg_stride}, v{t0}")
    A(f"v_add_u32 v{dst}, v{dst}, v{t0}")
    A(f"v_and_b32 v{t0}, 3, v1")
    A(f"v_lshl_add_u32 v{dst}, v{t0}, 3, v{dst}")
    if base: A(f"v_add_u32 v{dst}, {base}, v{dst}")

def cl_lane_off(A, dst, stok, tb_stride, t0):
    A(f"v_lshrrev_b32 v{t0}, 4, v2")
    A(f"s_lshr_b32 s21, s{stok}, 4")
    A(f"v_add_u32 v{t0}, s21, v{t0}")
    A(f"s_mov_b32 s21, {tb_stride}")
    A(f"v_mul_lo_u32 v{dst}, v{t0}, s21")
    A(f"v_lshl_add_u32 v{dst}, v3, 8, v{dst}")
    A(f"v_and_b32 v{t0}, 15, v2")
    A(f"v_lshl_add_u32 v{dst}, v{t0}, 4, v{dst}")

def wdma_off(A, dst, n, lanes_per_row, row_stride, scol, splane, t0):
    sh = {8: 3, 16: 4}[lanes_per_row]; R = 64 // lanes_per_row
    A(f"v_lshrrev_b32 v{t0}, {sh}, v1")
    A(f"v_lshlrev_b32 v{t0}, 2, v{t0}")
    A(f"v_add_u32 v{t0}, s{splane}, v{t0}")
    A(f"v_mul_u32_u24 v{t0}, {row_stride}, v{t0}")
    A(f"v_and_b32 v{t0+1}, {lanes_per_row-1}, v1")
    A(f"v_lshl_add_u32 v{t0}, v{t0+1}, 4, v{t0}")
    A(f"v_add_u32 v{dst}, s{scol}, v{t0}")
    for j in range(1, n): A(f"v_add_u32 v{dst+j}, {4*R*j*row_stride}, v{dst}")

def stats_off(A, dst, stok_local, t0):
    A(f"v_add_u32 v{t0}, s{stok_local}, v2")
    A(f"v_lshlrev_b32 v{dst}, 3, v{t0}")
    A(f"v_mul_u32_u24 v{t0}, 10240, v3")
    A(f"v_add_u32 v{dst}, v{dst}, v{t0}")
    A("s_mul_i32 s21, s18, 20480")
    A(f"v_add_u32 v{dst}, s21, v{dst}")

def l0_only(A, fn, name):
    l = A.newlabel(name)
    A("s_cmp_lg_u32 s16, 0"); A(f"s_cbranch_scc1 {l}")
    h = list(A.hist)
    fn()
    A.fence(); A.label(l)
    A.hist = h

def reset(A): A.vm = []; A.lg = []

def phase1(A, L0):
    n = "p1a" if L0 else "p1b"
    PS, RB, SLOT = 4160, 256, 16640
    WSL, XS = (5, 2) if L0 else (env("WSL1", 9), 6)
    XST = 5 * SLOT
    VX, VWD, VTR, VST, VCS, VOUT, NM, RS = 4, 4, 9, 12, 13, 14, 16, 18
    TMP = 20; WF = 32; ACC = 64; CS = 128; XA = 144; SA = 240; ONE = 244; VXR = 248
    A("s_cmp_lt_u32 s19, 30"); A(f"s_cbranch_scc1 L_{n}_go")
    if L0:
        flags_zero(A, 4); A.wait_vm_all(); census_post(A, 4)
        warm_code(A)
        l = A.newlabel("cw")
        A("s_cmp_lg_u32 s20, 4"); A(f"s_cbranch_scc1 {l}")
        census_wait(A, 4, 64); A.wait_lg_all()
        join(A, l)
        A("s_barrier")
        read_mode(A, 4)
    A("s_branch L_p1_done")
    A.label(f"L_{n}_go"); reset(A)
    A("s_and_b32 s26, s20, 3")
    A("s_and_b32 s24, s19, 1"); A("s_lshl_b32 s24, s24, 7")
    A("s_lshl_b32 s25, s26, 5"); A("s_add_u32 s24, s24, s25")
    A("s_lshl_b32 s27, s18, 8"); A("s_add_u32 s27, s27, s24")
    A("s_lshr_b32 s28, s19, 1")
    rot_init(A, "p1", 3840)
    def mk():
        g = Gemm(A, 4, 10, XS, WSL, SLOT, RB, 64, ACC, WF, XA, VX, [VWD + j for j in range(4)], [12] * 4,
                 [1024 * j for j in range(4)], [VTR, VTR + 1, VTR + 2], 8, 3840,
                 env("PRE1A", 12) if L0 else env("PRE1", 8), env("LA1A", 3) if L0 else env("LA1", 7))
        if L0: g.xstage = dict(vdma=[VX + j for j in range(4)], vrd=[VXR + j for j in range(4)], nslot=4)
        return g
    A("s_cmp_lt_u32 s20, 4"); A(f"s_cbranch_scc1 L_{n}_comp")
    srd(A, 12, SWQKV, 0, D * 1920 * 2)
    A(f"v_lshrrev_b32 v{TMP}, 4, v1"); A(f"v_lshlrev_b32 v{TMP}, {3 if L0 else 2}, v{TMP}"); A(f"v_add_u32 v{TMP}, s26, v{TMP}")
    A(f"v_mul_u32_u24 v{TMP}, 3840, v{TMP}")
    A(f"v_and_b32 v{TMP+1}, 15, v1"); A(f"v_lshl_add_u32 v{TMP}, v{TMP+1}, 4, v{TMP}")
    A("s_lshl_b32 s25, s28, 8"); A(f"v_add_u32 v{VWD}, s25, v{TMP}")
    A(f"v_add_u32 v{VWD+1}, {(4 if L0 else 16)*3840}, v{VWD}"); A(f"v_add_u32 v{VWD+2}, {32*3840}, v{VWD}"); A(f"v_add_u32 v{VWD+3}, {32*3840}, v{VWD+1}")
    A(f"s_mul_i32 s32, s26, {PS}")
    if not L0:
        g = mk(); g.throttle = env("THR1", 0) or None
        if env("W1DEP", 0): A(f"s_sleep {env('W1DEP', 0)}")
        g.run_loader()
        A("s_barrier")
        A("s_branch L_p1_done")
    else:
        flags_zero(A, TMP)
        def after(t):
            if t == 0:
                census_post(A, TMP)
                tr_lane_addr(A, VTR, PS, RB, 32, TMP)
                A("s_lshl_b32 s21, s26, 6"); A(f"v_add_u32 v{VTR}, s21, v{VTR}"); A(f"v_add_u32 v{VTR+1}, {3*SLOT}, v{VTR}")
                A(f"v_mov_b32 v{ONE}, 0x3f803f80")
                for k in range(4): A(f"v_mov_b32 v{SA+k}, 0")
            slot = t % WSL
            if env("NOCS1", 0): return
            for q in range(8):
                A(f"ds_read_b64_tr_b16 {v(WF + 2*q, 2)}, v{VTR + slot // 3} offset:{(slot % 3) * SLOT + 2 * q * RB}")
            A.wait_lg_all()
            for q in range(16):
                if env("CSDOT", 1): A(f"v_dot2_f32_bf16 v{SA + (q & 3)}, v{WF+q}, v{ONE}, v{SA + (q & 3)}")
                else:
                    A(f"v_lshlrev_b32 v{TMP+4}, 16, v{WF+q}"); A(f"v_and_b32 v{TMP+5}, 0xffff0000, v{WF+q}")
                    A(f"v_add_f32 v{SA + 2*(q & 1)}, v{SA + 2*(q & 1)}, v{TMP+4}"); A(f"v_add_f32 v{SA + 2*(q & 1) + 1}, v{SA + 2*(q & 1) + 1}, v{TMP+5}")
        mk().run_loader(after_bar=after, issue_first=True)
        A("s_nop 3")
        A(f"v_add_f32 v{SA}, v{SA}, v{SA+1}"); A(f"v_add_f32 v{SA+2}, v{SA+2}, v{SA+3}"); A(f"v_add_f32 v{SA}, v{SA}, v{SA+2}")
        A(f"v_mov_b32 v{SA+1}, v{SA}"); A(f"v_permlane32_swap_b32 v{SA}, v{SA+1}"); A(f"v_add_f32 v{SA}, v{SA}, v{SA+1}")
        A("s_lshl_b32 s21, s26, 7"); A(f"s_add_u32 s21, s21, {CS1}")
        A(f"v_lshlrev_b32 v{TMP}, 2, v2"); A(f"v_add_u32 v{TMP}, s21, v{TMP}")
        A(f"ds_write_b32 v{TMP}, v{SA}")
        l = A.newlabel("cw")
        A("s_cmp_lg_u32 s20, 4"); A(f"s_cbranch_scc1 {l}")
        census_wait(A, TMP, 8)
        join(A, l)
        A.wait_lg_all()
        A("s_barrier")
        read_mode(A, TMP)
        A("s_branch L_p1_done")
    A.label(f"L_{n}_comp"); reset(A)
    if L0:
        srd(A, 8, SX, 0, XB)
        A(f"v_lshrrev_b32 v{TMP}, 3, v1"); A(f"v_add_u32 v{TMP}, s27, v{TMP}"); A(f"v_mul_u32_u24 v{TMP}, 1280, v{TMP}")
        A(f"v_lshrrev_b32 v{TMP+1}, 4, v1"); A(f"v_and_b32 v{TMP+2}, 7, v1"); A(f"v_xor_b32 v{TMP+1}, v{TMP+1}, v{TMP+2}")
        A(f"v_lshl_add_u32 v{VX}, v{TMP+1}, 4, v{TMP}")
        A(f"v_xor_b32 v{TMP+1}, 4, v{TMP+1}"); A(f"v_lshl_add_u32 v{VX+1}, v{TMP+1}, 4, v{TMP}"); A(f"v_add_u32 v{VX+1}, {8*1280}, v{VX+1}")
        A(f"v_add_u32 v{VX+2}, {16*1280}, v{VX}"); A(f"v_add_u32 v{VX+3}, {16*1280}, v{VX+1}")
        A("s_lshr_b32 s30, s30, 4")
        A("s_lshl_b32 s33, s26, 14"); A(f"s_add_u32 s33, s33, {XST}")
    else:
        cl_lane_off(A, VX, 27, 20480, TMP)
        srd(A, 8, SWS, WS_XIN, XB)
    def setup():
        tr_lane_addr(A, VTR, PS, RB, 32, TMP)
        A(f"v_add_u32 v{VTR+1}, {3*SLOT}, v{VTR}")
        A(f"v_add_u32 v{VTR+2}, {6*SLOT}, v{VTR}")
        A(f"v_and_b32 v{TMP}, 15, v1"); A(f"v_lshlrev_b32 v{VOUT}, 4, v{TMP}"); A(f"v_lshl_add_u32 v{VOUT}, v3, 11, v{VOUT}")
        A(f"v_bfe_u32 v{TMP}, v1, 4, 1"); A(f"v_lshl_add_u32 v{VOUT}, v{TMP}, 12, v{VOUT}")
        A("s_lshl_b32 s21, s24, 3"); A(f"v_add_u32 v{VOUT}, s21, v{VOUT}")
        A(f"v_lshlrev_b32 v{VCS}, 4, v3"); A(f"v_add_u32 v{VCS}, {CS1}, v{VCS}")
        srd(A, 80, SWS, WS_QKV, QKV_B)
        if L0:
            A(f"v_bfe_u32 v{TMP}, v1, 1, 3"); A(f"v_xor_b32 v{TMP}, v{TMP}, v3")
            A(f"v_lshlrev_b32 v{TMP+1}, 7, v2"); A(f"v_add_u32 v{TMP+1}, s33, v{TMP+1}")
            for st in range(4):
                A(f"v_xor_b32 v{TMP+2}, {2*st}, v{TMP}"); A(f"v_lshl_add_u32 v{VXR+st}, v{TMP+2}, 4, v{TMP+1}")
            A(f"v_mov_b32 v{ONE}, 0x3f803f80")
            for k in range(4): A(f"v_mov_b32 v{SA+k}, 0")
    if L0:
        stamp(A, 1)
        g = mk()
        def xst(xr, nb):
            if env("NOXST", 0): return
            A(f"v_dot2_f32_bf16 v{SA + 2*(nb & 1)}, v{xr+nb}, v{ONE}, v{SA + 2*(nb & 1)}")
            A(f"v_dot2_f32_bf16 v{SA + 2*(nb & 1) + 1}, v{xr+nb}, v{xr+nb}, v{SA + 2*(nb & 1) + 1}")
        g.PRE += 1
        g.run(do_w=False, extra=[setup], extra_at=(g.PRE - 1) // 4, sb=1, per_mfma=xst)
        A("s_nop 3")
        A(f"v_pk_add_f32 {v(TMP,2)}, {v(SA,2)}, {v(SA+2,2)}")
        finish_stats(A, TMP, NM, RS, TMP + 10, single=True)
        A.fence()
        A("s_branch L_p1_epi")
        return
    setup()
    stats_off(A, VST, 24, TMP)
    srd(A, 36, SWS, WS_STA, ST_B)
    wait_local(A, 3, 30, 0x07, TMP, layer_delta=-1)
    reset(A)
    stamp(A, 1)
    mk().run(do_w=False, extra=stats_items(A, VST, 36, TMP), sb=1)
    finish_stats(A, TMP, NM, RS, TMP + 10)
    join(A, "L_p1_epi"); reset(A)
    A("s_cmp_lt_u32 s28, 5")
    A(f"s_cselect_b32 s21, {f32(20 ** -0.5 * 1.4426950408889634)}, 1.0")
    A(f"v_mul_f32 v{RS}, s21, v{RS}")
    A("s_barrier")
    csr = lambda nb: (WF + (nb & 1) * 16) if nb != 0 else CS
    def csread(nb):
        for i in range(4): A(f"ds_read_b128 {v(csr(nb) + i*4, 4)}, v{VCS} offset:{nb*128 + i*32}", ("C", nb, i))
    csread(0); csread(1); csread(2)
    A("s_mul_i32 s24, s18, 480"); A("s_lshl_b32 s25, s28, 5"); A("s_add_u32 s24, s24, s25"); A("s_lshl_b32 s24, s24, 11")
    for nb in range(4):
        if nb == 2: csread(3)
        for ip in range(2):
            r = ACC + nb * 16 + ip * 8; c = csr(nb) + ip * 8
            A.wait_lg(lambda g: g == ("C", nb, 2 * ip + 1))
            for k in range(0, 8, 2):
                A(f"v_pk_fma_f32 {v(r+k,2)}, {v(c+k,2)}, {v(NM,2)}, {v(r+k,2)} op_sel_hi:[1,0,1]")
            for k in range(0, 8, 2):
                A(f"v_pk_mul_f32 {v(r+k,2)}, {v(r+k,2)}, {v(RS,2)} op_sel_hi:[1,0]")
            for k in range(4):
                A(f"v_cvt_pk_bf16_f32 v{r+k}, v{r+2*k}, v{r+2*k+1}")
            A(f"s_add_u32 s21, s24, {(8*nb + 4*ip) * 2048}")
            A(f"v_permlane16_swap_b32 v{r}, v{r+2}")
            A(f"v_permlane16_swap_b32 v{r+1}, v{r+3}")
            A(f"buffer_store_dwordx4 {v(r,4)}, v{VOUT}, s[80:83], s21 offen sc1")
    read_mode(A, TMP)
    stamp(A, 4)
    A("s_lshl_b32 s21, s16, 3"); A("s_add_u32 s21, s21, s18"); A("s_lshl_b32 s21, s21, 5"); A("s_add_u32 s21, s21, s19")
    A("s_lshl_b32 s21, s21, 7"); A("s_add_u32 s21, s21, s20"); A("s_add_u32 s21, s21, 0x10000")
    A(f"v_mov_b32 v{TMP}, s21"); A(f"v_mov_b32 v{TMP+1}, 1")
    A.wait_vm_all()
    A("s_mov_b64 exec, 1")
    A(f"buffer_store_byte v{TMP+1}, v{TMP}, {s(SFL,4)}, 0 offen sc1")
    A("s_mov_b64 exec, -1")
    signal_local(A, 4, TMP + 2, nowait=True)
    stamp(A, 5)
    join(A, "L_p1_done"); reset(A)

P35 = dict(PS=2112, RB=128, SLOT=8448)
def p35_ids(A):
    A("s_mul_i32 s28, s19, 171"); A("s_lshr_b32 s28, s28, 9")
    A("s_mul_i32 s25, s28, 3"); A("s_sub_u32 s24, s19, s25")
    A("s_mul_i32 s24, s24, 80")
    A("s_and_b32 s26, s20, 3")
    A("s_lshl_b32 s25, s26, 5"); A("s_add_u32 s24, s24, s25")
    A("s_lshl_b32 s27, s18, 8"); A("s_add_u32 s27, s27, s24")

def p35_gemm(A, nstage, WSL, PRE, LA, npre):
    g = Gemm(A, 2, nstage, 9, WSL, 8448, 128, 64, 48, 24, 96, 4, [6, 7], [12] * 2,
             [0, 1024], [8, 9, 13], 8, D * 2, PRE, LA, npre)
    g.FD = env("FD35", 2)
    return g

def p35_loader_setup(A, sw, K, base):
    A("s_lshl_b32 s25, s28, 7")
    wdma_off(A, 6, 2, 8, D * 2, 25, 26, 16)
    A(f"s_mul_i32 s32, s26, 2112")
    if base: A(f"s_add_u32 s32, s32, {base}")
    srd(A, 12, sw, 0, K * D * 2)

def p35_compute(A, nstage, WSL, npre, base, ws_x, x_bytes, ws_res, ws_out, ws_st, waitf, sigk, can_final, sb, PRE):
    VX, VTR, VRES, VST, VOUT = 4, 8, 10, 11, 12
    TMP = 16; ACC = 48; RES = 80
    cl_lane_off(A, VX, 27, nstage * 2048, TMP)
    tr_lane_addr(A, VTR, 2112, 128, 32, TMP, base)
    A(f"v_add_u32 v{VTR+1}, {7*8448}, v{VTR}"); A(f"v_add_u32 v13, {14*8448}, v{VTR}")
    cl_lane_off(A, VRES, 27, 20480, TMP)
    A("s_lshl_b32 s21, s28, 11")
    A(f"v_add_u32 v{VRES}, s21, v{VRES}")
    if True:
        A(f"v_add_u32 v{TMP}, s27, v2")
        A(f"v_mul_u32_u24 v{VOUT}, {D*2}, v{TMP}")
        A("s_lshl_b32 s21, s28, 7")
        A(f"v_add_u32 v{VOUT}, s21, v{VOUT}")
        A(f"v_lshl_add_u32 v{VOUT}, v3, {5 if can_final else 3}, v{VOUT}")
    A(f"v_add_u32 v{TMP}, s24, v2"); A(f"v_lshlrev_b32 v{VST}, 3, v{TMP}")
    A("s_mul_i32 s21, s18, 10"); A("s_add_u32 s21, s21, s28"); A("s_lshl_b32 s21, s21, 11")
    A(f"v_add_u32 v{VST}, s21, v{VST}")
    A("s_cmp_eq_u32 s24, 80"); A("s_cselect_b32 s22, 0xffff, 0"); A("s_cmp_eq_u32 s24, 160"); A("s_cselect_b32 s22, 0xffff, s22"); A("s_mov_b32 s23, s22")
    A(f"v_mov_b32 v{TMP}, {OOB:#x}")
    A(f"v_cndmask_b32 v14, v{VRES}, v{TMP}, s[22:23]"); A(f"v_cndmask_b32 v{VST}, v{VST}, v{TMP}, s[22:23]")
    if can_final: A(f"v_cndmask_b32 v{VOUT}, v{VOUT}, v{TMP}, s[22:23]")
    srd(A, 8, SWS, ws_x, x_bytes)
    srd(A, 36, SWS, ws_res, XB)
    srd(A, 76, SWS, ws_out, XB)
    srd(A, 80, SWS, ws_st, ST_B)
    if not can_final:
        A("s_cmp_lg_u32 s16, 0"); A("s_cbranch_scc1 L_p3_rescl")
        srd(A, 36, SX, 0, XB)
        for nb in range(2):
            for half in range(2):
                p = RES + (nb * 2 + half) * 4
                A(f"buffer_load_dwordx2 {v(p,2)}, v{VOUT}, s[36:39], 0 offen offset:{(32*nb + 8*half)*2}")
                A(f"buffer_load_dwordx2 {v(p+2,2)}, v{VOUT}, s[36:39], 0 offen offset:{(32*nb + 16 + 8*half)*2}")
        A("s_branch L_p3_resdone")
        A.label("L_p3_rescl")
    for nb in range(2):
        for half in range(2):
            A(f"buffer_load_dwordx4 {v(RES + (nb*2+half)*4, 4)}, v{VRES}, s[36:39], 0 offen offset:{nb*1024 + half*512} sc1", ("R",))
    if not can_final: A.label("L_p3_resdone")
    if can_final: A("s_barrier")
    waitf(TMP); reset(A)
    stamp(A, sb)
    p35_gemm(A, nstage, WSL, PRE, 0, npre).run(do_w=False, sb=sb)
    A("s_barrier")
    for nb in range(2):
        for half in range(2):
            p = RES + (nb * 2 + half) * 4
            for j in range(4):
                src = ACC + nb * 16 + 4 * half + (j >> 1) * 8 + (j & 1) * 2
                A(f"v_lshlrev_b32 v{TMP}, 16, v{p+j}")
                A(f"v_and_b32 v{TMP+1}, 0xffff0000, v{p+j}")
                A(f"v_pk_add_f32 {v(src,2)}, {v(src,2)}, {v(TMP,2)}")
                A(f"v_cvt_pk_bf16_f32 v{p+j}, v{src}, v{src+1}")
    if can_final:
        A("s_cmp_eq_u32 s16, 0"); A("s_cbranch_scc1 L_p5_notfinal")
        srd(A, 76, SOUT, 0, XB)
        for nb in range(2):
            for half in range(2):
                p = RES + (nb * 2 + half) * 4
                A(f"v_permlane32_swap_b32 v{p}, v{p+2}")
                A(f"v_permlane32_swap_b32 v{p+1}, v{p+3}")
                A(f"buffer_store_dwordx4 {v(p,4)}, v{VOUT}, s[76:79], 0 offen offset:{(32*nb + 8*half)*2}")
        A("s_branch L_exit")
        A.label("L_p5_notfinal"); reset(A)
    for nb in range(2):
        for half in range(2):
            p = RES + (nb * 2 + half) * 4
            A(f"buffer_store_dwordx4 {v(p,4)}, v14, s[76:79], 0 offen offset:{nb*1024 + half*512}{STF}")
    for k in range(4): A(f"v_mov_b32 v{TMP+k}, 0")
    A(f"v_mov_b32 v{TMP+4}, 0x3f803f80")
    for j in range(16):
        o = 2 * (j & 1)
        A(f"v_dot2_f32_bf16 v{TMP+o}, v{RES+j}, v{TMP+4}, v{TMP+o}")
        A(f"v_dot2_f32_bf16 v{TMP+o+1}, v{RES+j}, v{RES+j}, v{TMP+o+1}")
    A("s_nop 3")
    A(f"v_pk_add_f32 {v(TMP,2)}, {v(TMP,2)}, {v(TMP+2,2)}")
    A(f"v_mov_b32 v{TMP+2}, v{TMP}"); A(f"v_mov_b32 v{TMP+3}, v{TMP+1}")
    A(f"v_permlane32_swap_b32 v{TMP}, v{TMP+2}")
    A(f"v_permlane32_swap_b32 v{TMP+1}, v{TMP+3}")
    A(f"v_pk_add_f32 {v(TMP,2)}, {v(TMP,2)}, {v(TMP+2,2)}")
    A(f"buffer_store_dwordx2 {v(TMP,2)}, v{VST}, s[80:83], 0 offen{STF}")
    stamp(A, sb + 3)
    signal_local(A, sigk, TMP + 4)
    stamp(A, sb + 4)

def phase2(A):
    PSK, PSV = 4096, 4160
    KOFF, VOFF = 0, 6 * 4096
    QOFF = VOFF + 6 * PSV
    VL16, VQ, VQ2, VK1, VK2, VV, VO, VWA, VWB, VW4 = 4, 5, 6, 7, 8, 9, 10, 12, 13, 252
    TMP = 14; Q1, Q2 = 20, 24; MSK = 26; KF = 34; VF = 52; O = 68; PB = 84; S = 100; MX = 244; DUM = 248
    A("s_mul_i32 s25, s19, 5")
    A(f"v_lshlrev_b32 v{VL16}, 4, v1")
    srd(A, 8, SWS, WS_QKV, QKV_B)
    A("s_lshl_b32 s24, s20, 5")
    A(f"v_and_b32 v{TMP+4}, 15, v1"); A(f"v_bfe_u32 v{TMP+5}, v1, 4, 1")
    A(f"v_lshlrev_b32 v{VK2}, 4, v{TMP+4}"); A(f"v_lshl_add_u32 v{VK2}, v{TMP+5}, 3, v{VK2}")
    A("s_lshl_b32 s21, s20, 8"); A(f"v_add_u32 v{VK2}, s21, v{VK2}")
    A(f"v_lshl_add_u32 v{VK1}, v3, 12, v{VK2}")
    A(f"v_add_u32 v{VQ2}, {QOFF}, v{VK2}"); A(f"v_lshl_add_u32 v{VQ}, v3, 11, v{VQ2}")
    srd(A, 12, SWS, WS_O, XB)
    A(f"v_mov_b32 v{TMP+2}, 0x3f803f80"); A(f"v_mov_b32 v{TMP+3}, 0x3f803f80")
    A(f"v_lshlrev_b32 v{TMP+1}, 3, v0")
    A(f"ds_write_b64 v{TMP+1}, {v(TMP+2,2)} offset:{VOFF + 5*PSV}")
    A("s_lshr_b32 s22, s20, 2"); A("s_add_u32 s22, s22, s18"); A("s_cmp_eq_u32 s22, 0"); A("s_cselect_b32 s22, 0xf149, 0")
    A(f"v_mov_b32 v{Q1}, s22"); A(f"v_mov_b32 v{Q1+1}, 0")
    A(f"ds_write_b64 v{TMP+1}, {v(Q1,2)} offset:{KOFF + 5*PSK}")
    A(f"v_and_b32 v{TMP}, 3, v1")
    A(f"v_lshl_add_u32 v{TMP+1}, v{TMP+5}, 2, v{TMP}"); A(f"v_min_u32 v{TMP+1}, 5, v{TMP+1}")
    A(f"v_mul_u32_u24 v{VV}, {PSV}, v{TMP+1}")
    A(f"v_bfe_u32 v{TMP+1}, v1, 2, 2"); A(f"v_lshl_add_u32 v{TMP+1}, v3, 2, v{TMP+1}")
    A(f"v_lshl_add_u32 v{VV}, v{TMP+1}, 4, v{VV}"); A(f"v_add_u32 v{VV}, s21, v{VV}")
    A("s_lshl_b32 s21, s18, 4"); A("s_lshl_b32 s22, s20, 1"); A("s_add_u32 s21, s21, s22")
    A(f"v_add_u32 v{TMP+1}, s21, v{TMP+5}"); A(f"v_mul_u32_u24 v{TMP+1}, 20480, v{TMP+1}")
    A(f"v_lshl_add_u32 v{TMP+1}, v{TMP+4}, 4, v{TMP+1}")
    A("s_lshl_b32 s21, s19, 9"); A(f"v_add_u32 v{VO}, s21, v{TMP+1}"); A(f"v_lshl_add_u32 v{VO}, v3, 8, v{VO}")
    A("s_lshr_b32 s21, s19, 1"); A("s_lshl_b32 s21, s21, 8"); A("s_and_b32 s22, s19, 1"); A("s_lshl_b32 s22, s22, 3"); A("s_add_u32 s21, s21, s22"); A(f"s_add_u32 s21, s21, {64*256}")
    A(f"v_add_u32 v{VO+1}, s21, v{TMP+1}"); A(f"v_lshl_add_u32 v{VO+1}, v3, 31, v{VO+1}")
    A("s_mul_i32 s28, s19, 171"); A("s_lshr_b32 s28, s28, 9")
    A("s_and_b32 s26, s20, 3"); A("s_lshr_b32 s27, s20, 2")
    A(f"v_bfe_u32 v{TMP}, v1, 3, 1"); A(f"v_mul_u32_u24 v{TMP+1}, 5, v{TMP+5}"); A(f"v_add_u32 v{TMP}, v{TMP}, v{TMP+1}")
    A(f"v_lshl_add_u32 v{TMP}, v3, 1, v{TMP}"); A("s_mul_i32 s21, s27, 10"); A(f"v_add_u32 v{TMP}, s21, v{TMP}")
    A(f"v_bfe_u32 v{TMP+1}, v1, 3, 2"); A(f"v_mul_u32_u24 v{TMP+1}, 10, v{TMP+1}"); A(f"v_mul_u32_u24 v{TMP+2}, 5, v3"); A(f"v_add_u32 v{TMP+1}, v{TMP+1}, v{TMP+2}")
    A("s_mul_i32 s21, s27, 40"); A("s_add_u32 s21, s21, 4"); A(f"v_add_u32 v{TMP+1}, s21, v{TMP+1}")
    A(f"v_and_b32 v{TMP+2}, 7, v1"); A(f"v_lshlrev_b32 v{TMP+2}, 4, v{TMP+2}")
    A("s_mul_i32 s21, s26, 1280"); A("s_lshl_b32 s22, s28, 7"); A("s_add_u32 s21, s21, s22")
    A("s_cmp_ge_u32 s19, 30"); A(f"s_cselect_b32 s21, {OOB:#x}, s21")
    A(f"v_add_u32 v{TMP+2}, s21, v{TMP+2}")
    A(f"v_mul_u32_u24 v{VWA}, 5120, v{TMP}"); A(f"v_add_u32 v{VWA}, v{VWA}, v{TMP+2}")
    A(f"v_mul_u32_u24 v{VWB}, 5120, v{TMP+1}"); A(f"v_add_u32 v{VWB}, v{VWB}, v{TMP+2}")
    A("s_mul_i32 s32, s26, 2112"); A("s_lshl_b32 s21, s27, 10"); A("s_add_u32 s32, s32, s21"); A(f"s_add_u32 s32, s32, {P3W}")
    A(f"s_add_u32 s34, s32, {10*8448}")
    rot_calc(A, "p3")
    A("s_sub_u32 s21, 10, s21"); A("s_cmp_eq_u32 s21, 10"); A("s_cselect_b32 s21, 0, s21"); A("s_mul_i32 s21, s21, 8448"); A("s_add_u32 s29, s32, s21")
    srd(A, 36, SWO, 0, D * D * 2)
    srd(A, 76, SWS, 0, LS)
    A("s_mul_i32 s21, s18, 327680"); A("s_mul_i32 s22, s19, 10240"); A("s_add_u32 s21, s21, s22"); A("s_lshl_b32 s22, s20, 10"); A("s_add_u32 s21, s21, s22")
    A(f"v_add_u32 v{VW4}, s21, v{VL16}")
    A("s_mul_i32 s21, s18, 20480"); A("s_mul_i32 s22, s19, 640"); A("s_add_u32 s21, s21, s22")
    A(f"v_add_u32 v{VW4+1}, s21, v{VL16}")
    side = []
    for t in range(10):
        def f(t=t):
            A("s_mov_b32 m0, s29")
            A(f"s_mov_b32 s21, {t*80*1280 if t < 8 else (t-8)*320*1280}")
            A(f"buffer_load_dwordx4 v{VWA if t < 8 else VWB}, s[36:39], s21 offen lds", "wo")
            A("s_add_u32 s29, s29, 8448"); A("s_cmp_ge_u32 s29, s34"); A("s_cselect_b32 s29, s32, s29")
        side.append(f)
    if PLAIN:
        def touch(vr, off):
            def f():
                A(f"s_mov_b32 s21, {off:#x}")
                A(f"buffer_load_dwordx4 {v(DUM,4)}, v{vr}, s[76:79], s21 offen sc1", "t")
            return f
        side = [touch(VW4, WS_O), touch(VW4, WS_O + 8192), touch(VW4, WS_X1), touch(VW4, WS_X1 + 8192), touch(VW4 + 1, WS_STB)] + side
    for r in range(16):
        k0 = 8 * (r >> 2) + (r & 3)
        A(f"s_mov_b32 s{40+2*r}, {(0xFFFFFFFF << k0) & 0xFFFFFFFF:#x}")
        A(f"s_mov_b32 s{41+2*r}, {(0xFFFFFFFF << (k0+4)) & 0xFFFFFFFF:#x}")
    A(f"v_mov_b32 v{TMP+4}, 0xffff"); A(f"v_mov_b32 v{TMP+5}, 0xffff0000")
    for j in range(8):
        A(f"v_cndmask_b32 v{MSK+j}, 0, v{TMP+4}, {s(40+4*j,2)}")
        A(f"v_cndmask_b32 v{TMP+1}, 0, v{TMP+5}, {s(42+4*j,2)}")
        A(f"v_or_b32 v{MSK+j}, v{MSK+j}, v{TMP+1}")
    stamp(A, 6)
    A("s_sub_u32 s21, s20, 4"); A("s_cmp_ge_u32 s21, 3"); A("s_cbranch_scc1 L_p2_setup")
    A("s_mul_i32 s25, s19, 5"); A("s_mul_i32 s80, s18, 480"); A("s_add_u32 s80, s80, s25"); A("s_lshl_b32 s80, s80, 11")
    A(f"s_add_u32 s81, s80, {320*2048}")
    A("s_cmp_eq_u32 s20, 6"); A("s_cbranch_scc1 L_p2_halo")
    A("s_cmp_eq_u32 s20, 4")
    A(f"s_cselect_b32 s22, 0, {160*2048}"); A(f"s_cselect_b32 s82, {QOFF}, 0"); A("s_cselect_b32 s83, 0, 1")
    A("s_add_u32 s80, s80, s22"); A("s_lshl_b32 s83, s83, 11"); A("s_add_u32 s82, s82, s83"); A("s_add_u32 s83, s83, 2048")
    A(f"s_mov_b32 s33, {VOFF + 2048}")
    wait_local(A, 4, 30, 0x0f, KF)
    A("s_branch L_p2_ld")
    A.label("L_p2_halo"); reset(A)
    A(f"s_sub_u32 s80, s80, {320*2048}"); A(f"s_sub_u32 s81, s81, {480*2048}")
    A("s_mov_b32 s82, 0"); A("s_mov_b32 s83, 4096"); A(f"s_mov_b32 s33, {VOFF}")
    A("s_cmp_eq_u32 s18, 0"); A(f"s_cselect_b32 s80, {OOB:#x}, s80"); A(f"s_cselect_b32 s81, {OOB:#x}, s81"); A("s_cbranch_scc1 L_p2_ld")
    A(f"v_min_u32 v{KF}, 19, v1"); A(f"v_lshlrev_b32 v{KF}, 7, v{KF}")
    A("s_lshl_b32 s21, s16, 3"); A("s_add_u32 s21, s21, s18"); A("s_lshl_b32 s21, s21, 12"); A(f"s_add_u32 s21, s21, {0x10000 - 4096 + 10*128}")
    A(f"v_add_u32 v{KF}, s21, v{KF}")
    A(f"v_mov_b32 v{KF+1}, 0x01010101")
    def body():
        A(f"buffer_load_dword v{KF+2}, v{KF}, {s(SFL,4)}, 0 offen sc1")
        A.wait_vm_all()
        A(f"v_cmp_ne_u32 vcc, v{KF+2}, v{KF+1}")
    spin(A, body, "p1w", 1)
    join(A, "L_p2_ld"); reset(A)
    stamp(A, 7)
    for i in range(5):
        for c in range(2):
            A(f"s_add_u32 m0, s82, {c*1024}")
            A(f"buffer_load_dwordx4 v{VL16}, s[8:11], s80 offen sc1 lds")
            A("s_add_u32 s80, s80, 1024")
        A("s_add_u32 s82, s82, s83")
    A("s_cmp_eq_u32 s20, 5"); A("s_cbranch_scc1 L_p2_w5")
    for i in range(5):
        for c in range(2):
            A(f"s_add_u32 m0, s33, {i*PSV + c*1024}")
            A(f"buffer_load_dwordx4 v{VL16}, s[8:11], s81 offen sc1 lds")
            A("s_add_u32 s81, s81, 1024")
    A("s_branch L_p2_setup")
    A.label("L_p2_w5")
    A("s_waitcnt vmcnt(0)")
    join(A, "L_p2_setup"); reset(A)
    A("s_waitcnt vmcnt(10)"); A.wait_lg_all()
    A.vm = ["V"] * 10
    A("s_barrier")
    stamp(A, 8)
    A(f"ds_read_b64 {v(Q1,2)}, v{VQ}", ("K", 0))
    A(f"ds_read_b64 {v(Q1+2,2)}, v{VQ} offset:4096", ("K", 0))
    A(f"ds_read_b64 {v(Q2,2)}, v{VQ2} offset:8192", ("K", 0))
    qorder = [0, 8, 1, 2, 3, 4, 5, 6, 7]
    def kreads(n):
        d = qorder[n]; b = KF + (n % 3) * 6
        for q in range(3):
            A(f"ds_read_b64 {v(b+2*q,2)}, v{VK1} offset:{KOFF + 2*q*PSK + d*256}", ("K", n))
    work = {}
    work[1] = [f"v_cndmask_b32 v{S+r}, v{S+r}, v{S+128+r}, {s(40+2*r,2)}" for r in range(16)]
    work[1] += [f"v_max_f32 v{MX+c}, v{S+2*c}, v{S+2*c+1}" for c in range(2)]
    work[1] += [f"v_max3_f32 v{MX+(k&1)}, v{MX+(k&1)}, v{S+2*k}, v{S+2*k+1}" for k in range(2, 8)]
    for n in range(2, 9):
        sb = S + 16 * qorder[n]
        work[n] = [f"v_max3_f32 v{MX+(k&1)}, v{MX+(k&1)}, v{sb+2*k}, v{sb+2*k+1}" for k in range(8)]
    pend = []
    kreads(0); kreads(1)
    for n in range(9):
        d = qorder[n]
        if n + 2 < 9: kreads(n + 2)
        A.wait_lg(lambda g: g == ("K", n))
        b = KF + (n % 3) * 6
        if n == 0:
            A("s_mov_b32 s22, -1"); A("s_mov_b32 s23, 0"); A(f"v_mov_b32 v{MX+2}, 0x3f80")
            A(f"v_cndmask_b32 v{Q2}, v{MX+2}, v{Q2}, s[22:23]"); A(f"v_cndmask_b32 v{Q2+1}, 0, v{Q2+1}, s[22:23]")
        if n - 2 in work: pend += work[n - 2]
        A(f"v_mfma_f32_32x32x16_bf16 {v(S+16*d,16)}, {v(b,4)}, {v(Q1,4)}, 0")
        for _ in range(6):
            if pend: A(pend.pop(0))
        A(f"v_mfma_f32_32x32x8_bf16 {v(S+16*d,16)}, {v(b+4,2)}, {v(Q2,2)}, {v(S+16*d,16)}")
        for _ in range(6):
            if pend: A(pend.pop(0))
    for w_ in pend + work[7] + work[8]: A(w_)
    A(f"v_max_f32 v{MX}, v{MX}, v{MX+1}")
    A(f"v_mov_b32 v{MX+1}, v{MX}")
    A(f"v_permlane32_swap_b32 v{MX}, v{MX+1}")
    A(f"v_max_f32 v{MX}, v{MX}, v{MX+1}")
    stamp(A, 27)
    A.wait_vm_all()
    A("s_barrier")
    stamp(A, 28)
    if env("NOSIDE", 0): side = []
    vbuf = lambda k: (VF + 8 * k) if k < 2 else (PB + 8 * (k - 2))
    vseq = [0, 8, 1, 2, 3, 4, 5, 6, 7]
    def vreads(i):
        d = vseq[i]
        for u in range(2):
            for rd in range(2):
                A(f"ds_read_b64_tr_b16 {v(vbuf(i % 4) + u*4 + rd*2, 2)}, v{VV} offset:{VOFF + d*256 + rd*128 + u*8}", ("V", i))
    mq = []; st_ = dict(first=True, nv=0)
    def pv():
        if not mq: return
        i, u = mq.pop(0)
        A.wait_lg(lambda g: g == ("V", i))
        c = "0" if st_["first"] else v(O, 16); st_["first"] = False
        A(f"v_mfma_f32_32x32x16_bf16 {v(O,16)}, {v(vbuf(i % 4) + u*4, 4)}, {v(S + 16*vseq[i] + u*4, 4)}, {c}")
    vreads(0); vreads(1)
    per = -(-len(side) // 6)
    for d in range(8):
        sb = S + 16 * d
        for r in range(0, 16, 2): A(f"v_pk_add_f32 {v(sb+r,2)}, {v(sb+r,2)}, {v(MX,2)} op_sel_hi:[1,0] neg_lo:[0,1] neg_hi:[0,1]")
        q = 0
        for r in range(16):
            A(f"v_exp_f32 v{sb+r}, v{sb+r}")
            if r in (1, 6) or (r == 11 and d in (1, 2)): pv()
            if r == 13 and d + 2 < 9: vreads(d + 2)
            if r % 4 == 3 and side and q < per: side.pop(0)(); q += 1
        for j in range(8): A(f"v_cvt_pk_bf16_f32 v{sb+j}, v{sb+2*j}, v{sb+2*j+1}")
        if d == 0:
            for j in range(8): A(f"v_and_b32 v{S+128+j}, v{sb+j}, v{MSK+j}")
            for j in range(8): A(f"v_bfi_b32 v{sb+j}, v{MSK+j}, 0, v{sb+j}")
            mq += [(0, 0), (0, 1), (1, 0), (1, 1)]
        else:
            mq += [(d + 1, 0), (d + 1, 1)]
    while mq: pv()
    assert not side
    stamp(A, 9)
    A(f"v_rcp_f32 v{MX}, v{O+12}")
    for k in range(0, 12, 2):
        A(f"v_pk_mul_f32 {v(O+k,2)}, {v(O+k,2)}, {v(MX,2)} op_sel_hi:[1,0]")
    for k in range(6): A(f"v_cvt_pk_bf16_f32 v{PB+k}, v{O+2*k}, v{O+2*k+1}")
    A(f"buffer_store_dwordx4 {v(PB,4)}, v{VO}, s[12:15], 0 offen{STF}")
    A(f"buffer_store_dwordx2 {v(PB+4,2)}, v{VO+1}, s[12:15], 0 offen{STF}")
    signal_local(A, 0, 20)
    stamp(A, 10)
    A("s_barrier")
    A.fence(); reset(A)

def touch_range(A, off, grp_bytes, nwg, base_idx, depth=8):
    per = nwg * 8 * 1024
    n = -(-grp_bytes // per)
    A(f"s_mul_i32 s21, s18, {grp_bytes}")
    srd(A, 36, SWS, off, grp_bytes, soff=21)
    A(f"s_sub_u32 s31, s19, {base_idx}"); A("s_lshl_b32 s31, s31, 3"); A("s_add_u32 s31, s31, s20"); A("s_lshl_b32 s31, s31, 10")
    A("v_lshlrev_b32 v4, 4, v1")
    A("s_mov_b32 s22, 0")
    lp = A.newlabel("tr")
    A.label(lp)
    A("buffer_load_dwordx4 v[8:11], v4, s[36:39], s31 offen sc1")
    A(f"s_waitcnt vmcnt({depth})"); A.vm = []
    A(f"s_add_u32 s31, s31, {per}")
    A("s_add_u32 s22, s22, 1"); A(f"s_cmp_lt_u32 s22, {n}"); A(f"s_cbranch_scc1 {lp}")

def warm_code(A, thr=31):
    if not env("WARMC", 1): return
    skip = A.newlabel("wc"); here = A.newlabel("pc"); lp = A.newlabel("wcl")
    A(f"s_cmp_lt_u32 s19, {thr}"); A(f"s_cbranch_scc1 {skip}")
    A("s_getpc_b64 s[22:23]")
    A.label(here)
    A(f"s_sub_u32 s22, s22, {here}-{NAME}_kernel"); A("s_subb_u32 s23, s23, 0")
    A("v_lshlrev_b32 v6, 4, v0")
    A.label(lp)
    A(f"v_min_u32 v7, L_code_end-{NAME}_kernel-16, v6")
    A("v_mov_b32 v5, s23"); A("v_add_co_u32 v4, vcc, s22, v7"); A("v_addc_co_u32 v5, vcc, 0, v5, vcc")
    A("global_load_dwordx4 v[8:11], v[4:5], off"); A.vm = []
    A("v_add_u32 v6, 8192, v6")
    A("v_readfirstlane_b32 s21, v6")
    A(f"s_cmp_lt_u32 s21, L_code_end-{NAME}_kernel"); A(f"s_cbranch_scc1 {lp}")
    A("s_waitcnt vmcnt(0)")
    join(A, skip); reset(A)

def idle4(A):
    l0_only(A, lambda: warm_code(A), "wc4")
    if PLAIN:
        touch_range(A, WS_H, H_B // 8, 5, 27, env("TDEP", 4))
        A("s_waitcnt vmcnt(0)")

def idle5(A):
    def f():
        l = A.newlabel("i5")
        A("s_cmp_lg_u32 s20, 0"); A(f"s_cbranch_scc1 {l}")
        wait_local(A, 2, 27, 0xff, 4, sleep=16)
        join(A, l); reset(A)
        A("s_barrier")
        warm_code(A)
    l0_only(A, f, "i5l0")

P4PRE = env("P4PRE", 4)
P4 = dict(PS=2112, RB=128, UOFF=8480, SLOT=16960)
def phase3(A):
    A("s_cmp_ge_u32 s19, 30"); A("s_cbranch_scc1 L_p3_done")
    A("s_cmp_lt_u32 s20, 3"); A("s_cbranch_scc1 L_p3_comp")
    A("s_cmp_eq_u32 s20, 3"); A("s_cbranch_scc1 L_p3_idle")
    A("s_cmp_ge_u32 s19, 27"); A("s_cbranch_scc1 L_p3_idle")
    A("s_and_b32 s26, s20, 3"); A("s_lshl_b32 s25, s19, 7")
    wdma_off(A, 6, 2, 8, F * 2, 25, 26, 16)
    A("s_mul_i32 s32, s26, 2112")
    rot_init(A, "p4", F * 2)
    srd(A, 12, SWG, 0, D * F * 2); srd(A, 36, SWU, 0, D * F * 2)
    g = Gemm(A, 4, 10, 6, 9, 16960, 128, 32, 0, 0, 0, 0, [6, 7, 6, 7], [12, 12, 36, 36], [0, 1024, 8480, 8480 + 1024],
             [], 8, F * 2, 0, 0)
    g.throttle = env("THR3", 3) or None; g.wflags = NT4
    if env("W3DEP", 0):
        wait_local(A, 0, 32, 0xff, 16, sleep=2); reset(A)
        if env("W3DEP", 0) > 1: A(f"s_sleep {env('W3DEP', 0)}")
    g.prefetch(P4PRE)
    A.wait_vm_all()
    join(A, "L_p3_idle"); reset(A)
    A("s_barrier")
    A("s_branch L_p3_done")
    A.label("L_p3_comp"); reset(A)
    p35_ids(A); rot_init(A, "p3", D * 2)
    p35_compute(A, 10, 10, 10, P3W, WS_O, XB, WS_XIN, WS_X1, WS_STB,
                lambda t0: wait_local(A, 0, 32, 0xff, t0), 1, False, 11, env("PRE3", 12))
    join(A, "L_p3_done"); reset(A)

B5 = 16960
N5 = env("N5", 10)
def phase5(A):
    A("s_cmp_lt_u32 s19, 30"); A("s_cbranch_scc1 L_p5_go")
    idle5(A)
    A("s_branch L_p5_done")
    A.label("L_p5_go"); reset(A)
    WSL = env("WSL5", 17)
    p35_ids(A); rot_init(A, "p5", D * 2)
    A("s_cmp_lt_u32 s20, 3"); A("s_cbranch_scc1 L_p5_comp")
    A("s_cmp_eq_u32 s20, 3"); A("s_cbranch_scc1 L_p5_idle")
    p35_loader_setup(A, SWD, F, B5)
    A("s_cmp_lt_u32 s19, 27"); A("s_cbranch_scc1 L_p5_pre")
    p35_gemm(A, 27, WSL, 0, 0, 0).prefetch(N5)
    A.wait_vm_all()
    join(A, "L_p5_pre"); reset(A)
    rot_init(A, "p5", D * 2, wskip=N5)
    A("s_barrier")
    g = p35_gemm(A, 27, WSL, 0, env("LA5", 14), 0); g.nland = N5
    g.run_loader()
    A("s_barrier")
    A("s_branch L_p5_done")
    A.label("L_p5_idle")
    A("s_mov_b32 s21, 0")
    A.label("L_p5_idle_loop")
    A("s_barrier"); A("s_add_u32 s21, s21, 1"); A("s_cmp_lt_u32 s21, 29"); A("s_cbranch_scc1 L_p5_idle_loop")
    A("s_branch L_p5_done")
    A.label("L_p5_comp"); reset(A)
    p35_compute(A, 27, WSL, 0, B5, WS_H, H_B, WS_X1, WS_XIN + LS, WS_STA + LS,
                lambda t0: wait_local(A, 2, 27, 0xff, t0), 3, True, 22, env("PRE5", 12))
    join(A, "L_p5_done"); reset(A)

def phase4(A):
    A("s_cmp_lt_u32 s19, 27"); A("s_cbranch_scc1 L_p4_go")
    idle4(A)
    A("s_branch L_p4_done")
    A.label("L_p4_go"); reset(A)
    A("s_lshl_b32 s24, s20, 5")
    A("s_lshl_b32 s27, s18, 8"); A("s_add_u32 s27, s27, s24")
    A("s_and_b32 s26, s20, 3"); A("s_lshr_b32 s29, s20, 2")
    PS, RB, UOFF, SLOT = 2112, 128, 8480, 16960
    WSL, XS = 9, 5
    VX, VWD, VTR, VST, VCS, VOUT, VPL = 4, 6, 8, 11, 12, 13, 144
    NM, CA, CB, IR = 14, 16, 18, 20
    TMP = 24; WF = 40; ACC = 72; T = 136; CSA = 148; CSB = 156; CT = 164; V5 = 165; XA = 168
    cl_lane_off(A, VX, 27, 20480, TMP)
    A("s_lshl_b32 s25, s19, 7")
    wdma_off(A, VWD, 2, 8, F * 2, 25, 26, TMP)
    tr_lane_addr(A, VTR, PS, RB, UOFF, TMP)
    A(f"v_add_u32 v{VTR+1}, {3*SLOT}, v{VTR}"); A(f"v_add_u32 v{VTR+2}, {6*SLOT}, v{VTR}")
    stats_off(A, VST, 24, TMP)
    cl_lane_off(A, VOUT, 27, 54 * 1024, TMP)
    A("s_lshl_b32 s21, s19, 11")
    A(f"v_add_u32 v{VOUT}, s21, v{VOUT}")
    A(f"v_lshlrev_b32 v{VCS}, 4, v3"); A(f"v_add_u32 v{VCS}, {CS4}, v{VCS}")
    A(f"s_mul_i32 s32, s26, {PS}"); A(f"s_mul_i32 s21, s29, {UOFF}"); A("s_add_u32 s32, s32, s21")
    A("s_lshl_b32 s21, s26, 5"); A(f"s_mul_i32 s22, s29, {8*RB}"); A("s_add_u32 s21, s21, s22")
    A(f"v_add_u32 v{VPL}, s21, v{VTR}")
    A(f"v_add_u32 v{VPL+1}, {3*SLOT}, v{VPL}"); A(f"v_add_u32 v{VPL+2}, {6*SLOT}, v{VPL}")
    for k in range(2): A(f"v_mov_b32 v{CSA+k}, 0")
    A(f"v_mov_b32 v{CT}, 0x3f803f80")
    rot_init(A, "p4", F * 2, wskip=P4PRE)
    A("s_cmp_eq_u32 s29, 0")
    A(f"s_cselect_b32 s22, s{SWG}, s{SWU}"); A(f"s_cselect_b32 s23, s{SWG+1}, s{SWU+1}")
    srd(A, 12, 22, 0, D * F * 2)
    srd(A, 8, SWS, WS_X1, XB)
    srd(A, 36, SWS, WS_STB, ST_B)
    srd(A, 80, SWS, WS_H, H_B)
    A("s_mov_b32 s34, s30"); A("s_mov_b32 s25, s31")
    rot_init(A, "p5", D * 2)
    A("s_mov_b32 s33, s31"); A("s_mov_b32 s30, s34"); A("s_mov_b32 s31, s25")
    A("s_mul_i32 s25, s19, 171"); A("s_lshr_b32 s25, s25, 9"); A("s_lshl_b32 s25, s25, 7")
    A(f"s_mul_i32 s21, s29, {32*D*2}"); A("s_add_u32 s25, s25, s21")
    wdma_off(A, V5, 1, 8, D * 2, 25, 26, TMP)
    A("s_mul_i32 s34, s26, 2112"); A("s_lshl_b32 s21, s29, 10"); A("s_add_u32 s34, s34, s21"); A(f"s_add_u32 s34, s34, {B5}")
    srd(A, 76, SWD, 0, F * D * 2)
    def t5(t):
        def f():
            A(f"s_add_u32 m0, s34, {t*8448}")
            A(f"buffer_load_dwordx4 v{V5}, s[76:79], s33 offen lds", "w5")
            A(f"s_add_u32 s33, s33, {64*D*2}"); A(f"s_cmp_ge_u32 s33, {F*D*2}"); A("s_cselect_b32 s33, 0, s33")
        return f
    if env("PRIO4", 1):
        l = A.newlabel("prio")
        A("s_cmp_ge_u32 s20, 4"); A(f"s_cbranch_scc1 {l}"); A("s_setprio 1"); A.label(l)
    A("s_cmp_lg_u32 s20, 7"); A("s_cbranch_scc1 L_p4_dep")
    wait_local(A, 1, 30, 0x07, TMP)
    join(A, "L_p4_dep"); reset(A)
    A("s_barrier")
    stamp(A, 16)
    g = Gemm(A, 4, 10, XS, WSL, SLOT, RB, 32, ACC, WF, XA, VX, [VWD, VWD + 1], [12, 12],
             [0, 1024], [VTR, VTR + 1, VTR + 2], 8, F * 2, env("PRE4", 8), 0, P4PRE)
    def csum(t):
        slot = t % WSL
        def f():
            for q in range(4):
                A(f"ds_read_b64_tr_b16 {v(CSB + 2*q, 2)}, v{VPL + slot // 3} offset:{(slot % 3) * SLOT + 2 * q * RB}")
            A("s_waitcnt lgkmcnt(0)")
            for q in range(8):
                if env("CSDOT", 1): A(f"v_dot2_f32_bf16 v{CSA + (q & 1)}, v{CSB+q}, v{CT}, v{CSA + (q & 1)}")
                else:
                    A(f"v_lshlrev_b32 v{CSA+2}, 16, v{CSB+q}"); A(f"v_and_b32 v{CSA+3}, 0xffff0000, v{CSB+q}")
                    A(f"v_add_f32 v{CSA}, v{CSA}, v{CSA+2}"); A(f"v_add_f32 v{CSA+1}, v{CSA+1}, v{CSA+3}")
        keep = list(A.lg)
        l0_only(A, f, "p4cs")
        A.lg = keep
    g.wflags = NT4
    g.lastbar = env("LB4", 7)
    g.run(extra=stats_items(A, VST, 36, TMP), wlead=env("WLEAD4", 3), sb=16, stage_end=csum, tail=[t5(t) for t in range(N5)], rate=env("RATE4", 7))
    def cpart():
        A("s_nop 3")
        A(f"v_add_f32 v{CSA}, v{CSA}, v{CSA+1}")
        A(f"v_mov_b32 v{CSA+1}, v{CSA}"); A(f"v_permlane32_swap_b32 v{CSA}, v{CSA+1}"); A(f"v_add_f32 v{CSA}, v{CSA}, v{CSA+1}")
        A(f"v_bfe_u32 v{CSB}, v1, 4, 1"); A(f"v_lshlrev_b32 v{CSB}, 8, v{CSB}")
        A(f"v_and_b32 v{CSB+1}, 15, v1"); A(f"v_lshl_add_u32 v{CSB}, v{CSB+1}, 2, v{CSB}")
        A("s_lshl_b32 s21, s26, 6"); A("s_lshl_b32 s22, s29, 9"); A("s_add_u32 s21, s21, s22"); A(f"s_add_u32 s21, s21, {CS_PART}")
        A(f"v_add_u32 v{CSB}, s21, v{CSB}")
        A(f"ds_write_b32 v{CSB}, v{CSA}")
    l0_only(A, cpart, "p4cp")
    kk = -2.0 * 1.4426950408889634 * 0.7978845608028654
    t = TMP
    finish_stats(A, t, NM, t + 2, t + 10)
    A(f"v_mov_b32 v{IR}, v{t+1}")
    A(f"v_mul_f32 v{CB}, {f32(kk)}, v{t+2}")
    A(f"v_mul_f32 v{t+3}, v{t+2}, v{t+2}")
    A(f"v_mul_f32 v{t+3}, {f32(0.044715)}, v{t+3}")
    A(f"v_mul_f32 v{CA}, v{CB}, v{t+3}")
    def cfin():
        A.wait_lg_all()
        A("s_barrier")
        A(f"v_lshlrev_b32 v{CSB}, 3, v1"); A(f"v_add_u32 v{CSB}, {CS_PART}, v{CSB}")
        A(f"ds_read_b64 {v(CSB+2,2)}, v{CSB}"); A(f"ds_read_b64 {v(CSB+4,2)}, v{CSB} offset:512")
        A.wait_lg_all()
        A(f"v_pk_add_f32 {v(CSB+2,2)}, {v(CSB+2,2)}, {v(CSB+4,2)}")
        A(f"ds_write_b64 v{CSB}, {v(CSB+2,2)} offset:{CS4 - CS_PART}")
        A.wait_lg_all()
    l0_only(A, cfin, "p4cf")
    csr = lambda nb: WF + (nb & 1) * 16
    def csread(nb):
        for i in range(2):
            A(f"ds_read_b128 {v(csr(nb) + i*4, 4)}, v{VCS} offset:{nb*64 + i*32}", ("C", nb))
            A(f"ds_read_b128 {v(csr(nb) + 8 + i*4, 4)}, v{VCS} offset:{256 + nb*64 + i*32}", ("C", nb))
    csread(0); csread(1)
    for kkb in range(2):
        for e in range(2):
            nb = 2 * kkb + e
            A.wait_lg(lambda g: g == ("C", nb))
            for k in range(0, 16, 2):
                r = ACC + nb * 16 + k
                A(f"v_pk_fma_f32 {v(r,2)}, {v(csr(nb)+k,2)}, {v(NM,2)}, {v(r,2)} op_sel_hi:[1,0,1]")
        if kkb == 0: csread(2); csread(3)
        for half in range(2):
            out = TMP + 4 * ((2 * kkb + half) & 3)
            for e in range(2):
                nb = 2 * kkb + e
                gq = ACC + nb * 16 + 4 * half
                uq = gq + 8
                Tt = T + 4 * e
                for k in (0, 2): A(f"v_pk_mul_f32 {v(Tt+k,2)}, {v(gq+k,2)}, {v(gq+k,2)}")
                for k in (0, 2): A(f"v_pk_fma_f32 {v(Tt+k,2)}, {v(Tt+k,2)}, {v(CA,2)}, {v(CB,2)} op_sel_hi:[1,0,0]")
                for k in (0, 2): A(f"v_pk_mul_f32 {v(Tt+k,2)}, {v(Tt+k,2)}, {v(gq+k,2)}")
                for k in range(4): A(f"v_exp_f32 v{Tt+k}, v{Tt+k}")
                for k in (0, 2): A(f"v_pk_mul_f32 {v(gq+k,2)}, {v(gq+k,2)}, {v(uq+k,2)}")
                for k in (0, 2): A(f"v_pk_fma_f32 {v(Tt+k,2)}, {v(Tt+k,2)}, {v(IR,2)}, {v(IR,2)} op_sel_hi:[1,0,0]")
                for k in range(4): A(f"v_rcp_f32 v{Tt+k}, v{Tt+k}")
                for k in (0, 2): A(f"v_pk_mul_f32 {v(gq+k,2)}, {v(gq+k,2)}, {v(Tt+k,2)}")
                A(f"v_cvt_pk_bf16_f32 v{out+2*e}, v{gq}, v{gq+1}")
                A(f"v_cvt_pk_bf16_f32 v{out+2*e+1}, v{gq+2}, v{gq+3}")
            A(f"buffer_store_dwordx4 {v(out,4)}, v{VOUT}, s[80:83], 0 offen offset:{kkb*1024 + half*512}{STF}")
    stamp(A, 19)
    signal_local(A, 2, T)
    stamp(A, 20)
    A("s_setprio 0")
    join(A, "L_p4_done"); reset(A)

def main(out_path):
    A = Asm(); name = NAME + "_kernel"
    A.raw(kernel_header(name))
    A("s_cmp_ge_u32 s2, 256"); A("s_cbranch_scc1 L_end")
    if STAMP:
        A("s_memtime s[90:91]"); A("v_mov_b32 v255, 0"); A("v_mov_b32 v254, 0")
    A(f"s_load_dwordx4 s[4:7], s[0:1], 64")
    A(f"s_load_dwordx4 s[84:87], s[0:1], 0")
    A(f"s_load_dwordx2 s[88:89], s[0:1], 16")
    A(f"s_load_dwordx8 s[92:99], s[0:1], 32")
    A("v_lshrrev_b32 v2, 6, v0")
    A("v_and_b32 v1, 63, v0")
    A("v_readfirstlane_b32 s20, v2")
    A("v_and_b32 v2, 31, v0")
    A("v_lshrrev_b32 v3, 5, v1")
    A("s_and_b32 s18, s2, 7")
    A("s_lshr_b32 s19, s2, 3")
    A("s_mov_b32 s16, 0"); A("s_mov_b32 s17, 0")
    A.wait_lg_all()
    srd(A, SFL, SWS, WS_FL, FL_B)
    stamp(A, 0)
    phase1(A, True)
    A.label("L_layer"); reset(A)
    phase1(A, False); phase2(A); phase3(A); phase4(A); phase5(A)
    A("s_cmp_lg_u32 s16, 0"); A("s_cbranch_scc1 L_exit")
    A("s_mov_b32 s16, 1")
    A(f"s_add_u32 s{SWS}, s{SWS}, {LS:#x}"); A(f"s_addc_u32 s{SWS+1}, s{SWS+1}, 0")
    if STAMP: A("v_mov_b32 v254, v255")
    A.fence()
    A("s_branch L_layer")
    A.label("L_exit")
    if STAMP:
        A("s_waitcnt vmcnt(0)")
        stamp(A, 31)
        srd(A, 76, SWS, WS_DBG - LS, 0x1000000)
        A("s_lshl_b32 s21, s2, 3"); A("s_add_u32 s21, s21, s20"); A("s_lshl_b32 s21, s21, 9")
        A("v_lshlrev_b32 v4, 2, v1"); A("v_add_u32 v4, s21, v4")
        A("buffer_store_dword v254, v4, s[76:79], 0 offen")
        A("buffer_store_dword v255, v4, s[76:79], 0 offen offset:256")
        if env("DBGOUT", 0):
            A("s_add_u32 s21, s2, s20"); A("s_cmp_lg_u32 s21, 0"); A("s_cbranch_scc1 L_end")
            srd(A, 76, SDBG, 0, 256)
            A("v_readlane_b32 s22, v254, 0")
            sel = [(254, 2), (254, 3), (254, 8), (254, 11), (254, 16), (254, 22), (255, 1), (255, 8), (255, 11), (255, 16), (255, 22), (255, 31)]
            slots = [2, 3, 4, 5, 6, 7, 10, 11, 12, 13, 14, 15]
            A("s_mov_b64 exec, 1")
            for (r, l), sl in zip(sel, slots):
                A(f"v_readlane_b32 s23, v{r}, {l}"); A("s_sub_u32 s23, s23, s22"); A("v_mov_b32 v6, s23"); A(f"v_mov_b32 v7, {sl*4}")
                A("buffer_store_dword v6, v7, s[76:79], 0 offen")
                A("s_waitcnt vmcnt(0)"); A.vm = []
    A.label("L_end"); A("s_endpgm")
    A.raw("    .p2align 4"); A.label("L_code_end")
    hdr = open(os.path.join(os.path.dirname(os.path.abspath(__file__)), "..", "cdna_kernels", NAME + ".s.ref")).read().split("; Override")[0]
    t = hdr + f"; @launch grid=(256,1,1) block=(512,1,1) lds={LDS_TOTAL}\n"
    t += '.amdgcn_target "amdgcn-amd-amdhsa--gfx950"\n.text\n' + A.text()
    t += '.section .rodata,"a"\n.p2align 6\n' + kernel_desc(name, 256, 0, 102)
    open(out_path, "w").write(t)

if __name__ == "__main__":
    main(sys.argv[1] if len(sys.argv) > 1 else f"cdna_kernels/{NAME}.s")
```

```python
import sys, os, struct
sys.path.insert(0, os.path.dirname(os.path.abspath(__file__)))
from asmdsl import *

NAME = "interleave_layers__sliding_block__glu_gated_geglu__prompt"
S_TOK, D, F = 2048, 640, 1728
XB = S_TOK * D * 2
LS = 0x2000000
WS_XIN = 0x0000000
WS_X1 = 0x0300000
WS_O = 0x0600000
WS_H = 0x0900000
H_B = S_TOK * F * 2
WS_QKV = 0x1000000
QKV_B = 480 * 16384
WS_STA = 0x1800000
WS_STB = 0x1840000
ST_B = 10 * S_TOK * 8
WS_FL = 0x1880000
FL_B = 0x20000
WS_QKL = 0x18a0000 + 0x60000
WS_DBG = 0x4000000
OOB = 0x80000000
LDS_TOTAL = 163840
RSV = LDS_TOTAL - 3072
CS_PART, CS1, CS4, L_MODE = RSV, RSV + 1024, RSV + 1536, RSV + 2048
P3W = RSV - 10 * 8448
SDBG, SWS, SX, SWQKV, SWO, SWG, SWU, SWD, SOUT = 4, 6, 84, 86, 88, 92, 94, 96, 98
SFL = 72
SPIN_MAX = 1 << 20
def env(n, d): return int(os.environ.get(n, str(d)))
def f32(x): return "0x%08x" % struct.unpack("<I", struct.pack("<f", x))[0]
STAMP = env("STAMP", 0)
FORCE_SLOW = env("FORCE_SLOW", 0)
PLAIN = env("PLAIN", 0)
STF = "" if PLAIN else " sc1"
NT4 = " nt" if env("NT4", 0) else ""
NTX = " nt" if env("NTX", 0) else ""

def stamp(A, i):
    if STAMP:
        A("s_memtime s[100:101]" if STAMP == 1 else "s_memrealtime s[100:101]"); A.wait_lg_all()
        if STAMP == 1: A("s_sub_u32 s100, s100, s90")
        A(f"v_writelane_b32 v255, s100, {i}")

def srd(A, d, base, off, size, soff=None):
    A(f"s_add_u32 s{d}, s{base}, {off:#x}")
    A(f"s_addc_u32 s{d+1}, s{base+1}, 0")
    if soff is not None:
        A(f"s_add_u32 s{d}, s{d}, s{soff}")
        A(f"s_addc_u32 s{d+1}, s{d+1}, 0")
    A(f"s_mov_b32 s{d+2}, {size:#x}")
    A(f"s_mov_b32 s{d+3}, 0x20000")

def join(A, label):
    A.fence(); A.label(label)

def spin(A, body, name, sleep=1):
    lp = A.newlabel(name); out = A.newlabel(name + "x")
    A("s_mov_b32 s35, 0")
    A.fence(); A.label(lp)
    body()
    A("s_add_u32 s35, s35, 1")
    A(f"s_cmp_gt_u32 s35, {SPIN_MAX}"); A(f"s_cbranch_scc1 {out}")
    A(f"s_cbranch_vccz {out}")
    if sleep: A(f"s_sleep {sleep}")
    A(f"s_branch {lp}")
    A.fence(); A.label(out)

def acquire_if_slow(A):
    l = A.newlabel("acq")
    A("s_cmp_lg_u32 s17, 0"); A(f"s_cbranch_scc1 {l}")
    A("buffer_inv sc1"); A("s_waitcnt vmcnt(0)")
    A.label(l)

def signal_local(A, k, t0, nowait=False):
    if not nowait: A.wait_vm_all()
    A("s_lshl_b32 s21, s16, 3"); A(f"s_add_u32 s21, s21, {k}"); A("s_lshl_b32 s21, s21, 3"); A("s_add_u32 s21, s21, s18")
    A("s_lshl_b32 s21, s21, 5"); A("s_add_u32 s21, s21, s19"); A("s_lshl_b32 s21, s21, 3"); A("s_add_u32 s21, s21, s20")
    A(f"v_mov_b32 v{t0}, s21"); A(f"v_mov_b32 v{t0+1}, 1")
    slow = A.newlabel("sigslow"); done = A.newlabel("sigdone")
    A("s_mov_b64 exec, 1")
    A("s_cmp_eq_u32 s17, 0"); A(f"s_cbranch_scc1 {slow}")
    A(f"buffer_store_byte v{t0+1}, v{t0}, {s(SFL,4)}, 0 offen")
    A(f"s_branch {done}")
    A.label(slow)
    if PLAIN: A("buffer_wbl2 sc1"); A("s_waitcnt vmcnt(0)")
    A(f"buffer_store_byte v{t0+1}, v{t0}, {s(SFL,4)}, 0 offen sc1")
    A.label(done)
    A("s_mov_b64 exec, -1")
    A.vm = [None]

def wait_local(A, k, nwg, wavemask, t0, layer_delta=0, sleep=1):
    lo = sum(1 << (8 * i) for i in range(4) if wavemask >> i & 1)
    hi = sum(1 << (8 * i) for i in range(4) if wavemask >> (4 + i) & 1)
    A(f"v_and_b32 v{t0}, 1, v1"); A(f"v_cmp_eq_u32 vcc, 1, v{t0}")
    A(f"v_mov_b32 v{t0}, {lo:#x}"); A(f"v_mov_b32 v{t0+1}, {hi:#x}")
    A(f"v_cndmask_b32 v{t0}, v{t0}, v{t0+1}, vcc")
    A(f"v_cmp_gt_u32 vcc, {2*nwg}, v1")
    A(f"v_cndmask_b32 v{t0}, 0, v{t0}, vcc")
    A(f"v_lshlrev_b32 v{t0+1}, 2, v1")
    A(f"s_add_u32 s21, s16, {layer_delta & 0xffffffff:#x}")
    A("s_lshl_b32 s21, s21, 3"); A(f"s_add_u32 s21, s21, {k}"); A("s_lshl_b32 s21, s21, 3"); A("s_add_u32 s21, s21, s18"); A("s_lshl_b32 s21, s21, 8")
    def body():
        A(f"buffer_load_dword v{t0+2}, v{t0+1}, {s(SFL,4)}, s21 offen sc1")
        A.wait_vm_all()
        A(f"v_and_b32 v{t0+2}, v{t0+2}, v{t0}")
        A(f"v_cmp_ne_u32 vcc, v{t0+2}, v{t0}")
    spin(A, body, "wl", sleep)
    acquire_if_slow(A)

def census_wait(A, t0, sleep=8):
    srd(A, 76, SDBG, 0, 256)
    A("s_sub_u32 s21, s18, 1"); A("s_max_i32 s21, s21, 0")
    A(f"v_mov_b32 v{t0}, s18"); A(f"v_mov_b32 v{t0+1}, s21")
    A("v_cmp_eq_u32 vcc, 0, v1")
    A(f"v_cndmask_b32 v{t0}, v{t0+1}, v{t0}, vcc")
    A(f"v_lshlrev_b32 v{t0}, 5, v{t0}")
    def body():
        A(f"buffer_load_dwordx2 {v(t0+2,2)}, v{t0}, s[76:79], 0 offen sc1")
        A.wait_vm_all()
        A(f"v_sad_u8 v{t0+1}, v{t0+2}, 0, 0")
        A(f"v_sad_u8 v{t0+1}, v{t0+3}, 0, v{t0+1}")
        A(f"v_cmp_ne_u32 vcc, 32, v{t0+1}")
    spin(A, body, "cen", sleep)
    A(f"v_readfirstlane_b32 s22, v{t0+2}"); A(f"v_readfirstlane_b32 s23, v{t0+3}")
    A("s_bcnt1_i32_b64 s21, s[22:23]")
    A("s_cmp_eq_u32 s21, 1"); A(f"s_cselect_b32 s17, {0 if FORCE_SLOW else 1}, 0")
    A(f"v_mov_b32 v{t0}, {L_MODE}"); A(f"v_mov_b32 v{t0+1}, s17")
    A(f"ds_write_b32 v{t0}, v{t0+1}")

def read_mode(A, t0):
    A(f"v_mov_b32 v{t0}, {L_MODE}")
    A(f"ds_read_b32 v{t0}, v{t0}", "mode")
    A.wait_lg(lambda g: g == "mode")
    A(f"v_readfirstlane_b32 s17, v{t0}")

def flags_zero(A, t0):
    A(f"v_mov_b32 v{t0}, 0"); A(f"v_mov_b32 v{t0+1}, 0")
    A("s_lshl_b32 s21, s18, 8"); A("s_lshl_b32 s22, s19, 3"); A("s_add_u32 s21, s21, s22")
    A(f"v_lshlrev_b32 v{t0+2}, 11, v1"); A(f"v_add_u32 v{t0+2}, s21, v{t0+2}")
    A("s_lshl_b32 s21, s18, 5"); A("s_add_u32 s21, s21, s19"); A("s_lshl_b32 s21, s21, 7"); A(f"s_add_u32 s21, s21, {(0x10000 - 16*32768) & 0xffffffff:#x}")
    A(f"v_lshlrev_b32 v{t0+3}, 15, v1"); A(f"v_add_u32 v{t0+3}, s21, v{t0+3}")
    A("v_cmp_gt_u32 vcc, 16, v1"); A(f"v_cndmask_b32 v{t0+2}, v{t0+3}, v{t0+2}, vcc")
    A("s_lshl_b32 s21, s16, 3"); A("s_add_u32 s21, s21, s20")
    A("s_cmp_eq_u32 s21, 4"); A("s_cselect_b32 s22, 0x3ffff, 0"); A("s_mov_b32 s23, 0")
    A(f"v_mov_b32 v{t0+3}, {OOB:#x}")
    A(f"v_cndmask_b32 v{t0+2}, v{t0+3}, v{t0+2}, s[22:23]")
    A(f"buffer_store_dwordx2 {v(t0,2)}, v{t0+2}, {s(SFL,4)}, 0 offen sc1", "fz")

def census_post(A, t0):
    srd(A, 76, SDBG, 0, 256)
    A("s_getreg_b32 s21, hwreg(HW_REG_XCC_ID)"); A("s_and_b32 s21, s21, 7"); A("s_lshl_b32 s21, s21, 3")
    A("s_mov_b64 s[22:23], 1"); A("s_lshl_b64 s[22:23], s[22:23], s21")
    A(f"v_mov_b32 v{t0}, s22"); A(f"v_mov_b32 v{t0+1}, s23")
    A("s_lshl_b32 s21, s16, 3"); A("s_add_u32 s21, s21, s20"); A("s_lshl_b32 s22, s18, 5")
    A("s_cmp_eq_u32 s21, 4"); A(f"s_cselect_b32 s21, s22, {OOB:#x}")
    A(f"v_mov_b32 v{t0+2}, s21")
    A("s_mov_b64 exec, 1")
    A(f"buffer_atomic_add_x2 {v(t0,2)}, v{t0+2}, s[76:79], 0 offen sc1")
    A("s_mov_b64 exec, -1")

def stats_items(A, vtok_off, srd_st, tmp, sbase=None):
    def mk(i):
        def f():
            A(f"s_mov_b32 s21, {i*2048}" if sbase is None else f"s_add_u32 s21, s{sbase}, {i*2048}")
            A(f"buffer_load_dwordx2 {v(tmp+2*i,2)}, v{vtok_off}, {s(srd_st,4)}, s21 offen sc1", ("S",))
        return f
    return [mk(i) for i in range(5)]

def finish_stats(A, tmp, negmean, rstd, t2, single=False):
    if not single:
        A(f"v_pk_add_f32 {v(tmp,2)}, {v(tmp,2)}, {v(tmp+2,2)}")
        A(f"v_pk_add_f32 {v(tmp+4,2)}, {v(tmp+4,2)}, {v(tmp+6,2)}")
        A(f"v_pk_add_f32 {v(tmp,2)}, {v(tmp,2)}, {v(tmp+8,2)}")
        A(f"v_pk_add_f32 {v(tmp,2)}, {v(tmp,2)}, {v(tmp+4,2)}")
    A(f"v_mov_b32 v{t2}, v{tmp}")
    A(f"v_mov_b32 v{t2+1}, v{tmp+1}")
    A(f"v_permlane32_swap_b32 v{tmp}, v{t2}")
    A(f"v_permlane32_swap_b32 v{tmp+1}, v{t2+1}")
    A(f"v_pk_add_f32 {v(tmp,2)}, {v(tmp,2)}, {v(t2,2)}")
    A(f"v_mul_f32 v{negmean}, {f32(-1.0/D)}, v{tmp}")
    A(f"v_mul_f32 v{tmp+1}, {f32(1.0/D)}, v{tmp+1}")
    A(f"v_fma_f32 v{tmp+1}, -v{negmean}, v{negmean}, v{tmp+1}")
    A(f"v_max_f32 v{tmp+1}, 0, v{tmp+1}")
    A(f"v_add_f32 v{tmp+1}, {f32(1e-5)}, v{tmp+1}")
    A(f"v_rsq_f32 v{rstd}, v{tmp+1}")

class Gemm:
    def __init__(self, A, NB, nstage, XS, WSL, slot_bytes, RB, nb_stride, acc, wf, xa,
                 vx, vwd, wd_srds, wd_lds, vtr, srd_x, w_row_stride, PRE, LA, npre=0):
        self.__dict__.update(locals())
        self.nbar = npre; self.issued = set()

    def load_list(self, do_x, do_w, wlead=0):
        L = []
        n = len(self.vwd)
        for t in range(self.nstage + wlead):
            tw = t
            if do_w and max(self.npre, self.nland) <= tw < self.nstage:
                for j in range(n): L.append(("W", tw, j, j == n - 1))
            tx = t - wlead
            if do_x and 0 <= tx:
                for st in range(4): L.append(("X", tx, st, st == 3))
        return L

    def issue(self, item):
        A = self.A
        if callable(item): return item()
        kind, t, j, last = item
        self.issued.add((kind, t, j))
        if kind == "X" and self.xstage:
            xs = self.xstage
            assert t - xs["nslot"] < self.cur_stage or t < xs["nslot"], (t, self.cur_stage)
            A(f"s_add_u32 m0, s33, {(t % xs['nslot']) * 4096 + j * 1024}")
            A(f"buffer_load_dwordx4 v{xs['vdma'][j]}, {s(self.srd_x,4)}, s30 offen{NTX} lds", ("X", t, j))
            if last and t < self.nstage - 1:
                A("s_add_u32 s30, s30, 128"); A(f"s_cmp_ge_u32 s30, {self.nstage * 128}"); A("s_cselect_b32 s30, 0, s30")
        elif kind == "X":
            st = j
            assert t - self.XS < self.cur_stage or (t - self.XS == self.cur_stage and st < self.cur_step), (t, self.cur_stage)
            r = self.xa + ((t % self.XS) * 4 + st) * 4
            if self.xdyn:
                A(f"buffer_load_dwordx4 {v(r,4)}, v{self.vx + st}, {s(self.srd_x,4)}, s30 offen", ("X", t, st))
            else:
                A(f"buffer_load_dwordx4 {v(r,4)}, v{self.vx}, {s(self.srd_x,4)}, s30 offen offset:{st*512} sc1", ("X", t, st))
            if last and t < self.nstage - 1:
                A("s_add_u32 s30, s30, s33" if self.xdyn else "s_add_u32 s30, s30, 2048")
                A("s_cmp_ge_u32 s30, s34" if self.xdyn else f"s_cmp_ge_u32 s30, {self.nstage * 2048}")
                A("s_cselect_b32 s30, 0, s30")
        else:
            assert t < self.WSL or self.realbar >= t - self.WSL + 2, (t, self.realbar)
            A(f"s_add_u32 m0, s32, {(t % self.WSL) * self.slot_bytes + self.wd_lds[j]}")
            A(f"buffer_load_dwordx4 v{self.vwd[j]}, {s(self.wd_srds[j],4)}, s31 offen{self.wflags} lds", ("W", t))
            if self.throttle is not None: A(f"s_waitcnt vmcnt({self.throttle})"); A.vm = A.vm[-self.throttle:] if self.throttle else []
            if last and t < self.nstage - 1: self.adv_w()

    def adv_w(self):
        A = self.A
        A(f"s_add_u32 s31, s31, {64 * self.w_row_stride}")
        A(f"s_cmp_ge_u32 s31, {self.nstage * 64 * self.w_row_stride}")
        A("s_cselect_b32 s31, 0, s31")

    def tr_reads(self, t, st, buf):
        out = []
        kb, f = st >> 1, st & 1
        slot = t % self.WSL
        per = 65536 // self.slot_bytes
        va = self.vtr[slot // per]
        base = (slot % per) * self.slot_bytes
        for nb in range(self.NB):
            for rd in range(2):
                off = base + (8 * kb + 4 * rd + 2 * f) * self.RB + nb * self.nb_stride
                r = self.wf + (buf * self.NB + nb) * 4 + rd * 2
                out.append((f"ds_read_b64_tr_b16 {v(r,2)}, v{va} offset:{off}", ("F", t, st, nb)))
        return out

    realbar = -1
    xdyn = False
    FD = 1
    xstage = None
    wflags = ""
    throttle = None
    lastbar = None
    nland = 0
    def barrier(self, t):
        if t < self.npre: return
        if self.lastbar is not None and t > self.lastbar: return
        tw = self.nstage - 1 if t == self.lastbar else t
        assert not self.do_w or tw < self.nland or ("W", tw, len(self.vwd) - 1) in self.issued, (t, tw)
        self.A.wait_vm(lambda g: g == ("W", tw))
        self.A("s_barrier")
        self.realbar = t

    def run_idle(self):
        for t in range(self.npre, self.nstage): self.A("s_barrier")

    def prefetch(self, n):
        self.do_w = True; self.cur_stage, self.cur_step = -1, 0
        for it in self.load_list(False, True):
            if it[1] < n: self.issue(it)

    def run_loader(self, after_bar=None, issue_first=False):
        L = self.load_list(False, True); self.do_w = True
        self.cur_stage, self.cur_step = -1, 0
        k = 0
        for t in range(self.nstage + 1):
            lim = max(self.LA, min(t + self.WSL - 2, t + self.LA))
            while k < len(L) and L[k][1] < lim and (L[k][1] < self.WSL or self.realbar >= L[k][1] - self.WSL + 2):
                self.issue(L[k]); k += 1
            if after_bar and t > 0: after_bar(t - 1)
            if t < self.nstage: self.barrier(t)
        assert k == len(L)

    def xread(self, t, st):
        xs = self.xstage
        r = self.xa + ((t % 2) * 4 + st) * 4
        self.A(f"ds_read_b128 {v(r,4)}, v{xs['vrd'][st]} offset:{(t % xs['nslot']) * 4096}", ("XR", t, st))

    def run(self, zero_init=True, do_w=True, extra=(), extra_at=3, wlead=0, sb=0, stage_end=None, per_mfma=None, tail=(), rate=None):
        A = self.A
        tail = list(tail)
        L = self.load_list(True, do_w, wlead); self.do_w = do_w
        pos = next(i for i, it in enumerate(L) if it[0] == "X" and it[1] == extra_at)
        L[pos:pos] = list(extra)
        self.cur_stage, self.cur_step = -1, 0
        k = min(self.PRE, len(L))
        for it in L[:k]: self.issue(it)
        self.barrier(0)
        stamp(A, sb + 1)
        xs = self.xstage
        if xs:
            A.wait_vm(lambda g: g == ("X", 0, 3))
            for st in range(4): self.xread(0, st)
        FD = self.FD
        for q in range(FD):
            for ins, tag in self.tr_reads(0, q, q): A(ins, tag)
        gstep = 0
        nm = self.NB
        per_stage = 4 + (len(self.vwd) if do_w else 0)
        rate = (rate or per_stage) / (4.0 * nm)
        credit = 0.0
        for t in range(self.nstage):
            for st in range(4):
                self.cur_stage, self.cur_step = t, st
                buf = gstep % (FD + 1)
                if st == 4 - FD and t + 1 < self.nstage: self.barrier(t + 1)
                gn = gstep + FD
                nreads = self.tr_reads(gn // 4, gn % 4, gn % (FD + 1)) if gn < 4 * self.nstage else []
                if xs:
                    xr = self.xa + ((t % 2) * 4 + st) * 4
                    if st >= 2 and t + 1 < self.nstage:
                        if st == 2:
                            assert ("X", t + 1, 3) in self.issued
                            A.wait_vm(lambda g: g == ("X", t + 1, 3))
                        self.xread(t + 1, 2 * (st - 2)); self.xread(t + 1, 2 * (st - 2) + 1)
                else:
                    xr = self.xa + ((t % self.XS) * 4 + st) * 4
                    assert ("X", t, st) in self.issued
                    A.wait_vm(lambda g: g == ("X", t, st))
                for nb in range(self.NB):
                    A.wait_lg(lambda g: g == ("F", t, st, nb) or g == ("XR", t, st))
                    ac = self.acc + nb * 16
                    wr = self.wf + (buf * self.NB + nb) * 4
                    c = "0" if (zero_init and gstep == 0) else v(ac, 16)
                    A(f"v_mfma_f32_32x32x16_bf16 {v(ac,16)}, {v(wr,4)}, {v(xr,4)}, {c}")
                    for ins, tag in nreads[2 * nb:2 * nb + 2]: A(ins, tag)
                    if per_mfma: per_mfma(xr, nb)
                    if tail and self.realbar == self.lastbar and nb == 1: tail.pop(0)()
                    credit += rate
                    while credit >= 1.0 - 1e-9 and k < len(L):
                        it = L[k]
                        if not callable(it):
                            if it[0] == "X" and xs:
                                if not (it[1] - xs["nslot"] < t or it[1] < xs["nslot"]): break
                            elif it[0] == "X" and not (it[1] - self.XS < t or (it[1] - self.XS == t and it[2] < st)): break
                            if it[0] == "W" and not (it[1] < self.WSL or self.realbar >= it[1] - self.WSL + 2): break
                            credit -= 1.0
                        else: credit -= 0.25
                        self.issue(it); k += 1
                gstep += 1
            if stage_end: stage_end(t)
        assert k == len(L), (k, len(L))
        assert not tail
        stamp(A, sb + 2)

ROT = env("ROT", 0)
def rot_calc(A, kind):
    n = 27 if kind == "p5" else 10
    A(f"s_mul_i32 s21, s18, {n}"); A("s_lshr_b32 s21, s21, 3")
    if ROT:
        if kind == "p1":
            A("s_lshr_b32 s22, s19, 1"); A("s_add_u32 s21, s21, s22")
            if ROT == 1: A("s_and_b32 s22, s19, 1"); A("s_mul_i32 s22, s22, 5"); A("s_add_u32 s21, s21, s22")
        elif kind == "p4":
            A("s_add_u32 s21, s21, s19")
        else:
            A("s_mul_i32 s22, s19, 171"); A("s_lshr_b32 s22, s22, 9")
            A("s_mul_i32 s23, s22, 3"); A("s_sub_u32 s23, s19, s23")
            if kind == "p5":
                A("s_mul_i32 s22, s22, 11"); A("s_lshr_b32 s22, s22, 2"); A("s_mul_i32 s23, s23, 9")
            else:
                A("s_mul_i32 s23, s23, 3")
            A("s_add_u32 s21, s21, s22")
            if ROT == 1: A("s_add_u32 s21, s21, s23")
        mag = (65536 + n - 1) // n
        A(f"s_mul_i32 s22, s21, {mag}"); A("s_lshr_b32 s22, s22, 16"); A(f"s_mul_i32 s22, s22, {n}"); A("s_sub_u32 s21, s21, s22")

def rot_init(A, kind, w_row_stride, wskip=0):
    nstage = 27 if kind == "p5" else 10
    rot_calc(A, kind)
    A("s_lshl_b32 s30, s21, 11")
    if wskip:
        A(f"s_add_u32 s21, s21, {wskip}"); A(f"s_cmp_ge_u32 s21, {nstage}"); A(f"s_cselect_b32 s22, {nstage}, 0"); A("s_sub_u32 s21, s21, s22")
    A(f"s_mul_i32 s31, s21, {64 * w_row_stride}")

def tr_lane_addr(A, dst, PS, RB, cg_stride, t0, base=0):
    A(f"v_bfe_u32 v{t0}, v1, 2, 2")
    A(f"v_mul_u32_u24 v{dst}, {PS}, v{t0}")
    A(f"v_mul_u32_u24 v{t0}, {RB}, v3")
    A(f"v_add_u32 v{dst}, v{dst}, v{t0}")
    A(f"v_bfe_u32 v{t0}, v1, 4, 1")
    A(f"v_mul_u32_u24 v{t0}, {cg_stride}, v{t0}")
    A(f"v_add_u32 v{dst}, v{dst}, v{t0}")
    A(f"v_and_b32 v{t0}, 3, v1")
    A(f"v_lshl_add_u32 v{dst}, v{t0}, 3, v{dst}")
    if base: A(f"v_add_u32 v{dst}, {base}, v{dst}")

def cl_lane_off(A, dst, stok, tb_stride, t0):
    A(f"v_lshrrev_b32 v{t0}, 4, v2")
    A(f"s_lshr_b32 s21, s{stok}, 4")
    A(f"v_add_u32 v{t0}, s21, v{t0}")
    A(f"s_mov_b32 s21, {tb_stride}")
    A(f"v_mul_lo_u32 v{dst}, v{t0}, s21")
    A(f"v_lshl_add_u32 v{dst}, v3, 8, v{dst}")
    A(f"v_and_b32 v{t0}, 15, v2")
    A(f"v_lshl_add_u32 v{dst}, v{t0}, 4, v{dst}")

def wdma_off(A, dst, n, lanes_per_row, row_stride, scol, splane, t0):
    sh = {8: 3, 16: 4}[lanes_per_row]; R = 64 // lanes_per_row
    A(f"v_lshrrev_b32 v{t0}, {sh}, v1")
    A(f"v_lshlrev_b32 v{t0}, 2, v{t0}")
    A(f"v_add_u32 v{t0}, s{splane}, v{t0}")
    A(f"v_mul_u32_u24 v{t0}, {row_stride}, v{t0}")
    A(f"v_and_b32 v{t0+1}, {lanes_per_row-1}, v1")
    A(f"v_lshl_add_u32 v{t0}, v{t0+1}, 4, v{t0}")
    A(f"v_add_u32 v{dst}, s{scol}, v{t0}")
    for j in range(1, n): A(f"v_add_u32 v{dst+j}, {4*R*j*row_stride}, v{dst}")

def stats_off(A, dst, stok_local, t0):
    A(f"v_add_u32 v{t0}, s{stok_local}, v2")
    A(f"v_lshlrev_b32 v{dst}, 3, v{t0}")
    A(f"v_mul_u32_u24 v{t0}, 10240, v3")
    A(f"v_add_u32 v{dst}, v{dst}, v{t0}")
    A("s_mul_i32 s21, s18, 20480")
    A(f"v_add_u32 v{dst}, s21, v{dst}")

def l0_only(A, fn, name):
    l = A.newlabel(name)
    A("s_cmp_lg_u32 s16, 0"); A(f"s_cbranch_scc1 {l}")
    h = list(A.hist)
    fn()
    A.fence(); A.label(l)
    A.hist = h

def reset(A): A.vm = []; A.lg = []

def phase1(A, L0):
    n = "p1a" if L0 else "p1b"
    PS, RB, SLOT = 4160, 256, 16640
    WSL, XS = (5, 2) if L0 else (env("WSL1", 9), 6)
    XST = 5 * SLOT
    VX, VWD, VTR, VST, VCS, VOUT, NM, RS = 4, 4, 9, 12, 13, 14, 16, 18
    TMP = 20; WF = 32; ACC = 64; CS = 128; XA = 144; SA = 240; ONE = 244; VXR = 248
    A("s_cmp_lt_u32 s19, 30"); A(f"s_cbranch_scc1 L_{n}_go")
    if L0:
        flags_zero(A, 4); A.wait_vm_all(); census_post(A, 4)
        warm_code(A); warm_tlb(A)
        l = A.newlabel("cw")
        A("s_cmp_lg_u32 s20, 4"); A(f"s_cbranch_scc1 {l}")
        census_wait(A, 4, 64); A.wait_lg_all()
        join(A, l)
        A("s_barrier")
        read_mode(A, 4)
    A("s_branch L_p1_done")
    A.label(f"L_{n}_go"); reset(A)
    A("s_and_b32 s26, s20, 3")
    A("s_and_b32 s24, s19, 1"); A("s_lshl_b32 s24, s24, 7")
    A("s_lshl_b32 s25, s26, 5"); A("s_add_u32 s24, s24, s25")
    A("s_lshl_b32 s27, s18, 8"); A("s_add_u32 s27, s27, s24")
    A("s_lshr_b32 s28, s19, 1")
    rot_init(A, "p1", 3840)
    def mk():
        g = Gemm(A, 4, 10, XS, WSL, SLOT, RB, 64, ACC, WF, XA, VX, [VWD + j for j in range(4)], [12] * 4,
                 [1024 * j for j in range(4)], [VTR, VTR + 1, VTR + 2], 8, 3840,
                 env("PRE1A", 12) if L0 else env("PRE1", 8), env("LA1A", 3) if L0 else env("LA1", 7))
        if L0: g.xstage = dict(vdma=[VX + j for j in range(4)], vrd=[VXR + j for j in range(4)], nslot=4)
        return g
    A("s_cmp_lt_u32 s20, 4"); A(f"s_cbranch_scc1 L_{n}_comp")
    srd(A, 12, SWQKV, 0, D * 1920 * 2)
    A(f"v_lshrrev_b32 v{TMP}, 4, v1"); A(f"v_lshlrev_b32 v{TMP}, {3 if L0 else 2}, v{TMP}"); A(f"v_add_u32 v{TMP}, s26, v{TMP}")
    A(f"v_mul_u32_u24 v{TMP}, 3840, v{TMP}")
    A(f"v_and_b32 v{TMP+1}, 15, v1"); A(f"v_lshl_add_u32 v{TMP}, v{TMP+1}, 4, v{TMP}")
    A("s_lshl_b32 s25, s28, 8"); A(f"v_add_u32 v{VWD}, s25, v{TMP}")
    A(f"v_add_u32 v{VWD+1}, {(4 if L0 else 16)*3840}, v{VWD}"); A(f"v_add_u32 v{VWD+2}, {32*3840}, v{VWD}"); A(f"v_add_u32 v{VWD+3}, {32*3840}, v{VWD+1}")
    A(f"s_mul_i32 s32, s26, {PS}")
    if not L0:
        g = mk(); g.throttle = env("THR1", 0) or None
        if env("W1DEP", 0): A(f"s_sleep {env('W1DEP', 0)}")
        g.run_loader()
        A("s_barrier")
        A("s_branch L_p1_done")
    else:
        flags_zero(A, TMP)
        def after(t):
            if t == 0:
                census_post(A, TMP)
                tr_lane_addr(A, VTR, PS, RB, 32, TMP)
                A("s_lshl_b32 s21, s26, 6"); A(f"v_add_u32 v{VTR}, s21, v{VTR}"); A(f"v_add_u32 v{VTR+1}, {3*SLOT}, v{VTR}")
                A(f"v_mov_b32 v{ONE}, 0x3f803f80")
                for k in range(4): A(f"v_mov_b32 v{SA+k}, 0")
            slot = t % WSL
            if env("NOCS1", 0): return
            for q in range(8):
                A(f"ds_read_b64_tr_b16 {v(WF + 2*q, 2)}, v{VTR + slot // 3} offset:{(slot % 3) * SLOT + 2 * q * RB}")
            A.wait_lg_all()
            for q in range(16):
                if env("CSDOT", 1): A(f"v_dot2_f32_bf16 v{SA + (q & 3)}, v{WF+q}, v{ONE}, v{SA + (q & 3)}")
                else:
                    A(f"v_lshlrev_b32 v{TMP+4}, 16, v{WF+q}"); A(f"v_and_b32 v{TMP+5}, 0xffff0000, v{WF+q}")
                    A(f"v_add_f32 v{SA + 2*(q & 1)}, v{SA + 2*(q & 1)}, v{TMP+4}"); A(f"v_add_f32 v{SA + 2*(q & 1) + 1}, v{SA + 2*(q & 1) + 1}, v{TMP+5}")
        mk().run_loader(after_bar=after, issue_first=True)
        A("s_nop 3")
        A(f"v_add_f32 v{SA}, v{SA}, v{SA+1}"); A(f"v_add_f32 v{SA+2}, v{SA+2}, v{SA+3}"); A(f"v_add_f32 v{SA}, v{SA}, v{SA+2}")
        A(f"v_mov_b32 v{SA+1}, v{SA}"); A(f"v_permlane32_swap_b32 v{SA}, v{SA+1}"); A(f"v_add_f32 v{SA}, v{SA}, v{SA+1}")
        A("s_lshl_b32 s21, s26, 7"); A(f"s_add_u32 s21, s21, {CS1}")
        A(f"v_lshlrev_b32 v{TMP}, 2, v2"); A(f"v_add_u32 v{TMP}, s21, v{TMP}")
        A(f"ds_write_b32 v{TMP}, v{SA}")
        l = A.newlabel("cw")
        A("s_cmp_lg_u32 s20, 4"); A(f"s_cbranch_scc1 {l}")
        census_wait(A, TMP, 8)
        join(A, l)
        A.wait_lg_all()
        A("s_barrier")
        read_mode(A, TMP)
        A("s_branch L_p1_done")
    A.label(f"L_{n}_comp"); reset(A)
    if L0:
        srd(A, 8, SX, 0, XB)
        A(f"v_lshrrev_b32 v{TMP}, 3, v1"); A(f"v_add_u32 v{TMP}, s27, v{TMP}"); A(f"v_mul_u32_u24 v{TMP}, 1280, v{TMP}")
        A(f"v_lshrrev_b32 v{TMP+1}, 4, v1"); A(f"v_and_b32 v{TMP+2}, 7, v1"); A(f"v_xor_b32 v{TMP+1}, v{TMP+1}, v{TMP+2}")
        A(f"v_lshl_add_u32 v{VX}, v{TMP+1}, 4, v{TMP}")
        A(f"v_xor_b32 v{TMP+1}, 4, v{TMP+1}"); A(f"v_lshl_add_u32 v{VX+1}, v{TMP+1}, 4, v{TMP}"); A(f"v_add_u32 v{VX+1}, {8*1280}, v{VX+1}")
        A(f"v_add_u32 v{VX+2}, {16*1280}, v{VX}"); A(f"v_add_u32 v{VX+3}, {16*1280}, v{VX+1}")
        A("s_lshr_b32 s30, s30, 4")
        A("s_lshl_b32 s33, s26, 14"); A(f"s_add_u32 s33, s33, {XST}")
    else:
        cl_lane_off(A, VX, 27, 20480, TMP)
        srd(A, 8, SWS, WS_XIN, XB)
    def setup():
        tr_lane_addr(A, VTR, PS, RB, 32, TMP)
        A(f"v_add_u32 v{VTR+1}, {3*SLOT}, v{VTR}")
        A(f"v_add_u32 v{VTR+2}, {6*SLOT}, v{VTR}")
        A(f"v_and_b32 v{TMP}, 15, v1"); A(f"v_lshlrev_b32 v{VOUT}, 4, v{TMP}"); A(f"v_lshl_add_u32 v{VOUT}, v3, 11, v{VOUT}")
        A(f"v_bfe_u32 v{TMP}, v1, 4, 1"); A(f"v_lshl_add_u32 v{VOUT}, v{TMP}, 12, v{VOUT}")
        A("s_lshl_b32 s21, s24, 3"); A(f"v_add_u32 v{VOUT}, s21, v{VOUT}")
        A(f"v_lshlrev_b32 v{VCS}, 4, v3"); A(f"v_add_u32 v{VCS}, {CS1}, v{VCS}")
        srd(A, 80, SWS, WS_QKV, QKV_B)
        if L0:
            A(f"v_bfe_u32 v{TMP}, v1, 1, 3"); A(f"v_xor_b32 v{TMP}, v{TMP}, v3")
            A(f"v_lshlrev_b32 v{TMP+1}, 7, v2"); A(f"v_add_u32 v{TMP+1}, s33, v{TMP+1}")
            for st in range(4):
                A(f"v_xor_b32 v{TMP+2}, {2*st}, v{TMP}"); A(f"v_lshl_add_u32 v{VXR+st}, v{TMP+2}, 4, v{TMP+1}")
            A(f"v_mov_b32 v{ONE}, 0x3f803f80")
            for k in range(4): A(f"v_mov_b32 v{SA+k}, 0")
    if L0:
        stamp(A, 1)
        g = mk()
        def xst(xr, nb):
            if env("NOXST", 0): return
            A(f"v_dot2_f32_bf16 v{SA + 2*(nb & 1)}, v{xr+nb}, v{ONE}, v{SA + 2*(nb & 1)}")
            A(f"v_dot2_f32_bf16 v{SA + 2*(nb & 1) + 1}, v{xr+nb}, v{xr+nb}, v{SA + 2*(nb & 1) + 1}")
        g.PRE += 1
        g.run(do_w=False, extra=[setup], extra_at=(g.PRE - 1) // 4, sb=1, per_mfma=xst)
        A("s_nop 3")
        A(f"v_pk_add_f32 {v(TMP,2)}, {v(SA,2)}, {v(SA+2,2)}")
        finish_stats(A, TMP, NM, RS, TMP + 10, single=True)
        A.fence()
        A("s_branch L_p1_epi")
        return
    setup()
    stats_off(A, VST, 24, TMP)
    srd(A, 36, SWS, WS_STA, ST_B)
    wait_local(A, 3, 30, 0x07, TMP, layer_delta=-1)
    reset(A)
    stamp(A, 1)
    mk().run(do_w=False, extra=stats_items(A, VST, 36, TMP), sb=1)
    finish_stats(A, TMP, NM, RS, TMP + 10)
    join(A, "L_p1_epi"); reset(A)
    A("s_cmp_lt_u32 s28, 5")
    A(f"s_cselect_b32 s21, {f32(20 ** -0.5 * 1.4426950408889634)}, 1.0")
    A(f"v_mul_f32 v{RS}, s21, v{RS}")
    A("s_barrier")
    csr = lambda nb: (WF + (nb & 1) * 16) if nb != 0 else CS
    def csread(nb):
        for i in range(4): A(f"ds_read_b128 {v(csr(nb) + i*4, 4)}, v{VCS} offset:{nb*128 + i*32}", ("C", nb, i))
    csread(0); csread(1); csread(2)
    A("s_mul_i32 s24, s18, 480"); A("s_lshl_b32 s25, s28, 5"); A("s_add_u32 s24, s24, s25"); A("s_lshl_b32 s24, s24, 11")
    for nb in range(4):
        if nb == 2: csread(3)
        for ip in range(2):
            r = ACC + nb * 16 + ip * 8; c = csr(nb) + ip * 8
            A.wait_lg(lambda g: g == ("C", nb, 2 * ip + 1))
            for k in range(0, 8, 2):
                A(f"v_pk_fma_f32 {v(r+k,2)}, {v(c+k,2)}, {v(NM,2)}, {v(r+k,2)} op_sel_hi:[1,0,1]")
            for k in range(0, 8, 2):
                A(f"v_pk_mul_f32 {v(r+k,2)}, {v(r+k,2)}, {v(RS,2)} op_sel_hi:[1,0]")
            for k in range(4):
                A(f"v_cvt_pk_bf16_f32 v{r+k}, v{r+2*k}, v{r+2*k+1}")
            A(f"s_add_u32 s21, s24, {(8*nb + 4*ip) * 2048}")
            A(f"v_permlane16_swap_b32 v{r}, v{r+2}")
            A(f"v_permlane16_swap_b32 v{r+1}, v{r+3}")
            A(f"buffer_store_dwordx4 {v(r,4)}, v{VOUT}, s[80:83], s21 offen sc1")
    read_mode(A, TMP)
    stamp(A, 4)
    A("s_lshl_b32 s21, s16, 3"); A("s_add_u32 s21, s21, s18"); A("s_lshl_b32 s21, s21, 5"); A("s_add_u32 s21, s21, s19")
    A("s_lshl_b32 s21, s21, 7"); A("s_add_u32 s21, s21, s20"); A("s_add_u32 s21, s21, 0x10000")
    A(f"v_mov_b32 v{TMP}, s21"); A(f"v_mov_b32 v{TMP+1}, 1")
    A.wait_vm_all()
    A("s_mov_b64 exec, 1")
    A(f"buffer_store_byte v{TMP+1}, v{TMP}, {s(SFL,4)}, 0 offen sc1")
    A("s_mov_b64 exec, -1")
    signal_local(A, 4, TMP + 2, nowait=True)
    stamp(A, 5)
    join(A, "L_p1_done"); reset(A)

P35 = dict(PS=2112, RB=128, SLOT=8448)
def p35_ids(A):
    A("s_mul_i32 s28, s19, 171"); A("s_lshr_b32 s28, s28, 9")
    A("s_mul_i32 s25, s28, 3"); A("s_sub_u32 s24, s19, s25")
    A("s_mul_i32 s24, s24, 80")
    A("s_and_b32 s26, s20, 3")
    A("s_lshl_b32 s25, s26, 5"); A("s_add_u32 s24, s24, s25")
    A("s_lshl_b32 s27, s18, 8"); A("s_add_u32 s27, s27, s24")

def p35_gemm(A, nstage, WSL, PRE, LA, npre):
    g = Gemm(A, 2, nstage, 9, WSL, 8448, 128, 64, 48, 24, 96, 4, [6, 7], [12] * 2,
             [0, 1024], [8, 9, 13], 8, D * 2, PRE, LA, npre)
    g.FD = env("FD35", 2)
    return g

def p35_loader_setup(A, sw, K, base):
    A("s_lshl_b32 s25, s28, 7")
    wdma_off(A, 6, 2, 8, D * 2, 25, 26, 16)
    A(f"s_mul_i32 s32, s26, 2112")
    if base: A(f"s_add_u32 s32, s32, {base}")
    srd(A, 12, sw, 0, K * D * 2)

def p35_compute(A, nstage, WSL, npre, base, ws_x, x_bytes, ws_res, ws_out, ws_st, waitf, sigk, can_final, sb, PRE):
    VX, VTR, VRES, VST, VOUT = 4, 8, 10, 11, 12
    TMP = 16; ACC = 48; RES = 80
    cl_lane_off(A, VX, 27, nstage * 2048, TMP)
    tr_lane_addr(A, VTR, 2112, 128, 32, TMP, base)
    A(f"v_add_u32 v{VTR+1}, {7*8448}, v{VTR}"); A(f"v_add_u32 v13, {14*8448}, v{VTR}")
    cl_lane_off(A, VRES, 27, 20480, TMP)
    A("s_lshl_b32 s21, s28, 11")
    A(f"v_add_u32 v{VRES}, s21, v{VRES}")
    if True:
        A(f"v_add_u32 v{TMP}, s27, v2")
        A(f"v_mul_u32_u24 v{VOUT}, {D*2}, v{TMP}")
        A("s_lshl_b32 s21, s28, 7")
        A(f"v_add_u32 v{VOUT}, s21, v{VOUT}")
        A(f"v_lshl_add_u32 v{VOUT}, v3, {5 if can_final else 3}, v{VOUT}")
    A(f"v_add_u32 v{TMP}, s24, v2"); A(f"v_lshlrev_b32 v{VST}, 3, v{TMP}")
    A("s_mul_i32 s21, s18, 10"); A("s_add_u32 s21, s21, s28"); A("s_lshl_b32 s21, s21, 11")
    A(f"v_add_u32 v{VST}, s21, v{VST}")
    A("s_cmp_eq_u32 s24, 80"); A("s_cselect_b32 s22, 0xffff, 0"); A("s_cmp_eq_u32 s24, 160"); A("s_cselect_b32 s22, 0xffff, s22"); A("s_mov_b32 s23, s22")
    A(f"v_mov_b32 v{TMP}, {OOB:#x}")
    A(f"v_cndmask_b32 v14, v{VRES}, v{TMP}, s[22:23]"); A(f"v_cndmask_b32 v{VST}, v{VST}, v{TMP}, s[22:23]")
    if can_final: A(f"v_cndmask_b32 v{VOUT}, v{VOUT}, v{TMP}, s[22:23]")
    srd(A, 8, SWS, ws_x, x_bytes)
    srd(A, 36, SWS, ws_res, XB)
    srd(A, 76, SWS, ws_out, XB)
    srd(A, 80, SWS, ws_st, ST_B)
    if not can_final:
        A("s_cmp_lg_u32 s16, 0"); A("s_cbranch_scc1 L_p3_rescl")
        srd(A, 36, SX, 0, XB)
        for nb in range(2):
            for half in range(2):
                p = RES + (nb * 2 + half) * 4
                A(f"buffer_load_dwordx2 {v(p,2)}, v{VOUT}, s[36:39], 0 offen offset:{(32*nb + 8*half)*2}")
                A(f"buffer_load_dwordx2 {v(p+2,2)}, v{VOUT}, s[36:39], 0 offen offset:{(32*nb + 16 + 8*half)*2}")
        A("s_branch L_p3_resdone")
        A.label("L_p3_rescl")
    for nb in range(2):
        for half in range(2):
            A(f"buffer_load_dwordx4 {v(RES + (nb*2+half)*4, 4)}, v{VRES}, s[36:39], 0 offen offset:{nb*1024 + half*512} sc1", ("R",))
    if not can_final: A.label("L_p3_resdone")
    if can_final: A("s_barrier")
    waitf(TMP); reset(A)
    stamp(A, sb)
    p35_gemm(A, nstage, WSL, PRE, 0, npre).run(do_w=False, sb=sb)
    A("s_barrier")
    for nb in range(2):
        for half in range(2):
            p = RES + (nb * 2 + half) * 4
            for j in range(4):
                src = ACC + nb * 16 + 4 * half + (j >> 1) * 8 + (j & 1) * 2
                A(f"v_lshlrev_b32 v{TMP}, 16, v{p+j}")
                A(f"v_and_b32 v{TMP+1}, 0xffff0000, v{p+j}")
                A(f"v_pk_add_f32 {v(src,2)}, {v(src,2)}, {v(TMP,2)}")
                A(f"v_cvt_pk_bf16_f32 v{p+j}, v{src}, v{src+1}")
    if can_final:
        A("s_cmp_eq_u32 s16, 0"); A("s_cbranch_scc1 L_p5_notfinal")
        srd(A, 76, SOUT, 0, XB)
        for nb in range(2):
            for half in range(2):
                p = RES + (nb * 2 + half) * 4
                A(f"v_permlane32_swap_b32 v{p}, v{p+2}")
                A(f"v_permlane32_swap_b32 v{p+1}, v{p+3}")
                A(f"buffer_store_dwordx4 {v(p,4)}, v{VOUT}, s[76:79], 0 offen offset:{(32*nb + 8*half)*2}")
        A("s_branch L_exit")
        A.label("L_p5_notfinal"); reset(A)
    for nb in range(2):
        for half in range(2):
            p = RES + (nb * 2 + half) * 4
            A(f"buffer_store_dwordx4 {v(p,4)}, v14, s[76:79], 0 offen offset:{nb*1024 + half*512}{STF}")
    for k in range(4): A(f"v_mov_b32 v{TMP+k}, 0")
    A(f"v_mov_b32 v{TMP+4}, 0x3f803f80")
    for j in range(16):
        o = 2 * (j & 1)
        A(f"v_dot2_f32_bf16 v{TMP+o}, v{RES+j}, v{TMP+4}, v{TMP+o}")
        A(f"v_dot2_f32_bf16 v{TMP+o+1}, v{RES+j}, v{RES+j}, v{TMP+o+1}")
    A("s_nop 3")
    A(f"v_pk_add_f32 {v(TMP,2)}, {v(TMP,2)}, {v(TMP+2,2)}")
    A(f"v_mov_b32 v{TMP+2}, v{TMP}"); A(f"v_mov_b32 v{TMP+3}, v{TMP+1}")
    A(f"v_permlane32_swap_b32 v{TMP}, v{TMP+2}")
    A(f"v_permlane32_swap_b32 v{TMP+1}, v{TMP+3}")
    A(f"v_pk_add_f32 {v(TMP,2)}, {v(TMP,2)}, {v(TMP+2,2)}")
    A(f"buffer_store_dwordx2 {v(TMP,2)}, v{VST}, s[80:83], 0 offen{STF}")
    stamp(A, sb + 3)
    signal_local(A, sigk, TMP + 4)
    stamp(A, sb + 4)

def phase2(A):
    PSK, PSV = 4096, 4160
    KOFF, VOFF = 0, 6 * 4096
    QOFF = VOFF + 6 * PSV
    VL16, VQ, VQ2, VK1, VK2, VV, VO, VWA, VWB, VW4 = 4, 5, 6, 7, 8, 9, 10, 12, 13, 252
    TMP = 14; Q1, Q2 = 20, 24; MSK = 26; KF = 34; VF = 52; O = 68; PB = 84; S = 100; MX = 244; DUM = 248
    A("s_mul_i32 s25, s19, 5")
    A(f"v_lshlrev_b32 v{VL16}, 4, v1")
    srd(A, 8, SWS, WS_QKV, QKV_B)
    A("s_lshl_b32 s24, s20, 5")
    A(f"v_and_b32 v{TMP+4}, 15, v1"); A(f"v_bfe_u32 v{TMP+5}, v1, 4, 1")
    A(f"v_lshlrev_b32 v{VK2}, 4, v{TMP+4}"); A(f"v_lshl_add_u32 v{VK2}, v{TMP+5}, 3, v{VK2}")
    A("s_lshl_b32 s21, s20, 8"); A(f"v_add_u32 v{VK2}, s21, v{VK2}")
    A(f"v_lshl_add_u32 v{VK1}, v3, 12, v{VK2}")
    A(f"v_add_u32 v{VQ2}, {QOFF}, v{VK2}"); A(f"v_lshl_add_u32 v{VQ}, v3, 11, v{VQ2}")
    srd(A, 12, SWS, WS_O, XB)
    A(f"v_mov_b32 v{TMP+2}, 0x3f803f80"); A(f"v_mov_b32 v{TMP+3}, 0x3f803f80")
    A(f"v_lshlrev_b32 v{TMP+1}, 3, v0")
    A(f"ds_write_b64 v{TMP+1}, {v(TMP+2,2)} offset:{VOFF + 5*PSV}")
    A("s_lshr_b32 s22, s20, 2"); A("s_add_u32 s22, s22, s18"); A("s_cmp_eq_u32 s22, 0"); A("s_cselect_b32 s22, 0xf149, 0")
    A(f"v_mov_b32 v{Q1}, s22"); A(f"v_mov_b32 v{Q1+1}, 0")
    A(f"ds_write_b64 v{TMP+1}, {v(Q1,2)} offset:{KOFF + 5*PSK}")
    A(f"v_and_b32 v{TMP}, 3, v1")
    A(f"v_lshl_add_u32 v{TMP+1}, v{TMP+5}, 2, v{TMP}"); A(f"v_min_u32 v{TMP+1}, 5, v{TMP+1}")
    A(f"v_mul_u32_u24 v{VV}, {PSV}, v{TMP+1}")
    A(f"v_bfe_u32 v{TMP+1}, v1, 2, 2"); A(f"v_lshl_add_u32 v{TMP+1}, v3, 2, v{TMP+1}")
    A(f"v_lshl_add_u32 v{VV}, v{TMP+1}, 4, v{VV}"); A(f"v_add_u32 v{VV}, s21, v{VV}")
    A("s_lshl_b32 s21, s18, 4"); A("s_lshl_b32 s22, s20, 1"); A("s_add_u32 s21, s21, s22")
    A(f"v_add_u32 v{TMP+1}, s21, v{TMP+5}"); A(f"v_mul_u32_u24 v{TMP+1}, 20480, v{TMP+1}")
    A(f"v_lshl_add_u32 v{TMP+1}, v{TMP+4}, 4, v{TMP+1}")
    A("s_lshl_b32 s21, s19, 9"); A(f"v_add_u32 v{VO}, s21, v{TMP+1}"); A(f"v_lshl_add_u32 v{VO}, v3, 8, v{VO}")
    A("s_lshr_b32 s21, s19, 1"); A("s_lshl_b32 s21, s21, 8"); A("s_and_b32 s22, s19, 1"); A("s_lshl_b32 s22, s22, 3"); A("s_add_u32 s21, s21, s22"); A(f"s_add_u32 s21, s21, {64*256}")
    A(f"v_add_u32 v{VO+1}, s21, v{TMP+1}"); A(f"v_lshl_add_u32 v{VO+1}, v3, 31, v{VO+1}")
    A("s_mul_i32 s28, s19, 171"); A("s_lshr_b32 s28, s28, 9")
    A("s_and_b32 s26, s20, 3"); A("s_lshr_b32 s27, s20, 2")
    A(f"v_bfe_u32 v{TMP}, v1, 3, 1"); A(f"v_mul_u32_u24 v{TMP+1}, 5, v{TMP+5}"); A(f"v_add_u32 v{TMP}, v{TMP}, v{TMP+1}")
    A(f"v_lshl_add_u32 v{TMP}, v3, 1, v{TMP}"); A("s_mul_i32 s21, s27, 10"); A(f"v_add_u32 v{TMP}, s21, v{TMP}")
    A(f"v_bfe_u32 v{TMP+1}, v1, 3, 2"); A(f"v_mul_u32_u24 v{TMP+1}, 10, v{TMP+1}"); A(f"v_mul_u32_u24 v{TMP+2}, 5, v3"); A(f"v_add_u32 v{TMP+1}, v{TMP+1}, v{TMP+2}")
    A("s_mul_i32 s21, s27, 40"); A("s_add_u32 s21, s21, 4"); A(f"v_add_u32 v{TMP+1}, s21, v{TMP+1}")
    A(f"v_and_b32 v{TMP+2}, 7, v1"); A(f"v_lshlrev_b32 v{TMP+2}, 4, v{TMP+2}")
    A("s_mul_i32 s21, s26, 1280"); A("s_lshl_b32 s22, s28, 7"); A("s_add_u32 s21, s21, s22")
    A("s_cmp_ge_u32 s19, 30"); A(f"s_cselect_b32 s21, {OOB:#x}, s21")
    A(f"v_add_u32 v{TMP+2}, s21, v{TMP+2}")
    A(f"v_mul_u32_u24 v{VWA}, 5120, v{TMP}"); A(f"v_add_u32 v{VWA}, v{VWA}, v{TMP+2}")
    A(f"v_mul_u32_u24 v{VWB}, 5120, v{TMP+1}"); A(f"v_add_u32 v{VWB}, v{VWB}, v{TMP+2}")
    A("s_mul_i32 s32, s26, 2112"); A("s_lshl_b32 s21, s27, 10"); A("s_add_u32 s32, s32, s21"); A(f"s_add_u32 s32, s32, {P3W}")
    A(f"s_add_u32 s34, s32, {10*8448}")
    rot_calc(A, "p3")
    A("s_sub_u32 s21, 10, s21"); A("s_cmp_eq_u32 s21, 10"); A("s_cselect_b32 s21, 0, s21"); A("s_mul_i32 s21, s21, 8448"); A("s_add_u32 s29, s32, s21")
    srd(A, 36, SWO, 0, D * D * 2)
    srd(A, 76, SWS, 0, LS)
    A("s_mul_i32 s21, s18, 327680"); A("s_mul_i32 s22, s19, 10240"); A("s_add_u32 s21, s21, s22"); A("s_lshl_b32 s22, s20, 10"); A("s_add_u32 s21, s21, s22")
    A(f"v_add_u32 v{VW4}, s21, v{VL16}")
    A("s_mul_i32 s21, s18, 20480"); A("s_mul_i32 s22, s19, 640"); A("s_add_u32 s21, s21, s22")
    A(f"v_add_u32 v{VW4+1}, s21, v{VL16}")
    side = []
    for t in range(10):
        def f(t=t):
            A("s_mov_b32 m0, s29")
            A(f"s_mov_b32 s21, {t*80*1280 if t < 8 else (t-8)*320*1280}")
            A(f"buffer_load_dwordx4 v{VWA if t < 8 else VWB}, s[36:39], s21 offen lds", "wo")
            A("s_add_u32 s29, s29, 8448"); A("s_cmp_ge_u32 s29, s34"); A("s_cselect_b32 s29, s32, s29")
        side.append(f)
    if PLAIN:
        def touch(vr, off):
            def f():
                A(f"s_mov_b32 s21, {off:#x}")
                A(f"buffer_load_dwordx4 {v(DUM,4)}, v{vr}, s[76:79], s21 offen sc1", "t")
            return f
        side = [touch(VW4, WS_O), touch(VW4, WS_O + 8192), touch(VW4, WS_X1), touch(VW4, WS_X1 + 8192), touch(VW4 + 1, WS_STB)] + side
    for r in range(16):
        k0 = 8 * (r >> 2) + (r & 3)
        A(f"s_mov_b32 s{40+2*r}, {(0xFFFFFFFF << k0) & 0xFFFFFFFF:#x}")
        A(f"s_mov_b32 s{41+2*r}, {(0xFFFFFFFF << (k0+4)) & 0xFFFFFFFF:#x}")
    A(f"v_mov_b32 v{TMP+4}, 0xffff"); A(f"v_mov_b32 v{TMP+5}, 0xffff0000")
    for j in range(8):
        A(f"v_cndmask_b32 v{MSK+j}, 0, v{TMP+4}, {s(40+4*j,2)}")
        A(f"v_cndmask_b32 v{TMP+1}, 0, v{TMP+5}, {s(42+4*j,2)}")
        A(f"v_or_b32 v{MSK+j}, v{MSK+j}, v{TMP+1}")
    stamp(A, 6)
    A("s_sub_u32 s21, s20, 4"); A("s_cmp_ge_u32 s21, 3"); A("s_cbranch_scc1 L_p2_setup")
    A("s_mul_i32 s25, s19, 5"); A("s_mul_i32 s80, s18, 480"); A("s_add_u32 s80, s80, s25"); A("s_lshl_b32 s80, s80, 11")
    A(f"s_add_u32 s81, s80, {320*2048}")
    A("s_cmp_eq_u32 s20, 6"); A("s_cbranch_scc1 L_p2_halo")
    A("s_cmp_eq_u32 s20, 4")
    A(f"s_cselect_b32 s22, 0, {160*2048}"); A(f"s_cselect_b32 s82, {QOFF}, 0"); A("s_cselect_b32 s83, 0, 1")
    A("s_add_u32 s80, s80, s22"); A("s_lshl_b32 s83, s83, 11"); A("s_add_u32 s82, s82, s83"); A("s_add_u32 s83, s83, 2048")
    A(f"s_mov_b32 s33, {VOFF + 2048}")
    wait_local(A, 4, 30, 0x0f, KF)
    A("s_branch L_p2_ld")
    A.label("L_p2_halo"); reset(A)
    A(f"s_sub_u32 s80, s80, {320*2048}"); A(f"s_sub_u32 s81, s81, {480*2048}")
    A("s_mov_b32 s82, 0"); A("s_mov_b32 s83, 4096"); A(f"s_mov_b32 s33, {VOFF}")
    A("s_cmp_eq_u32 s18, 0"); A(f"s_cselect_b32 s80, {OOB:#x}, s80"); A(f"s_cselect_b32 s81, {OOB:#x}, s81"); A("s_cbranch_scc1 L_p2_ld")
    A(f"v_min_u32 v{KF}, 19, v1"); A(f"v_lshlrev_b32 v{KF}, 7, v{KF}")
    A("s_lshl_b32 s21, s16, 3"); A("s_add_u32 s21, s21, s18"); A("s_lshl_b32 s21, s21, 12"); A(f"s_add_u32 s21, s21, {0x10000 - 4096 + 10*128}")
    A(f"v_add_u32 v{KF}, s21, v{KF}")
    A(f"v_mov_b32 v{KF+1}, 0x01010101")
    def body():
        A(f"buffer_load_dword v{KF+2}, v{KF}, {s(SFL,4)}, 0 offen sc1")
        A.wait_vm_all()
        A(f"v_cmp_ne_u32 vcc, v{KF+2}, v{KF+1}")
    spin(A, body, "p1w", 1)
    join(A, "L_p2_ld"); reset(A)
    stamp(A, 7)
    for i in range(5):
        for c in range(2):
            A(f"s_add_u32 m0, s82, {c*1024}")
            A(f"buffer_load_dwordx4 v{VL16}, s[8:11], s80 offen sc1 lds")
            A("s_add_u32 s80, s80, 1024")
        A("s_add_u32 s82, s82, s83")
    A("s_cmp_eq_u32 s20, 5"); A("s_cbranch_scc1 L_p2_w5")
    for i in range(5):
        for c in range(2):
            A(f"s_add_u32 m0, s33, {i*PSV + c*1024}")
            A(f"buffer_load_dwordx4 v{VL16}, s[8:11], s81 offen sc1 lds")
            A("s_add_u32 s81, s81, 1024")
    A("s_branch L_p2_setup")
    A.label("L_p2_w5")
    A("s_waitcnt vmcnt(0)")
    join(A, "L_p2_setup"); reset(A)
    A("s_waitcnt vmcnt(10)"); A.wait_lg_all()
    A.vm = ["V"] * 10
    A("s_barrier")
    stamp(A, 8)
    A(f"ds_read_b64 {v(Q1,2)}, v{VQ}", ("K", 0))
    A(f"ds_read_b64 {v(Q1+2,2)}, v{VQ} offset:4096", ("K", 0))
    A(f"ds_read_b64 {v(Q2,2)}, v{VQ2} offset:8192", ("K", 0))
    qorder = [0, 8, 1, 2, 3, 4, 5, 6, 7]
    def kreads(n):
        d = qorder[n]; b = KF + (n % 3) * 6
        for q in range(3):
            A(f"ds_read_b64 {v(b+2*q,2)}, v{VK1} offset:{KOFF + 2*q*PSK + d*256}", ("K", n))
    work = {}
    work[1] = [f"v_cndmask_b32 v{S+r}, v{S+r}, v{S+128+r}, {s(40+2*r,2)}" for r in range(16)]
    work[1] += [f"v_max_f32 v{MX+c}, v{S+2*c}, v{S+2*c+1}" for c in range(2)]
    work[1] += [f"v_max3_f32 v{MX+(k&1)}, v{MX+(k&1)}, v{S+2*k}, v{S+2*k+1}" for k in range(2, 8)]
    for n in range(2, 9):
        sb = S + 16 * qorder[n]
        work[n] = [f"v_max3_f32 v{MX+(k&1)}, v{MX+(k&1)}, v{sb+2*k}, v{sb+2*k+1}" for k in range(8)]
    pend = []
    kreads(0); kreads(1)
    for n in range(9):
        d = qorder[n]
        if n + 2 < 9: kreads(n + 2)
        A.wait_lg(lambda g: g == ("K", n))
        b = KF + (n % 3) * 6
        if n == 0:
            A("s_mov_b32 s22, -1"); A("s_mov_b32 s23, 0"); A(f"v_mov_b32 v{MX+2}, 0x3f80")
            A(f"v_cndmask_b32 v{Q2}, v{MX+2}, v{Q2}, s[22:23]"); A(f"v_cndmask_b32 v{Q2+1}, 0, v{Q2+1}, s[22:23]")
        if n - 2 in work: pend += work[n - 2]
        A(f"v_mfma_f32_32x32x16_bf16 {v(S+16*d,16)}, {v(b,4)}, {v(Q1,4)}, 0")
        for _ in range(6):
            if pend: A(pend.pop(0))
        A(f"v_mfma_f32_32x32x8_bf16 {v(S+16*d,16)}, {v(b+4,2)}, {v(Q2,2)}, {v(S+16*d,16)}")
        for _ in range(6):
            if pend: A(pend.pop(0))
    for w_ in pend + work[7] + work[8]: A(w_)
    A(f"v_max_f32 v{MX}, v{MX}, v{MX+1}")
    A(f"v_mov_b32 v{MX+1}, v{MX}")
    A(f"v_permlane32_swap_b32 v{MX}, v{MX+1}")
    A(f"v_max_f32 v{MX}, v{MX}, v{MX+1}")
    stamp(A, 27)
    A.wait_vm_all()
    A("s_barrier")
    stamp(A, 28)
    if env("NOSIDE", 0): side = []
    vbuf = lambda k: (VF + 8 * k) if k < 2 else (PB + 8 * (k - 2))
    vseq = [0, 8, 1, 2, 3, 4, 5, 6, 7]
    def vreads(i):
        d = vseq[i]
        for u in range(2):
            for rd in range(2):
                A(f"ds_read_b64_tr_b16 {v(vbuf(i % 4) + u*4 + rd*2, 2)}, v{VV} offset:{VOFF + d*256 + rd*128 + u*8}", ("V", i))
    mq = []; st_ = dict(first=True, nv=0)
    def pv():
        if not mq: return
        i, u = mq.pop(0)
        A.wait_lg(lambda g: g == ("V", i))
        c = "0" if st_["first"] else v(O, 16); st_["first"] = False
        A(f"v_mfma_f32_32x32x16_bf16 {v(O,16)}, {v(vbuf(i % 4) + u*4, 4)}, {v(S + 16*vseq[i] + u*4, 4)}, {c}")
    vreads(0); vreads(1)
    per = -(-len(side) // 6)
    for d in range(8):
        sb = S + 16 * d
        for r in range(0, 16, 2): A(f"v_pk_add_f32 {v(sb+r,2)}, {v(sb+r,2)}, {v(MX,2)} op_sel_hi:[1,0] neg_lo:[0,1] neg_hi:[0,1]")
        q = 0
        for r in range(16):
            A(f"v_exp_f32 v{sb+r}, v{sb+r}")
            if r in (1, 6) or (r == 11 and d in (1, 2)): pv()
            if r == 13 and d + 2 < 9: vreads(d + 2)
            if r % 4 == 3 and side and q < per: side.pop(0)(); q += 1
        for j in range(8): A(f"v_cvt_pk_bf16_f32 v{sb+j}, v{sb+2*j}, v{sb+2*j+1}")
        if d == 0:
            for j in range(8): A(f"v_and_b32 v{S+128+j}, v{sb+j}, v{MSK+j}")
            for j in range(8): A(f"v_bfi_b32 v{sb+j}, v{MSK+j}, 0, v{sb+j}")
            mq += [(0, 0), (0, 1), (1, 0), (1, 1)]
        else:
            mq += [(d + 1, 0), (d + 1, 1)]
    while mq: pv()
    assert not side
    stamp(A, 9)
    A(f"v_rcp_f32 v{MX}, v{O+12}")
    for k in range(0, 12, 2):
        A(f"v_pk_mul_f32 {v(O+k,2)}, {v(O+k,2)}, {v(MX,2)} op_sel_hi:[1,0]")
    for k in range(6): A(f"v_cvt_pk_bf16_f32 v{PB+k}, v{O+2*k}, v{O+2*k+1}")
    A(f"buffer_store_dwordx4 {v(PB,4)}, v{VO}, s[12:15], 0 offen{STF}")
    A(f"buffer_store_dwordx2 {v(PB+4,2)}, v{VO+1}, s[12:15], 0 offen{STF}")
    signal_local(A, 0, 20)
    stamp(A, 10)
    A("s_barrier")
    A.fence(); reset(A)

def touch_range(A, off, grp_bytes, nwg, base_idx, depth=8):
    per = nwg * 8 * 1024
    n = -(-grp_bytes // per)
    A(f"s_mul_i32 s21, s18, {grp_bytes}")
    srd(A, 36, SWS, off, grp_bytes, soff=21)
    A(f"s_sub_u32 s31, s19, {base_idx}"); A("s_lshl_b32 s31, s31, 3"); A("s_add_u32 s31, s31, s20"); A("s_lshl_b32 s31, s31, 10")
    A("v_lshlrev_b32 v4, 4, v1")
    A("s_mov_b32 s22, 0")
    lp = A.newlabel("tr")
    A.label(lp)
    A("buffer_load_dwordx4 v[8:11], v4, s[36:39], s31 offen sc1")
    A(f"s_waitcnt vmcnt({depth})"); A.vm = []
    A(f"s_add_u32 s31, s31, {per}")
    A("s_add_u32 s22, s22, 1"); A(f"s_cmp_lt_u32 s22, {n}"); A(f"s_cbranch_scc1 {lp}")

def warm_code(A, thr=31):
    if not env("WARMC", 1): return
    skip = A.newlabel("wc"); here = A.newlabel("pc"); lp = A.newlabel("wcl")
    A(f"s_cmp_lt_u32 s19, {thr}"); A(f"s_cbranch_scc1 {skip}")
    A("s_getpc_b64 s[22:23]")
    A.label(here)
    A(f"s_sub_u32 s22, s22, {here}-{NAME}_kernel"); A("s_subb_u32 s23, s23, 0")
    A("v_lshlrev_b32 v6, 4, v0")
    A.label(lp)
    A(f"v_min_u32 v7, L_code_end-{NAME}_kernel-16, v6")
    A("v_mov_b32 v5, s23"); A("v_add_co_u32 v4, vcc, s22, v7"); A("v_addc_co_u32 v5, vcc, 0, v5, vcc")
    A("global_load_dwordx4 v[8:11], v[4:5], off"); A.vm = []
    A("v_add_u32 v6, 8192, v6")
    A("v_readfirstlane_b32 s21, v6")
    A(f"s_cmp_lt_u32 s21, L_code_end-{NAME}_kernel"); A(f"s_cbranch_scc1 {lp}")
    A("s_waitcnt vmcnt(0)")
    join(A, skip); reset(A)

def warm_tlb(A):
    if not env("WARMT", 0): return
    skip = A.newlabel("wt")
    A("s_cmp_lg_u32 s19, 30"); A(f"s_cbranch_scc1 {skip}")
    sh = env("WARMT_SH", 16)
    A(f"v_lshlrev_b32 v6, {sh}, v0")
    for base, size in ((SWO, D*D*2), (SWG, D*F*2), (SWU, D*F*2), (SWD, D*F*2), (SOUT, XB)):
        srd(A, 36, base, 0, size)
        A("buffer_load_dword v8, v6, s[36:39], 0 offen")
    srd(A, 36, SWS, 0, 2 * LS)
    for k in range((2 * LS) >> (sh + 9)):
        A(f"s_mov_b32 s21, {k << (sh + 9):#x}"); A("buffer_load_dword v8, v6, s[36:39], s21 offen")
    A.wait_vm_all()
    join(A, skip); reset(A)

def idle4(A):
    l0_only(A, lambda: warm_code(A), "wc4")
    if PLAIN:
        touch_range(A, WS_H, H_B // 8, 5, 27, env("TDEP", 4))
        A("s_waitcnt vmcnt(0)")

def idle5(A):
    def f():
        l = A.newlabel("i5")
        A("s_cmp_lg_u32 s20, 0"); A(f"s_cbranch_scc1 {l}")
        wait_local(A, 2, 27, 0xff, 4, sleep=16)
        join(A, l); reset(A)
        A("s_barrier")
        warm_code(A)
    l0_only(A, f, "i5l0")

P4PRE = env("P4PRE", 4)
P4 = dict(PS=2112, RB=128, UOFF=8480, SLOT=16960)
def phase3(A):
    A("s_cmp_ge_u32 s19, 30"); A("s_cbranch_scc1 L_p3_done")
    A("s_cmp_lt_u32 s20, 3"); A("s_cbranch_scc1 L_p3_comp")
    A("s_cmp_eq_u32 s20, 3"); A("s_cbranch_scc1 L_p3_idle")
    A("s_cmp_ge_u32 s19, 27"); A("s_cbranch_scc1 L_p3_idle")
    A("s_and_b32 s26, s20, 3"); A("s_lshl_b32 s25, s19, 7")
    wdma_off(A, 6, 2, 8, F * 2, 25, 26, 16)
    A("s_mul_i32 s32, s26, 2112")
    rot_init(A, "p4", F * 2)
    srd(A, 12, SWG, 0, D * F * 2); srd(A, 36, SWU, 0, D * F * 2)
    g = Gemm(A, 4, 10, 6, 9, 16960, 128, 32, 0, 0, 0, 0, [6, 7, 6, 7], [12, 12, 36, 36], [0, 1024, 8480, 8480 + 1024],
             [], 8, F * 2, 0, 0)
    g.throttle = env("THR3", 3) or None; g.wflags = NT4
    if env("W3DEP", 0):
        wait_local(A, 0, 32, 0xff, 16, sleep=2); reset(A)
        if env("W3DEP", 0) > 1: A(f"s_sleep {env('W3DEP', 0)}")
    g.prefetch(P4PRE)
    A.wait_vm_all()
    join(A, "L_p3_idle"); reset(A)
    A("s_barrier")
    A("s_branch L_p3_done")
    A.label("L_p3_comp"); reset(A)
    p35_ids(A); rot_init(A, "p3", D * 2)
    p35_compute(A, 10, 10, 10, P3W, WS_O, XB, WS_XIN, WS_X1, WS_STB,
                lambda t0: wait_local(A, 0, 32, 0xff, t0), 1, False, 11, env("PRE3", 12))
    join(A, "L_p3_done"); reset(A)

B5 = 16960
N5 = env("N5", 10)
def phase5(A):
    A("s_cmp_lt_u32 s19, 30"); A("s_cbranch_scc1 L_p5_go")
    idle5(A)
    A("s_branch L_p5_done")
    A.label("L_p5_go"); reset(A)
    WSL = env("WSL5", 17)
    p35_ids(A); rot_init(A, "p5", D * 2)
    A("s_cmp_lt_u32 s20, 3"); A("s_cbranch_scc1 L_p5_comp")
    A("s_cmp_eq_u32 s20, 3"); A("s_cbranch_scc1 L_p5_idle")
    p35_loader_setup(A, SWD, F, B5)
    A("s_cmp_lt_u32 s19, 27"); A("s_cbranch_scc1 L_p5_pre")
    p35_gemm(A, 27, WSL, 0, 0, 0).prefetch(N5)
    A.wait_vm_all()
    join(A, "L_p5_pre"); reset(A)
    rot_init(A, "p5", D * 2, wskip=N5)
    A("s_barrier")
    g = p35_gemm(A, 27, WSL, 0, env("LA5", 14), 0); g.nland = N5
    g.run_loader()
    A("s_barrier")
    A("s_branch L_p5_done")
    A.label("L_p5_idle")
    A("s_mov_b32 s21, 0")
    A.label("L_p5_idle_loop")
    A("s_barrier"); A("s_add_u32 s21, s21, 1"); A("s_cmp_lt_u32 s21, 29"); A("s_cbranch_scc1 L_p5_idle_loop")
    A("s_branch L_p5_done")
    A.label("L_p5_comp"); reset(A)
    p35_compute(A, 27, WSL, 0, B5, WS_H, H_B, WS_X1, WS_XIN + LS, WS_STA + LS,
                lambda t0: wait_local(A, 2, 27, 0xff, t0), 3, True, 22, env("PRE5", 12))
    join(A, "L_p5_done"); reset(A)

def phase4(A):
    A("s_cmp_lt_u32 s19, 27"); A("s_cbranch_scc1 L_p4_go")
    idle4(A)
    A("s_branch L_p4_done")
    A.label("L_p4_go"); reset(A)
    A("s_lshl_b32 s24, s20, 5")
    A("s_lshl_b32 s27, s18, 8"); A("s_add_u32 s27, s27, s24")
    A("s_and_b32 s26, s20, 3"); A("s_lshr_b32 s29, s20, 2")
    PS, RB, UOFF, SLOT = 2112, 128, 8480, 16960
    WSL, XS = 9, 5
    VX, VWD, VTR, VST, VCS, VOUT, VPL = 4, 6, 8, 11, 12, 13, 144
    NM, CA, CB, IR = 14, 16, 18, 20
    TMP = 24; WF = 40; ACC = 72; T = 136; CSA = 148; CSB = 156; CT = 164; V5 = 165; XA = 168
    cl_lane_off(A, VX, 27, 20480, TMP)
    A("s_lshl_b32 s25, s19, 7")
    wdma_off(A, VWD, 2, 8, F * 2, 25, 26, TMP)
    tr_lane_addr(A, VTR, PS, RB, UOFF, TMP)
    A(f"v_add_u32 v{VTR+1}, {3*SLOT}, v{VTR}"); A(f"v_add_u32 v{VTR+2}, {6*SLOT}, v{VTR}")
    stats_off(A, VST, 24, TMP)
    cl_lane_off(A, VOUT, 27, 54 * 1024, TMP)
    A("s_lshl_b32 s21, s19, 11")
    A(f"v_add_u32 v{VOUT}, s21, v{VOUT}")
    A(f"v_lshlrev_b32 v{VCS}, 4, v3"); A(f"v_add_u32 v{VCS}, {CS4}, v{VCS}")
    A(f"s_mul_i32 s32, s26, {PS}"); A(f"s_mul_i32 s21, s29, {UOFF}"); A("s_add_u32 s32, s32, s21")
    A("s_lshl_b32 s21, s26, 5"); A(f"s_mul_i32 s22, s29, {8*RB}"); A("s_add_u32 s21, s21, s22")
    A(f"v_add_u32 v{VPL}, s21, v{VTR}")
    A(f"v_add_u32 v{VPL+1}, {3*SLOT}, v{VPL}"); A(f"v_add_u32 v{VPL+2}, {6*SLOT}, v{VPL}")
    for k in range(2): A(f"v_mov_b32 v{CSA+k}, 0")
    A(f"v_mov_b32 v{CT}, 0x3f803f80")
    rot_init(A, "p4", F * 2, wskip=P4PRE)
    A("s_cmp_eq_u32 s29, 0")
    A(f"s_cselect_b32 s22, s{SWG}, s{SWU}"); A(f"s_cselect_b32 s23, s{SWG+1}, s{SWU+1}")
    srd(A, 12, 22, 0, D * F * 2)
    srd(A, 8, SWS, WS_X1, XB)
    srd(A, 36, SWS, WS_STB, ST_B)
    srd(A, 80, SWS, WS_H, H_B)
    A("s_mov_b32 s34, s30"); A("s_mov_b32 s25, s31")
    rot_init(A, "p5", D * 2)
    A("s_mov_b32 s33, s31"); A("s_mov_b32 s30, s34"); A("s_mov_b32 s31, s25")
    A("s_mul_i32 s25, s19, 171"); A("s_lshr_b32 s25, s25, 9"); A("s_lshl_b32 s25, s25, 7")
    A(f"s_mul_i32 s21, s29, {32*D*2}"); A("s_add_u32 s25, s25, s21")
    wdma_off(A, V5, 1, 8, D * 2, 25, 26, TMP)
    A("s_mul_i32 s34, s26, 2112"); A("s_lshl_b32 s21, s29, 10"); A("s_add_u32 s34, s34, s21"); A(f"s_add_u32 s34, s34, {B5}")
    srd(A, 76, SWD, 0, F * D * 2)
    def t5(t):
        def f():
            A(f"s_add_u32 m0, s34, {t*8448}")
            A(f"buffer_load_dwordx4 v{V5}, s[76:79], s33 offen lds", "w5")
            A(f"s_add_u32 s33, s33, {64*D*2}"); A(f"s_cmp_ge_u32 s33, {F*D*2}"); A("s_cselect_b32 s33, 0, s33")
        return f
    if env("PRIO4", 1):
        l = A.newlabel("prio")
        A("s_cmp_ge_u32 s20, 4"); A(f"s_cbranch_scc1 {l}"); A("s_setprio 1"); A.label(l)
    A("s_cmp_lg_u32 s20, 7"); A("s_cbranch_scc1 L_p4_dep")
    wait_local(A, 1, 30, 0x07, TMP)
    join(A, "L_p4_dep"); reset(A)
    A("s_barrier")
    stamp(A, 16)
    g = Gemm(A, 4, 10, XS, WSL, SLOT, RB, 32, ACC, WF, XA, VX, [VWD, VWD + 1], [12, 12],
             [0, 1024], [VTR, VTR + 1, VTR + 2], 8, F * 2, env("PRE4", 8), 0, P4PRE)
    def csum(t):
        slot = t % WSL
        def f():
            for q in range(4):
                A(f"ds_read_b64_tr_b16 {v(CSB + 2*q, 2)}, v{VPL + slot // 3} offset:{(slot % 3) * SLOT + 2 * q * RB}")
            A("s_waitcnt lgkmcnt(0)")
            for q in range(8):
                if env("CSDOT", 1): A(f"v_dot2_f32_bf16 v{CSA + (q & 1)}, v{CSB+q}, v{CT}, v{CSA + (q & 1)}")
                else:
                    A(f"v_lshlrev_b32 v{CSA+2}, 16, v{CSB+q}"); A(f"v_and_b32 v{CSA+3}, 0xffff0000, v{CSB+q}")
                    A(f"v_add_f32 v{CSA}, v{CSA}, v{CSA+2}"); A(f"v_add_f32 v{CSA+1}, v{CSA+1}, v{CSA+3}")
        keep = list(A.lg)
        l0_only(A, f, "p4cs")
        A.lg = keep
    g.wflags = NT4
    g.lastbar = env("LB4", 7)
    g.run(extra=stats_items(A, VST, 36, TMP), wlead=env("WLEAD4", 3), sb=16, stage_end=csum, tail=[t5(t) for t in range(N5)], rate=env("RATE4", 7))
    def cpart():
        A("s_nop 3")
        A(f"v_add_f32 v{CSA}, v{CSA}, v{CSA+1}")
        A(f"v_mov_b32 v{CSA+1}, v{CSA}"); A(f"v_permlane32_swap_b32 v{CSA}, v{CSA+1}"); A(f"v_add_f32 v{CSA}, v{CSA}, v{CSA+1}")
        A(f"v_bfe_u32 v{CSB}, v1, 4, 1"); A(f"v_lshlrev_b32 v{CSB}, 8, v{CSB}")
        A(f"v_and_b32 v{CSB+1}, 15, v1"); A(f"v_lshl_add_u32 v{CSB}, v{CSB+1}, 2, v{CSB}")
        A("s_lshl_b32 s21, s26, 6"); A("s_lshl_b32 s22, s29, 9"); A("s_add_u32 s21, s21, s22"); A(f"s_add_u32 s21, s21, {CS_PART}")
        A(f"v_add_u32 v{CSB}, s21, v{CSB}")
        A(f"ds_write_b32 v{CSB}, v{CSA}")
    l0_only(A, cpart, "p4cp")
    kk = -2.0 * 1.4426950408889634 * 0.7978845608028654
    t = TMP
    finish_stats(A, t, NM, t + 2, t + 10)
    A(f"v_mov_b32 v{IR}, v{t+1}")
    A(f"v_mul_f32 v{CB}, {f32(kk)}, v{t+2}")
    A(f"v_mul_f32 v{t+3}, v{t+2}, v{t+2}")
    A(f"v_mul_f32 v{t+3}, {f32(0.044715)}, v{t+3}")
    A(f"v_mul_f32 v{CA}, v{CB}, v{t+3}")
    def cfin():
        A.wait_lg_all()
        A("s_barrier")
        A(f"v_lshlrev_b32 v{CSB}, 3, v1"); A(f"v_add_u32 v{CSB}, {CS_PART}, v{CSB}")
        A(f"ds_read_b64 {v(CSB+2,2)}, v{CSB}"); A(f"ds_read_b64 {v(CSB+4,2)}, v{CSB} offset:512")
        A.wait_lg_all()
        A(f"v_pk_add_f32 {v(CSB+2,2)}, {v(CSB+2,2)}, {v(CSB+4,2)}")
        A(f"ds_write_b64 v{CSB}, {v(CSB+2,2)} offset:{CS4 - CS_PART}")
        A.wait_lg_all()
    l0_only(A, cfin, "p4cf")
    csr = lambda nb: WF + (nb & 1) * 16
    def csread(nb):
        for i in range(2):
            A(f"ds_read_b128 {v(csr(nb) + i*4, 4)}, v{VCS} offset:{nb*64 + i*32}", ("C", nb))
            A(f"ds_read_b128 {v(csr(nb) + 8 + i*4, 4)}, v{VCS} offset:{256 + nb*64 + i*32}", ("C", nb))
    csread(0); csread(1)
    for kkb in range(2):
        for e in range(2):
            nb = 2 * kkb + e
            A.wait_lg(lambda g: g == ("C", nb))
            for k in range(0, 16, 2):
                r = ACC + nb * 16 + k
                A(f"v_pk_fma_f32 {v(r,2)}, {v(csr(nb)+k,2)}, {v(NM,2)}, {v(r,2)} op_sel_hi:[1,0,1]")
        if kkb == 0: csread(2); csread(3)
        for half in range(2):
            out = TMP + 4 * ((2 * kkb + half) & 3)
            for e in range(2):
                nb = 2 * kkb + e
                gq = ACC + nb * 16 + 4 * half
                uq = gq + 8
                Tt = T + 4 * e
                for k in (0, 2): A(f"v_pk_mul_f32 {v(Tt+k,2)}, {v(gq+k,2)}, {v(gq+k,2)}")
                for k in (0, 2): A(f"v_pk_fma_f32 {v(Tt+k,2)}, {v(Tt+k,2)}, {v(CA,2)}, {v(CB,2)} op_sel_hi:[1,0,0]")
                for k in (0, 2): A(f"v_pk_mul_f32 {v(Tt+k,2)}, {v(Tt+k,2)}, {v(gq+k,2)}")
                for k in range(4): A(f"v_exp_f32 v{Tt+k}, v{Tt+k}")
                for k in (0, 2): A(f"v_pk_mul_f32 {v(gq+k,2)}, {v(gq+k,2)}, {v(uq+k,2)}")
                for k in (0, 2): A(f"v_pk_fma_f32 {v(Tt+k,2)}, {v(Tt+k,2)}, {v(IR,2)}, {v(IR,2)} op_sel_hi:[1,0,0]")
                for k in range(4): A(f"v_rcp_f32 v{Tt+k}, v{Tt+k}")
                for k in (0, 2): A(f"v_pk_mul_f32 {v(gq+k,2)}, {v(gq+k,2)}, {v(Tt+k,2)}")
                A(f"v_cvt_pk_bf16_f32 v{out+2*e}, v{gq}, v{gq+1}")
                A(f"v_cvt_pk_bf16_f32 v{out+2*e+1}, v{gq+2}, v{gq+3}")
            A(f"buffer_store_dwordx4 {v(out,4)}, v{VOUT}, s[80:83], 0 offen offset:{kkb*1024 + half*512}{STF}")
    stamp(A, 19)
    signal_local(A, 2, T)
    stamp(A, 20)
    A("s_setprio 0")
    join(A, "L_p4_done"); reset(A)

def main(out_path):
    A = Asm(); name = NAME + "_kernel"
    A.raw(kernel_header(name))
    A("s_cmp_ge_u32 s2, 256"); A("s_cbranch_scc1 L_end")
    if STAMP:
        A("s_memtime s[90:91]"); A("v_mov_b32 v255, 0"); A("v_mov_b32 v254, 0")
    A(f"s_load_dwordx4 s[4:7], s[0:1], 64")
    A(f"s_load_dwordx4 s[84:87], s[0:1], 0")
    A(f"s_load_dwordx2 s[88:89], s[0:1], 16")
    A(f"s_load_dwordx8 s[92:99], s[0:1], 32")
    A("v_lshrrev_b32 v2, 6, v0")
    A("v_and_b32 v1, 63, v0")
    A("v_readfirstlane_b32 s20, v2")
    A("v_and_b32 v2, 31, v0")
    A("v_lshrrev_b32 v3, 5, v1")
    A("s_and_b32 s18, s2, 7")
    A("s_lshr_b32 s19, s2, 3")
    A("s_mov_b32 s16, 0"); A("s_mov_b32 s17, 0")
    A.wait_lg_all()
    srd(A, SFL, SWS, WS_FL, FL_B)
    stamp(A, 0)
    phase1(A, True)
    A.label("L_layer"); reset(A)
    phase1(A, False); phase2(A); phase3(A); phase4(A); phase5(A)
    A("s_cmp_lg_u32 s16, 0"); A("s_cbranch_scc1 L_exit")
    A("s_mov_b32 s16, 1")
    A(f"s_add_u32 s{SWS}, s{SWS}, {LS:#x}"); A(f"s_addc_u32 s{SWS+1}, s{SWS+1}, 0")
    if STAMP: A("v_mov_b32 v254, v255")
    A.fence()
    A("s_branch L_layer")
    A.label("L_exit")
    if STAMP:
        A("s_waitcnt vmcnt(0)")
        stamp(A, 31)
        srd(A, 76, SWS, WS_DBG - LS, 0x1000000)
        A("s_lshl_b32 s21, s2, 3"); A("s_add_u32 s21, s21, s20"); A("s_lshl_b32 s21, s21, 9")
        A("v_lshlrev_b32 v4, 2, v1"); A("v_add_u32 v4, s21, v4")
        A("buffer_store_dword v254, v4, s[76:79], 0 offen")
        A("buffer_store_dword v255, v4, s[76:79], 0 offen offset:256")
        if env("DBGOUT", 0):
            A("s_add_u32 s21, s2, s20"); A("s_cmp_lg_u32 s21, 0"); A("s_cbranch_scc1 L_end")
            srd(A, 76, SDBG, 0, 256)
            A("v_readlane_b32 s22, v254, 0")
            sel = [(254, 2), (254, 3), (254, 8), (254, 11), (254, 16), (254, 22), (255, 1), (255, 8), (255, 11), (255, 16), (255, 22), (255, 31)]
            slots = [2, 3, 4, 5, 6, 7, 10, 11, 12, 13, 14, 15]
            A("s_mov_b64 exec, 1")
            for (r, l), sl in zip(sel, slots):
                A(f"v_readlane_b32 s23, v{r}, {l}"); A("s_sub_u32 s23, s23, s22"); A("v_mov_b32 v6, s23"); A(f"v_mov_b32 v7, {sl*4}")
                A("buffer_store_dword v6, v7, s[76:79], 0 offen")
                A("s_waitcnt vmcnt(0)"); A.vm = []
    A.label("L_end"); A("s_endpgm")
    A.raw("    .p2align 4"); A.label("L_code_end")
    hdr = open(os.path.join(os.path.dirname(os.path.abspath(__file__)), "..", "cdna_kernels", NAME + ".s.ref")).read().split("; Override")[0]
    t = hdr + f"; @launch grid=(256,1,1) block=(512,1,1) lds={LDS_TOTAL}\n"
    t += '.amdgcn_target "amdgcn-amd-amdhsa--gfx950"\n.text\n' + A.text()
    t += '.section .rodata,"a"\n.p2align 6\n' + kernel_desc(name, 256, 0, 102)
    open(out_path, "w").write(t)

if __name__ == "__main__":
    main(sys.argv[1] if len(sys.argv) > 1 else f"cdna_kernels/{NAME}.s")
```

```python
import re

TRANS = ("v_exp_f32", "v_log_f32", "v_rcp_f32", "v_rsq_f32", "v_sqrt_f32", "v_sin_f32", "v_cos_f32")
MFMA_PASSES = {"v_mfma_f32_32x32x16_bf16": 8, "v_mfma_f32_32x32x8_bf16": 8, "v_mfma_f32_16x16x32_bf16": 4,
               "v_mfma_f32_16x16x16_bf16": 4}
D2OTHER = {2: 5, 4: 8, 8: 12, 16: 20}
D2COVL = {2: 4, 4: 6, 8: 10, 16: 18}
CWAR = {2: 1, 4: 3, 8: 7, 16: 15}

_reg_re = re.compile(r"^(-|\|)?(abs\()?([vas])(\d+)\)?\|?$")
_rng_re = re.compile(r"^(-|\|)?([vas])\[(\d+):(\d+)\]\|?$")

def regs_of(op):
    op = op.strip()
    if op in ("vcc",): return {("s", 106), ("s", 107)}
    if op == "vcc_lo": return {("s", 106)}
    if op == "vcc_hi": return {("s", 107)}
    if op in ("exec", "exec_lo", "exec_hi"): return {("x", 0)}
    if op == "m0": return {("m", 0)}
    m = _reg_re.match(op)
    if m: return {(m.group(3), int(m.group(4)))}
    m = _rng_re.match(op)
    if m: return {(m.group(2), i) for i in range(int(m.group(3)), int(m.group(4)) + 1)}
    return set()

def v(i, n=1): return f"v{i}" if n == 1 else f"v[{i}:{i+n-1}]"
def a(i, n=1): return f"a{i}" if n == 1 else f"a[{i}:{i+n-1}]"
def s(i, n=1): return f"s{i}" if n == 1 else f"s[{i}:{i+n-1}]"

class Ins:
    __slots__ = ("text", "mn", "kind", "rd", "wr", "rdA", "rdC", "passes", "lds", "wide_data", "dpp", "states")

def split_ops(rest):
    ops = []; depth = 0; cur = ""
    for ch in rest:
        if ch in "[(": depth += 1
        if ch in "])": depth -= 1
        if ch == "," and depth == 0:
            ops.append(cur.strip()); cur = ""
        else: cur += ch
    if cur.strip(): ops.append(cur.strip())
    return ops

def parse(text):
    t = text.strip()
    i = Ins(); i.text = t
    parts = t.split(None, 1)
    mn = parts[0]; rest = parts[1] if len(parts) > 1 else ""
    mn = re.sub(r"_e(32|64)$", "", mn)
    i.mn = mn; i.rd = set(); i.wr = set(); i.rdA = set(); i.rdC = set(); i.passes = 0; i.lds = False
    i.wide_data = set(); i.dpp = False; i.states = 1
    ops = split_ops(rest)
    mods = ""
    if ops:
        sp = ops[-1].split(None, 1)
        ops[-1] = sp[0]; mods = sp[1] if len(sp) > 1 else ""
    R = [regs_of(o) for o in ops]
    if mn.startswith("v_mfma"):
        i.kind = "mfma"; i.passes = MFMA_PASSES[mn]
        i.wr = R[0]; i.rdA = R[1] | R[2]; i.rdC = R[3]; i.rd = i.rdA | i.rdC
    elif mn.startswith("v_"):
        i.kind = "trans" if mn in TRANS else "valu"
        i.dpp = mn.endswith("_dpp")
        if mn.startswith("v_permlane") and "swap" in mn:
            i.kind = "perm"; i.wr = R[0] | R[1]; i.rd = R[0] | R[1]
        elif mn.startswith(("v_add_co", "v_sub_co", "v_addc_co", "v_subb_co", "v_div_scale", "v_mad_u64")):
            i.wr = R[0] | R[1]; i.rd = set().union(*R[2:])
        else:
            i.wr = R[0]; i.rd = set().union(*R[1:]) if len(R) > 1 else set()
            if mn.startswith(("v_fmac", "v_dot2c", "v_pk_fmac")) or i.dpp: i.rd |= R[0]
            if mn == "v_cndmask_b32" and len(ops) == 3: i.rd |= regs_of("vcc")
            if mn.startswith("v_writelane"): i.rd |= R[0]
    elif mn.startswith("ds_"):
        i.kind = "ds"
        if mn.startswith(("ds_read", "ds_bpermute", "ds_permute", "ds_swizzle")):
            i.wr = R[0]; i.rd = set().union(*R[1:])
        else:
            i.rd = set().union(*R)
    elif mn.startswith(("buffer_", "global_")):
        i.kind = "vmem"
        allm = (" " + mods + " ")
        if mn in ("buffer_wbl2", "buffer_inv"):
            pass
        elif " lds " in allm or mn.startswith("global_load_lds"):
            i.lds = True; i.rd = set().union(*R) | {("m", 0)}
        elif "load" in mn:
            i.wr = R[0]; i.rd = set().union(*R[1:])
        elif "atomic" in mn:
            i.rd = set().union(*R)
            if " sc0 " in allm: i.wr = R[0]
        else:
            i.rd = set().union(*R)
            if mn.endswith(("x3", "x4")): i.wide_data = R[0] if mn.startswith("buffer") else R[1]
    elif mn.startswith("s_"):
        i.kind = "salu"
        if mn == "s_nop": i.states = int(ops[0], 0) + 1
        elif mn.startswith(("s_cmp", "s_bitcmp")): i.rd = set().union(*R)
        elif mn.startswith(("s_waitcnt", "s_barrier", "s_branch", "s_cbranch", "s_endpgm", "s_setprio", "s_sleep")): pass
        elif mn.startswith(("s_load", "s_memtime", "s_memrealtime", "s_buffer_load")):
            i.kind = "smem"; i.wr = R[0]; i.rd = set().union(*R[1:]) if len(R) > 1 else set()
        elif "saveexec" in mn:
            i.wr = R[0] | {("x", 0)}; i.rd = R[1]
        else:
            i.wr = R[0]; i.rd = set().union(*R[1:]) if len(R) > 1 else set()
    else:
        raise ValueError("unknown instruction " + t)
    return i

def need(p, c):
    n = 0
    pv = p.kind in ("valu", "trans", "perm")
    cv = c.kind in ("valu", "trans", "perm")
    if pv:
        wv = {r for r in p.wr if r[0] in "va"}
        ws = {r for r in p.wr if r[0] == "s"}
        if wv:
            if c.kind == "mfma" and wv & c.rd: n = max(n, 2)
            if c.mn.startswith(("v_readfirstlane", "v_readlane")) and wv & c.rd: n = max(n, 1)
            if c.kind == "perm" and wv & c.rd: n = max(n, 2)
            if c.dpp and wv & c.rd: n = max(n, 2)
            if p.kind == "trans" and c.kind in ("valu", "perm") and wv & c.rd: n = max(n, 1)
        if ws:
            if c.kind == "vmem" and ws & c.rd: n = max(n, 5)
            if cv and ws & c.rd:
                n = max(n, 4 if c.mn.startswith(("v_readlane", "v_writelane")) else 2)
    if p.kind == "mfma":
        if c.kind == "mfma":
            if p.wr & c.rdA: n = max(n, D2OTHER[p.passes])
            if p.wr & c.rdC:
                if not (p.wr == c.rdC and p.passes == c.passes):
                    n = max(n, D2COVL[p.passes])
            elif p.wr & c.wr: n = max(n, D2COVL[p.passes])
        elif cv or c.kind in ("vmem", "ds"):
            if p.wr & (c.rd | c.wr): n = max(n, D2OTHER[p.passes])
        if cv and p.rdC & c.wr: n = max(n, CWAR[p.passes])
    if p.kind == "salu" and ("m", 0) in p.wr and c.kind == "vmem" and c.lds: n = max(n, 1)
    if p.kind == "vmem" and p.wide_data and p.wide_data & c.wr:
        n = max(n, 2 if cv else 1)
    return n

class Asm:
    def __init__(self):
        self.lines = []
        self.hist = []
        self.vm = []
        self.lg = []
        self.nbytes = 0
        self.uid = 0
    def raw(self, t): self.lines.append(t)
    def comment(self, t): self.lines.append("    ; " + t)
    def label(self, name, fence=True):
        self.lines.append(name + ":")
    def fence(self, n=20):
        self._pad_all()
    def _pad_all(self):
        worst = 0; d = 0
        for p in reversed(self.hist):
            w = 0
            if p.kind == "mfma": w = D2OTHER[p.passes]
            elif p.kind in ("valu", "trans", "perm"):
                w = 5 if any(r[0] == "s" for r in p.wr) else 2
            elif p.kind == "vmem" and p.wide_data: w = 2
            elif p.kind == "salu" and ("m", 0) in p.wr: w = 1
            worst = max(worst, w - d)
            d += p.states
            if d > 24: break
        self._nop(worst)
    def _nop(self, n):
        while n > 0:
            k = min(n, 16)
            i = parse(f"s_nop {k-1}")
            self.lines.append("    " + i.text); self.hist.append(i); n -= k
    def I(self, text, tag=None):
        i = parse(text)
        d = 0; pad = 0
        for p in reversed(self.hist):
            pad = max(pad, need(p, i) - d)
            d += p.states
            if d > 24: break
        self._nop(pad)
        self.lines.append("    " + i.text)
        self.hist.append(i)
        if len(self.hist) > 64: self.hist = self.hist[-40:]
        if i.kind == "vmem" and i.mn not in ("buffer_wbl2", "buffer_inv"):
            self.vm.append(tag); assert len(self.vm) <= 63, "too many outstanding vmem"
        if i.kind == "ds": self.lg.append(tag)
        if i.kind == "smem": self.lg.append("SMEM")
        return i
    def __call__(self, text, tag=None):
        for ln in text.strip().split("\n"):
            ln = ln.split(";")[0].strip()
            if ln: self.I(ln, tag)
    def wait_vm(self, pred):
        last = -1
        for k, t in enumerate(self.vm):
            if pred(t): last = k
        if last < 0: return
        n = len(self.vm) - 1 - last
        self.I(f"s_waitcnt vmcnt({n})")
        self.vm = self.vm[last + 1:]
    def wait_vm_all(self):
        self.I("s_waitcnt vmcnt(0)"); self.vm = []
    def wait_lg(self, pred):
        last = -1
        for k, t in enumerate(self.lg):
            if pred(t): last = k
        if last < 0: return
        if "SMEM" in self.lg:
            self.I("s_waitcnt lgkmcnt(0)"); self.lg = []; return
        n = len(self.lg) - 1 - last
        if n > 15:
            n = 15; last = len(self.lg) - 1 - n
        self.I(f"s_waitcnt lgkmcnt({n})")
        self.lg = self.lg[last + 1:]
    def wait_lg_all(self):
        self.I("s_waitcnt lgkmcnt(0)"); self.lg = []
    def move_out(self, start, label, jump=True):
        if not hasattr(self, "tail"): self.tail = []
        self.tail += [label + ":"] + self.lines[start:]
        del self.lines[start:]
        if jump: self.lines.append("    s_branch " + label)
    def flush_tail(self):
        self.lines += getattr(self, "tail", []); self.tail = []
    def text(self): return "\n".join(self.lines) + "\n"
    def newlabel(self, base):
        self.uid += 1
        return f"L_{base}_{self.uid}"

def kernel_header(name):
    return f".globl {name}\n.p2align 8\n.type {name},@function\n{name}:\n"

def kernel_desc(name, vgpr, agpr=0, sgpr=96):
    acc = (vgpr + 3) // 4 * 4
    nfv = acc + agpr if agpr else vgpr
    return f""".amdhsa_kernel {name}
  .amdhsa_next_free_vgpr {nfv}
  .amdhsa_next_free_sgpr {sgpr}
  .amdhsa_accum_offset {acc}
  .amdhsa_group_segment_fixed_size 0
  .amdhsa_kernarg_size 80
  .amdhsa_user_sgpr_count 2
  .amdhsa_user_sgpr_kernarg_segment_ptr 1
  .amdhsa_system_sgpr_workgroup_id_x 1
.end_amdhsa_kernel
"""
```

```python
import sys, os, struct
sys.path.insert(0, os.path.dirname(os.path.abspath(__file__)))
from asmdsl import *

NAME = "interleave_layers__sliding_block__glu_gated_geglu__prompt"
S_TOK, D, F = 2048, 640, 1728
XB = S_TOK * D * 2
LS = 0x2000000
WS_XIN = 0x0000000
WS_X1 = 0x0300000
WS_O = 0x0600000
WS_H = 0x0900000
H_B = S_TOK * F * 2
WS_QKV = 0x1000000
QKV_B = 480 * 16384
WS_STA = 0x1800000
WS_STB = 0x1840000
ST_B = 10 * S_TOK * 8
WS_FL = 0x1880000
FL_B = 0x20000
WS_QKL = 0x18a0000 + 0x60000
WS_DBG = 0x4000000
OOB = 0x80000000
LDS_TOTAL = 163840
RSV = LDS_TOTAL - 3072
CS_PART, CS1, CS4, L_MODE = RSV, RSV + 1024, RSV + 1536, RSV + 2048
P3W = RSV - 10 * 8448
SDBG, SWS, SX, SWQKV, SWO, SWG, SWU, SWD, SOUT = 4, 6, 84, 86, 88, 92, 94, 96, 98
SFL = 72
SPIN_MAX = 1 << 20
def env(n, d): return int(os.environ.get(n, str(d)))
def f32(x): return "0x%08x" % struct.unpack("<I", struct.pack("<f", x))[0]
STAMP = env("STAMP", 0)
FORCE_SLOW = env("FORCE_SLOW", 0)
PLAIN = env("PLAIN", 0)
STF = "" if PLAIN else " sc1"
NT4 = " nt" if env("NT4", 0) else ""
NTX = " nt" if env("NTX", 0) else ""

def stamp(A, i):
    if STAMP:
        A("s_memtime s[100:101]" if STAMP == 1 else "s_memrealtime s[100:101]"); A.wait_lg_all()
        if STAMP == 1: A("s_sub_u32 s100, s100, s90")
        A(f"v_writelane_b32 v255, s100, {i}")

def srd(A, d, base, off, size, soff=None):
    A(f"s_add_u32 s{d}, s{base}, {off:#x}")
    A(f"s_addc_u32 s{d+1}, s{base+1}, 0")
    if soff is not None:
        A(f"s_add_u32 s{d}, s{d}, s{soff}")
        A(f"s_addc_u32 s{d+1}, s{d+1}, 0")
    A(f"s_mov_b32 s{d+2}, {size:#x}")
    A(f"s_mov_b32 s{d+3}, 0x20000")

def join(A, label):
    A.fence(); A.label(label)

def spin(A, body, name, sleep=1):
    lp = A.newlabel(name); out = A.newlabel(name + "x")
    A("s_mov_b32 s35, 0")
    A.fence(); A.label(lp)
    body()
    A("s_add_u32 s35, s35, 1")
    A(f"s_cmp_gt_u32 s35, {SPIN_MAX}"); A(f"s_cbranch_scc1 {out}")
    A(f"s_cbranch_vccz {out}")
    if sleep: A(f"s_sleep {sleep}")
    A(f"s_branch {lp}")
    A.fence(); A.label(out)

def acquire_if_slow(A):
    l = A.newlabel("acq")
    A("s_cmp_lg_u32 s17, 0"); A(f"s_cbranch_scc1 {l}")
    A("buffer_inv sc1"); A("s_waitcnt vmcnt(0)")
    A.label(l)

def signal_local(A, k, t0, sblk, sprod, nowait=False):
    A("s_lshl_b32 s21, s16, 3"); A(f"s_add_u32 s21, s21, {k}"); A("s_lshl_b32 s21, s21, 3"); A("s_add_u32 s21, s21, s18")
    A(f"s_lshl_b32 s21, s21, 3"); A(f"s_add_u32 s21, s21, s{sblk}"); A("s_lshl_b32 s21, s21, 5"); A(f"s_add_u32 s21, s21, s{sprod}")
    A(f"v_mov_b32 v{t0}, s21"); A(f"v_mov_b32 v{t0+1}, 1")
    if not nowait: A.wait_vm_all()
    slow = A.newlabel("sigslow"); done = A.newlabel("sigdone")
    A("s_mov_b64 exec, 1")
    A("s_cmp_eq_u32 s17, 0"); A(f"s_cbranch_scc1 {slow}")
    A(f"buffer_store_byte v{t0+1}, v{t0}, {s(SFL,4)}, 0 offen")
    A(f"s_branch {done}")
    A.label(slow)
    A(f"buffer_store_byte v{t0+1}, v{t0}, {s(SFL,4)}, 0 offen sc1")
    A.label(done)
    A("s_mov_b64 exec, -1")
    A.vm = [None]

def wait_local(A, k, p0, p1, sblk, t0, layer_delta=0, sleep=1):
    A(f"v_and_b32 v{t0+1}, 7, v1"); A(f"v_lshlrev_b32 v{t0+2}, 5, v{t0+1}")
    A(f"v_mov_b32 v{t0}, 0")
    for j in range(8):
        m = sum(1 << (8 * q) for q in range(4) if p0 <= 4 * j + q < p1)
        if m == 0x01010101 or m == 0: continue
        A(f"v_cmp_eq_u32 vcc, {j}, v{t0+1}"); A(f"v_mov_b32 v{t0+2}, {m:#x}"); A(f"v_cndmask_b32 v{t0}, v{t0}, v{t0+2}, vcc")
    f0, f1 = (p0 + 3) // 4, p1 // 4
    A(f"v_subrev_u32 v{t0+2}, {f0}, v{t0+1}"); A(f"v_cmp_gt_u32 vcc, {f1 - f0}, v{t0+2}")
    A(f"v_mov_b32 v{t0+2}, 0x01010101"); A(f"v_cndmask_b32 v{t0}, v{t0}, v{t0+2}, vcc")
    A(f"v_lshlrev_b32 v{t0+1}, 2, v{t0+1 if sblk is not None else 1}")
    A(f"s_add_u32 s21, s16, {layer_delta & 0xffffffff:#x}")
    A("s_lshl_b32 s21, s21, 3"); A(f"s_add_u32 s21, s21, {k}"); A("s_lshl_b32 s21, s21, 3"); A("s_add_u32 s21, s21, s18"); A("s_lshl_b32 s21, s21, 3")
    if sblk is not None: A(f"s_add_u32 s21, s21, s{sblk}")
    A("s_lshl_b32 s21, s21, 5")
    def body():
        A(f"buffer_load_dword v{t0+2}, v{t0+1}, {s(SFL,4)}, s21 offen sc1")
        A.wait_vm_all()
        A(f"v_and_b32 v{t0+2}, v{t0+2}, v{t0}")
        A(f"v_cmp_ne_u32 vcc, v{t0+2}, v{t0}")
    spin(A, body, "wl", sleep)
    acquire_if_slow(A)

def census_wait(A, t0, sleep=8):
    srd(A, 76, SDBG, 0, 256)
    A("s_sub_u32 s21, s18, 1"); A("s_max_i32 s21, s21, 0")
    A(f"v_mov_b32 v{t0}, s18"); A(f"v_mov_b32 v{t0+1}, s21")
    A("v_cmp_eq_u32 vcc, 0, v1")
    A(f"v_cndmask_b32 v{t0}, v{t0+1}, v{t0}, vcc")
    A(f"v_lshlrev_b32 v{t0}, 5, v{t0}")
    def body():
        A(f"buffer_load_dwordx2 {v(t0+2,2)}, v{t0}, s[76:79], 0 offen sc1")
        A.wait_vm_all()
        A(f"v_sad_u8 v{t0+1}, v{t0+2}, 0, 0")
        A(f"v_sad_u8 v{t0+1}, v{t0+3}, 0, v{t0+1}")
        A(f"v_cmp_ne_u32 vcc, 32, v{t0+1}")
    spin(A, body, "cen", sleep)
    A(f"v_readfirstlane_b32 s22, v{t0+2}"); A(f"v_readfirstlane_b32 s23, v{t0+3}")
    A("s_bcnt1_i32_b64 s21, s[22:23]")
    A("s_cmp_eq_u32 s21, 1"); A(f"s_cselect_b32 s17, {0 if FORCE_SLOW else 1}, 0")
    A(f"v_mov_b32 v{t0}, {L_MODE}"); A(f"v_mov_b32 v{t0+1}, s17")
    A(f"ds_write_b32 v{t0}, v{t0+1}")

def row_loads(A, b):
    srd(A, 36, SX, 0, XB)
    A("s_lshl_b32 s21, s18, 8"); A("s_lshl_b32 s22, s19, 3"); A("s_add_u32 s21, s21, s22"); A("s_and_b32 s22, s20, 3"); A("s_lshl_b32 s22, s22, 1"); A("s_add_u32 s21, s21, s22")
    A(f"v_add_u32 v{b+12}, s21, v3"); A(f"v_mul_u32_u24 v{b+13}, 1280, v{b+12}"); A(f"v_lshl_add_u32 v{b+13}, v2, 4, v{b+13}")
    A(f"buffer_load_dwordx4 {v(b,4)}, v{b+13}, s[36:39], 0 offen", "row")
    A(f"buffer_load_dwordx4 {v(b+4,4)}, v{b+13}, s[36:39], 0 offen offset:512", "row")
    A(f"v_lshrrev_b32 v{b+8}, 4, v2"); A(f"v_lshl_add_u32 v{b+13}, v{b+8}, 31, v{b+13}")
    A(f"buffer_load_dwordx4 {v(b+8,4)}, v{b+13}, s[36:39], 0 offen offset:1024", "row")

def row_stats(A, b, t):
    A.wait_vm(lambda g: g == "row")
    A(f"v_mov_b32 v{t}, 0"); A(f"v_mov_b32 v{t+1}, 0"); A(f"v_mov_b32 v{t+2}, 0x3f803f80")
    for q in range(12):
        A(f"v_dot2_f32_bf16 v{t}, v{b+q}, v{t+2}, v{t}"); A(f"v_dot2_f32_bf16 v{t+1}, v{b+q}, v{b+q}, v{t+1}")
    A("s_nop 3")
    for r in (1, 2, 4, 8):
        for k in range(2): A(f"v_add_f32_dpp v{t+k}, v{t+k}, v{t+k} row_ror:{r} row_mask:0xf bank_mask:0xf")
    A(f"v_mov_b32 v{t+2}, v{t}"); A(f"v_mov_b32 v{t+3}, v{t+1}")
    A(f"v_permlane16_swap_b32 v{t}, v{t+2}"); A(f"v_permlane16_swap_b32 v{t+1}, v{t+3}")
    A(f"v_add_f32 v{t}, v{t}, v{t+2}"); A(f"v_add_f32 v{t+1}, v{t+1}, v{t+3}")
    A(f"v_mul_f32 v{t+4}, {f32(-1.0/D)}, v{t}")
    A(f"v_mul_f32 v{t+1}, {f32(1.0/D)}, v{t+1}")
    A(f"v_fma_f32 v{t+1}, -v{t+4}, v{t+4}, v{t+1}")
    A(f"v_max_f32 v{t+1}, 0, v{t+1}")
    A(f"v_add_f32 v{t+1}, {f32(1e-5)}, v{t+1}")
    A(f"v_rsq_f32 v{t+5}, v{t+1}")
    srd(A, 36, SWS, WS_STA, ST_B)
    A(f"v_lshlrev_b32 v{t}, 3, v{b+12}")
    A("s_mov_b32 exec_lo, 1"); A("s_mov_b32 exec_hi, 1")
    A(f"buffer_store_dwordx2 {v(t+4,2)}, v{t}, s[36:39], 0 offen sc1", "rst")
    A("s_mov_b64 exec, -1")

def read_mode(A, t0):
    A(f"v_mov_b32 v{t0}, {L_MODE}")
    A(f"ds_read_b32 v{t0}, v{t0}", "mode")
    A.wait_lg(lambda g: g == "mode")
    A(f"v_readfirstlane_b32 s17, v{t0}")

def flags_zero(A, t0):
    A(f"v_mov_b32 v{t0}, 0"); A(f"v_mov_b32 v{t0+1}, 0")
    A("s_lshl_b32 s21, s18, 8"); A("s_lshl_b32 s22, s19, 3"); A("s_add_u32 s21, s21, s22")
    A(f"v_lshlrev_b32 v{t0+2}, 11, v1"); A(f"v_add_u32 v{t0+2}, s21, v{t0+2}")
    A("s_lshl_b32 s21, s18, 5"); A("s_add_u32 s21, s21, s19"); A("s_lshl_b32 s21, s21, 7"); A(f"s_add_u32 s21, s21, {(0x10000 - 16*32768) & 0xffffffff:#x}")
    A(f"v_lshlrev_b32 v{t0+3}, 15, v1"); A(f"v_add_u32 v{t0+3}, s21, v{t0+3}")
    A("v_cmp_gt_u32 vcc, 16, v1"); A(f"v_cndmask_b32 v{t0+2}, v{t0+3}, v{t0+2}, vcc")
    A("s_lshl_b32 s21, s16, 3"); A("s_add_u32 s21, s21, s20")
    A("s_cmp_eq_u32 s21, 4"); A("s_cselect_b32 s22, 0x3ffff, 0"); A("s_mov_b32 s23, 0")
    A(f"v_mov_b32 v{t0+3}, {OOB:#x}")
    A(f"v_cndmask_b32 v{t0+2}, v{t0+3}, v{t0+2}, s[22:23]")
    A(f"buffer_store_dwordx2 {v(t0,2)}, v{t0+2}, {s(SFL,4)}, 0 offen sc1", "fz")

def census_post(A, t0):
    srd(A, 76, SDBG, 0, 256)
    A("s_getreg_b32 s21, hwreg(HW_REG_XCC_ID)"); A("s_and_b32 s21, s21, 7"); A("s_lshl_b32 s21, s21, 3")
    A("s_mov_b64 s[22:23], 1"); A("s_lshl_b64 s[22:23], s[22:23], s21")
    A(f"v_mov_b32 v{t0}, s22"); A(f"v_mov_b32 v{t0+1}, s23")
    A("s_lshl_b32 s21, s16, 3"); A("s_add_u32 s21, s21, s20"); A("s_lshl_b32 s22, s18, 5")
    A("s_cmp_eq_u32 s21, 4"); A(f"s_cselect_b32 s21, s22, {OOB:#x}")
    A(f"v_mov_b32 v{t0+2}, s21")
    A("s_mov_b64 exec, 1")
    A(f"buffer_atomic_add_x2 {v(t0,2)}, v{t0+2}, s[76:79], 0 offen sc1")
    A("s_mov_b64 exec, -1")

def stats_items(A, vtok_off, srd_st, tmp, sbase=None):
    def mk(i):
        def f():
            A(f"s_mov_b32 s21, {i*2048}" if sbase is None else f"s_add_u32 s21, s{sbase}, {i*2048}")
            A(f"buffer_load_dwordx2 {v(tmp+2*i,2)}, v{vtok_off}, {s(srd_st,4)}, s21 offen sc1", ("S",))
        return f
    return [mk(i) for i in range(5)]

def finish_stats(A, tmp, negmean, rstd, t2, single=False):
    if not single:
        A(f"v_pk_add_f32 {v(tmp,2)}, {v(tmp,2)}, {v(tmp+2,2)}")
        A(f"v_pk_add_f32 {v(tmp+4,2)}, {v(tmp+4,2)}, {v(tmp+6,2)}")
        A(f"v_pk_add_f32 {v(tmp,2)}, {v(tmp,2)}, {v(tmp+8,2)}")
        A(f"v_pk_add_f32 {v(tmp,2)}, {v(tmp,2)}, {v(tmp+4,2)}")
    A(f"v_mov_b32 v{t2}, v{tmp}")
    A(f"v_mov_b32 v{t2+1}, v{tmp+1}")
    A(f"v_permlane32_swap_b32 v{tmp}, v{t2}")
    A(f"v_permlane32_swap_b32 v{tmp+1}, v{t2+1}")
    A(f"v_pk_add_f32 {v(tmp,2)}, {v(tmp,2)}, {v(t2,2)}")
    A(f"v_mul_f32 v{negmean}, {f32(-1.0/D)}, v{tmp}")
    A(f"v_mul_f32 v{tmp+1}, {f32(1.0/D)}, v{tmp+1}")
    A(f"v_fma_f32 v{tmp+1}, -v{negmean}, v{negmean}, v{tmp+1}")
    A(f"v_max_f32 v{tmp+1}, 0, v{tmp+1}")
    A(f"v_add_f32 v{tmp+1}, {f32(1e-5)}, v{tmp+1}")
    A(f"v_rsq_f32 v{rstd}, v{tmp+1}")

class Gemm:
    def __init__(self, A, NB, nstage, XS, WSL, slot_bytes, RB, nb_stride, acc, wf, xa,
                 vx, vwd, wd_srds, wd_lds, vtr, srd_x, w_row_stride, PRE, LA, npre=0):
        self.__dict__.update(locals())
        self.nbar = npre; self.issued = set()

    def load_list(self, do_x, do_w, wlead=0):
        L = []
        n = len(self.vwd)
        for t in range(self.nstage + wlead):
            tw = t
            if do_w and max(self.npre, self.nland) <= tw < self.nstage:
                for j in range(n): L.append(("W", tw, j, j == n - 1))
            tx = t - wlead
            if do_x and 0 <= tx:
                for st in range(4): L.append(("X", tx, st, st == 3))
        return L

    def issue(self, item):
        A = self.A
        if callable(item): return item()
        kind, t, j, last = item
        self.issued.add((kind, t, j))
        if kind == "X" and self.xstage:
            xs = self.xstage
            assert t - xs["nslot"] < self.cur_stage or t < xs["nslot"], (t, self.cur_stage)
            A(f"s_add_u32 m0, s33, {(t % xs['nslot']) * 4096 + j * 1024}")
            A(f"buffer_load_dwordx4 v{xs['vdma'][j]}, {s(self.srd_x,4)}, s30 offen{NTX} lds", ("X", t, j))
            if last and t < self.nstage - 1:
                A("s_add_u32 s30, s30, 128"); A(f"s_cmp_ge_u32 s30, {self.nstage * 128}"); A("s_cselect_b32 s30, 0, s30")
        elif kind == "X":
            st = j
            assert t - self.XS < self.cur_stage or (t - self.XS == self.cur_stage and st < self.cur_step), (t, self.cur_stage)
            r = self.xa + ((t % self.XS) * 4 + st) * 4
            if self.xdyn:
                A(f"buffer_load_dwordx4 {v(r,4)}, v{self.vx + st}, {s(self.srd_x,4)}, s30 offen", ("X", t, st))
            else:
                A(f"buffer_load_dwordx4 {v(r,4)}, v{self.vx}, {s(self.srd_x,4)}, s30 offen offset:{st*512} sc1", ("X", t, st))
            if last and t < self.nstage - 1:
                A("s_add_u32 s30, s30, s33" if self.xdyn else "s_add_u32 s30, s30, 2048")
                A("s_cmp_ge_u32 s30, s34" if self.xdyn else f"s_cmp_ge_u32 s30, {self.nstage * 2048}")
                A("s_cselect_b32 s30, 0, s30")
        else:
            assert t < self.WSL or self.realbar >= t - self.WSL + 2, (t, self.realbar)
            A(f"s_add_u32 m0, s32, {(t % self.WSL) * self.slot_bytes + self.wd_lds[j]}")
            A(f"buffer_load_dwordx4 v{self.vwd[j]}, {s(self.wd_srds[j],4)}, s31 offen{self.wflags} lds", ("W", t))
            if self.throttle is not None: A(f"s_waitcnt vmcnt({self.throttle})"); A.vm = A.vm[-self.throttle:] if self.throttle else []
            if last and t < self.nstage - 1: self.adv_w()

    def adv_w(self):
        A = self.A
        A(f"s_add_u32 s31, s31, {64 * self.w_row_stride}")
        A(f"s_cmp_ge_u32 s31, {self.nstage * 64 * self.w_row_stride}")
        A("s_cselect_b32 s31, 0, s31")

    def tr_reads(self, t, st, buf):
        out = []
        kb, f = st >> 1, st & 1
        slot = t % self.WSL
        per = 65536 // self.slot_bytes
        va = self.vtr[slot // per]
        base = (slot % per) * self.slot_bytes
        for nb in range(self.NB):
            for rd in range(2):
                off = base + (8 * kb + 4 * rd + 2 * f) * self.RB + nb * self.nb_stride
                r = self.wf + (buf * self.NB + nb) * 4 + rd * 2
                out.append((f"ds_read_b64_tr_b16 {v(r,2)}, v{va} offset:{off}", ("F", t, st, nb)))
        return out

    realbar = -1
    xdyn = False
    bar_at = None
    LA0 = 0
    FD = 1
    xstage = None
    wflags = ""
    throttle = None
    lastbar = None
    nland = 0
    def barrier(self, t):
        if t < self.npre: return
        if self.lastbar is not None and t > self.lastbar: return
        tw = self.nstage - 1 if t == self.lastbar else t
        assert not self.do_w or tw < self.nland or ("W", tw, len(self.vwd) - 1) in self.issued, (t, tw)
        self.A.wait_vm(lambda g: g == ("W", tw))
        self.A("s_barrier")
        self.realbar = t

    def run_idle(self):
        for t in range(self.npre, self.nstage): self.A("s_barrier")

    def prefetch(self, n):
        self.do_w = True; self.cur_stage, self.cur_step = -1, 0
        for it in self.load_list(False, True):
            if it[1] < n: self.issue(it)

    def run_loader(self, after_bar=None, early=None, first=None):
        L = self.load_list(False, True); self.do_w = True
        self.cur_stage, self.cur_step = -1, 0
        k = 0
        for t in range(self.nstage + 1):
            if early and t > 0: early(t - 1)
            lim = max(self.LA, min(t + self.WSL - 2, t + self.LA))
            if t == 0 and self.LA0: lim = self.LA0
            while k < len(L) and L[k][1] < lim and (L[k][1] < self.WSL or self.realbar >= L[k][1] - self.WSL + 2):
                self.issue(L[k]); k += 1
                if first and k == env("FIRSTN", 8): first()
            if after_bar and t > 0: after_bar(t - 1)
            if t < self.nstage: self.barrier(t)
        assert k == len(L)

    def xread(self, t, st):
        xs = self.xstage
        r = self.xa + ((t % 2) * 4 + st) * 4
        self.A(f"ds_read_b128 {v(r,4)}, v{xs['vrd'][st]} offset:{(t % xs['nslot']) * 4096}", ("XR", t, st))

    def run(self, zero_init=True, do_w=True, extra=(), extra_at=3, wlead=0, sb=0, stage_end=None, per_mfma=None, tail=(), rate=None):
        A = self.A
        tail = list(tail)
        L = self.load_list(True, do_w, wlead); self.do_w = do_w
        pos = next(i for i, it in enumerate(L) if it[0] == "X" and it[1] == extra_at)
        L[pos:pos] = list(extra)
        self.cur_stage, self.cur_step = -1, 0
        k = min(self.PRE, len(L))
        for q, it in enumerate(L[:k]):
            if self.bar_at == q: A("s_barrier")
            assert self.bar_at is None or q >= self.bar_at or it[0] == "X"
            self.issue(it)
        self.barrier(0)
        stamp(A, sb + 1)
        xs = self.xstage
        if xs:
            A.wait_vm(lambda g: g == ("X", 0, 3))
            for st in range(4): self.xread(0, st)
        FD = self.FD
        for q in range(FD):
            for ins, tag in self.tr_reads(0, q, q): A(ins, tag)
        gstep = 0
        nm = self.NB
        per_stage = 4 + (len(self.vwd) if do_w else 0)
        rate = (rate or per_stage) / (4.0 * nm)
        credit = 0.0
        for t in range(self.nstage):
            for st in range(4):
                self.cur_stage, self.cur_step = t, st
                buf = gstep % (FD + 1)
                if st == 4 - FD and t + 1 < self.nstage: self.barrier(t + 1)
                gn = gstep + FD
                nreads = self.tr_reads(gn // 4, gn % 4, gn % (FD + 1)) if gn < 4 * self.nstage else []
                if xs:
                    xr = self.xa + ((t % 2) * 4 + st) * 4
                    if st >= 2 and t + 1 < self.nstage:
                        if st == 2:
                            assert ("X", t + 1, 3) in self.issued
                            A.wait_vm(lambda g: g == ("X", t + 1, 3))
                        self.xread(t + 1, 2 * (st - 2)); self.xread(t + 1, 2 * (st - 2) + 1)
                else:
                    xr = self.xa + ((t % self.XS) * 4 + st) * 4
                    assert ("X", t, st) in self.issued
                    A.wait_vm(lambda g: g == ("X", t, st))
                for nb in range(self.NB):
                    A.wait_lg(lambda g: g == ("F", t, st, nb) or g == ("XR", t, st))
                    ac = self.acc + nb * 16
                    wr = self.wf + (buf * self.NB + nb) * 4
                    c = "0" if (zero_init and gstep == 0) else v(ac, 16)
                    A(f"v_mfma_f32_32x32x16_bf16 {v(ac,16)}, {v(wr,4)}, {v(xr,4)}, {c}")
                    for ins, tag in nreads[2 * nb:2 * nb + 2]: A(ins, tag)
                    if per_mfma: per_mfma(xr, nb)
                    if tail and self.realbar == self.lastbar and nb == 1: tail.pop(0)()
                    credit += rate
                    while credit >= 1.0 - 1e-9 and k < len(L):
                        it = L[k]
                        if not callable(it):
                            if it[0] == "X" and xs:
                                if not (it[1] - xs["nslot"] < t or it[1] < xs["nslot"]): break
                            elif it[0] == "X" and not (it[1] - self.XS < t or (it[1] - self.XS == t and it[2] < st)): break
                            if it[0] == "W" and not (it[1] < self.WSL or self.realbar >= it[1] - self.WSL + 2): break
                            credit -= 1.0
                        else: credit -= 0.25
                        self.issue(it); k += 1
                gstep += 1
            if stage_end: stage_end(t)
        assert k == len(L), (k, len(L))
        assert not tail
        stamp(A, sb + 2)

ROT = env("ROT", 0)
def rot_calc(A, kind):
    n = 27 if kind == "p5" else 10
    A(f"s_mul_i32 s21, s18, {n}"); A("s_lshr_b32 s21, s21, 3")
    if kind == "p1r":
        A("s_and_b32 s22, s19, 1"); A("s_mul_i32 s22, s22, 5"); A("s_add_u32 s21, s21, s22")
        A("s_cmp_ge_u32 s21, 10"); A("s_cselect_b32 s22, 10, 0"); A("s_sub_u32 s21, s21, s22")
    elif ROT:
        if kind == "p1":
            A("s_lshr_b32 s22, s19, 1"); A("s_add_u32 s21, s21, s22")
            if ROT == 1: A("s_and_b32 s22, s19, 1"); A("s_mul_i32 s22, s22, 5"); A("s_add_u32 s21, s21, s22")
        elif kind == "p4":
            A("s_add_u32 s21, s21, s19")
        else:
            A("s_mul_i32 s22, s19, 171"); A("s_lshr_b32 s22, s22, 9")
            A("s_mul_i32 s23, s22, 3"); A("s_sub_u32 s23, s19, s23")
            if kind == "p5":
                A("s_mul_i32 s22, s22, 11"); A("s_lshr_b32 s22, s22, 2"); A("s_mul_i32 s23, s23, 9")
            else:
                A("s_mul_i32 s23, s23, 3")
            A("s_add_u32 s21, s21, s22")
            if ROT == 1: A("s_add_u32 s21, s21, s23")
        mag = (65536 + n - 1) // n
        A(f"s_mul_i32 s22, s21, {mag}"); A("s_lshr_b32 s22, s22, 16"); A(f"s_mul_i32 s22, s22, {n}"); A("s_sub_u32 s21, s21, s22")

def rot_init(A, kind, w_row_stride, wskip=0):
    nstage = 27 if kind == "p5" else 10
    rot_calc(A, kind)
    A("s_lshl_b32 s30, s21, 11")
    if wskip:
        A(f"s_add_u32 s21, s21, {wskip}"); A(f"s_cmp_ge_u32 s21, {nstage}"); A(f"s_cselect_b32 s22, {nstage}, 0"); A("s_sub_u32 s21, s21, s22")
    A(f"s_mul_i32 s31, s21, {64 * w_row_stride}")

def tr_lane_addr(A, dst, PS, RB, cg_stride, t0, base=0):
    A(f"v_bfe_u32 v{t0}, v1, 2, 2")
    A(f"v_mul_u32_u24 v{dst}, {PS}, v{t0}")
    A(f"v_mul_u32_u24 v{t0}, {RB}, v3")
    A(f"v_add_u32 v{dst}, v{dst}, v{t0}")
    A(f"v_bfe_u32 v{t0}, v1, 4, 1")
    A(f"v_mul_u32_u24 v{t0}, {cg_stride}, v{t0}")
    A(f"v_add_u32 v{dst}, v{dst}, v{t0}")
    A(f"v_and_b32 v{t0}, 3, v1")
    A(f"v_lshl_add_u32 v{dst}, v{t0}, 3, v{dst}")
    if base: A(f"v_add_u32 v{dst}, {base}, v{dst}")

def cl_lane_off(A, dst, stok, tb_stride, t0):
    A(f"v_lshrrev_b32 v{t0}, 4, v2")
    A(f"s_lshr_b32 s21, s{stok}, 4")
    A(f"v_add_u32 v{t0}, s21, v{t0}")
    A(f"s_mov_b32 s21, {tb_stride}")
    A(f"v_mul_lo_u32 v{dst}, v{t0}, s21")
    A(f"v_lshl_add_u32 v{dst}, v3, 8, v{dst}")
    A(f"v_and_b32 v{t0}, 15, v2")
    A(f"v_lshl_add_u32 v{dst}, v{t0}, 4, v{dst}")

def wdma_off(A, dst, n, lanes_per_row, row_stride, scol, splane, t0):
    sh = {8: 3, 16: 4}[lanes_per_row]; R = 64 // lanes_per_row
    A(f"v_lshrrev_b32 v{t0}, {sh}, v1")
    A(f"v_lshlrev_b32 v{t0}, 2, v{t0}")
    A(f"v_add_u32 v{t0}, s{splane}, v{t0}")
    A(f"v_mul_u32_u24 v{t0}, {row_stride}, v{t0}")
    A(f"v_and_b32 v{t0+1}, {lanes_per_row-1}, v1")
    A(f"v_lshl_add_u32 v{t0}, v{t0+1}, 4, v{t0}")
    A(f"v_add_u32 v{dst}, s{scol}, v{t0}")
    for j in range(1, n): A(f"v_add_u32 v{dst+j}, {4*R*j*row_stride}, v{dst}")

def stats_off(A, dst, stok_local, t0):
    A(f"v_add_u32 v{t0}, s{stok_local}, v2")
    A(f"v_lshlrev_b32 v{dst}, 3, v{t0}")
    A(f"v_mul_u32_u24 v{t0}, 10240, v3")
    A(f"v_add_u32 v{dst}, v{dst}, v{t0}")
    A("s_mul_i32 s21, s18, 20480")
    A(f"v_add_u32 v{dst}, s21, v{dst}")

def l0_only(A, fn, name):
    l = A.newlabel(name)
    A("s_cmp_lg_u32 s16, 0"); A(f"s_cbranch_scc1 {l}")
    h = list(A.hist)
    fn()
    A.fence(); A.label(l)
    A.hist = h

def reset(A): A.vm = []; A.lg = []

def phase1(A, L0):
    n = "p1a" if L0 else "p1b"
    PS, RB, SLOT = 4160, 256, 16640
    XSL = env("XSL1A", 4)
    WSL, XS = (9 - XSL, 2) if L0 else (env("WSL1", 9), 6)
    XST = (9 - XSL) * SLOT
    VX, VWD, VTR, VST, VCS, VOUT, NM, RS = 4, 4, 9, 12, 13, 14, 16, 18
    TMP = 20; WF = 32; ACC = 64; CS = 128; XA = 144; SA = 240; ONE = 244; VXR = 248
    A("s_cmp_ge_u32 s19, 30"); A(f"s_cbranch_scc1 L_{n}_idle")
    m0_ = len(A.lines)
    if L0:
        l = A.newlabel("ir")
        A("s_cmp_lt_u32 s20, 4"); A(f"s_cbranch_scc1 {l}")
        row_loads(A, 32); flags_zero(A, 4); row_stats(A, 32, 16); A.wait_vm_all()
        join(A, l); reset(A)
        A("s_barrier")
        census_post(A, 4)
        warm_code(A); warm_mall(A)
        l = A.newlabel("cw")
        A("s_cmp_lg_u32 s20, 4"); A(f"s_cbranch_scc1 {l}")
        census_wait(A, 4, 64); A.wait_lg_all()
        join(A, l)
        A("s_barrier")
        read_mode(A, 4)
    A("s_branch L_p1_done")
    A.move_out(m0_, f"L_{n}_idle", jump=False); reset(A)
    A("s_and_b32 s26, s20, 3")
    A("s_and_b32 s24, s19, 1"); A("s_lshl_b32 s24, s24, 7")
    A("s_lshl_b32 s25, s26, 5"); A("s_add_u32 s24, s24, s25")
    A("s_lshl_b32 s27, s18, 8"); A("s_add_u32 s27, s27, s24")
    A("s_lshr_b32 s28, s19, 1")
    rot_init(A, "p1r" if (L0 and env("ROT1A", 0)) else "p1", 3840)
    def mk():
        g = Gemm(A, 4, 10, XS, WSL, SLOT, RB, 64, ACC, WF, XA, VX, [VWD + j for j in range(4)], [12] * 4,
                 [1024 * j for j in range(4)], [VTR, VTR + 1, VTR + 2], 8, 3840,
                 env("PRE1A", 12) if L0 else env("PRE1", 8), env("LA1A", 3) if L0 else env("LA1", 7))
        if L0: g.LA0 = env("LA0", 0)
        if L0: g.xstage = dict(vdma=[VX + j for j in range(4)], vrd=[VXR + j for j in range(4)], nslot=XSL)
        return g
    A("s_cmp_lt_u32 s20, 4"); A(f"s_cbranch_scc1 L_{n}_comp")
    srd(A, 12, SWQKV, 0, D * 1920 * 2)
    A(f"v_lshrrev_b32 v{TMP}, 4, v1"); A(f"v_lshlrev_b32 v{TMP}, {3 if L0 else 2}, v{TMP}"); A(f"v_add_u32 v{TMP}, s26, v{TMP}")
    A(f"v_mul_u32_u24 v{TMP}, 3840, v{TMP}")
    A(f"v_and_b32 v{TMP+1}, 15, v1"); A(f"v_lshl_add_u32 v{TMP}, v{TMP+1}, 4, v{TMP}")
    A("s_lshl_b32 s25, s28, 8"); A(f"v_add_u32 v{VWD}, s25, v{TMP}")
    A(f"v_add_u32 v{VWD+1}, {(4 if L0 else 16)*3840}, v{VWD}"); A(f"v_add_u32 v{VWD+2}, {32*3840}, v{VWD}"); A(f"v_add_u32 v{VWD+3}, {32*3840}, v{VWD+1}")
    A(f"s_mul_i32 s32, s26, {PS}")
    def st_publish(pair):
        A("s_cmp_lt_u32 s28, 5")
        A(f"s_cselect_b32 s21, {f32(20 ** -0.5 * 1.4426950408889634)}, 1.0")
        A(f"v_mul_f32 v{pair+1}, s21, v{pair+1}")
        A("s_lshl_b32 s21, s26, 8"); A(f"s_add_u32 s21, s21, {CS_PART}")
        A(f"v_lshlrev_b32 v{TMP}, 3, v2"); A(f"v_add_u32 v{TMP}, s21, v{TMP}")
        A(f"ds_write_b64 v{TMP}, {v(pair,2)}")
    if not L0:
        stats_off(A, VST, 24, TMP)
        srd(A, 36, SWS, WS_STA, ST_B)
        def after(t):
            if t == 4:
                for f in stats_items(A, VST, 36, TMP): f()
            if t == 7:
                A.wait_vm(lambda g: g == ("S",))
                finish_stats(A, TMP, NM, NM + 1, TMP + 10)
                st_publish(NM)
        mk().run_loader(after_bar=after)
        A.wait_lg_all()
        A("s_barrier")
        A("s_branch L_p1_done")
    else:
        mark = {}
        def first():
            mark["m"] = len(A.lines)
            row_loads(A, ACC)
            flags_zero(A, TMP)
        def early(t):
            if t == 0: row_stats(A, ACC, ACC + 16)
        def after(t):
            if t == 0:
                tr_lane_addr(A, VTR, PS, RB, 32, TMP)
                A("s_lshl_b32 s21, s26, 6"); A(f"v_add_u32 v{VTR}, s21, v{VTR}"); A(f"v_add_u32 v{VTR+1}, {3*SLOT}, v{VTR}")
                A(f"v_mov_b32 v{ONE}, 0x3f803f80")
                for k in range(4): A(f"v_mov_b32 v{SA+k}, 0")
            if t == env("CPOST", 3):
                assert "rst" not in A.vm
                census_post(A, TMP)
            slot = t % WSL
            for q in range(8):
                A(f"ds_read_b64_tr_b16 {v(WF + 2*q, 2)}, v{VTR + slot // 3} offset:{(slot % 3) * SLOT + 2 * q * RB}")
            if t == 8:
                A(f"v_add_u32 v{TMP}, s27, v2"); A(f"v_lshlrev_b32 v{TMP}, 3, v{TMP}")
                A(f"buffer_load_dwordx2 {v(NM,2)}, v{TMP}, s[36:39], 0 offen sc1", "S")
            A.wait_lg_all()
            for q in range(16): A(f"v_dot2_f32_bf16 v{SA + (q & 3)}, v{WF+q}, v{ONE}, v{SA + (q & 3)}")
            if t == 7:
                keep = list(A.vm)
                l = A.newlabel("cw")
                A("s_cmp_lg_u32 s20, 4"); A(f"s_cbranch_scc1 {l}")
                census_wait(A, TMP, 4)
                join(A, l)
                A.vm = keep
        mk().run_loader(after_bar=after, early=early, first=first)
        A("s_nop 3")
        A(f"v_add_f32 v{SA}, v{SA}, v{SA+1}"); A(f"v_add_f32 v{SA+2}, v{SA+2}, v{SA+3}"); A(f"v_add_f32 v{SA}, v{SA}, v{SA+2}")
        A(f"v_mov_b32 v{SA+1}, v{SA}"); A(f"v_permlane32_swap_b32 v{SA}, v{SA+1}"); A(f"v_add_f32 v{SA}, v{SA}, v{SA+1}")
        A("s_lshl_b32 s21, s26, 7"); A(f"s_add_u32 s21, s21, {CS1}")
        A(f"v_lshlrev_b32 v{TMP}, 2, v2"); A(f"v_add_u32 v{TMP}, s21, v{TMP}")
        A(f"ds_write_b32 v{TMP}, v{SA}")
        A.wait_vm_all()
        st_publish(NM)
        A.wait_lg_all()
        A("s_barrier")
        read_mode(A, TMP)
        A("s_branch L_p1_done")
        A.move_out(mark["m"], "L_p1a_ld")
    A.label(f"L_{n}_comp"); reset(A)
    if L0:
        srd(A, 8, SX, 0, XB)
        A(f"v_lshrrev_b32 v{TMP}, 3, v1"); A(f"v_add_u32 v{TMP}, s27, v{TMP}"); A(f"v_mul_u32_u24 v{TMP}, 1280, v{TMP}")
        A(f"v_lshrrev_b32 v{TMP+1}, 4, v1"); A(f"v_and_b32 v{TMP+2}, 7, v1"); A(f"v_xor_b32 v{TMP+1}, v{TMP+1}, v{TMP+2}")
        A(f"v_lshl_add_u32 v{VX}, v{TMP+1}, 4, v{TMP}")
        A(f"v_xor_b32 v{TMP+1}, 4, v{TMP+1}"); A(f"v_lshl_add_u32 v{VX+1}, v{TMP+1}, 4, v{TMP}"); A(f"v_add_u32 v{VX+1}, {8*1280}, v{VX+1}")
        A(f"v_add_u32 v{VX+2}, {16*1280}, v{VX}"); A(f"v_add_u32 v{VX+3}, {16*1280}, v{VX+1}")
        A("s_lshr_b32 s30, s30, 4")
        A(f"s_mul_i32 s33, s26, {XSL*4096}"); A(f"s_add_u32 s33, s33, {XST}")
    else:
        cl_lane_off(A, VX, 27, 20480, TMP)
        srd(A, 8, SWS, WS_XIN, XB)
    def setup():
        tr_lane_addr(A, VTR, PS, RB, 32, TMP)
        A(f"v_add_u32 v{VTR+1}, {3*SLOT}, v{VTR}")
        A(f"v_add_u32 v{VTR+2}, {6*SLOT}, v{VTR}")
        A(f"v_and_b32 v{TMP}, 15, v1"); A(f"v_lshlrev_b32 v{VOUT}, 4, v{TMP}"); A(f"v_lshl_add_u32 v{VOUT}, v3, 11, v{VOUT}")
        A(f"v_bfe_u32 v{TMP}, v1, 4, 1"); A(f"v_lshl_add_u32 v{VOUT}, v{TMP}, 12, v{VOUT}")
        A("s_lshl_b32 s21, s24, 3"); A(f"v_add_u32 v{VOUT}, s21, v{VOUT}")
        A(f"v_lshlrev_b32 v{VCS}, 4, v3"); A(f"v_add_u32 v{VCS}, {CS1}, v{VCS}")
        srd(A, 80, SWS, WS_QKV, QKV_B)
        if L0:
            A(f"v_bfe_u32 v{TMP}, v1, 1, 3"); A(f"v_xor_b32 v{TMP}, v{TMP}, v3")
            A(f"v_lshlrev_b32 v{TMP+1}, 7, v2"); A(f"v_add_u32 v{TMP+1}, s33, v{TMP+1}")
            for st in range(4):
                A(f"v_xor_b32 v{TMP+2}, {2*st}, v{TMP}"); A(f"v_lshl_add_u32 v{VXR+st}, v{TMP+2}, 4, v{TMP+1}")
        A("s_lshl_b32 s21, s26, 8"); A(f"s_add_u32 s21, s21, {CS_PART}")
        A(f"v_lshlrev_b32 v{VST}, 3, v2"); A(f"v_add_u32 v{VST}, s21, v{VST}")
    if L0:
        stamp(A, 1)
        g = mk()
        g.PRE += 1
        g.run(do_w=False, extra=[setup], extra_at=(g.PRE - 1) // 4, sb=1, rate=env("RATE1A", 4))
        A("s_branch L_p1_epi")
        return
    setup()
    A("s_lshr_b32 s29, s24, 5")
    wait_local(A, 3, 0, 10, 29, TMP, layer_delta=-1)
    reset(A)
    stamp(A, 1)
    mk().run(do_w=False, sb=1)
    A.label("L_p1_epi"); reset(A)
    A("s_barrier")
    A(f"ds_read_b64 {v(NM,2)}, v{VST}", ("C", 0, 0))
    csr = lambda nb: (WF + (nb & 1) * 16) if nb != 0 else CS
    def csread(nb):
        for i in range(4): A(f"ds_read_b128 {v(csr(nb) + i*4, 4)}, v{VCS} offset:{nb*128 + i*32}", ("C", nb, i))
    csread(0); csread(1); csread(2)
    A("s_lshr_b32 s29, s24, 5")
    A("s_mul_i32 s24, s18, 480"); A("s_lshl_b32 s25, s28, 5"); A("s_add_u32 s24, s24, s25"); A("s_lshl_b32 s24, s24, 11")
    for nb in range(4):
        if nb == 2: csread(3)
        for ip in range(2):
            r = ACC + nb * 16 + ip * 8; c = csr(nb) + ip * 8
            A.wait_lg(lambda g: g == ("C", nb, 2 * ip + 1))
            for k in range(0, 8, 2):
                A(f"v_pk_fma_f32 {v(r+k,2)}, {v(c+k,2)}, {v(NM,2)}, {v(r+k,2)} op_sel_hi:[1,0,1]")
            for k in range(0, 8, 2):
                A(f"v_pk_mul_f32 {v(r+k,2)}, {v(r+k,2)}, {v(NM,2)} op_sel:[0,1] op_sel_hi:[1,1]")
            for k in range(4):
                A(f"v_cvt_pk_bf16_f32 v{r+k}, v{r+2*k}, v{r+2*k+1}")
            A(f"s_add_u32 s21, s24, {(8*nb + 4*ip) * 2048}")
            A(f"v_permlane16_swap_b32 v{r}, v{r+2}")
            A(f"v_permlane16_swap_b32 v{r+1}, v{r+3}")
            A(f"buffer_store_dwordx4 {v(r,4)}, v{VOUT}, s[80:83], s21 offen sc1")
    read_mode(A, TMP)
    stamp(A, 4)
    A("s_lshl_b32 s21, s16, 3"); A("s_add_u32 s21, s21, s18"); A("s_lshl_b32 s21, s21, 5"); A("s_add_u32 s21, s21, s19")
    A("s_lshl_b32 s21, s21, 7"); A("s_add_u32 s21, s21, s20"); A("s_add_u32 s21, s21, 0x10000")
    A(f"v_mov_b32 v{TMP}, s21"); A(f"v_mov_b32 v{TMP+1}, 1")
    A.wait_vm_all()
    A("s_mov_b64 exec, 1")
    A(f"buffer_store_byte v{TMP+1}, v{TMP}, {s(SFL,4)}, 0 offen sc1")
    A("s_mov_b64 exec, -1")
    signal_local(A, 4, TMP + 2, 29, 28, nowait=True)
    stamp(A, 5)
    join(A, "L_p1_done"); reset(A)

P35 = dict(PS=2112, RB=128, SLOT=8448)
def p35_ids(A):
    A("s_mul_i32 s28, s19, 171"); A("s_lshr_b32 s28, s28, 9")
    A("s_mul_i32 s25, s28, 3"); A("s_sub_u32 s24, s19, s25")
    A("s_and_b32 s26, s20, 3")
    A("s_lshl_b32 s24, s24, 2"); A("s_add_u32 s24, s24, s26"); A("s_lshl_b32 s24, s24, 2")
    tab = [0, 1, 4, 8, 2, 5, 6, 8, 3, 7, 8, 8]
    t64 = sum(x << (4 * i) for i, x in enumerate(tab))
    A(f"s_mov_b32 s22, {t64 & 0xffffffff:#x}"); A(f"s_mov_b32 s23, {t64 >> 32:#x}")
    A("s_lshr_b64 s[22:23], s[22:23], s24"); A("s_and_b32 s29, s22, 15")
    A("s_lshl_b32 s24, s29, 5")
    A("s_lshl_b32 s27, s18, 8"); A("s_add_u32 s27, s27, s24")

def p35_gemm(A, nstage, WSL, PRE, LA, npre):
    g = Gemm(A, 2, nstage, 9, WSL, 8448, 128, 64, 48, 24, 96, 4, [6, 7], [12] * 2,
             [0, 1024], [8, 9, 13], 8, D * 2, PRE, LA, npre)
    g.FD = env("FD35", 2)
    return g

def p35_loader_setup(A, sw, K, base):
    A("s_lshl_b32 s25, s28, 7")
    wdma_off(A, 6, 2, 8, D * 2, 25, 26, 16)
    A(f"s_mul_i32 s32, s26, 2112")
    if base: A(f"s_add_u32 s32, s32, {base}")
    srd(A, 12, sw, 0, K * D * 2)

def p35_compute(A, nstage, WSL, npre, base, ws_x, x_bytes, ws_res, ws_out, ws_st, waitf, sigk, can_final, sb, PRE):
    VX, VTR, VRES, VST, VOUT = 4, 8, 10, 11, 12
    TMP = 16; ACC = 48; RES = 80
    cl_lane_off(A, VX, 27, nstage * 2048, TMP)
    tr_lane_addr(A, VTR, 2112, 128, 32, TMP, base)
    A(f"v_add_u32 v{VTR+1}, {7*8448}, v{VTR}"); A(f"v_add_u32 v13, {14*8448}, v{VTR}")
    cl_lane_off(A, VRES, 27, 20480, TMP)
    A("s_lshl_b32 s21, s28, 11")
    A(f"v_add_u32 v{VRES}, s21, v{VRES}")
    if True:
        A(f"v_add_u32 v{TMP}, s27, v2")
        A(f"v_mul_u32_u24 v{VOUT}, {D*2}, v{TMP}")
        A("s_lshl_b32 s21, s28, 7")
        A(f"v_add_u32 v{VOUT}, s21, v{VOUT}")
        A(f"v_lshl_add_u32 v{VOUT}, v3, {5 if can_final else 3}, v{VOUT}")
    A(f"v_add_u32 v{TMP}, s24, v2"); A(f"v_lshlrev_b32 v{VST}, 3, v{TMP}")
    A("s_mul_i32 s21, s18, 10"); A("s_add_u32 s21, s21, s28"); A("s_lshl_b32 s21, s21, 11")
    A(f"v_add_u32 v{VST}, s21, v{VST}")
    srd(A, 8, SWS, ws_x, x_bytes)
    srd(A, 36, SWS, ws_res, XB)
    srd(A, 76, SWS, ws_out, XB)
    srd(A, 80, SWS, ws_st, ST_B)
    if not can_final:
        A("s_cmp_lg_u32 s16, 0"); A("s_cbranch_scc1 L_p3_rescl")
        srd(A, 36, SX, 0, XB)
        for nb in range(2):
            for half in range(2):
                p = RES + (nb * 2 + half) * 4
                A(f"buffer_load_dwordx2 {v(p,2)}, v{VOUT}, s[36:39], 0 offen offset:{(32*nb + 8*half)*2}")
                A(f"buffer_load_dwordx2 {v(p+2,2)}, v{VOUT}, s[36:39], 0 offen offset:{(32*nb + 16 + 8*half)*2}")
        A("s_branch L_p3_resdone")
        A.label("L_p3_rescl")
    for nb in range(2):
        for half in range(2):
            A(f"buffer_load_dwordx4 {v(RES + (nb*2+half)*4, 4)}, v{VRES}, s[36:39], 0 offen offset:{nb*1024 + half*512} sc1", ("R",))
    if not can_final: A.label("L_p3_resdone")
    waitf(TMP); reset(A)
    stamp(A, sb)
    p35_gemm(A, nstage, WSL, PRE + 1, 0, npre).run(do_w=False, sb=sb, extra=[lambda: A("s_barrier")], extra_at=PRE // 4)
    late = env("E5LATE", 0) if can_final else 0
    if can_final and not late: A("s_barrier")
    for nb in range(2):
        for half in range(2):
            p = RES + (nb * 2 + half) * 4
            for j in range(4):
                src = ACC + nb * 16 + 4 * half + (j >> 1) * 8 + (j & 1) * 2
                A(f"v_lshlrev_b32 v{TMP}, 16, v{p+j}")
                A(f"v_and_b32 v{TMP+1}, 0xffff0000, v{p+j}")
                A(f"v_pk_add_f32 {v(src,2)}, {v(src,2)}, {v(TMP,2)}")
                A(f"v_cvt_pk_bf16_f32 v{p+j}, v{src}, v{src+1}")
    if can_final:
        A("s_cmp_eq_u32 s16, 0"); A("s_cbranch_scc1 L_p5_notfinal")
        srd(A, 76, SOUT, 0, XB)
        for nb in range(2):
            for half in range(2):
                p = RES + (nb * 2 + half) * 4
                A(f"v_permlane32_swap_b32 v{p}, v{p+2}")
                A(f"v_permlane32_swap_b32 v{p+1}, v{p+3}")
                A(f"buffer_store_dwordx4 {v(p,4)}, v{VOUT}, s[76:79], 0 offen offset:{(32*nb + 8*half)*2}")
        A("s_branch L_exit")
        A.label("L_p5_notfinal"); reset(A)
    for nb in range(2):
        for half in range(2):
            p = RES + (nb * 2 + half) * 4
            A(f"buffer_store_dwordx4 {v(p,4)}, v{VRES}, s[76:79], 0 offen offset:{nb*1024 + half*512}{STF}")
    for k in range(4): A(f"v_mov_b32 v{TMP+k}, 0")
    A(f"v_mov_b32 v{TMP+4}, 0x3f803f80")
    for j in range(16):
        o = 2 * (j & 1)
        A(f"v_dot2_f32_bf16 v{TMP+o}, v{RES+j}, v{TMP+4}, v{TMP+o}")
        A(f"v_dot2_f32_bf16 v{TMP+o+1}, v{RES+j}, v{RES+j}, v{TMP+o+1}")
    A("s_nop 3")
    A(f"v_pk_add_f32 {v(TMP,2)}, {v(TMP,2)}, {v(TMP+2,2)}")
    A(f"v_mov_b32 v{TMP+2}, v{TMP}"); A(f"v_mov_b32 v{TMP+3}, v{TMP+1}")
    A(f"v_permlane32_swap_b32 v{TMP}, v{TMP+2}")
    A(f"v_permlane32_swap_b32 v{TMP+1}, v{TMP+3}")
    A(f"v_pk_add_f32 {v(TMP,2)}, {v(TMP,2)}, {v(TMP+2,2)}")
    A(f"buffer_store_dwordx2 {v(TMP,2)}, v{VST}, s[80:83], 0 offen{STF}")
    stamp(A, sb + 3)
    signal_local(A, sigk, TMP + 4, 29, 28)
    stamp(A, sb + 4)
    if late: A("s_barrier")

def phase2(A):
    PSK, PSV = 4096, 4160
    KOFF, VOFF = 0, 6 * 4096
    QOFF = VOFF + 6 * PSV
    VL16, VQ, VQ2, VK1, VK2, VV, VO, VWA, VWB, VW4 = 4, 5, 6, 7, 8, 9, 10, 12, 13, 252
    TMP = 14; Q1, Q2 = 20, 24; MSK = 26; KF = 34; VF = 52; O = 68; PB = 84; S = 100; MX = 244; DUM = 248
    A("s_mul_i32 s25, s19, 5")
    A(f"v_lshlrev_b32 v{VL16}, 4, v1")
    srd(A, 8, SWS, WS_QKV, QKV_B)
    A("s_lshl_b32 s24, s20, 5")
    A(f"v_and_b32 v{TMP+4}, 15, v1"); A(f"v_bfe_u32 v{TMP+5}, v1, 4, 1")
    A(f"v_lshlrev_b32 v{VK2}, 4, v{TMP+4}"); A(f"v_lshl_add_u32 v{VK2}, v{TMP+5}, 3, v{VK2}")
    A("s_lshl_b32 s21, s20, 8"); A(f"v_add_u32 v{VK2}, s21, v{VK2}")
    A(f"v_lshl_add_u32 v{VK1}, v3, 12, v{VK2}")
    A(f"v_add_u32 v{VQ2}, {QOFF}, v{VK2}"); A(f"v_lshl_add_u32 v{VQ}, v3, 11, v{VQ2}")
    srd(A, 12, SWS, WS_O, XB)
    A(f"v_mov_b32 v{TMP+2}, 0x3f803f80"); A(f"v_mov_b32 v{TMP+3}, 0x3f803f80")
    A(f"v_lshlrev_b32 v{TMP+1}, 3, v0")
    A(f"ds_write_b64 v{TMP+1}, {v(TMP+2,2)} offset:{VOFF + 5*PSV}")
    A("s_lshr_b32 s22, s20, 2"); A("s_add_u32 s22, s22, s18"); A("s_cmp_eq_u32 s22, 0"); A("s_cselect_b32 s22, 0xf149, 0")
    A(f"v_mov_b32 v{Q1}, s22"); A(f"v_mov_b32 v{Q1+1}, 0")
    A(f"ds_write_b64 v{TMP+1}, {v(Q1,2)} offset:{KOFF + 5*PSK}")
    A(f"v_and_b32 v{TMP}, 3, v1")
    A(f"v_lshl_add_u32 v{TMP+1}, v{TMP+5}, 2, v{TMP}"); A(f"v_min_u32 v{TMP+1}, 5, v{TMP+1}")
    A(f"v_mul_u32_u24 v{VV}, {PSV}, v{TMP+1}")
    A(f"v_bfe_u32 v{TMP+1}, v1, 2, 2"); A(f"v_lshl_add_u32 v{TMP+1}, v3, 2, v{TMP+1}")
    A(f"v_lshl_add_u32 v{VV}, v{TMP+1}, 4, v{VV}"); A(f"v_add_u32 v{VV}, s21, v{VV}")
    A("s_lshl_b32 s21, s18, 4"); A("s_lshl_b32 s22, s20, 1"); A("s_add_u32 s21, s21, s22")
    A(f"v_add_u32 v{TMP+1}, s21, v{TMP+5}"); A(f"v_mul_u32_u24 v{TMP+1}, 20480, v{TMP+1}")
    A(f"v_lshl_add_u32 v{TMP+1}, v{TMP+4}, 4, v{TMP+1}")
    A("s_lshl_b32 s21, s19, 9"); A(f"v_add_u32 v{VO}, s21, v{TMP+1}"); A(f"v_lshl_add_u32 v{VO}, v3, 8, v{VO}")
    A("s_lshr_b32 s21, s19, 1"); A("s_lshl_b32 s21, s21, 8"); A("s_and_b32 s22, s19, 1"); A("s_lshl_b32 s22, s22, 3"); A("s_add_u32 s21, s21, s22"); A(f"s_add_u32 s21, s21, {64*256}")
    A(f"v_add_u32 v{VO+1}, s21, v{TMP+1}"); A(f"v_lshl_add_u32 v{VO+1}, v3, 31, v{VO+1}")
    A("s_mul_i32 s28, s19, 171"); A("s_lshr_b32 s28, s28, 9")
    A("s_and_b32 s26, s20, 3"); A("s_lshr_b32 s27, s20, 2")
    A(f"v_bfe_u32 v{TMP}, v1, 3, 1"); A(f"v_mul_u32_u24 v{TMP+1}, 5, v{TMP+5}"); A(f"v_add_u32 v{TMP}, v{TMP}, v{TMP+1}")
    A(f"v_lshl_add_u32 v{TMP}, v3, 1, v{TMP}"); A("s_mul_i32 s21, s27, 10"); A(f"v_add_u32 v{TMP}, s21, v{TMP}")
    A(f"v_bfe_u32 v{TMP+1}, v1, 3, 2"); A(f"v_mul_u32_u24 v{TMP+1}, 10, v{TMP+1}"); A(f"v_mul_u32_u24 v{TMP+2}, 5, v3"); A(f"v_add_u32 v{TMP+1}, v{TMP+1}, v{TMP+2}")
    A("s_mul_i32 s21, s27, 40"); A("s_add_u32 s21, s21, 4"); A(f"v_add_u32 v{TMP+1}, s21, v{TMP+1}")
    A(f"v_and_b32 v{TMP+2}, 7, v1"); A(f"v_lshlrev_b32 v{TMP+2}, 4, v{TMP+2}")
    A("s_mul_i32 s21, s26, 1280"); A("s_lshl_b32 s22, s28, 7"); A("s_add_u32 s21, s21, s22")
    A("s_cmp_ge_u32 s19, 30"); A(f"s_cselect_b32 s21, {OOB:#x}, s21")
    A(f"v_add_u32 v{TMP+2}, s21, v{TMP+2}")
    A(f"v_mul_u32_u24 v{VWA}, 5120, v{TMP}"); A(f"v_add_u32 v{VWA}, v{VWA}, v{TMP+2}")
    A(f"v_mul_u32_u24 v{VWB}, 5120, v{TMP+1}"); A(f"v_add_u32 v{VWB}, v{VWB}, v{TMP+2}")
    A("s_mul_i32 s32, s26, 2112"); A("s_lshl_b32 s21, s27, 10"); A("s_add_u32 s32, s32, s21"); A(f"s_add_u32 s32, s32, {P3W}")
    A(f"s_add_u32 s34, s32, {10*8448}")
    rot_calc(A, "p3")
    A("s_sub_u32 s21, 10, s21"); A("s_cmp_eq_u32 s21, 10"); A("s_cselect_b32 s21, 0, s21"); A("s_mul_i32 s21, s21, 8448"); A("s_add_u32 s29, s32, s21")
    srd(A, 36, SWO, 0, D * D * 2)
    srd(A, 76, SWS, 0, LS)
    A("s_mul_i32 s21, s18, 327680"); A("s_mul_i32 s22, s19, 10240"); A("s_add_u32 s21, s21, s22"); A("s_lshl_b32 s22, s20, 10"); A("s_add_u32 s21, s21, s22")
    A(f"v_add_u32 v{VW4}, s21, v{VL16}")
    A("s_mul_i32 s21, s18, 20480"); A("s_mul_i32 s22, s19, 640"); A("s_add_u32 s21, s21, s22")
    A(f"v_add_u32 v{VW4+1}, s21, v{VL16}")
    side = []
    for t in range(10):
        def f(t=t):
            A("s_mov_b32 m0, s29")
            A(f"s_mov_b32 s21, {t*80*1280 if t < 8 else (t-8)*320*1280}")
            A(f"buffer_load_dwordx4 v{VWA if t < 8 else VWB}, s[36:39], s21 offen lds", "wo")
            A("s_add_u32 s29, s29, 8448"); A("s_cmp_ge_u32 s29, s34"); A("s_cselect_b32 s29, s32, s29")
        side.append(f)
    if PLAIN:
        def touch(vr, off):
            def f():
                A(f"s_mov_b32 s21, {off:#x}")
                A(f"buffer_load_dwordx4 {v(DUM,4)}, v{vr}, s[76:79], s21 offen sc1", "t")
            return f
        side = [touch(VW4, WS_O), touch(VW4, WS_O + 8192), touch(VW4, WS_X1), touch(VW4, WS_X1 + 8192), touch(VW4 + 1, WS_STB)] + side
    for r in range(16):
        k0 = 8 * (r >> 2) + (r & 3)
        A(f"s_mov_b32 s{40+2*r}, {(0xFFFFFFFF << k0) & 0xFFFFFFFF:#x}")
        A(f"s_mov_b32 s{41+2*r}, {(0xFFFFFFFF << (k0+4)) & 0xFFFFFFFF:#x}")
    A(f"v_mov_b32 v{TMP+4}, 0xffff"); A(f"v_mov_b32 v{TMP+5}, 0xffff0000")
    for j in range(8):
        A(f"v_cndmask_b32 v{MSK+j}, 0, v{TMP+4}, {s(40+4*j,2)}")
        A(f"v_cndmask_b32 v{TMP+1}, 0, v{TMP+5}, {s(42+4*j,2)}")
        A(f"v_or_b32 v{MSK+j}, v{MSK+j}, v{TMP+1}")
    stamp(A, 6)
    A("s_sub_u32 s21, s20, 4"); A("s_cmp_ge_u32 s21, 3"); A("s_cbranch_scc1 L_p2_setup")
    A("s_mul_i32 s25, s19, 5"); A("s_mul_i32 s80, s18, 480"); A("s_add_u32 s80, s80, s25"); A("s_lshl_b32 s80, s80, 11")
    A(f"s_add_u32 s81, s80, {320*2048}")
    A("s_cmp_eq_u32 s20, 6"); A("s_cbranch_scc1 L_p2_halo")
    A("s_cmp_eq_u32 s20, 4")
    A(f"s_cselect_b32 s22, 0, {160*2048}"); A(f"s_cselect_b32 s82, {QOFF}, 0"); A("s_cselect_b32 s83, 0, 1")
    A("s_add_u32 s80, s80, s22"); A("s_lshl_b32 s83, s83, 11"); A("s_add_u32 s82, s82, s83"); A("s_add_u32 s83, s83, 2048")
    A(f"s_mov_b32 s33, {VOFF + 2048}")
    wait_local(A, 4, 0, 15, None, KF)
    A("s_branch L_p2_ld")
    A.label("L_p2_halo"); reset(A)
    A(f"s_sub_u32 s80, s80, {320*2048}"); A(f"s_sub_u32 s81, s81, {480*2048}")
    A("s_mov_b32 s82, 0"); A("s_mov_b32 s83, 4096"); A(f"s_mov_b32 s33, {VOFF}")
    A("s_cmp_eq_u32 s18, 0"); A(f"s_cselect_b32 s80, {OOB:#x}, s80"); A(f"s_cselect_b32 s81, {OOB:#x}, s81"); A("s_cbranch_scc1 L_p2_ld")
    A(f"v_min_u32 v{KF}, 19, v1"); A(f"v_lshlrev_b32 v{KF}, 7, v{KF}")
    A("s_lshl_b32 s21, s16, 3"); A("s_add_u32 s21, s21, s18"); A("s_lshl_b32 s21, s21, 12"); A(f"s_add_u32 s21, s21, {0x10000 - 4096 + 10*128}")
    A(f"v_add_u32 v{KF}, s21, v{KF}")
    A(f"v_mov_b32 v{KF+1}, 0x01010101")
    def body():
        A(f"buffer_load_dword v{KF+2}, v{KF}, {s(SFL,4)}, 0 offen sc1")
        A.wait_vm_all()
        A(f"v_cmp_ne_u32 vcc, v{KF+2}, v{KF+1}")
    spin(A, body, "p1w", 1)
    join(A, "L_p2_ld"); reset(A)
    stamp(A, 7)
    for i in range(5):
        for c in range(2):
            A(f"s_add_u32 m0, s82, {c*1024}")
            A(f"buffer_load_dwordx4 v{VL16}, s[8:11], s80 offen sc1 lds")
            A("s_add_u32 s80, s80, 1024")
        A("s_add_u32 s82, s82, s83")
    A("s_cmp_eq_u32 s20, 5"); A("s_cbranch_scc1 L_p2_w5")
    for i in range(5):
        for c in range(2):
            A(f"s_add_u32 m0, s33, {i*PSV + c*1024}")
            A(f"buffer_load_dwordx4 v{VL16}, s[8:11], s81 offen sc1 lds")
            A("s_add_u32 s81, s81, 1024")
    A("s_branch L_p2_setup")
    A.label("L_p2_w5")
    A("s_waitcnt vmcnt(0)")
    join(A, "L_p2_setup"); reset(A)
    A("s_waitcnt vmcnt(10)"); A.wait_lg_all()
    A.vm = ["V"] * 10
    A("s_barrier")
    stamp(A, 8)
    A(f"ds_read_b64 {v(Q1,2)}, v{VQ}", ("K", 0))
    A(f"ds_read_b64 {v(Q1+2,2)}, v{VQ} offset:4096", ("K", 0))
    A(f"ds_read_b64 {v(Q2,2)}, v{VQ2} offset:8192", ("K", 0))
    qorder = [0, 8, 1, 2, 3, 4, 5, 6, 7]
    def kreads(n):
        d = qorder[n]; b = KF + (n % 3) * 6
        for q in range(3):
            A(f"ds_read_b64 {v(b+2*q,2)}, v{VK1} offset:{KOFF + 2*q*PSK + d*256}", ("K", n))
    work = {}
    work[1] = [f"v_cndmask_b32 v{S+r}, v{S+r}, v{S+128+r}, {s(40+2*r,2)}" for r in range(16)]
    work[1] += [f"v_max_f32 v{MX+c}, v{S+2*c}, v{S+2*c+1}" for c in range(2)]
    work[1] += [f"v_max3_f32 v{MX+(k&1)}, v{MX+(k&1)}, v{S+2*k}, v{S+2*k+1}" for k in range(2, 8)]
    for n in range(2, 9):
        sb = S + 16 * qorder[n]
        work[n] = [f"v_max3_f32 v{MX+(k&1)}, v{MX+(k&1)}, v{sb+2*k}, v{sb+2*k+1}" for k in range(8)]
    pend = []
    kreads(0); kreads(1)
    for n in range(9):
        d = qorder[n]
        if n + 2 < 9: kreads(n + 2)
        A.wait_lg(lambda g: g == ("K", n))
        b = KF + (n % 3) * 6
        if n == 0:
            A("s_mov_b32 s22, -1"); A("s_mov_b32 s23, 0"); A(f"v_mov_b32 v{MX+2}, 0x3f80")
            A(f"v_cndmask_b32 v{Q2}, v{MX+2}, v{Q2}, s[22:23]"); A(f"v_cndmask_b32 v{Q2+1}, 0, v{Q2+1}, s[22:23]")
        if n - 2 in work: pend += work[n - 2]
        A(f"v_mfma_f32_32x32x16_bf16 {v(S+16*d,16)}, {v(b,4)}, {v(Q1,4)}, 0")
        for _ in range(6):
            if pend: A(pend.pop(0))
        A(f"v_mfma_f32_32x32x8_bf16 {v(S+16*d,16)}, {v(b+4,2)}, {v(Q2,2)}, {v(S+16*d,16)}")
        for _ in range(6):
            if pend: A(pend.pop(0))
    for w_ in pend + work[7] + work[8]: A(w_)
    A(f"v_max_f32 v{MX}, v{MX}, v{MX+1}")
    A(f"v_mov_b32 v{MX+1}, v{MX}")
    A(f"v_permlane32_swap_b32 v{MX}, v{MX+1}")
    A(f"v_max_f32 v{MX}, v{MX}, v{MX+1}")
    stamp(A, 27)
    A.wait_vm_all()
    A("s_barrier")
    stamp(A, 28)
    if env("NOSIDE", 0): side = []
    vbuf = lambda k: (VF + 8 * k) if k < 2 else (PB + 8 * (k - 2))
    vseq = [0, 8, 1, 2, 3, 4, 5, 6, 7]
    def vreads(i):
        d = vseq[i]
        for u in range(2):
            for rd in range(2):
                A(f"ds_read_b64_tr_b16 {v(vbuf(i % 4) + u*4 + rd*2, 2)}, v{VV} offset:{VOFF + d*256 + rd*128 + u*8}", ("V", i))
    mq = []; st_ = dict(first=True, nv=0)
    def pv():
        if not mq: return
        i, u = mq.pop(0)
        A.wait_lg(lambda g: g == ("V", i))
        c = "0" if st_["first"] else v(O, 16); st_["first"] = False
        A(f"v_mfma_f32_32x32x16_bf16 {v(O,16)}, {v(vbuf(i % 4) + u*4, 4)}, {v(S + 16*vseq[i] + u*4, 4)}, {c}")
    vreads(0); vreads(1)
    per = -(-len(side) // 6)
    for d in range(8):
        sb = S + 16 * d
        for r in range(0, 16, 2): A(f"v_pk_add_f32 {v(sb+r,2)}, {v(sb+r,2)}, {v(MX,2)} op_sel_hi:[1,0] neg_lo:[0,1] neg_hi:[0,1]")
        q = 0
        for r in range(16):
            A(f"v_exp_f32 v{sb+r}, v{sb+r}")
            if r in (1, 6) or (r == 11 and d in (1, 2)): pv()
            if r == 13 and d + 2 < 9: vreads(d + 2)
            if r % 4 == 3 and side and q < per: side.pop(0)(); q += 1
        for j in range(8): A(f"v_cvt_pk_bf16_f32 v{sb+j}, v{sb+2*j}, v{sb+2*j+1}")
        if d == 0:
            for j in range(8): A(f"v_and_b32 v{S+128+j}, v{sb+j}, v{MSK+j}")
            for j in range(8): A(f"v_bfi_b32 v{sb+j}, v{MSK+j}, 0, v{sb+j}")
            mq += [(0, 0), (0, 1), (1, 0), (1, 1)]
        else:
            mq += [(d + 1, 0), (d + 1, 1)]
    while mq: pv()
    assert not side
    stamp(A, 9)
    A(f"v_rcp_f32 v{MX}, v{O+12}")
    for k in range(0, 12, 2):
        A(f"v_pk_mul_f32 {v(O+k,2)}, {v(O+k,2)}, {v(MX,2)} op_sel_hi:[1,0]")
    for k in range(6): A(f"v_cvt_pk_bf16_f32 v{PB+k}, v{O+2*k}, v{O+2*k+1}")
    A(f"buffer_store_dwordx4 {v(PB,4)}, v{VO}, s[12:15], 0 offen{STF}")
    A(f"buffer_store_dwordx2 {v(PB+4,2)}, v{VO+1}, s[12:15], 0 offen{STF}")
    signal_local(A, 0, 20, 20, 19)
    stamp(A, 10)
    A.fence(); reset(A)

def touch_range(A, off, grp_bytes, nwg, base_idx, depth=8):
    per = nwg * 8 * 1024
    n = -(-grp_bytes // per)
    A(f"s_mul_i32 s21, s18, {grp_bytes}")
    srd(A, 36, SWS, off, grp_bytes, soff=21)
    A(f"s_sub_u32 s31, s19, {base_idx}"); A("s_lshl_b32 s31, s31, 3"); A("s_add_u32 s31, s31, s20"); A("s_lshl_b32 s31, s31, 10")
    A("v_lshlrev_b32 v4, 4, v1")
    A("s_mov_b32 s22, 0")
    lp = A.newlabel("tr")
    A.label(lp)
    A("buffer_load_dwordx4 v[8:11], v4, s[36:39], s31 offen sc1")
    A(f"s_waitcnt vmcnt({depth})"); A.vm = []
    A(f"s_add_u32 s31, s31, {per}")
    A("s_add_u32 s22, s22, 1"); A(f"s_cmp_lt_u32 s22, {n}"); A(f"s_cbranch_scc1 {lp}")

def warm_code(A, thr=31):
    if not env("WARMC", 1): return
    skip = A.newlabel("wc"); here = A.newlabel("pc"); lp = A.newlabel("wcl")
    A(f"s_cmp_lt_u32 s19, {thr}"); A(f"s_cbranch_scc1 {skip}")
    A("s_getpc_b64 s[22:23]")
    A.label(here)
    A(f"s_sub_u32 s22, s22, {here}-{NAME}_kernel"); A("s_subb_u32 s23, s23, 0")
    A("v_lshlrev_b32 v6, 4, v0")
    A.label(lp)
    A(f"v_min_u32 v7, L_code_end-{NAME}_kernel-16, v6")
    A("v_mov_b32 v5, s23"); A("v_add_co_u32 v4, vcc, s22, v7"); A("v_addc_co_u32 v5, vcc, 0, v5, vcc")
    A("global_load_dwordx4 v[8:11], v[4:5], off"); A.vm = []
    A("v_add_u32 v6, 8192, v6")
    A("v_readfirstlane_b32 s21, v6")
    A(f"s_cmp_lt_u32 s21, L_code_end-{NAME}_kernel"); A(f"s_cbranch_scc1 {lp}")
    A("s_waitcnt vmcnt(0)")
    join(A, skip); reset(A)

def warm_tlb(A):
    if not env("WARMT", 0): return
    skip = A.newlabel("wt")
    A("s_cmp_lg_u32 s19, 30"); A(f"s_cbranch_scc1 {skip}")
    sh = env("WARMT_SH", 16)
    A(f"v_lshlrev_b32 v6, {sh}, v0")
    for base, size in ((SWO, D*D*2), (SWG, D*F*2), (SWU, D*F*2), (SWD, D*F*2), (SOUT, XB)):
        srd(A, 36, base, 0, size)
        A("buffer_load_dword v8, v6, s[36:39], 0 offen")
    srd(A, 36, SWS, 0, 2 * LS)
    for k in range((2 * LS) >> (sh + 9)):
        A(f"s_mov_b32 s21, {k << (sh + 9):#x}"); A("buffer_load_dword v8, v6, s[36:39], s21 offen")
    A.wait_vm_all()
    join(A, skip); reset(A)

def warm_stream(A, sbase, size, sstart, step, n, depth, wrap=None):
    srd(A, 36, sbase, 0, size)
    A("v_lshlrev_b32 v4, 4, v0")
    A("s_mov_b32 s22, 0")
    lp = A.newlabel("ws")
    A.label(lp)
    A(f"buffer_load_dwordx4 v[8:11], v4, s[36:39], s{sstart} offen")
    A(f"s_waitcnt vmcnt({depth})"); A.vm = []
    A(f"s_add_u32 s{sstart}, s{sstart}, {step}")
    if wrap:
        A(f"s_cmp_ge_u32 s{sstart}, {wrap}"); A(f"s_cselect_b32 s23, {wrap}, 0"); A(f"s_sub_u32 s{sstart}, s{sstart}, s23")
    A("s_add_u32 s22, s22, 1"); A(f"s_cmp_lt_u32 s22, {n}"); A(f"s_cbranch_scc1 {lp}")

def warm_mall(A):
    n = env("WMALL", 0)
    if not n: return
    for sb, size in ((SWO, D * D * 2), (SWG, D * F * 2), (SWU, D * F * 2))[:n]:
        A("s_lshl_b32 s24, s18, 1"); A("s_add_u32 s24, s24, s19"); A("s_sub_u32 s24, s24, 30"); A("s_lshl_b32 s24, s24, 13")
        warm_stream(A, sb, size, 24, 16 * 8192, -(-size // (16 * 8192)), 8)
    A("s_waitcnt vmcnt(0)")

def idle4(A):
    l0_only(A, lambda: warm_code(A), "wc4")
    if PLAIN:
        touch_range(A, WS_H, H_B // 8, 5, 27, env("TDEP", 4))
        A("s_waitcnt vmcnt(0)")

def idle5(A):
    def f():
        l = A.newlabel("i5")
        A("s_cmp_lg_u32 s20, 0"); A(f"s_cbranch_scc1 {l}")
        wait_local(A, 2, 0, 27, None, 4, sleep=16)
        join(A, l); reset(A)
        A("s_barrier")
        warm_code(A)
        if env("WW1", 0):
            rot_init(A, "p1", 3840)
            A("s_sub_u32 s24, s19, 30"); A("s_lshl_b32 s24, s24, 13"); A("s_add_u32 s24, s24, s31")
            warm_stream(A, SWQKV, D * 1920 * 2, 24, 16384, env("WW1", 0) * 15, 6, wrap=D * 1920 * 2)
            A("s_waitcnt vmcnt(0)")
    l0_only(A, f, "i5l0")

P4PRE = env("P4PRE", 4)
P4 = dict(PS=2112, RB=128, UOFF=8480, SLOT=16960)
def phase3(A):
    A("s_cmp_ge_u32 s19, 30"); A("s_cbranch_scc1 L_p3_skip")
    p35_ids(A)
    A("s_lshl_b32 s21, s20, 1"); A("s_or_b32 s21, s21, s29"); A("s_cmp_lt_u32 s21, 8"); A("s_cbranch_scc1 L_p3_comp")
    A("s_barrier")
    A("s_cmp_lt_u32 s20, 4"); A("s_cbranch_scc1 L_p3_skip")
    A("s_cmp_ge_u32 s19, 27"); A("s_cbranch_scc1 L_p3_skip")
    A("s_lshl_b32 s25, s19, 7")
    wdma_off(A, 6, 2, 8, F * 2, 25, 26, 16)
    A("s_mul_i32 s32, s26, 2112")
    rot_init(A, "p4", F * 2)
    srd(A, 12, SWG, 0, D * F * 2); srd(A, 36, SWU, 0, D * F * 2)
    g = Gemm(A, 4, 10, 6, 9, 16960, 128, 32, 0, 0, 0, 0, [6, 7, 6, 7], [12, 12, 36, 36], [0, 1024, 8480, 8480 + 1024],
             [], 8, F * 2, 0, 0)
    g.throttle = env("THR3", 3) or None; g.wflags = NT4
    g.prefetch(P4PRE)
    A.wait_vm_all()
    join(A, "L_p3_skip"); reset(A)
    A("s_branch L_p3_done")
    A.label("L_p3_comp"); reset(A)
    rot_init(A, "p3", D * 2)
    p35_compute(A, 10, 10, 10, P3W, WS_O, XB, WS_XIN, WS_X1, WS_STB,
                lambda t0: wait_local(A, 0, 0, 32, 29, t0), 1, False, 11, env("PRE3", 16))
    join(A, "L_p3_done"); reset(A)

B5 = 16960
N5 = env("N5", 10)
def phase5(A):
    A("s_cmp_lt_u32 s19, 30"); A("s_cbranch_scc1 L_p5_go")
    idle5(A)
    A("s_branch L_p5_done")
    A.label("L_p5_go"); reset(A)
    WSL = env("WSL5", 17)
    p35_ids(A); rot_init(A, "p5", D * 2)
    A("s_lshl_b32 s21, s20, 1"); A("s_or_b32 s21, s21, s29"); A("s_cmp_lt_u32 s21, 8"); A("s_cbranch_scc1 L_p5_comp")
    A("s_cmp_lt_u32 s20, 4"); A("s_cbranch_scc1 L_p5_idle")
    p35_loader_setup(A, SWD, F, B5)
    A("s_cmp_lt_u32 s19, 27"); A("s_cbranch_scc1 L_p5_pre")
    p35_gemm(A, 27, WSL, 0, 0, 0).prefetch(N5)
    A.wait_vm_all()
    join(A, "L_p5_pre"); reset(A)
    rot_init(A, "p5", D * 2, wskip=N5)
    A("s_barrier")
    g = p35_gemm(A, 27, WSL, 0, env("LA5", 14), 0); g.nland = N5
    g.run_loader()
    A("s_barrier")
    A("s_branch L_p5_done")
    A.label("L_p5_idle")
    A("s_mov_b32 s21, 0")
    A.label("L_p5_idle_loop")
    A("s_barrier"); A("s_add_u32 s21, s21, 1"); A("s_cmp_lt_u32 s21, 29"); A("s_cbranch_scc1 L_p5_idle_loop")
    A("s_branch L_p5_done")
    A.label("L_p5_comp"); reset(A)
    p35_compute(A, 27, WSL, 0, B5, WS_H, H_B, WS_X1, WS_XIN + LS, WS_STA + LS,
                lambda t0: wait_local(A, 2, 0, 27, 29, t0), 3, True, 22, env("PRE5", 16))
    join(A, "L_p5_done"); reset(A)

def phase4(A):
    A("s_cmp_lt_u32 s19, 27"); A("s_cbranch_scc1 L_p4_go")
    A("s_barrier")
    idle4(A)
    A("s_branch L_p4_done")
    A.label("L_p4_go"); reset(A)
    A("s_lshl_b32 s24, s20, 5")
    A("s_lshl_b32 s27, s18, 8"); A("s_add_u32 s27, s27, s24")
    A("s_and_b32 s26, s20, 3"); A("s_lshr_b32 s29, s20, 2")
    PS, RB, UOFF, SLOT = 2112, 128, 8480, 16960
    WSL, XS = 9, 5
    VX, VWD, VTR, VST, VCS, VOUT, VPL = 4, 6, 8, 11, 12, 13, 144
    NM, CA, CB, IR = 14, 16, 18, 20
    TMP = 24; WF = 40; ACC = 72; T = 136; CSA = 148; CSB = 156; CT = 164; V5 = 165; XA = 168
    cl_lane_off(A, VX, 27, 20480, TMP)
    A("s_lshl_b32 s25, s19, 7")
    wdma_off(A, VWD, 2, 8, F * 2, 25, 26, TMP)
    tr_lane_addr(A, VTR, PS, RB, UOFF, TMP)
    A(f"v_add_u32 v{VTR+1}, {3*SLOT}, v{VTR}"); A(f"v_add_u32 v{VTR+2}, {6*SLOT}, v{VTR}")
    stats_off(A, VST, 24, TMP)
    cl_lane_off(A, VOUT, 27, 54 * 1024, TMP)
    A("s_lshl_b32 s21, s19, 11")
    A(f"v_add_u32 v{VOUT}, s21, v{VOUT}")
    A(f"v_lshlrev_b32 v{VCS}, 4, v3"); A(f"v_add_u32 v{VCS}, {CS4}, v{VCS}")
    A(f"s_mul_i32 s32, s26, {PS}"); A(f"s_mul_i32 s21, s29, {UOFF}"); A("s_add_u32 s32, s32, s21")
    A("s_lshl_b32 s21, s26, 5"); A(f"s_mul_i32 s22, s29, {8*RB}"); A("s_add_u32 s21, s21, s22")
    A(f"v_add_u32 v{VPL}, s21, v{VTR}")
    A(f"v_add_u32 v{VPL+1}, {3*SLOT}, v{VPL}"); A(f"v_add_u32 v{VPL+2}, {6*SLOT}, v{VPL}")
    for k in range(2): A(f"v_mov_b32 v{CSA+k}, 0")
    A(f"v_mov_b32 v{CT}, 0x3f803f80")
    rot_init(A, "p4", F * 2, wskip=P4PRE)
    A("s_cmp_eq_u32 s29, 0")
    A(f"s_cselect_b32 s22, s{SWG}, s{SWU}"); A(f"s_cselect_b32 s23, s{SWG+1}, s{SWU+1}")
    srd(A, 12, 22, 0, D * F * 2)
    srd(A, 8, SWS, WS_X1, XB)
    srd(A, 36, SWS, WS_STB, ST_B)
    srd(A, 80, SWS, WS_H, H_B)
    A("s_mov_b32 s34, s30"); A("s_mov_b32 s25, s31")
    rot_init(A, "p5", D * 2)
    A("s_mov_b32 s33, s31"); A("s_mov_b32 s30, s34"); A("s_mov_b32 s31, s25")
    A("s_mul_i32 s25, s19, 171"); A("s_lshr_b32 s25, s25, 9"); A("s_lshl_b32 s25, s25, 7")
    A(f"s_mul_i32 s21, s29, {32*D*2}"); A("s_add_u32 s25, s25, s21")
    wdma_off(A, V5, 1, 8, D * 2, 25, 26, TMP)
    A("s_mul_i32 s34, s26, 2112"); A("s_lshl_b32 s21, s29, 10"); A("s_add_u32 s34, s34, s21"); A(f"s_add_u32 s34, s34, {B5}")
    srd(A, 76, SWD, 0, F * D * 2)
    def t5(t):
        def f():
            A(f"s_add_u32 m0, s34, {t*8448}")
            A(f"buffer_load_dwordx4 v{V5}, s[76:79], s33 offen lds", "w5")
            A(f"s_add_u32 s33, s33, {64*D*2}"); A(f"s_cmp_ge_u32 s33, {F*D*2}"); A("s_cselect_b32 s33, 0, s33")
        return f
    if env("PRIO4", 1):
        l = A.newlabel("prio")
        A("s_cmp_ge_u32 s20, 4"); A(f"s_cbranch_scc1 {l}"); A("s_setprio 1"); A.label(l)
    if env("E3POS", 1) == 0: A("s_barrier")
    wait_local(A, 1, 0, 10, 20, TMP, sleep=2); reset(A)
    stamp(A, 16)
    g = Gemm(A, 4, 10, XS, WSL, SLOT, RB, 32, ACC, WF, XA, VX, [VWD, VWD + 1], [12, 12],
             [0, 1024], [VTR, VTR + 1, VTR + 2], 8, F * 2, env("PRE4", 8), 0, P4PRE)
    def csum(t):
        slot = t % WSL
        def f():
            for q in range(4):
                A(f"ds_read_b64_tr_b16 {v(CSB + 2*q, 2)}, v{VPL + slot // 3} offset:{(slot % 3) * SLOT + 2 * q * RB}")
            A("s_waitcnt lgkmcnt(0)")
            for q in range(8):
                if env("CSDOT", 1): A(f"v_dot2_f32_bf16 v{CSA + (q & 1)}, v{CSB+q}, v{CT}, v{CSA + (q & 1)}")
                else:
                    A(f"v_lshlrev_b32 v{CSA+2}, 16, v{CSB+q}"); A(f"v_and_b32 v{CSA+3}, 0xffff0000, v{CSB+q}")
                    A(f"v_add_f32 v{CSA}, v{CSA}, v{CSA+2}"); A(f"v_add_f32 v{CSA+1}, v{CSA+1}, v{CSA+3}")
        keep = list(A.lg)
        l0_only(A, f, "p4cs")
        A.lg = keep
    g.wflags = NT4
    g.lastbar = env("LB4", 7)
    if env("E3POS", 1): g.bar_at = env("E3AT", 4)
    g.run(extra=stats_items(A, VST, 36, TMP), wlead=env("WLEAD4", 3), sb=16, stage_end=csum, tail=[t5(t) for t in range(N5)], rate=env("RATE4", 7))
    def cpart():
        A("s_nop 3")
        A(f"v_add_f32 v{CSA}, v{CSA}, v{CSA+1}")
        A(f"v_mov_b32 v{CSA+1}, v{CSA}"); A(f"v_permlane32_swap_b32 v{CSA}, v{CSA+1}"); A(f"v_add_f32 v{CSA}, v{CSA}, v{CSA+1}")
        A(f"v_bfe_u32 v{CSB}, v1, 4, 1"); A(f"v_lshlrev_b32 v{CSB}, 8, v{CSB}")
        A(f"v_and_b32 v{CSB+1}, 15, v1"); A(f"v_lshl_add_u32 v{CSB}, v{CSB+1}, 2, v{CSB}")
        A("s_lshl_b32 s21, s26, 6"); A("s_lshl_b32 s22, s29, 9"); A("s_add_u32 s21, s21, s22"); A(f"s_add_u32 s21, s21, {CS_PART}")
        A(f"v_add_u32 v{CSB}, s21, v{CSB}")
        A(f"ds_write_b32 v{CSB}, v{CSA}")
    l0_only(A, cpart, "p4cp")
    kk = -2.0 * 1.4426950408889634 * 0.7978845608028654
    t = TMP
    finish_stats(A, t, NM, t + 2, t + 10)
    A(f"v_mov_b32 v{IR}, v{t+1}")
    A(f"v_mul_f32 v{CB}, {f32(kk)}, v{t+2}")
    A(f"v_mul_f32 v{t+3}, v{t+2}, v{t+2}")
    A(f"v_mul_f32 v{t+3}, {f32(0.044715)}, v{t+3}")
    A(f"v_mul_f32 v{CA}, v{CB}, v{t+3}")
    def cfin():
        A.wait_lg_all()
        A("s_barrier")
        A(f"v_lshlrev_b32 v{CSB}, 3, v1"); A(f"v_add_u32 v{CSB}, {CS_PART}, v{CSB}")
        A(f"ds_read_b64 {v(CSB+2,2)}, v{CSB}"); A(f"ds_read_b64 {v(CSB+4,2)}, v{CSB} offset:512")
        A.wait_lg_all()
        A(f"v_pk_add_f32 {v(CSB+2,2)}, {v(CSB+2,2)}, {v(CSB+4,2)}")
        A(f"ds_write_b64 v{CSB}, {v(CSB+2,2)} offset:{CS4 - CS_PART}")
        A.wait_lg_all()
    l0_only(A, cfin, "p4cf")
    csr = lambda nb: WF + (nb & 1) * 16
    def csread(nb):
        for i in range(2):
            A(f"ds_read_b128 {v(csr(nb) + i*4, 4)}, v{VCS} offset:{nb*64 + i*32}", ("C", nb))
            A(f"ds_read_b128 {v(csr(nb) + 8 + i*4, 4)}, v{VCS} offset:{256 + nb*64 + i*32}", ("C", nb))
    csread(0); csread(1)
    for kkb in range(2):
        for e in range(2):
            nb = 2 * kkb + e
            A.wait_lg(lambda g: g == ("C", nb))
            for k in range(0, 16, 2):
                r = ACC + nb * 16 + k
                A(f"v_pk_fma_f32 {v(r,2)}, {v(csr(nb)+k,2)}, {v(NM,2)}, {v(r,2)} op_sel_hi:[1,0,1]")
        if kkb == 0: csread(2); csread(3)
        for half in range(2):
            out = TMP + 4 * ((2 * kkb + half) & 3)
            for e in range(2):
                nb = 2 * kkb + e
                gq = ACC + nb * 16 + 4 * half
                uq = gq + 8
                Tt = T + 4 * e
                for k in (0, 2): A(f"v_pk_mul_f32 {v(Tt+k,2)}, {v(gq+k,2)}, {v(gq+k,2)}")
                for k in (0, 2): A(f"v_pk_fma_f32 {v(Tt+k,2)}, {v(Tt+k,2)}, {v(CA,2)}, {v(CB,2)} op_sel_hi:[1,0,0]")
                for k in (0, 2): A(f"v_pk_mul_f32 {v(Tt+k,2)}, {v(Tt+k,2)}, {v(gq+k,2)}")
                for k in range(4): A(f"v_exp_f32 v{Tt+k}, v{Tt+k}")
                for k in (0, 2): A(f"v_pk_mul_f32 {v(gq+k,2)}, {v(gq+k,2)}, {v(uq+k,2)}")
                for k in (0, 2): A(f"v_pk_fma_f32 {v(Tt+k,2)}, {v(Tt+k,2)}, {v(IR,2)}, {v(IR,2)} op_sel_hi:[1,0,0]")
                for k in range(4): A(f"v_rcp_f32 v{Tt+k}, v{Tt+k}")
                for k in (0, 2): A(f"v_pk_mul_f32 {v(gq+k,2)}, {v(gq+k,2)}, {v(Tt+k,2)}")
                A(f"v_cvt_pk_bf16_f32 v{out+2*e}, v{gq}, v{gq+1}")
                A(f"v_cvt_pk_bf16_f32 v{out+2*e+1}, v{gq+2}, v{gq+3}")
            A(f"buffer_store_dwordx4 {v(out,4)}, v{VOUT}, s[80:83], 0 offen offset:{kkb*1024 + half*512}{STF}")
    stamp(A, 19)
    signal_local(A, 2, T, 20, 19)
    stamp(A, 20)
    A("s_setprio 0")
    join(A, "L_p4_done"); reset(A)

def main(out_path):
    A = Asm(); name = NAME + "_kernel"
    A.raw(kernel_header(name))
    A("s_cmp_ge_u32 s2, 256"); A("s_cbranch_scc1 L_end")
    if STAMP:
        A("s_memtime s[90:91]"); A("v_mov_b32 v255, 0"); A("v_mov_b32 v254, 0")
    A(f"s_load_dwordx4 s[4:7], s[0:1], 64")
    A(f"s_load_dwordx4 s[84:87], s[0:1], 0")
    A(f"s_load_dwordx2 s[88:89], s[0:1], 16")
    A(f"s_load_dwordx8 s[92:99], s[0:1], 32")
    A("v_lshrrev_b32 v2, 6, v0")
    A("v_and_b32 v1, 63, v0")
    A("v_readfirstlane_b32 s20, v2")
    A("v_and_b32 v2, 31, v0")
    A("v_lshrrev_b32 v3, 5, v1")
    A("s_and_b32 s18, s2, 7")
    A("s_lshr_b32 s19, s2, 3")
    A("s_mov_b32 s16, 0"); A("s_mov_b32 s17, 0")
    A.wait_lg_all()
    if env("WSBASE", 0):
        A(f"s_add_u32 s{SWS}, s{SWS}, {env('WSBASE', 0) << 20:#x}"); A(f"s_addc_u32 s{SWS+1}, s{SWS+1}, 0")
    srd(A, SFL, SWS, WS_FL, FL_B)
    stamp(A, 0)
    phase1(A, True)
    A.label("L_layer"); reset(A)
    phase1(A, False); phase2(A); phase3(A); phase4(A); phase5(A)
    A("s_cmp_lg_u32 s16, 0"); A("s_cbranch_scc1 L_exit")
    A("s_mov_b32 s16, 1")
    A(f"s_add_u32 s{SWS}, s{SWS}, {LS:#x}"); A(f"s_addc_u32 s{SWS+1}, s{SWS+1}, 0")
    if STAMP: A("v_mov_b32 v254, v255")
    A.fence()
    A("s_branch L_layer")
    A.label("L_exit")
    if STAMP:
        A("s_waitcnt vmcnt(0)")
        stamp(A, 31)
        srd(A, 76, SWS, WS_DBG - LS, 0x1000000)
        A("s_lshl_b32 s21, s2, 3"); A("s_add_u32 s21, s21, s20"); A("s_lshl_b32 s21, s21, 9")
        A("v_lshlrev_b32 v4, 2, v1"); A("v_add_u32 v4, s21, v4")
        A("buffer_store_dword v254, v4, s[76:79], 0 offen")
        A("buffer_store_dword v255, v4, s[76:79], 0 offen offset:256")
        if env("DBGOUT", 0):
            A("s_add_u32 s21, s2, s20"); A("s_cmp_lg_u32 s21, 0"); A("s_cbranch_scc1 L_end")
            srd(A, 76, SDBG, 0, 256)
            A("v_readlane_b32 s22, v254, 0")
            sel = [(254, 2), (254, 3), (254, 8), (254, 11), (254, 16), (254, 22), (255, 1), (255, 8), (255, 11), (255, 16), (255, 22), (255, 31)]
            slots = [2, 3, 4, 5, 6, 7, 10, 11, 12, 13, 14, 15]
            A("s_mov_b64 exec, 1")
            for (r, l), sl in zip(sel, slots):
                A(f"v_readlane_b32 s23, v{r}, {l}"); A("s_sub_u32 s23, s23, s22"); A("v_mov_b32 v6, s23"); A(f"v_mov_b32 v7, {sl*4}")
                A("buffer_store_dword v6, v7, s[76:79], 0 offen")
                A("s_waitcnt vmcnt(0)"); A.vm = []
    A.label("L_end"); A("s_endpgm")
    A.flush_tail()
    A.raw("    .p2align 4"); A.label("L_code_end")
    hdr = open(os.path.join(os.path.dirname(os.path.abspath(__file__)), "..", "cdna_kernels", NAME + ".s.ref")).read().split("; Override")[0]
    t = hdr + f"; @launch grid=(256,1,1) block=(512,1,1) lds={LDS_TOTAL}\n"
    t += '.amdgcn_target "amdgcn-amd-amdhsa--gfx950"\n.text\n' + A.text()
    t += '.section .rodata,"a"\n.p2align 6\n' + kernel_desc(name, 256, 0, 102)
    open(out_path, "w").write(t)

if __name__ == "__main__":
    main(sys.argv[1] if len(sys.argv) > 1 else f"cdna_kernels/{NAME}.s")
```

```python
import sys, os, struct
sys.path.insert(0, os.path.dirname(os.path.abspath(__file__)))
from asmdsl import *

NAME = "interleave_layers__sliding_block__glu_gated_geglu__prompt"
S_TOK, D, F = 2048, 640, 1728
XB = S_TOK * D * 2
LS = 0x2000000
WS_XIN = 0x0000000
WS_X1 = 0x0300000
WS_O = 0x0600000
WS_H = 0x0900000
H_B = S_TOK * F * 2
WS_QKV = 0x1000000
QKV_B = 480 * 16384
WS_STA = 0x1800000
WS_STB = 0x1840000
ST_B = 10 * S_TOK * 8
WS_FL = 0x1880000
FL_B = 0x20000
WS_QKL = 0x18a0000 + 0x60000
WS_DBG = 0x4000000
OOB = 0x80000000
LDS_TOTAL = 163840
RSV = LDS_TOTAL - 3072
CS_PART, CS1, CS4, L_MODE, L_CNT = RSV, RSV + 1024, RSV + 1536, RSV + 2048, RSV + 2064
P3W = RSV - 10 * 8448
SDBG, SWS, SX, SWQKV, SWO, SWG, SWU, SWD, SOUT = 4, 6, 84, 86, 88, 92, 94, 96, 98
SFL = 72
SPIN_MAX = 1 << 20
def env(n, d): return int(os.environ.get(n, str(d)))
def f32(x): return "0x%08x" % struct.unpack("<I", struct.pack("<f", x))[0]
STAMP = env("STAMP", 0)
FORCE_SLOW = env("FORCE_SLOW", 0)
LEAD = env("LEAD", 0)
PLAIN = env("PLAIN", 0)
STF = "" if PLAIN else " sc1"
NT4 = " nt" if env("NT4", 0) else ""
NTX = " nt" if env("NTX", 0) else ""

def stamp(A, i):
    if STAMP:
        A("s_memtime s[100:101]" if STAMP == 1 else "s_memrealtime s[100:101]"); A.wait_lg_all()
        if STAMP == 1: A("s_sub_u32 s100, s100, s90")
        A(f"v_writelane_b32 v255, s100, {i}")

def srd(A, d, base, off, size, soff=None):
    A(f"s_add_u32 s{d}, s{base}, {off:#x}")
    A(f"s_addc_u32 s{d+1}, s{base+1}, 0")
    if soff is not None:
        A(f"s_add_u32 s{d}, s{d}, s{soff}")
        A(f"s_addc_u32 s{d+1}, s{d+1}, 0")
    A(f"s_mov_b32 s{d+2}, {size:#x}")
    A(f"s_mov_b32 s{d+3}, 0x20000")

def join(A, label):
    A.fence(); A.label(label)

def spin(A, body, name, sleep=1):
    lp = A.newlabel(name); out = A.newlabel(name + "x")
    A("s_mov_b32 s35, 0")
    A.fence(); A.label(lp)
    body()
    A("s_add_u32 s35, s35, 1")
    A(f"s_cmp_gt_u32 s35, {SPIN_MAX}"); A(f"s_cbranch_scc1 {out}")
    A(f"s_cbranch_vccz {out}")
    if sleep: A(f"s_sleep {sleep}")
    A(f"s_branch {lp}")
    A.fence(); A.label(out)

def acquire_if_slow(A):
    l = A.newlabel("acq")
    A("s_cmp_lg_u32 s17, 0"); A(f"s_cbranch_scc1 {l}")
    A("buffer_inv sc1"); A("s_waitcnt vmcnt(0)")
    A.label(l)

def signal_local(A, k, t0, sblk, sprod, nowait=False):
    A("s_lshl_b32 s21, s16, 3"); A(f"s_add_u32 s21, s21, {k}"); A("s_lshl_b32 s21, s21, 3"); A("s_add_u32 s21, s21, s18")
    A(f"s_lshl_b32 s21, s21, 3"); A(f"s_add_u32 s21, s21, s{sblk}"); A("s_lshl_b32 s21, s21, 5"); A(f"s_add_u32 s21, s21, s{sprod}")
    A(f"v_mov_b32 v{t0}, s21"); A(f"v_mov_b32 v{t0+1}, 1")
    if not nowait: A.wait_vm_all()
    slow = A.newlabel("sigslow"); done = A.newlabel("sigdone")
    A("s_mov_b64 exec, 1")
    A("s_cmp_eq_u32 s17, 0"); A(f"s_cbranch_scc1 {slow}")
    A(f"buffer_store_byte v{t0+1}, v{t0}, {s(SFL,4)}, 0 offen")
    A(f"s_branch {done}")
    A.label(slow)
    A(f"buffer_store_byte v{t0+1}, v{t0}, {s(SFL,4)}, 0 offen sc1")
    A.label(done)
    A("s_mov_b64 exec, -1")
    A.vm = [None]

def wait_local(A, k, p0, p1, sblk, t0, layer_delta=0, sleep=1):
    A(f"v_and_b32 v{t0+1}, 7, v1"); A(f"v_lshlrev_b32 v{t0+2}, 5, v{t0+1}")
    A(f"v_mov_b32 v{t0}, 0")
    for j in range(8):
        m = sum(1 << (8 * q) for q in range(4) if p0 <= 4 * j + q < p1)
        if m == 0x01010101 or m == 0: continue
        A(f"v_cmp_eq_u32 vcc, {j}, v{t0+1}"); A(f"v_mov_b32 v{t0+2}, {m:#x}"); A(f"v_cndmask_b32 v{t0}, v{t0}, v{t0+2}, vcc")
    f0, f1 = (p0 + 3) // 4, p1 // 4
    A(f"v_subrev_u32 v{t0+2}, {f0}, v{t0+1}"); A(f"v_cmp_gt_u32 vcc, {f1 - f0}, v{t0+2}")
    A(f"v_mov_b32 v{t0+2}, 0x01010101"); A(f"v_cndmask_b32 v{t0}, v{t0}, v{t0+2}, vcc")
    A(f"v_lshlrev_b32 v{t0+1}, 2, v{t0+1 if sblk is not None else 1}")
    A(f"s_add_u32 s21, s16, {layer_delta & 0xffffffff:#x}")
    A("s_lshl_b32 s21, s21, 3"); A(f"s_add_u32 s21, s21, {k}"); A("s_lshl_b32 s21, s21, 3"); A("s_add_u32 s21, s21, s18"); A("s_lshl_b32 s21, s21, 3")
    if sblk is not None: A(f"s_add_u32 s21, s21, s{sblk}")
    A("s_lshl_b32 s21, s21, 5")
    def body():
        A(f"buffer_load_dword v{t0+2}, v{t0+1}, {s(SFL,4)}, s21 offen sc1")
        A.wait_vm_all()
        A(f"v_and_b32 v{t0+2}, v{t0+2}, v{t0}")
        A(f"v_cmp_ne_u32 vcc, v{t0+2}, v{t0}")
    spin(A, body, "wl", sleep)
    acquire_if_slow(A)

def census_wait(A, t0, sleep=8):
    srd(A, 76, SDBG, 0, 256)
    A("s_sub_u32 s21, s18, 1"); A("s_max_i32 s21, s21, 0")
    A(f"v_mov_b32 v{t0}, s18"); A(f"v_mov_b32 v{t0+1}, s21")
    A("v_cmp_eq_u32 vcc, 0, v1")
    A(f"v_cndmask_b32 v{t0}, v{t0+1}, v{t0}, vcc")
    A(f"v_lshlrev_b32 v{t0}, 5, v{t0}")
    def body():
        A(f"buffer_load_dwordx2 {v(t0+2,2)}, v{t0}, s[76:79], 0 offen sc1")
        A.wait_vm_all()
        A(f"v_sad_u8 v{t0+1}, v{t0+2}, 0, 0")
        A(f"v_sad_u8 v{t0+1}, v{t0+3}, 0, v{t0+1}")
        A(f"v_cmp_ne_u32 vcc, 32, v{t0+1}")
    spin(A, body, "cen", sleep)
    A(f"v_readfirstlane_b32 s22, v{t0+2}"); A(f"v_readfirstlane_b32 s23, v{t0+3}")
    A("s_bcnt1_i32_b64 s21, s[22:23]")
    A("s_cmp_eq_u32 s21, 1"); A(f"s_cselect_b32 s17, {0 if FORCE_SLOW else 1}, 0")
    A(f"v_mov_b32 v{t0}, {L_MODE}"); A(f"v_mov_b32 v{t0+2}, s17"); A(f"v_mov_b32 v{t0+3}, 0")
    A(f"ds_write_b64 v{t0}, {v(t0+2,2)}")
    A(f"v_mov_b32 v{t0+2}, 0")
    for q in range(3): A(f"ds_write_b64 v{t0}, {v(t0+2,2)} offset:{16 + 8*q}")

def cnt_add(A, k, t0):
    A(f"v_mov_b32 v{t0}, {L_CNT + 4*k}"); A(f"v_mov_b32 v{t0+1}, 1")
    A("s_mov_b64 exec, 1")
    A(f"ds_add_u32 v{t0}, v{t0+1}")
    A("s_mov_b64 exec, -1")

def cnt_wait(A, k, n, t0):
    A(f"s_mul_i32 s21, s16, {n}"); A(f"s_add_u32 s21, s21, {n}"); A(f"v_mov_b32 v{t0}, {L_CNT + 4*k}")
    def body():
        A(f"ds_read_b32 v{t0+1}, v{t0}"); A.wait_lg_all()
        A(f"v_cmp_gt_u32 vcc, s21, v{t0+1}")
    spin(A, body, "lc", 1)

def row_loads(A, b):
    srd(A, 36, SX, 0, XB)
    A("s_lshl_b32 s21, s18, 8"); A("s_lshl_b32 s22, s19, 3"); A("s_add_u32 s21, s21, s22"); A("s_and_b32 s22, s20, 3"); A("s_lshl_b32 s22, s22, 1"); A("s_add_u32 s21, s21, s22")
    A(f"v_add_u32 v{b+12}, s21, v3"); A(f"v_mul_u32_u24 v{b+13}, 1280, v{b+12}"); A(f"v_lshl_add_u32 v{b+13}, v2, 4, v{b+13}")
    A(f"buffer_load_dwordx4 {v(b,4)}, v{b+13}, s[36:39], 0 offen", "row")
    A(f"buffer_load_dwordx4 {v(b+4,4)}, v{b+13}, s[36:39], 0 offen offset:512", "row")
    A(f"v_lshrrev_b32 v{b+8}, 4, v2"); A(f"v_lshl_add_u32 v{b+13}, v{b+8}, 31, v{b+13}")
    A(f"buffer_load_dwordx4 {v(b+8,4)}, v{b+13}, s[36:39], 0 offen offset:1024", "row")

def row_stats(A, b, t):
    A.wait_vm(lambda g: g == "row")
    A(f"v_mov_b32 v{t}, 0"); A(f"v_mov_b32 v{t+1}, 0"); A(f"v_mov_b32 v{t+2}, 0x3f803f80")
    for q in range(12):
        A(f"v_dot2_f32_bf16 v{t}, v{b+q}, v{t+2}, v{t}"); A(f"v_dot2_f32_bf16 v{t+1}, v{b+q}, v{b+q}, v{t+1}")
    A("s_nop 3")
    for r in (1, 2, 4, 8):
        for k in range(2): A(f"v_add_f32_dpp v{t+k}, v{t+k}, v{t+k} row_ror:{r} row_mask:0xf bank_mask:0xf")
    A(f"v_mov_b32 v{t+2}, v{t}"); A(f"v_mov_b32 v{t+3}, v{t+1}")
    A(f"v_permlane16_swap_b32 v{t}, v{t+2}"); A(f"v_permlane16_swap_b32 v{t+1}, v{t+3}")
    A(f"v_add_f32 v{t}, v{t}, v{t+2}"); A(f"v_add_f32 v{t+1}, v{t+1}, v{t+3}")
    ln_finish(A, t, t + 4, t + 5)
    srd(A, 36, SWS, WS_STA, ST_B)
    A(f"v_lshlrev_b32 v{t}, 3, v{b+12}")
    A("s_mov_b32 exec_lo, 1"); A("s_mov_b32 exec_hi, 1")
    A(f"buffer_store_dwordx2 {v(t+4,2)}, v{t}, s[36:39], 0 offen sc1", "rst")
    A("s_mov_b64 exec, -1")

def read_mode(A, t0):
    A(f"v_mov_b32 v{t0}, {L_MODE}")
    A(f"ds_read_b32 v{t0}, v{t0}", "mode")
    A.wait_lg(lambda g: g == "mode")
    A(f"v_readfirstlane_b32 s17, v{t0}")

def flags_zero(A, t0):
    A(f"v_mov_b32 v{t0}, 0"); A(f"v_mov_b32 v{t0+1}, 0")
    A("s_lshl_b32 s21, s18, 8"); A("s_lshl_b32 s22, s19, 3"); A("s_add_u32 s21, s21, s22")
    A(f"v_lshlrev_b32 v{t0+2}, 11, v1"); A(f"v_add_u32 v{t0+2}, s21, v{t0+2}")
    A("s_lshl_b32 s21, s18, 5"); A("s_add_u32 s21, s21, s19"); A("s_lshl_b32 s21, s21, 7"); A(f"s_add_u32 s21, s21, {(0x10000 - 16*32768) & 0xffffffff:#x}")
    A(f"v_lshlrev_b32 v{t0+3}, 15, v1"); A(f"v_add_u32 v{t0+3}, s21, v{t0+3}")
    A("v_cmp_gt_u32 vcc, 16, v1"); A(f"v_cndmask_b32 v{t0+2}, v{t0+3}, v{t0+2}, vcc")
    A("s_lshl_b32 s21, s16, 3"); A("s_add_u32 s21, s21, s20")
    A("s_cmp_eq_u32 s21, 4"); A("s_cselect_b32 s22, 0x3ffff, 0"); A("s_mov_b32 s23, 0")
    A(f"v_mov_b32 v{t0+3}, {OOB:#x}")
    A(f"v_cndmask_b32 v{t0+2}, v{t0+3}, v{t0+2}, s[22:23]")
    A(f"buffer_store_dwordx2 {v(t0,2)}, v{t0+2}, {s(SFL,4)}, 0 offen sc1", "fz")

def census_post(A, t0):
    srd(A, 76, SDBG, 0, 256)
    A("s_getreg_b32 s21, hwreg(HW_REG_XCC_ID)"); A("s_and_b32 s21, s21, 7"); A("s_lshl_b32 s21, s21, 3")
    A("s_mov_b64 s[22:23], 1"); A("s_lshl_b64 s[22:23], s[22:23], s21")
    A(f"v_mov_b32 v{t0}, s22"); A(f"v_mov_b32 v{t0+1}, s23")
    A("s_lshl_b32 s21, s16, 3"); A("s_add_u32 s21, s21, s20"); A("s_lshl_b32 s22, s18, 5")
    A("s_cmp_eq_u32 s21, 4"); A(f"s_cselect_b32 s21, s22, {OOB:#x}")
    A(f"v_mov_b32 v{t0+2}, s21")
    A("s_mov_b64 exec, 1")
    A(f"buffer_atomic_add_x2 {v(t0,2)}, v{t0+2}, s[76:79], 0 offen sc1")
    A("s_mov_b64 exec, -1")

def stats_items(A, vtok_off, srd_st, tmp, sbase=None):
    def mk(i):
        def f():
            A(f"s_mov_b32 s21, {i*2048}" if sbase is None else f"s_add_u32 s21, s{sbase}, {i*2048}")
            A(f"buffer_load_dwordx2 {v(tmp+2*i,2)}, v{vtok_off}, {s(srd_st,4)}, s21 offen sc1", ("S",))
        return f
    return [mk(i) for i in range(5)]

def finish_stats(A, tmp, negmean, rstd, t2, single=False):
    if not single:
        A(f"v_pk_add_f32 {v(tmp,2)}, {v(tmp,2)}, {v(tmp+2,2)}")
        A(f"v_pk_add_f32 {v(tmp+4,2)}, {v(tmp+4,2)}, {v(tmp+6,2)}")
        A(f"v_pk_add_f32 {v(tmp,2)}, {v(tmp,2)}, {v(tmp+8,2)}")
        A(f"v_pk_add_f32 {v(tmp,2)}, {v(tmp,2)}, {v(tmp+4,2)}")
    A(f"v_mov_b32 v{t2}, v{tmp}")
    A(f"v_mov_b32 v{t2+1}, v{tmp+1}")
    A(f"v_permlane32_swap_b32 v{tmp}, v{t2}")
    A(f"v_permlane32_swap_b32 v{tmp+1}, v{t2+1}")
    A(f"v_pk_add_f32 {v(tmp,2)}, {v(tmp,2)}, {v(t2,2)}")
    ln_finish(A, tmp, negmean, rstd)

def bfr(A, r):
    A(f"v_cvt_pk_bf16_f32 v{r}, v{r}, v{r}"); A(f"v_and_b32 v{r}, 0xffff0000, v{r}")

def ln_finish(A, tmp, negmean, rstd):
    A(f"v_mul_f32 v{negmean}, {f32(-1.0/D)}, v{tmp}")
    A(f"v_mul_f32 v{tmp+1}, {f32(1.0/D)}, v{tmp+1}")
    A(f"v_fma_f32 v{tmp+1}, -v{negmean}, v{negmean}, v{tmp+1}")
    A(f"v_max_f32 v{tmp+1}, 0, v{tmp+1}")
    bfr(A, negmean); bfr(A, tmp + 1)
    A(f"v_add_f32 v{tmp+1}, {f32(1e-5)}, v{tmp+1}")
    bfr(A, tmp + 1)
    A(f"v_sqrt_f32 v{tmp+1}, v{tmp+1}")
    bfr(A, tmp + 1)
    A(f"v_rcp_f32 v{rstd}, v{tmp+1}")
    A(f"v_mul_f32 v{tmp+1}, v{tmp+1}, v{tmp+1}")

class Gemm:
    def __init__(self, A, NB, nstage, XS, WSL, slot_bytes, RB, nb_stride, acc, wf, xa,
                 vx, vwd, wd_srds, wd_lds, vtr, srd_x, w_row_stride, PRE, LA, npre=0):
        self.__dict__.update(locals())
        self.nbar = npre; self.issued = set()

    def load_list(self, do_x, do_w, wlead=0):
        L = []
        n = len(self.vwd)
        for t in range(min(0, wlead), self.nstage + max(0, wlead)):
            tw = t
            if do_w and max(self.npre, self.nland) <= tw < self.nstage:
                for j in range(n): L.append(("W", tw, j, j == n - 1))
            tx = t - wlead
            if do_x and 0 <= tx < self.nstage:
                for st in range(4): L.append(("X", tx, st, st == 3))
        return L

    def issue(self, item):
        A = self.A
        if callable(item): return item()
        kind, t, j, last = item
        self.issued.add((kind, t, j))
        if kind == "X" and self.xstage:
            xs = self.xstage
            assert t - xs["nslot"] < self.cur_stage or t < xs["nslot"], (t, self.cur_stage)
            A(f"s_add_u32 m0, s33, {(t % xs['nslot']) * 4096 + j * 1024}")
            A(f"buffer_load_dwordx4 v{xs['vdma'][j]}, {s(self.srd_x,4)}, s30 offen{NTX} lds", ("X", t, j))
            if last and t < self.nstage - 1:
                A("s_add_u32 s30, s30, 128"); A(f"s_cmp_ge_u32 s30, {self.nstage * 128}"); A("s_cselect_b32 s30, 0, s30")
        elif kind == "X":
            st = j
            assert t - self.XS < self.cur_stage or (t - self.XS == self.cur_stage and st < self.cur_step), (t, self.cur_stage)
            r = self.xa + ((t % self.XS) * 4 + st) * 4
            if self.xdyn:
                A(f"buffer_load_dwordx4 {v(r,4)}, v{self.vx + st}, {s(self.srd_x,4)}, s30 offen", ("X", t, st))
            else:
                A(f"buffer_load_dwordx4 {v(r,4)}, v{self.vx}, {s(self.srd_x,4)}, s30 offen offset:{st*512} sc1", ("X", t, st))
            if last and t < self.nstage - 1:
                A("s_add_u32 s30, s30, s33" if self.xdyn else "s_add_u32 s30, s30, 2048")
                A("s_cmp_ge_u32 s30, s34" if self.xdyn else f"s_cmp_ge_u32 s30, {self.nstage * 2048}")
                A("s_cselect_b32 s30, 0, s30")
        else:
            assert t < self.WSL or self.realbar >= t - self.WSL + 2, (t, self.realbar)
            A(f"s_add_u32 m0, s32, {(t % self.WSL) * self.slot_bytes + self.wd_lds[j]}")
            A(f"buffer_load_dwordx4 v{self.vwd[j]}, {s(self.wd_srds[j],4)}, s31 offen{self.wflags} lds", ("W", t))
            if self.throttle is not None: A(f"s_waitcnt vmcnt({self.throttle})"); A.vm = A.vm[-self.throttle:] if self.throttle else []
            if last and t < self.nstage - 1: self.adv_w()

    def adv_w(self):
        A = self.A
        A(f"s_add_u32 s31, s31, {64 * self.w_row_stride}")
        A(f"s_cmp_ge_u32 s31, {self.nstage * 64 * self.w_row_stride}")
        A("s_cselect_b32 s31, 0, s31")

    def tr_reads(self, t, st, buf):
        out = []
        kb, f = st >> 1, st & 1
        slot = t % self.WSL
        per = 65536 // self.slot_bytes
        va = self.vtr[slot // per]
        base = (slot % per) * self.slot_bytes
        for nb in range(self.NB):
            for rd in range(2):
                off = base + (8 * kb + 4 * rd + 2 * f) * self.RB + nb * self.nb_stride
                r = self.wf + (buf * self.NB + nb) * 4 + rd * 2
                out.append((f"ds_read_b64_tr_b16 {v(r,2)}, v{va} offset:{off}", ("F", t, st, nb)))
        return out

    realbar = -1
    xdyn = False
    bar_at = None
    bar_fn = None
    wgate = None
    pre_bar = {}
    LA0 = 0
    FD = 1
    xstage = None
    wflags = ""
    throttle = None
    lastbar = None
    nland = 0
    def barrier(self, t):
        if t < self.npre: return
        if self.lastbar is not None and t > self.lastbar: return
        if t in self.pre_bar: self.pre_bar[t]()
        tw = self.nstage - 1 if t == self.lastbar else t
        assert not self.do_w or tw < self.nland or ("W", tw, len(self.vwd) - 1) in self.issued, (t, tw)
        self.A.wait_vm(lambda g: g == ("W", tw))
        self.A("s_barrier")
        self.realbar = t

    def run_idle(self):
        for t in range(self.npre, self.nstage): self.A("s_barrier")

    def prefetch(self, n):
        self.do_w = True; self.cur_stage, self.cur_step = -1, 0
        for it in self.load_list(False, True):
            if it[1] < n: self.issue(it)

    def run_loader(self, after_bar=None, early=None, first=None):
        L = self.load_list(False, True); self.do_w = True
        self.cur_stage, self.cur_step = -1, 0
        k = 0
        for t in range(self.nstage + 1):
            if early and t > 0: early(t - 1)
            lim = max(self.LA, min(t + self.WSL - 2, t + self.LA))
            if t == 0 and self.LA0: lim = self.LA0
            while k < len(L) and L[k][1] < lim and (L[k][1] < self.WSL or self.realbar >= L[k][1] - self.WSL + 2):
                self.issue(L[k]); k += 1
                if first and k == env("FIRSTN", 8): first()
            if after_bar and t > 0: after_bar(t - 1)
            if t < self.nstage: self.barrier(t)
        assert k == len(L)

    def xread(self, t, st):
        xs = self.xstage
        r = self.xa + ((t % 2) * 4 + st) * 4
        self.A(f"ds_read_b128 {v(r,4)}, v{xs['vrd'][st]} offset:{(t % xs['nslot']) * 4096}", ("XR", t, st))

    def run(self, zero_init=True, do_w=True, extra=(), extra_at=3, wlead=0, sb=0, stage_end=None, per_mfma=None, tail=(), rate=None):
        A = self.A
        tail = list(tail)
        L = self.load_list(True, do_w, wlead); self.do_w = do_w
        pos = next(i for i, it in enumerate(L) if it[0] == "X" and it[1] == extra_at)
        L[pos:pos] = list(extra)
        self.cur_stage, self.cur_step = -1, 0
        k = min(self.PRE, len(L))
        for q, it in enumerate(L[:k]):
            if self.bar_at == q: (self.bar_fn() if self.bar_fn else A("s_barrier"))
            assert self.bar_at is None or q >= self.bar_at or it[0] == "X"
            self.issue(it)
        self.barrier(0)
        stamp(A, sb + 1)
        xs = self.xstage
        if xs:
            A.wait_vm(lambda g: g == ("X", 0, 3))
            for st in range(4): self.xread(0, st)
        FD = self.FD
        for q in range(FD):
            for ins, tag in self.tr_reads(0, q, q): A(ins, tag)
        gstep = 0
        nm = self.NB
        per_stage = 4 + (len(self.vwd) if do_w else 0)
        rate = (rate or per_stage) / (4.0 * nm)
        credit = 0.0
        for t in range(self.nstage):
            for st in range(4):
                self.cur_stage, self.cur_step = t, st
                buf = gstep % (FD + 1)
                if st == 4 - FD and t + 1 < self.nstage: self.barrier(t + 1)
                gn = gstep + FD
                nreads = self.tr_reads(gn // 4, gn % 4, gn % (FD + 1)) if gn < 4 * self.nstage else []
                if xs:
                    xr = self.xa + ((t % 2) * 4 + st) * 4
                    if st >= 2 and t + 1 < self.nstage:
                        if st == 2:
                            assert ("X", t + 1, 3) in self.issued
                            A.wait_vm(lambda g: g == ("X", t + 1, 3))
                        self.xread(t + 1, 2 * (st - 2)); self.xread(t + 1, 2 * (st - 2) + 1)
                else:
                    xr = self.xa + ((t % self.XS) * 4 + st) * 4
                    assert ("X", t, st) in self.issued
                    A.wait_vm(lambda g: g == ("X", t, st))
                for nb in range(self.NB):
                    A.wait_lg(lambda g: g == ("F", t, st, nb) or g == ("XR", t, st))
                    ac = self.acc + nb * 16
                    wr = self.wf + (buf * self.NB + nb) * 4
                    c = "0" if (zero_init and gstep == 0) else v(ac, 16)
                    A(f"v_mfma_f32_32x32x16_bf16 {v(ac,16)}, {v(wr,4)}, {v(xr,4)}, {c}")
                    for ins, tag in nreads[2 * nb:2 * nb + 2]: A(ins, tag)
                    if per_mfma: per_mfma(xr, nb)
                    if tail and self.realbar == self.lastbar and nb == 1: tail.pop(0)()
                    credit += rate
                    while credit >= 1.0 - 1e-9 and k < len(L):
                        it = L[k]
                        if not callable(it):
                            if it[0] == "X" and xs:
                                if not (it[1] - xs["nslot"] < t or it[1] < xs["nslot"]): break
                            elif it[0] == "X" and not (it[1] - self.XS < t or (it[1] - self.XS == t and it[2] < st)): break
                            if it[0] == "W" and not (it[1] < self.WSL or self.realbar >= it[1] - self.WSL + 2): break
                            if it[0] == "W" and self.wgate is not None and self.realbar < self.wgate: break
                            credit -= 1.0
                        else: credit -= 0.25
                        self.issue(it); k += 1
                gstep += 1
            if stage_end: stage_end(t)
        assert k == len(L), (k, len(L))
        assert not tail
        stamp(A, sb + 2)

ROT = env("ROT", 0)
def rot_calc(A, kind):
    n = 27 if kind == "p5" else 10
    A(f"s_mul_i32 s21, s18, {n}"); A("s_lshr_b32 s21, s21, 3")
    if kind == "p1r":
        A("s_and_b32 s22, s19, 1"); A("s_mul_i32 s22, s22, 5"); A("s_add_u32 s21, s21, s22")
        A("s_cmp_ge_u32 s21, 10"); A("s_cselect_b32 s22, 10, 0"); A("s_sub_u32 s21, s21, s22")
    elif ROT:
        if kind == "p1":
            A("s_lshr_b32 s22, s19, 1"); A("s_add_u32 s21, s21, s22")
            if ROT == 1: A("s_and_b32 s22, s19, 1"); A("s_mul_i32 s22, s22, 5"); A("s_add_u32 s21, s21, s22")
        elif kind == "p4":
            A("s_add_u32 s21, s21, s19")
        else:
            A("s_mul_i32 s22, s19, 171"); A("s_lshr_b32 s22, s22, 9")
            A("s_mul_i32 s23, s22, 3"); A("s_sub_u32 s23, s19, s23")
            if kind == "p5":
                A("s_mul_i32 s22, s22, 11"); A("s_lshr_b32 s22, s22, 2"); A("s_mul_i32 s23, s23, 9")
            else:
                A("s_mul_i32 s23, s23, 3")
            A("s_add_u32 s21, s21, s22")
            if ROT == 1: A("s_add_u32 s21, s21, s23")
        mag = (65536 + n - 1) // n
        A(f"s_mul_i32 s22, s21, {mag}"); A("s_lshr_b32 s22, s22, 16"); A(f"s_mul_i32 s22, s22, {n}"); A("s_sub_u32 s21, s21, s22")

def rot_init(A, kind, w_row_stride, wskip=0):
    nstage = 27 if kind == "p5" else 10
    rot_calc(A, kind)
    A("s_lshl_b32 s30, s21, 11")
    if wskip:
        A(f"s_add_u32 s21, s21, {wskip}"); A(f"s_cmp_ge_u32 s21, {nstage}"); A(f"s_cselect_b32 s22, {nstage}, 0"); A("s_sub_u32 s21, s21, s22")
    A(f"s_mul_i32 s31, s21, {64 * w_row_stride}")

def tr_lane_addr(A, dst, PS, RB, cg_stride, t0, base=0):
    A(f"v_bfe_u32 v{t0}, v1, 2, 2")
    A(f"v_mul_u32_u24 v{dst}, {PS}, v{t0}")
    A(f"v_mul_u32_u24 v{t0}, {RB}, v3")
    A(f"v_add_u32 v{dst}, v{dst}, v{t0}")
    A(f"v_bfe_u32 v{t0}, v1, 4, 1")
    A(f"v_mul_u32_u24 v{t0}, {cg_stride}, v{t0}")
    A(f"v_add_u32 v{dst}, v{dst}, v{t0}")
    A(f"v_and_b32 v{t0}, 3, v1")
    A(f"v_lshl_add_u32 v{dst}, v{t0}, 3, v{dst}")
    if base: A(f"v_add_u32 v{dst}, {base}, v{dst}")

def cl_lane_off(A, dst, stok, tb_stride, t0):
    A(f"v_lshrrev_b32 v{t0}, 4, v2")
    A(f"s_lshr_b32 s21, s{stok}, 4")
    A(f"v_add_u32 v{t0}, s21, v{t0}")
    A(f"s_mov_b32 s21, {tb_stride}")
    A(f"v_mul_lo_u32 v{dst}, v{t0}, s21")
    A(f"v_lshl_add_u32 v{dst}, v3, 8, v{dst}")
    A(f"v_and_b32 v{t0}, 15, v2")
    A(f"v_lshl_add_u32 v{dst}, v{t0}, 4, v{dst}")

def wdma_off(A, dst, n, lanes_per_row, row_stride, scol, splane, t0):
    sh = {8: 3, 16: 4}[lanes_per_row]; R = 64 // lanes_per_row
    A(f"v_lshrrev_b32 v{t0}, {sh}, v1")
    A(f"v_lshlrev_b32 v{t0}, 2, v{t0}")
    A(f"v_add_u32 v{t0}, s{splane}, v{t0}")
    A(f"v_mul_u32_u24 v{t0}, {row_stride}, v{t0}")
    A(f"v_and_b32 v{t0+1}, {lanes_per_row-1}, v1")
    A(f"v_lshl_add_u32 v{t0}, v{t0+1}, 4, v{t0}")
    A(f"v_add_u32 v{dst}, s{scol}, v{t0}")
    for j in range(1, n): A(f"v_add_u32 v{dst+j}, {4*R*j*row_stride}, v{dst}")

def stats_off(A, dst, stok_local, t0):
    A(f"v_add_u32 v{t0}, s{stok_local}, v2")
    A(f"v_lshlrev_b32 v{dst}, 3, v{t0}")
    A(f"v_mul_u32_u24 v{t0}, 10240, v3")
    A(f"v_add_u32 v{dst}, v{dst}, v{t0}")
    A("s_mul_i32 s21, s18, 20480")
    A(f"v_add_u32 v{dst}, s21, v{dst}")

def l0_only(A, fn, name):
    l = A.newlabel(name)
    A("s_cmp_lg_u32 s16, 0"); A(f"s_cbranch_scc1 {l}")
    h = list(A.hist)
    fn()
    A.fence(); A.label(l)
    A.hist = h

def reset(A): A.vm = []; A.lg = []

def phase1(A, L0):
    n = "p1a" if L0 else "p1b"
    PS, RB, SLOT = 4160, 256, 16640
    XSL = env("XSL1A", 4)
    WSL, XS = (9 - XSL, 2) if L0 else (env("WSL1", 9), 6)
    XST = (9 - XSL) * SLOT
    VX, VWD, VTR, VST, VCS, VOUT, NM, RS = 4, 4, 9, 12, 13, 14, 16, 18
    TMP = 20; WF = 32; ACC = 64; CS = 128; XA = 144; SA = 240; ONE = 244; VXR = 248
    A("s_cmp_ge_u32 s19, 30"); A(f"s_cbranch_scc1 L_{n}_idle")
    m0_ = len(A.lines)
    if L0:
        warm_tlb(A)
        l = A.newlabel("ir")
        A("s_cmp_lt_u32 s20, 4"); A(f"s_cbranch_scc1 {l}")
        row_loads(A, 32); flags_zero(A, 4); row_stats(A, 32, 16); A.wait_vm_all()
        join(A, l); reset(A)
        A("s_barrier")
        census_post(A, 4)
        warm_code(A); warm_mall(A)
        l = A.newlabel("cw")
        A("s_cmp_lg_u32 s20, 4"); A(f"s_cbranch_scc1 {l}")
        census_wait(A, 4, 64); A.wait_lg_all()
        join(A, l)
        A("s_barrier")
        read_mode(A, 4)
    A("s_branch L_p1_done")
    A.move_out(m0_, f"L_{n}_idle", jump=False); reset(A)
    A("s_and_b32 s26, s20, 3")
    A("s_and_b32 s24, s19, 1"); A("s_lshl_b32 s24, s24, 7")
    A("s_lshl_b32 s25, s26, 5"); A("s_add_u32 s24, s24, s25")
    A("s_lshl_b32 s27, s18, 8"); A("s_add_u32 s27, s27, s24")
    A("s_lshr_b32 s28, s19, 1")
    rot_init(A, "p1r" if (L0 and env("ROT1A", 0)) else "p1", 3840)
    def mk():
        g = Gemm(A, 4, 10, XS, WSL, SLOT, RB, 64, ACC, WF, XA, VX, [VWD + j for j in range(4)], [12] * 4,
                 [1024 * j for j in range(4)], [VTR, VTR + 1, VTR + 2], 8, 3840,
                 env("PRE1A", 12) if L0 else env("PRE1", 8), env("LA1A", 3) if L0 else env("LA1", 7))
        if L0: g.LA0 = env("LA0", 0)
        if L0: g.xstage = dict(vdma=[VX + j for j in range(4)], vrd=[VXR + j for j in range(4)], nslot=XSL)
        return g
    A("s_cmp_lt_u32 s20, 4"); A(f"s_cbranch_scc1 L_{n}_comp")
    srd(A, 12, SWQKV, 0, D * 1920 * 2)
    A(f"v_lshrrev_b32 v{TMP}, 4, v1"); A(f"v_lshlrev_b32 v{TMP}, {3 if L0 else 2}, v{TMP}"); A(f"v_add_u32 v{TMP}, s26, v{TMP}")
    A(f"v_mul_u32_u24 v{TMP}, 3840, v{TMP}")
    A(f"v_and_b32 v{TMP+1}, 15, v1"); A(f"v_lshl_add_u32 v{TMP}, v{TMP+1}, 4, v{TMP}")
    A("s_lshl_b32 s25, s28, 8"); A(f"v_add_u32 v{VWD}, s25, v{TMP}")
    A(f"v_add_u32 v{VWD+1}, {(4 if L0 else 16)*3840}, v{VWD}"); A(f"v_add_u32 v{VWD+2}, {32*3840}, v{VWD}"); A(f"v_add_u32 v{VWD+3}, {32*3840}, v{VWD+1}")
    A(f"s_mul_i32 s32, s26, {PS}")
    def st_publish(pair):
        A("s_cmp_lt_u32 s28, 5")
        A(f"s_cselect_b32 s21, {f32(20 ** -0.5 * 1.4426950408889634)}, 1.0")
        A(f"v_mul_f32 v{pair+1}, s21, v{pair+1}")
        A("s_lshl_b32 s21, s26, 8"); A(f"s_add_u32 s21, s21, {CS_PART}")
        A(f"v_lshlrev_b32 v{TMP}, 3, v2"); A(f"v_add_u32 v{TMP}, s21, v{TMP}")
        A(f"ds_write_b64 v{TMP}, {v(pair,2)}")
    if not L0:
        stats_off(A, VST, 24, TMP)
        srd(A, 36, SWS, WS_STA, ST_B)
        def after(t):
            if t == 4:
                for f in stats_items(A, VST, 36, TMP): f()
            if t == 7:
                A.wait_vm(lambda g: g == ("S",))
                finish_stats(A, TMP, NM, NM + 1, TMP + 10)
                st_publish(NM)
        mk().run_loader(after_bar=after)
        A.wait_lg_all()
        A("s_barrier")
        A("s_branch L_p1_done")
    else:
        mark = {}
        def first():
            mark["m"] = len(A.lines)
            row_loads(A, ACC)
            flags_zero(A, TMP)
        def early(t):
            if t == 0: row_stats(A, ACC, ACC + 16)
        def after(t):
            if t == 0:
                tr_lane_addr(A, VTR, PS, RB, 32, TMP)
                A("s_lshl_b32 s21, s26, 6"); A(f"v_add_u32 v{VTR}, s21, v{VTR}"); A(f"v_add_u32 v{VTR+1}, {3*SLOT}, v{VTR}")
                A(f"v_mov_b32 v{ONE}, 0x3f803f80")
                for k in range(4): A(f"v_mov_b32 v{SA+k}, 0")
            if t == env("CPOST", 3):
                assert "rst" not in A.vm
                census_post(A, TMP)
            slot = t % WSL
            for q in range(8):
                A(f"ds_read_b64_tr_b16 {v(WF + 2*q, 2)}, v{VTR + slot // 3} offset:{(slot % 3) * SLOT + 2 * q * RB}")
            if t == 8:
                A(f"v_add_u32 v{TMP}, s27, v2"); A(f"v_lshlrev_b32 v{TMP}, 3, v{TMP}")
                A(f"buffer_load_dwordx2 {v(NM,2)}, v{TMP}, s[36:39], 0 offen sc1", "S")
            A.wait_lg_all()
            for q in range(16): A(f"v_dot2_f32_bf16 v{SA + (q & 3)}, v{WF+q}, v{ONE}, v{SA + (q & 3)}")
            if t == 7:
                keep = list(A.vm)
                l = A.newlabel("cw")
                A("s_cmp_lg_u32 s20, 4"); A(f"s_cbranch_scc1 {l}")
                census_wait(A, TMP, 4)
                join(A, l)
                A.vm = keep
        mk().run_loader(after_bar=after, early=early, first=first)
        A("s_nop 3")
        A(f"v_add_f32 v{SA}, v{SA}, v{SA+1}"); A(f"v_add_f32 v{SA+2}, v{SA+2}, v{SA+3}"); A(f"v_add_f32 v{SA}, v{SA}, v{SA+2}")
        A(f"v_mov_b32 v{SA+1}, v{SA}"); A(f"v_permlane32_swap_b32 v{SA}, v{SA+1}"); A(f"v_add_f32 v{SA}, v{SA}, v{SA+1}")
        A("s_lshl_b32 s21, s26, 7"); A(f"s_add_u32 s21, s21, {CS1}")
        A(f"v_lshlrev_b32 v{TMP}, 2, v2"); A(f"v_add_u32 v{TMP}, s21, v{TMP}")
        A(f"ds_write_b32 v{TMP}, v{SA}")
        A.wait_vm_all()
        st_publish(NM)
        A.wait_lg_all()
        A("s_barrier")
        read_mode(A, TMP)
        A("s_branch L_p1_done")
        A.move_out(mark["m"], "L_p1a_ld")
    A.label(f"L_{n}_comp"); reset(A)
    if L0:
        srd(A, 8, SX, 0, XB)
        A(f"v_lshrrev_b32 v{TMP}, 3, v1"); A(f"v_add_u32 v{TMP}, s27, v{TMP}"); A(f"v_mul_u32_u24 v{TMP}, 1280, v{TMP}")
        A(f"v_lshrrev_b32 v{TMP+1}, 4, v1"); A(f"v_and_b32 v{TMP+2}, 7, v1"); A(f"v_xor_b32 v{TMP+1}, v{TMP+1}, v{TMP+2}")
        A(f"v_lshl_add_u32 v{VX}, v{TMP+1}, 4, v{TMP}")
        A(f"v_xor_b32 v{TMP+1}, 4, v{TMP+1}"); A(f"v_lshl_add_u32 v{VX+1}, v{TMP+1}, 4, v{TMP}"); A(f"v_add_u32 v{VX+1}, {8*1280}, v{VX+1}")
        A(f"v_add_u32 v{VX+2}, {16*1280}, v{VX}"); A(f"v_add_u32 v{VX+3}, {16*1280}, v{VX+1}")
        A("s_lshr_b32 s30, s30, 4")
        A(f"s_mul_i32 s33, s26, {XSL*4096}"); A(f"s_add_u32 s33, s33, {XST}")
    else:
        cl_lane_off(A, VX, 27, 20480, TMP)
        srd(A, 8, SWS, WS_XIN, XB)
    def setup():
        tr_lane_addr(A, VTR, PS, RB, 32, TMP)
        A(f"v_add_u32 v{VTR+1}, {3*SLOT}, v{VTR}")
        A(f"v_add_u32 v{VTR+2}, {6*SLOT}, v{VTR}")
        A(f"v_and_b32 v{TMP}, 15, v1"); A(f"v_lshlrev_b32 v{VOUT}, 4, v{TMP}"); A(f"v_lshl_add_u32 v{VOUT}, v3, 11, v{VOUT}")
        A(f"v_bfe_u32 v{TMP}, v1, 4, 1"); A(f"v_lshl_add_u32 v{VOUT}, v{TMP}, 12, v{VOUT}")
        A("s_lshl_b32 s21, s24, 3"); A(f"v_add_u32 v{VOUT}, s21, v{VOUT}")
        A(f"v_lshlrev_b32 v{VCS}, 4, v3"); A(f"v_add_u32 v{VCS}, {CS1}, v{VCS}")
        srd(A, 80, SWS, WS_QKV, QKV_B)
        if L0:
            A(f"v_bfe_u32 v{TMP}, v1, 1, 3"); A(f"v_xor_b32 v{TMP}, v{TMP}, v3")
            A(f"v_lshlrev_b32 v{TMP+1}, 7, v2"); A(f"v_add_u32 v{TMP+1}, s33, v{TMP+1}")
            for st in range(4):
                A(f"v_xor_b32 v{TMP+2}, {2*st}, v{TMP}"); A(f"v_lshl_add_u32 v{VXR+st}, v{TMP+2}, 4, v{TMP+1}")
        A("s_lshl_b32 s21, s26, 8"); A(f"s_add_u32 s21, s21, {CS_PART}")
        A(f"v_lshlrev_b32 v{VST}, 3, v2"); A(f"v_add_u32 v{VST}, s21, v{VST}")
    if L0:
        stamp(A, 1)
        g = mk()
        g.PRE += 1
        g.run(do_w=False, extra=[setup], extra_at=(g.PRE - 1) // 4, sb=1, rate=env("RATE1A", 4))
        A("s_branch L_p1_epi")
        return
    setup()
    A("s_lshr_b32 s29, s24, 5")
    wait_local(A, 3, 0, 10, 29, TMP, layer_delta=-1)
    reset(A)
    stamp(A, 1)
    mk().run(do_w=False, sb=1)
    A.label("L_p1_epi"); reset(A)
    A("s_barrier")
    A(f"ds_read_b64 {v(NM,2)}, v{VST}", ("C", 0, 0))
    csr = lambda nb: (WF + (nb & 1) * 16) if nb != 0 else CS
    def csread(nb):
        for i in range(4): A(f"ds_read_b128 {v(csr(nb) + i*4, 4)}, v{VCS} offset:{nb*128 + i*32}", ("C", nb, i))
    csread(0); csread(1); csread(2)
    A("s_lshr_b32 s29, s24, 5")
    A("s_mul_i32 s24, s18, 480"); A("s_lshl_b32 s25, s28, 5"); A("s_add_u32 s24, s24, s25"); A("s_lshl_b32 s24, s24, 11")
    for nb in range(4):
        if nb == 2: csread(3)
        for ip in range(2):
            r = ACC + nb * 16 + ip * 8; c = csr(nb) + ip * 8
            A.wait_lg(lambda g: g == ("C", nb, 2 * ip + 1))
            for k in range(0, 8, 2):
                A(f"v_pk_fma_f32 {v(r+k,2)}, {v(c+k,2)}, {v(NM,2)}, {v(r+k,2)} op_sel_hi:[1,0,1]")
            for k in range(0, 8, 2):
                A(f"v_pk_mul_f32 {v(r+k,2)}, {v(r+k,2)}, {v(NM,2)} op_sel:[0,1] op_sel_hi:[1,1]")
            for k in range(4):
                A(f"v_cvt_pk_bf16_f32 v{r+k}, v{r+2*k}, v{r+2*k+1}")
            A(f"s_add_u32 s21, s24, {(8*nb + 4*ip) * 2048}")
            A(f"v_permlane16_swap_b32 v{r}, v{r+2}")
            A(f"v_permlane16_swap_b32 v{r+1}, v{r+3}")
            A(f"buffer_store_dwordx4 {v(r,4)}, v{VOUT}, s[80:83], s21 offen sc1")
    read_mode(A, TMP)
    stamp(A, 4)
    A("s_lshl_b32 s21, s16, 3"); A("s_add_u32 s21, s21, s18"); A("s_lshl_b32 s21, s21, 5"); A("s_add_u32 s21, s21, s19")
    A("s_lshl_b32 s21, s21, 7"); A("s_add_u32 s21, s21, s20"); A("s_add_u32 s21, s21, 0x10000")
    A(f"v_mov_b32 v{TMP}, s21"); A(f"v_mov_b32 v{TMP+1}, 1")
    A.wait_vm_all()
    A("s_mov_b64 exec, 1")
    A(f"buffer_store_byte v{TMP+1}, v{TMP}, {s(SFL,4)}, 0 offen sc1")
    A("s_mov_b64 exec, -1")
    signal_local(A, 4, TMP + 2, 29, 28, nowait=True)
    stamp(A, 5)
    join(A, "L_p1_done"); reset(A)

P35 = dict(PS=2112, RB=128, SLOT=8448)
def p35_ids(A):
    A("s_mul_i32 s28, s19, 171"); A("s_lshr_b32 s28, s28, 9")
    A("s_mul_i32 s25, s28, 3"); A("s_sub_u32 s24, s19, s25")
    A("s_and_b32 s26, s20, 3")
    A("s_lshl_b32 s24, s24, 2"); A("s_add_u32 s24, s24, s26"); A("s_lshl_b32 s24, s24, 2")
    tab = [0, 1, 4, 8, 2, 5, 6, 8, 3, 7, 8, 8]
    t64 = sum(x << (4 * i) for i, x in enumerate(tab))
    A(f"s_mov_b32 s22, {t64 & 0xffffffff:#x}"); A(f"s_mov_b32 s23, {t64 >> 32:#x}")
    A("s_lshr_b64 s[22:23], s[22:23], s24"); A("s_and_b32 s29, s22, 15")
    A("s_lshl_b32 s24, s29, 5")
    A("s_lshl_b32 s27, s18, 8"); A("s_add_u32 s27, s27, s24")

def p35_gemm(A, nstage, WSL, PRE, LA, npre):
    g = Gemm(A, 2, nstage, 9, WSL, 8448, 128, 64, 48, 24, 96, 4, [6, 7], [12] * 2,
             [0, 1024], [8, 9, 13], 8, D * 2, PRE, LA, npre)
    g.FD = env("FD35", 2)
    return g

def p35_loader_setup(A, sw, K, base):
    A("s_lshl_b32 s25, s28, 7")
    wdma_off(A, 6, 2, 8, D * 2, 25, 26, 16)
    A(f"s_mul_i32 s32, s26, 2112")
    if base: A(f"s_add_u32 s32, s32, {base}")
    srd(A, 12, sw, 0, K * D * 2)

def p35_compute(A, nstage, WSL, npre, base, ws_x, x_bytes, ws_res, ws_out, ws_st, waitf, sigk, can_final, sb, PRE):
    VX, VTR, VRES, VST, VOUT = 4, 8, 10, 11, 12
    TMP = 16; ACC = 48; RES = 80
    cl_lane_off(A, VX, 27, nstage * 2048, TMP)
    tr_lane_addr(A, VTR, 2112, 128, 32, TMP, base)
    A(f"v_add_u32 v{VTR+1}, {7*8448}, v{VTR}"); A(f"v_add_u32 v13, {14*8448}, v{VTR}")
    cl_lane_off(A, VRES, 27, 20480, TMP)
    A("s_lshl_b32 s21, s28, 11")
    A(f"v_add_u32 v{VRES}, s21, v{VRES}")
    if True:
        A(f"v_add_u32 v{TMP}, s27, v2")
        A(f"v_mul_u32_u24 v{VOUT}, {D*2}, v{TMP}")
        A("s_lshl_b32 s21, s28, 7")
        A(f"v_add_u32 v{VOUT}, s21, v{VOUT}")
        A(f"v_lshl_add_u32 v{VOUT}, v3, {5 if can_final else 3}, v{VOUT}")
    A(f"v_add_u32 v{TMP}, s24, v2"); A(f"v_lshlrev_b32 v{VST}, 3, v{TMP}")
    A("s_mul_i32 s21, s18, 10"); A("s_add_u32 s21, s21, s28"); A("s_lshl_b32 s21, s21, 11")
    A(f"v_add_u32 v{VST}, s21, v{VST}")
    srd(A, 8, SWS, ws_x, x_bytes)
    srd(A, 36, SWS, ws_res, XB)
    srd(A, 76, SWS, ws_out, XB)
    srd(A, 80, SWS, ws_st, ST_B)
    if not can_final:
        A("s_cmp_lg_u32 s16, 0"); A("s_cbranch_scc1 L_p3_rescl")
        srd(A, 36, SX, 0, XB)
        for nb in range(2):
            for half in range(2):
                p = RES + (nb * 2 + half) * 4
                A(f"buffer_load_dwordx2 {v(p,2)}, v{VOUT}, s[36:39], 0 offen offset:{(32*nb + 8*half)*2}")
                A(f"buffer_load_dwordx2 {v(p+2,2)}, v{VOUT}, s[36:39], 0 offen offset:{(32*nb + 16 + 8*half)*2}")
        A("s_branch L_p3_resdone")
        A.label("L_p3_rescl")
    for nb in range(2):
        for half in range(2):
            A(f"buffer_load_dwordx4 {v(RES + (nb*2+half)*4, 4)}, v{VRES}, s[36:39], 0 offen offset:{nb*1024 + half*512} sc1", ("R",))
    if not can_final: A.label("L_p3_resdone")
    CINIT = env("CINIT", 1)
    if CINIT:
        A("s_waitcnt vmcnt(0)")
        for nb in range(2):
            for half in range(2):
                p = RES + (nb * 2 + half) * 4
                for j in range(4):
                    dst = ACC + nb * 16 + 4 * half + (j >> 1) * 8 + (j & 1) * 2
                    A(f"v_lshlrev_b32 v{dst}, 16, v{p+j}")
                    A(f"v_and_b32 v{dst+1}, 0xffff0000, v{p+j}")
    waitf(TMP); reset(A)
    stamp(A, sb)
    gate = (lambda: cnt_wait(A, 1, 8, TMP)) if (LEAD and not can_final) else (lambda: A("s_barrier"))
    p35_gemm(A, nstage, WSL, PRE + 1, 0, npre).run(do_w=False, zero_init=not CINIT, sb=sb, extra=[gate], extra_at=PRE // 4)
    if LEAD and not can_final: cnt_add(A, 4, TMP)
    late = env("E5LATE", 0) if can_final else 0
    if can_final and not late: A("s_barrier")
    for nb in range(2):
        for half in range(2):
            p = RES + (nb * 2 + half) * 4
            for j in range(4):
                src = ACC + nb * 16 + 4 * half + (j >> 1) * 8 + (j & 1) * 2
                if not CINIT:
                    A(f"v_lshlrev_b32 v{TMP}, 16, v{p+j}")
                    A(f"v_and_b32 v{TMP+1}, 0xffff0000, v{p+j}")
                    A(f"v_pk_add_f32 {v(src,2)}, {v(src,2)}, {v(TMP,2)}")
                A(f"v_cvt_pk_bf16_f32 v{p+j}, v{src}, v{src+1}")
    if can_final:
        A("s_cmp_eq_u32 s16, 0"); A("s_cbranch_scc1 L_p5_notfinal")
        srd(A, 76, SOUT, 0, XB)
        for nb in range(2):
            for half in range(2):
                p = RES + (nb * 2 + half) * 4
                A(f"v_permlane32_swap_b32 v{p}, v{p+2}")
                A(f"v_permlane32_swap_b32 v{p+1}, v{p+3}")
                A(f"buffer_store_dwordx4 {v(p,4)}, v{VOUT}, s[76:79], 0 offen offset:{(32*nb + 8*half)*2}")
        A("s_branch L_exit")
        A.label("L_p5_notfinal"); reset(A)
    for nb in range(2):
        for half in range(2):
            p = RES + (nb * 2 + half) * 4
            A(f"buffer_store_dwordx4 {v(p,4)}, v{VRES}, s[76:79], 0 offen offset:{nb*1024 + half*512}{STF}")
    for k in range(4): A(f"v_mov_b32 v{TMP+k}, 0")
    A(f"v_mov_b32 v{TMP+4}, 0x3f803f80")
    for j in range(16):
        o = 2 * (j & 1)
        A(f"v_dot2_f32_bf16 v{TMP+o}, v{RES+j}, v{TMP+4}, v{TMP+o}")
        A(f"v_dot2_f32_bf16 v{TMP+o+1}, v{RES+j}, v{RES+j}, v{TMP+o+1}")
    A("s_nop 3")
    A(f"v_pk_add_f32 {v(TMP,2)}, {v(TMP,2)}, {v(TMP+2,2)}")
    A(f"v_mov_b32 v{TMP+2}, v{TMP}"); A(f"v_mov_b32 v{TMP+3}, v{TMP+1}")
    A(f"v_permlane32_swap_b32 v{TMP}, v{TMP+2}")
    A(f"v_permlane32_swap_b32 v{TMP+1}, v{TMP+3}")
    A(f"v_pk_add_f32 {v(TMP,2)}, {v(TMP,2)}, {v(TMP+2,2)}")
    A(f"buffer_store_dwordx2 {v(TMP,2)}, v{VST}, s[80:83], 0 offen{STF}")
    stamp(A, sb + 3)
    signal_local(A, sigk, TMP + 4, 29, 28)
    stamp(A, sb + 4)
    if late: A("s_barrier")

def phase2(A):
    PSK, PSV = 4096, 4160
    KOFF, VOFF = 0, 6 * 4096
    QOFF = VOFF + 6 * PSV
    VL16, VQ, VQ2, VK1, VK2, VV, VO, VWA, VWB, VW4 = 4, 5, 6, 7, 8, 9, 10, 12, 13, 252
    TMP = 14; Q1, Q2 = 20, 24; MSK = 26; KF = 34; VF = 52; O = 68; PB = 84; S = 100; MX = 244; DUM = 248
    A("s_mul_i32 s25, s19, 5")
    A(f"v_lshlrev_b32 v{VL16}, 4, v1")
    srd(A, 8, SWS, WS_QKV, QKV_B)
    A("s_lshl_b32 s24, s20, 5")
    A(f"v_and_b32 v{TMP+4}, 15, v1"); A(f"v_bfe_u32 v{TMP+5}, v1, 4, 1")
    A(f"v_lshlrev_b32 v{VK2}, 4, v{TMP+4}"); A(f"v_lshl_add_u32 v{VK2}, v{TMP+5}, 3, v{VK2}")
    A("s_lshl_b32 s21, s20, 8"); A(f"v_add_u32 v{VK2}, s21, v{VK2}")
    A(f"v_lshl_add_u32 v{VK1}, v3, 12, v{VK2}")
    A(f"v_add_u32 v{VQ2}, {QOFF}, v{VK2}"); A(f"v_lshl_add_u32 v{VQ}, v3, 11, v{VQ2}")
    srd(A, 12, SWS, WS_O, XB)
    A(f"v_mov_b32 v{TMP+2}, 0x3f803f80"); A(f"v_mov_b32 v{TMP+3}, 0x3f803f80")
    A(f"v_lshlrev_b32 v{TMP+1}, 3, v0")
    A(f"ds_write_b64 v{TMP+1}, {v(TMP+2,2)} offset:{VOFF + 5*PSV}")
    A("s_lshr_b32 s22, s20, 2"); A("s_add_u32 s22, s22, s18"); A("s_cmp_eq_u32 s22, 0"); A("s_cselect_b32 s22, 0xf149, 0")
    A(f"v_mov_b32 v{Q1}, s22"); A(f"v_mov_b32 v{Q1+1}, 0")
    A(f"ds_write_b64 v{TMP+1}, {v(Q1,2)} offset:{KOFF + 5*PSK}")
    A(f"v_and_b32 v{TMP}, 3, v1")
    A(f"v_lshl_add_u32 v{TMP+1}, v{TMP+5}, 2, v{TMP}"); A(f"v_min_u32 v{TMP+1}, 5, v{TMP+1}")
    A(f"v_mul_u32_u24 v{VV}, {PSV}, v{TMP+1}")
    A(f"v_bfe_u32 v{TMP+1}, v1, 2, 2"); A(f"v_lshl_add_u32 v{TMP+1}, v3, 2, v{TMP+1}")
    A(f"v_lshl_add_u32 v{VV}, v{TMP+1}, 4, v{VV}"); A(f"v_add_u32 v{VV}, s21, v{VV}")
    A("s_lshl_b32 s21, s18, 4"); A("s_lshl_b32 s22, s20, 1"); A("s_add_u32 s21, s21, s22")
    A(f"v_add_u32 v{TMP+1}, s21, v{TMP+5}"); A(f"v_mul_u32_u24 v{TMP+1}, 20480, v{TMP+1}")
    A(f"v_lshl_add_u32 v{TMP+1}, v{TMP+4}, 4, v{TMP+1}")
    A("s_lshl_b32 s21, s19, 9"); A(f"v_add_u32 v{VO}, s21, v{TMP+1}"); A(f"v_lshl_add_u32 v{VO}, v3, 8, v{VO}")
    A("s_lshr_b32 s21, s19, 1"); A("s_lshl_b32 s21, s21, 8"); A("s_and_b32 s22, s19, 1"); A("s_lshl_b32 s22, s22, 3"); A("s_add_u32 s21, s21, s22"); A(f"s_add_u32 s21, s21, {64*256}")
    A(f"v_add_u32 v{VO+1}, s21, v{TMP+1}"); A(f"v_lshl_add_u32 v{VO+1}, v3, 31, v{VO+1}")
    A("s_mul_i32 s28, s19, 171"); A("s_lshr_b32 s28, s28, 9")
    A("s_and_b32 s26, s20, 3"); A("s_lshr_b32 s27, s20, 2")
    A(f"v_bfe_u32 v{TMP}, v1, 3, 1"); A(f"v_mul_u32_u24 v{TMP+1}, 5, v{TMP+5}"); A(f"v_add_u32 v{TMP}, v{TMP}, v{TMP+1}")
    A(f"v_lshl_add_u32 v{TMP}, v3, 1, v{TMP}"); A("s_mul_i32 s21, s27, 10"); A(f"v_add_u32 v{TMP}, s21, v{TMP}")
    A(f"v_bfe_u32 v{TMP+1}, v1, 3, 2"); A(f"v_mul_u32_u24 v{TMP+1}, 10, v{TMP+1}"); A(f"v_mul_u32_u24 v{TMP+2}, 5, v3"); A(f"v_add_u32 v{TMP+1}, v{TMP+1}, v{TMP+2}")
    A("s_mul_i32 s21, s27, 40"); A("s_add_u32 s21, s21, 4"); A(f"v_add_u32 v{TMP+1}, s21, v{TMP+1}")
    A(f"v_and_b32 v{TMP+2}, 7, v1"); A(f"v_lshlrev_b32 v{TMP+2}, 4, v{TMP+2}")
    A("s_mul_i32 s21, s26, 1280"); A("s_lshl_b32 s22, s28, 7"); A("s_add_u32 s21, s21, s22")
    A("s_cmp_ge_u32 s19, 30"); A(f"s_cselect_b32 s21, {OOB:#x}, s21")
    A(f"v_add_u32 v{TMP+2}, s21, v{TMP+2}")
    A(f"v_mul_u32_u24 v{VWA}, 5120, v{TMP}"); A(f"v_add_u32 v{VWA}, v{VWA}, v{TMP+2}")
    A(f"v_mul_u32_u24 v{VWB}, 5120, v{TMP+1}"); A(f"v_add_u32 v{VWB}, v{VWB}, v{TMP+2}")
    A("s_mul_i32 s32, s26, 2112"); A("s_lshl_b32 s21, s27, 10"); A("s_add_u32 s32, s32, s21"); A(f"s_add_u32 s32, s32, {P3W}")
    A(f"s_add_u32 s34, s32, {10*8448}")
    rot_calc(A, "p3")
    A("s_sub_u32 s21, 10, s21"); A("s_cmp_eq_u32 s21, 10"); A("s_cselect_b32 s21, 0, s21"); A("s_mul_i32 s21, s21, 8448"); A("s_add_u32 s29, s32, s21")
    srd(A, 36, SWO, 0, D * D * 2)
    srd(A, 76, SWS, 0, LS)
    A("s_mul_i32 s21, s18, 327680"); A("s_mul_i32 s22, s19, 10240"); A("s_add_u32 s21, s21, s22"); A("s_lshl_b32 s22, s20, 10"); A("s_add_u32 s21, s21, s22")
    A(f"v_add_u32 v{VW4}, s21, v{VL16}")
    A("s_mul_i32 s21, s18, 20480"); A("s_mul_i32 s22, s19, 640"); A("s_add_u32 s21, s21, s22")
    A(f"v_add_u32 v{VW4+1}, s21, v{VL16}")
    side = []
    for t in range(10):
        def f(t=t):
            A("s_mov_b32 m0, s29")
            A(f"s_mov_b32 s21, {t*80*1280 if t < 8 else (t-8)*320*1280}")
            A(f"buffer_load_dwordx4 v{VWA if t < 8 else VWB}, s[36:39], s21 offen lds", "wo")
            A("s_add_u32 s29, s29, 8448"); A("s_cmp_ge_u32 s29, s34"); A("s_cselect_b32 s29, s32, s29")
        side.append(f)
    if PLAIN:
        def touch(vr, off):
            def f():
                A(f"s_mov_b32 s21, {off:#x}")
                A(f"buffer_load_dwordx4 {v(DUM,4)}, v{vr}, s[76:79], s21 offen sc1", "t")
            return f
        side = [touch(VW4, WS_O), touch(VW4, WS_O + 8192), touch(VW4, WS_X1), touch(VW4, WS_X1 + 8192), touch(VW4 + 1, WS_STB)] + side
    for r in range(16):
        k0 = 8 * (r >> 2) + (r & 3)
        A(f"s_mov_b32 s{40+2*r}, {(0xFFFFFFFF << k0) & 0xFFFFFFFF:#x}")
        A(f"s_mov_b32 s{41+2*r}, {(0xFFFFFFFF << (k0+4)) & 0xFFFFFFFF:#x}")
    A(f"v_mov_b32 v{TMP+4}, 0xffff"); A(f"v_mov_b32 v{TMP+5}, 0xffff0000")
    for j in range(8):
        A(f"v_cndmask_b32 v{MSK+j}, 0, v{TMP+4}, {s(40+4*j,2)}")
        A(f"v_cndmask_b32 v{TMP+1}, 0, v{TMP+5}, {s(42+4*j,2)}")
        A(f"v_or_b32 v{MSK+j}, v{MSK+j}, v{TMP+1}")
    stamp(A, 6)
    A("s_sub_u32 s21, s20, 4"); A("s_cmp_ge_u32 s21, 3"); A("s_cbranch_scc1 L_p2_setup")
    A("s_mul_i32 s25, s19, 5"); A("s_mul_i32 s80, s18, 480"); A("s_add_u32 s80, s80, s25"); A("s_lshl_b32 s80, s80, 11")
    A(f"s_add_u32 s81, s80, {320*2048}")
    A("s_cmp_eq_u32 s20, 6"); A("s_cbranch_scc1 L_p2_halo")
    A("s_cmp_eq_u32 s20, 4")
    A(f"s_cselect_b32 s22, 0, {160*2048}"); A(f"s_cselect_b32 s82, {QOFF}, 0"); A("s_cselect_b32 s83, 0, 1")
    A("s_add_u32 s80, s80, s22"); A("s_lshl_b32 s83, s83, 11"); A("s_add_u32 s82, s82, s83"); A("s_add_u32 s83, s83, 2048")
    A(f"s_mov_b32 s33, {VOFF + 2048}")
    wait_local(A, 4, 0, 15, None, KF)
    A("s_branch L_p2_ld")
    A.label("L_p2_halo"); reset(A)
    A(f"s_sub_u32 s80, s80, {320*2048}"); A(f"s_sub_u32 s81, s81, {480*2048}")
    A("s_mov_b32 s82, 0"); A("s_mov_b32 s83, 4096"); A(f"s_mov_b32 s33, {VOFF}")
    A("s_cmp_eq_u32 s18, 0"); A(f"s_cselect_b32 s80, {OOB:#x}, s80"); A(f"s_cselect_b32 s81, {OOB:#x}, s81"); A("s_cbranch_scc1 L_p2_ld")
    A(f"v_min_u32 v{KF}, 19, v1"); A(f"v_lshlrev_b32 v{KF}, 7, v{KF}")
    A("s_lshl_b32 s21, s16, 3"); A("s_add_u32 s21, s21, s18"); A("s_lshl_b32 s21, s21, 12"); A(f"s_add_u32 s21, s21, {0x10000 - 4096 + 10*128}")
    A(f"v_add_u32 v{KF}, s21, v{KF}")
    A(f"v_mov_b32 v{KF+1}, 0x01010101")
    def body():
        A(f"buffer_load_dword v{KF+2}, v{KF}, {s(SFL,4)}, 0 offen sc1")
        A.wait_vm_all()
        A(f"v_cmp_ne_u32 vcc, v{KF+2}, v{KF+1}")
    spin(A, body, "p1w", 1)
    join(A, "L_p2_ld"); reset(A)
    stamp(A, 7)
    for i in range(5):
        for c in range(2):
            A(f"s_add_u32 m0, s82, {c*1024}")
            A(f"buffer_load_dwordx4 v{VL16}, s[8:11], s80 offen sc1 lds")
            A("s_add_u32 s80, s80, 1024")
        A("s_add_u32 s82, s82, s83")
    A("s_cmp_eq_u32 s20, 5"); A("s_cbranch_scc1 L_p2_w5")
    for i in range(5):
        for c in range(2):
            A(f"s_add_u32 m0, s33, {i*PSV + c*1024}")
            A(f"buffer_load_dwordx4 v{VL16}, s[8:11], s81 offen sc1 lds")
            A("s_add_u32 s81, s81, 1024")
    A("s_branch L_p2_setup")
    A.label("L_p2_w5")
    A("s_waitcnt vmcnt(0)")
    join(A, "L_p2_setup"); reset(A)
    A("s_waitcnt vmcnt(10)"); A.wait_lg_all()
    A.vm = ["V"] * 10
    A("s_barrier")
    STAG = env("STAG", 0)
    if STAG:
        l = A.newlabel("pr2")
        A("s_cmp_ge_u32 s20, 4"); A(f"s_cbranch_scc1 {l}"); A("s_setprio 2"); A.label(l)
    stamp(A, 8)
    A(f"ds_read_b64 {v(Q1,2)}, v{VQ}", ("K", 0))
    A(f"ds_read_b64 {v(Q1+2,2)}, v{VQ} offset:4096", ("K", 0))
    A(f"ds_read_b64 {v(Q2,2)}, v{VQ2} offset:8192", ("K", 0))
    qorder = [0, 8, 1, 2, 3, 4, 5, 6, 7]
    def kreads(n):
        d = qorder[n]; b = KF + (n % 3) * 6
        for q in range(3):
            A(f"ds_read_b64 {v(b+2*q,2)}, v{VK1} offset:{KOFF + 2*q*PSK + d*256}", ("K", n))
    work = {}
    work[1] = [f"v_cndmask_b32 v{S+r}, v{S+r}, v{S+128+r}, {s(40+2*r,2)}" for r in range(16)]
    work[1] += [f"v_max_f32 v{MX+c}, v{S+2*c}, v{S+2*c+1}" for c in range(2)]
    work[1] += [f"v_max3_f32 v{MX+(k&1)}, v{MX+(k&1)}, v{S+2*k}, v{S+2*k+1}" for k in range(2, 8)]
    for n in range(2, 9):
        sb = S + 16 * qorder[n]
        work[n] = [f"v_max3_f32 v{MX+(k&1)}, v{MX+(k&1)}, v{sb+2*k}, v{sb+2*k+1}" for k in range(8)]
    pend = []
    kreads(0); kreads(1)
    for n in range(9):
        d = qorder[n]
        if n + 2 < 9: kreads(n + 2)
        A.wait_lg(lambda g: g == ("K", n))
        b = KF + (n % 3) * 6
        if n == 0:
            A("s_mov_b32 s22, -1"); A("s_mov_b32 s23, 0"); A(f"v_mov_b32 v{MX+2}, 0x3f80")
            A(f"v_cndmask_b32 v{Q2}, v{MX+2}, v{Q2}, s[22:23]"); A(f"v_cndmask_b32 v{Q2+1}, 0, v{Q2+1}, s[22:23]")
        if n - 2 in work: pend += work[n - 2]
        A(f"v_mfma_f32_32x32x16_bf16 {v(S+16*d,16)}, {v(b,4)}, {v(Q1,4)}, 0")
        for _ in range(6):
            if pend: A(pend.pop(0))
        A(f"v_mfma_f32_32x32x8_bf16 {v(S+16*d,16)}, {v(b+4,2)}, {v(Q2,2)}, {v(S+16*d,16)}")
        for _ in range(6):
            if pend: A(pend.pop(0))
    for w_ in pend + work[7] + work[8]: A(w_)
    A(f"v_max_f32 v{MX}, v{MX}, v{MX+1}")
    A(f"v_mov_b32 v{MX+1}, v{MX}")
    A(f"v_permlane32_swap_b32 v{MX}, v{MX+1}")
    A(f"v_max_f32 v{MX}, v{MX}, v{MX+1}")
    stamp(A, 27)
    A.wait_vm_all()
    if STAG:
        cnt_add(A, 0, KF)
        if env("STAG", 1) == 2: A("s_setprio 0")
    else: A("s_barrier")
    stamp(A, 28)
    if env("NOSIDE", 0): side = []
    vbuf = lambda k: (VF + 8 * k) if k < 2 else (PB + 8 * (k - 2))
    vseq = [0, 8, 1, 2, 3, 4, 5, 6, 7]
    def vreads(i):
        d = vseq[i]
        for u in range(2):
            for rd in range(2):
                A(f"ds_read_b64_tr_b16 {v(vbuf(i % 4) + u*4 + rd*2, 2)}, v{VV} offset:{VOFF + d*256 + rd*128 + u*8}", ("V", i))
    mq = []; st_ = dict(first=True, nv=0)
    def pv():
        if not mq: return
        i, u = mq.pop(0)
        A.wait_lg(lambda g: g == ("V", i))
        c = "0" if st_["first"] else v(O, 16); st_["first"] = False
        A(f"v_mfma_f32_32x32x16_bf16 {v(O,16)}, {v(vbuf(i % 4) + u*4, 4)}, {v(S + 16*vseq[i] + u*4, 4)}, {c}")
    VD = env("VD", 1) if STAG else 0
    if not VD: vreads(0); vreads(1)
    per = 4 if LEAD else -(-len(side) // 6)
    for d in range(8):
        sb = S + 16 * d
        if LEAD and d == 6:
            A.wait_vm_all(); cnt_add(A, 1, KF)
        for r in range(0, 16, 2): A(f"v_pk_add_f32 {v(sb+r,2)}, {v(sb+r,2)}, {v(MX,2)} op_sel_hi:[1,0] neg_lo:[0,1] neg_hi:[0,1]")
        q = 0
        for r in range(16):
            A(f"v_exp_f32 v{sb+r}, v{sb+r}")
            if d > VD and (r in (1, 6) or (r == 11 and len(mq) > 0 and d < 7)): pv()
            if r == 13:
                if VD and d == VD:
                    cnt_wait(A, 0, 8, KF)
                while d >= VD and st_["nv"] < 9 and st_["nv"] <= d + 2 and st_["nv"] - 4 < min([i for i, u in mq] + [d + 1]):
                    if VD or st_["nv"] >= 2: vreads(st_["nv"])
                    st_["nv"] += 1
            if r % 4 == 3 and side and q < per: side.pop(0)(); q += 1
        for j in range(8): A(f"v_cvt_pk_bf16_f32 v{sb+j}, v{sb+2*j}, v{sb+2*j+1}")
        if d == 0:
            for j in range(8): A(f"v_and_b32 v{S+128+j}, v{sb+j}, v{MSK+j}")
            for j in range(8): A(f"v_bfi_b32 v{sb+j}, v{MSK+j}, 0, v{sb+j}")
            mq += [(0, 0), (0, 1), (1, 0), (1, 1)]
        else:
            mq += [(d + 1, 0), (d + 1, 1)]
    while mq: pv()
    assert not side
    if LEAD: cnt_add(A, 2, KF)
    stamp(A, 9)
    A(f"v_rcp_f32 v{MX}, v{O+12}")
    for k in range(0, 12, 2):
        A(f"v_pk_mul_f32 {v(O+k,2)}, {v(O+k,2)}, {v(MX,2)} op_sel_hi:[1,0]")
    for k in range(6): A(f"v_cvt_pk_bf16_f32 v{PB+k}, v{O+2*k}, v{O+2*k+1}")
    A(f"buffer_store_dwordx4 {v(PB,4)}, v{VO}, s[12:15], 0 offen{STF}")
    A(f"buffer_store_dwordx2 {v(PB+4,2)}, v{VO+1}, s[12:15], 0 offen{STF}")
    if STAG: A("s_setprio 0")
    signal_local(A, 0, 20, 20, 19)
    stamp(A, 10)
    A.fence(); reset(A)

def touch_range(A, off, grp_bytes, nwg, base_idx, depth=8):
    per = nwg * 8 * 1024
    n = -(-grp_bytes // per)
    A(f"s_mul_i32 s21, s18, {grp_bytes}")
    srd(A, 36, SWS, off, grp_bytes, soff=21)
    A(f"s_sub_u32 s31, s19, {base_idx}"); A("s_lshl_b32 s31, s31, 3"); A("s_add_u32 s31, s31, s20"); A("s_lshl_b32 s31, s31, 10")
    A("v_lshlrev_b32 v4, 4, v1")
    A("s_mov_b32 s22, 0")
    lp = A.newlabel("tr")
    A.label(lp)
    A("buffer_load_dwordx4 v[8:11], v4, s[36:39], s31 offen sc1")
    A(f"s_waitcnt vmcnt({depth})"); A.vm = []
    A(f"s_add_u32 s31, s31, {per}")
    A("s_add_u32 s22, s22, 1"); A(f"s_cmp_lt_u32 s22, {n}"); A(f"s_cbranch_scc1 {lp}")

def warm_code(A, thr=31):
    if not env("WARMC", 1): return
    skip = A.newlabel("wc"); here = A.newlabel("pc"); lp = A.newlabel("wcl")
    A(f"s_cmp_lt_u32 s19, {thr}"); A(f"s_cbranch_scc1 {skip}")
    A("s_getpc_b64 s[22:23]")
    A.label(here)
    A(f"s_sub_u32 s22, s22, {here}-{NAME}_kernel"); A("s_subb_u32 s23, s23, 0")
    A("v_lshlrev_b32 v6, 4, v0")
    A.label(lp)
    A(f"v_min_u32 v7, L_code_end-{NAME}_kernel-16, v6")
    A("v_mov_b32 v5, s23"); A("v_add_co_u32 v4, vcc, s22, v7"); A("v_addc_co_u32 v5, vcc, 0, v5, vcc")
    A("global_load_dwordx4 v[8:11], v[4:5], off"); A.vm = []
    A("v_add_u32 v6, 8192, v6")
    A("v_readfirstlane_b32 s21, v6")
    A(f"s_cmp_lt_u32 s21, L_code_end-{NAME}_kernel"); A(f"s_cbranch_scc1 {lp}")
    A("s_waitcnt vmcnt(0)")
    join(A, skip); reset(A)

def warm_tlb(A):
    if not env("WARMT", 0): return
    skip = A.newlabel("wt")
    A("s_cmp_lg_u32 s19, 30"); A(f"s_cbranch_scc1 {skip}")
    A("s_cmp_lg_u32 s20, 0"); A(f"s_cbranch_scc1 {skip}")
    sh = env("WARMT_SH", 20)
    A(f"v_lshlrev_b32 v6, {sh}, v0")
    for base, size in ((SWO, D*D*2), (SWG, D*F*2), (SWU, D*F*2), (SWD, D*F*2), (SOUT, XB)):
        srd(A, 36, base, 0, size)
        A("buffer_load_dword v8, v6, s[36:39], 0 offen")
    srd(A, 36, SWS, 0, 2 * LS)
    for k in range(max(1, (2 * LS) >> (sh + 9))):
        A(f"s_mov_b32 s21, {k << (sh + 9):#x}"); A("buffer_load_dword v8, v6, s[36:39], s21 offen")
    join(A, skip); reset(A)

def warm_stream(A, sbase, size, sstart, step, n, depth, wrap=None):
    srd(A, 36, sbase, 0, size)
    A("v_lshlrev_b32 v4, 4, v0")
    A("s_mov_b32 s22, 0")
    lp = A.newlabel("ws")
    A.label(lp)
    A(f"buffer_load_dwordx4 v[8:11], v4, s[36:39], s{sstart} offen")
    A(f"s_waitcnt vmcnt({depth})"); A.vm = []
    A(f"s_add_u32 s{sstart}, s{sstart}, {step}")
    if wrap:
        A(f"s_cmp_ge_u32 s{sstart}, {wrap}"); A(f"s_cselect_b32 s23, {wrap}, 0"); A(f"s_sub_u32 s{sstart}, s{sstart}, s23")
    A("s_add_u32 s22, s22, 1"); A(f"s_cmp_lt_u32 s22, {n}"); A(f"s_cbranch_scc1 {lp}")

def warm_mall(A):
    n = env("WMALL", 0)
    if not n: return
    for sb, size in ((SWO, D * D * 2), (SWG, D * F * 2), (SWU, D * F * 2))[:n]:
        A("s_lshl_b32 s24, s18, 1"); A("s_add_u32 s24, s24, s19"); A("s_sub_u32 s24, s24, 30"); A("s_lshl_b32 s24, s24, 13")
        warm_stream(A, sb, size, 24, 16 * 8192, -(-size // (16 * 8192)), 8)
    A("s_waitcnt vmcnt(0)")

def idle4(A):
    l0_only(A, lambda: warm_code(A), "wc4")
    if env("WW5", 0):
        rot_init(A, "p5", D * 2, wskip=env("WW5S", 10))
        A("s_sub_u32 s24, s19, 27"); A("s_lshl_b32 s24, s24, 13"); A("s_add_u32 s24, s24, s31")
        warm_stream(A, SWD, F * D * 2, 24, 40960, env("WW5", 0) * 2, env("WW5D", 2), wrap=F * D * 2)
        A("s_waitcnt vmcnt(0)")
    if PLAIN:
        touch_range(A, WS_H, H_B // 8, 5, 27, env("TDEP", 4))
        A("s_waitcnt vmcnt(0)")

def idle5(A):
    def f():
        l = A.newlabel("i5")
        A("s_cmp_lg_u32 s20, 0"); A(f"s_cbranch_scc1 {l}")
        wait_local(A, 2, 0, 27, None, 4, sleep=16)
        join(A, l); reset(A)
        A("s_barrier")
        warm_code(A)
        if env("WW1", 4):
            rot_init(A, "p1", 3840)
            A("s_sub_u32 s24, s19, 30"); A("s_lshl_b32 s24, s24, 13"); A("s_add_u32 s24, s24, s31")
            warm_stream(A, SWQKV, D * 1920 * 2, 24, 16384, env("WW1", 4) * 15, 6, wrap=D * 1920 * 2)
            A("s_waitcnt vmcnt(0)")
    l0_only(A, f, "i5l0")

P4PRE = env("P4PRE", 4)
P4 = dict(PS=2112, RB=128, UOFF=8480, SLOT=16960)
def phase3(A):
    A("s_cmp_ge_u32 s19, 30"); A("s_cbranch_scc1 L_p3_skip")
    p35_ids(A)
    A("s_lshl_b32 s21, s20, 1"); A("s_or_b32 s21, s21, s29"); A("s_cmp_lt_u32 s21, 8"); A("s_cbranch_scc1 L_p3_comp")
    if not LEAD: A("s_barrier")
    A("s_cmp_lt_u32 s20, 4"); A("s_cbranch_scc1 L_p3_noblk")
    A("s_cmp_ge_u32 s19, 27"); A("s_cbranch_scc1 L_p3_skip")
    A("s_lshl_b32 s25, s19, 7")
    wdma_off(A, 6, 2, 8, F * 2, 25, 26, 16)
    A("s_mul_i32 s32, s26, 2112")
    rot_init(A, "p4", F * 2)
    srd(A, 12, SWG, 0, D * F * 2); srd(A, 36, SWU, 0, D * F * 2)
    g = Gemm(A, 4, 10, 6, 9, 16960, 128, 32, 0, 0, 0, 0, [6, 7, 6, 7], [12, 12, 36, 36], [0, 1024, 8480, 8480 + 1024],
             [], 8, F * 2, 0, 0)
    g.throttle = env("THR3", 3) or None; g.wflags = NT4
    if LEAD: cnt_wait(A, 2, 8, 16)
    g.prefetch(P4PRE)
    A.wait_vm_all()
    if LEAD: cnt_add(A, 3, 16)
    A("s_branch L_p3_done")
    A.label("L_p3_noblk")
    if LEAD: cnt_add(A, 4, 16)
    join(A, "L_p3_skip"); reset(A)
    A("s_branch L_p3_done")
    A.label("L_p3_comp"); reset(A)
    rot_init(A, "p3", D * 2)
    p35_compute(A, 10, 10, 10, P3W, WS_O, XB, WS_XIN, WS_X1, WS_STB,
                lambda t0: wait_local(A, 0, 0, 32, 29, t0), 1, False, 11, env("PRE3", 32))
    join(A, "L_p3_done"); reset(A)

B5 = 16960
N5 = env("N5", 10)
N5B = env("N5B", 0)
def phase5(A):
    A("s_cmp_lt_u32 s19, 30"); A("s_cbranch_scc1 L_p5_go")
    idle5(A)
    A("s_branch L_p5_done")
    A.label("L_p5_go"); reset(A)
    WSL = env("WSL5", 17)
    p35_ids(A); rot_init(A, "p5", D * 2)
    A("s_lshl_b32 s21, s20, 1"); A("s_or_b32 s21, s21, s29"); A("s_cmp_lt_u32 s21, 8"); A("s_cbranch_scc1 L_p5_comp")
    A("s_cmp_lt_u32 s20, 4"); A("s_cbranch_scc1 L_p5_idle")
    p35_loader_setup(A, SWD, F, B5)
    A("s_cmp_lt_u32 s19, 27"); A("s_cbranch_scc1 L_p5_pre")
    p35_gemm(A, 27, WSL, 0, 0, 0).prefetch(N5 + N5B)
    A.wait_vm_all()
    join(A, "L_p5_pre"); reset(A)
    rot_init(A, "p5", D * 2, wskip=N5 + N5B)
    A("s_barrier")
    g = p35_gemm(A, 27, WSL, 0, env("LA5", 14), 0); g.nland = N5 + N5B
    g.run_loader()
    A("s_barrier")
    A("s_branch L_p5_done")
    A.label("L_p5_idle"); reset(A)
    if N5B:
        A("s_cmp_lg_u32 s20, 3"); A("s_cbranch_scc1 L_p5_idle2")
        A("s_cmp_ge_u32 s19, 27"); A("s_cbranch_scc1 L_p5_idle2")
        A("s_lshl_b32 s25, s28, 7"); A("s_mov_b32 s26, 0")
        wdma_off(A, 4, 1, 8, D * 2, 25, 26, 16)
        for q in range(1, 8): A(f"v_add_u32 v{4+q}, {((q & 3) + 32 * (q >> 2)) * D * 2}, v4")
        srd(A, 12, SWD, 0, F * D * 2)
        rot_init(A, "p5", D * 2, wskip=N5)
        A(f"s_mov_b32 s32, {B5}")
        A("s_lshl_b32 s24, s16, 3"); A("s_add_u32 s24, s24, 8"); A(f"v_mov_b32 v16, {L_CNT}")
        def body():
            A("ds_read_b32 v17, v16"); A.wait_lg_all()
            A("v_cmp_gt_u32 vcc, s24, v17")
        spin(A, body, "lc", 1)
        g = Gemm(A, 2, 27, 9, WSL, 8448, 128, 64, 0, 0, 0, 0, [4 + q for q in range(8)], [12] * 8,
                 [(q & 3) * 2112 + (q >> 2) * 1024 for q in range(8)], [], 8, D * 2, 0, 0)
        g.nland = N5; g.throttle = env("THR5", 0) or None
        g.prefetch(N5 + N5B)
        join(A, "L_p5_idle2"); reset(A)
    A("s_mov_b32 s21, 0")
    A.label("L_p5_idle_loop")
    A("s_cmp_lg_u32 s21, 6"); A("s_cbranch_scc1 L_p5_idle3"); A("s_waitcnt vmcnt(0)")
    A.label("L_p5_idle3")
    A("s_barrier"); A("s_add_u32 s21, s21, 1"); A("s_cmp_lt_u32 s21, 29"); A("s_cbranch_scc1 L_p5_idle_loop")
    A("s_branch L_p5_done")
    A.label("L_p5_comp"); reset(A)
    p35_compute(A, 27, WSL, 0, B5, WS_H, H_B, WS_X1, WS_XIN + LS, WS_STA + LS,
                lambda t0: wait_local(A, 2, 0, 27, 29, t0), 3, True, 22, env("PRE5", 16))
    join(A, "L_p5_done"); reset(A)

def phase4(A):
    A("s_cmp_lt_u32 s19, 27"); A("s_cbranch_scc1 L_p4_go")
    A("s_barrier")
    idle4(A)
    A("s_branch L_p4_done")
    A.label("L_p4_go"); reset(A)
    A(f"s_xor_b32 s28, s20, {4 if LEAD else 0}")
    A("s_lshl_b32 s24, s28, 5")
    A("s_lshl_b32 s27, s18, 8"); A("s_add_u32 s27, s27, s24")
    A("s_and_b32 s26, s20, 3"); A("s_lshr_b32 s29, s20, 2")
    PS, RB, UOFF, SLOT = 2112, 128, 8480, 16960
    WSL, XS = 9, 5
    VX, VWD, VTR, VST, VCS, VOUT, VPL = 4, 6, 8, 11, 12, 13, 144
    NM, CA, CB, IR = 14, 16, 18, 20
    TMP = 24; WF = 40; ACC = 72; T = 136; CSA = 148; CSB = 156; CT = 164; V5 = 165; XA = 168
    cl_lane_off(A, VX, 27, 20480, TMP)
    A("s_lshl_b32 s25, s19, 7")
    wdma_off(A, VWD, 2, 8, F * 2, 25, 26, TMP)
    tr_lane_addr(A, VTR, PS, RB, UOFF, TMP)
    A(f"v_add_u32 v{VTR+1}, {3*SLOT}, v{VTR}"); A(f"v_add_u32 v{VTR+2}, {6*SLOT}, v{VTR}")
    stats_off(A, VST, 24, TMP)
    cl_lane_off(A, VOUT, 27, 54 * 1024, TMP)
    A("s_lshl_b32 s21, s19, 11")
    A(f"v_add_u32 v{VOUT}, s21, v{VOUT}")
    A(f"v_lshlrev_b32 v{VCS}, 4, v3"); A(f"v_add_u32 v{VCS}, {CS4}, v{VCS}")
    A(f"s_mul_i32 s32, s26, {PS}"); A(f"s_mul_i32 s21, s29, {UOFF}"); A("s_add_u32 s32, s32, s21")
    A("s_lshl_b32 s21, s26, 5"); A(f"s_mul_i32 s22, s29, {8*RB}"); A("s_add_u32 s21, s21, s22")
    A(f"v_add_u32 v{VPL}, s21, v{VTR}")
    A(f"v_add_u32 v{VPL+1}, {3*SLOT}, v{VPL}"); A(f"v_add_u32 v{VPL+2}, {6*SLOT}, v{VPL}")
    for k in range(2): A(f"v_mov_b32 v{CSA+k}, 0")
    A(f"v_mov_b32 v{CT}, 0x3f803f80")
    NA = 2 if LEAD else 0
    if LEAD:
        rot_init(A, "p4", F * 2, wskip=P4PRE); A("s_mov_b32 s44, s31")
        srd(A, 40, SWG, 0, D * F * 2)
    rot_init(A, "p4", F * 2, wskip=P4PRE + NA)
    A("s_cmp_eq_u32 s29, 0")
    A(f"s_cselect_b32 s22, s{SWG}, s{SWU}"); A(f"s_cselect_b32 s23, s{SWG+1}, s{SWU+1}")
    srd(A, 12, 22, 0, D * F * 2)
    srd(A, 8, SWS, WS_X1, XB)
    srd(A, 36, SWS, WS_STB, ST_B)
    srd(A, 80, SWS, WS_H, H_B)
    A("s_mov_b32 s34, s30"); A("s_mov_b32 s25, s31")
    rot_init(A, "p5", D * 2)
    A("s_mov_b32 s33, s31"); A("s_mov_b32 s30, s34"); A("s_mov_b32 s31, s25")
    A("s_mul_i32 s25, s19, 171"); A("s_lshr_b32 s25, s25, 9"); A("s_lshl_b32 s25, s25, 7")
    A(f"s_mul_i32 s21, s29, {32*D*2}"); A("s_add_u32 s25, s25, s21")
    wdma_off(A, V5, 1, 8, D * 2, 25, 26, TMP)
    A("s_mul_i32 s34, s26, 2112"); A("s_lshl_b32 s21, s29, 10"); A("s_add_u32 s34, s34, s21"); A(f"s_add_u32 s34, s34, {B5}")
    srd(A, 76, SWD, 0, F * D * 2)
    def t5(t):
        def f():
            A(f"s_add_u32 m0, s34, {t*8448}")
            A(f"buffer_load_dwordx4 v{V5}, s[76:79], s33 offen lds", "w5")
            A(f"s_add_u32 s33, s33, {64*D*2}"); A(f"s_cmp_ge_u32 s33, {F*D*2}"); A("s_cselect_b32 s33, 0, s33")
        return f
    if env("PRIO4", 1):
        l = A.newlabel("prio")
        A("s_cmp_ge_u32 s20, 4"); A(f"s_cbranch_scc1 {l}"); A("s_setprio 1"); A.label(l)
    if env("E3POS", 1) == 0: A("s_barrier")
    wait_local(A, 1, 0, 10, 28, TMP, sleep=2); reset(A)
    stamp(A, 16)
    g = Gemm(A, 4, 10, XS, WSL, SLOT, RB, 32, ACC, WF, XA, VX, [VWD, VWD + 1], [12, 12],
             [0, 1024], [VTR, VTR + 1, VTR + 2], 8, F * 2, env("PRE4", 8), 0, P4PRE)
    def csum(t):
        slot = t % WSL
        def f():
            for q in range(4):
                A(f"ds_read_b64_tr_b16 {v(CSB + 2*q, 2)}, v{VPL + slot // 3} offset:{(slot % 3) * SLOT + 2 * q * RB}")
            A("s_waitcnt lgkmcnt(0)")
            for q in range(8):
                if env("CSDOT", 1): A(f"v_dot2_f32_bf16 v{CSA + (q & 1)}, v{CSB+q}, v{CT}, v{CSA + (q & 1)}")
                else:
                    A(f"v_lshlrev_b32 v{CSA+2}, 16, v{CSB+q}"); A(f"v_and_b32 v{CSA+3}, 0xffff0000, v{CSB+q}")
                    A(f"v_add_f32 v{CSA}, v{CSA}, v{CSA+2}"); A(f"v_add_f32 v{CSA+1}, v{CSA+1}, v{CSA+3}")
        keep = list(A.lg)
        l0_only(A, f, "p4cs")
        A.lg = keep
    kk = -2.0 * 1.4426950408889634 * 0.7978845608028654
    def mid(t):
        csum(t)
        if t == 6:
            tt = TMP
            A.wait_vm(lambda g: g == ("S",))
            finish_stats(A, tt, NM, tt + 2, tt + 10)
            A(f"v_mov_b32 v{IR}, v{tt+1}")
            A(f"v_mul_f32 v{CB}, {f32(kk)}, v{tt+2}")
            A(f"v_mul_f32 v{tt+3}, v{tt+2}, v{tt+2}")
            A(f"v_mul_f32 v{tt+3}, {f32(0.044715)}, v{tt+3}")
            A(f"v_mul_f32 v{CA}, v{CB}, v{tt+3}")
    g.wflags = NT4
    g.lastbar = env("LB4", 7)
    if LEAD:
        g.bar_at = env("E3AT", 4); g.bar_fn = lambda: cnt_wait(A, 3, 4, T)
        g.nland = P4PRE + NA; g.wgate = P4PRE
        def gate4():
            l = A.newlabel("g4")
            kv, kl, h = list(A.vm), list(A.lg), None
            A("s_cmp_lt_u32 s20, 4"); A(f"s_cbranch_scc1 {l}")
            h = list(A.hist)
            cnt_wait(A, 4, 4, T)
            for t in range(P4PRE, P4PRE + NA):
                for q in range(4):
                    A(f"s_add_u32 m0, s32, {t * SLOT + (q & 1) * 1024 - (UOFF if q < 2 else 0)}")
                    A(f"buffer_load_dwordx4 v{VWD + (q & 1)}, {s(40 if q < 2 else 12, 4)}, s44 offen lds")
                A(f"s_add_u32 s44, s44, {64*F*2}"); A(f"s_cmp_ge_u32 s44, {640*F*2}"); A("s_cselect_b32 s44, 0, s44")
            A("s_waitcnt vmcnt(0)")
            A.fence(); A.label(l)
            A.vm, A.lg, A.hist = kv, kl, h
        g.pre_bar = {P4PRE: gate4}
    elif env("E3POS", 1): g.bar_at = env("E3AT", 4)
    g.run(extra=stats_items(A, VST, 36, TMP), wlead=env("WLEAD4", -1 if LEAD else 3), sb=16, stage_end=mid, tail=[t5(t) for t in range(N5)], rate=env("RATE4", 7))
    if N5B:
        A(f"v_mov_b32 v{CSB}, {L_CNT}"); A(f"v_mov_b32 v{CSB+1}, 1")
        A("s_mov_b64 exec, 1")
        A(f"ds_add_u32 v{CSB}, v{CSB+1}")
        A("s_mov_b64 exec, -1")
    def cpart():
        A("s_nop 3")
        A(f"v_add_f32 v{CSA}, v{CSA}, v{CSA+1}")
        A(f"v_mov_b32 v{CSA+1}, v{CSA}"); A(f"v_permlane32_swap_b32 v{CSA}, v{CSA+1}"); A(f"v_add_f32 v{CSA}, v{CSA}, v{CSA+1}")
        A(f"v_bfe_u32 v{CSB}, v1, 4, 1"); A(f"v_lshlrev_b32 v{CSB}, 8, v{CSB}")
        A(f"v_and_b32 v{CSB+1}, 15, v1"); A(f"v_lshl_add_u32 v{CSB}, v{CSB+1}, 2, v{CSB}")
        A("s_lshl_b32 s21, s26, 6"); A("s_lshl_b32 s22, s29, 9"); A("s_add_u32 s21, s21, s22"); A(f"s_add_u32 s21, s21, {CS_PART}")
        A(f"v_add_u32 v{CSB}, s21, v{CSB}")
        A(f"ds_write_b32 v{CSB}, v{CSA}")
    l0_only(A, cpart, "p4cp")
    def cfin():
        A.wait_lg_all()
        A("s_barrier")
        A(f"v_lshlrev_b32 v{CSB}, 3, v1"); A(f"v_add_u32 v{CSB}, {CS_PART}, v{CSB}")
        A(f"ds_read_b64 {v(CSB+2,2)}, v{CSB}"); A(f"ds_read_b64 {v(CSB+4,2)}, v{CSB} offset:512")
        A.wait_lg_all()
        A(f"v_pk_add_f32 {v(CSB+2,2)}, {v(CSB+2,2)}, {v(CSB+4,2)}")
        A(f"ds_write_b64 v{CSB}, {v(CSB+2,2)} offset:{CS4 - CS_PART}")
        A.wait_lg_all()
    l0_only(A, cfin, "p4cf")
    csr = lambda nb: WF + (nb & 1) * 16
    def csread(nb):
        for i in range(2):
            A(f"ds_read_b128 {v(csr(nb) + i*4, 4)}, v{VCS} offset:{nb*64 + i*32}", ("C", nb))
            A(f"ds_read_b128 {v(csr(nb) + 8 + i*4, 4)}, v{VCS} offset:{256 + nb*64 + i*32}", ("C", nb))
    csread(0); csread(1)
    for kkb in range(2):
        for e in range(2):
            nb = 2 * kkb + e
            A.wait_lg(lambda g: g == ("C", nb))
            for k in range(0, 16, 2):
                r = ACC + nb * 16 + k
                A(f"v_pk_fma_f32 {v(r,2)}, {v(csr(nb)+k,2)}, {v(NM,2)}, {v(r,2)} op_sel_hi:[1,0,1]")
        if kkb == 0: csread(2); csread(3)
        for half in range(2):
            out = TMP + 4 * ((2 * kkb + half) & 3)
            for e in range(2):
                nb = 2 * kkb + e
                gq = ACC + nb * 16 + 4 * half
                uq = gq + 8
                Tt = T + 4 * e
                for k in (0, 2): A(f"v_pk_mul_f32 {v(Tt+k,2)}, {v(gq+k,2)}, {v(gq+k,2)}")
                for k in (0, 2): A(f"v_pk_fma_f32 {v(Tt+k,2)}, {v(Tt+k,2)}, {v(CA,2)}, {v(CB,2)} op_sel_hi:[1,0,0]")
                for k in (0, 2): A(f"v_pk_mul_f32 {v(Tt+k,2)}, {v(Tt+k,2)}, {v(gq+k,2)}")
                for k in range(4): A(f"v_exp_f32 v{Tt+k}, v{Tt+k}")
                for k in (0, 2): A(f"v_pk_mul_f32 {v(gq+k,2)}, {v(gq+k,2)}, {v(uq+k,2)}")
                for k in (0, 2): A(f"v_pk_fma_f32 {v(Tt+k,2)}, {v(Tt+k,2)}, {v(IR,2)}, {v(IR,2)} op_sel_hi:[1,0,0]")
                for k in range(4): A(f"v_rcp_f32 v{Tt+k}, v{Tt+k}")
                for k in (0, 2): A(f"v_pk_mul_f32 {v(gq+k,2)}, {v(gq+k,2)}, {v(Tt+k,2)}")
                A(f"v_cvt_pk_bf16_f32 v{out+2*e}, v{gq}, v{gq+1}")
                A(f"v_cvt_pk_bf16_f32 v{out+2*e+1}, v{gq+2}, v{gq+3}")
            A(f"buffer_store_dwordx4 {v(out,4)}, v{VOUT}, s[80:83], 0 offen offset:{kkb*1024 + half*512}{STF}")
    stamp(A, 19)
    signal_local(A, 2, T, 28, 19)
    stamp(A, 20)
    A("s_setprio 0")
    join(A, "L_p4_done"); reset(A)

def main(out_path):
    A = Asm(); name = NAME + "_kernel"
    A.raw(kernel_header(name))
    A("s_cmp_ge_u32 s2, 256"); A("s_cbranch_scc1 L_end")
    if STAMP:
        A("s_memtime s[90:91]"); A("v_mov_b32 v255, 0"); A("v_mov_b32 v254, 0")
    if env("DIAGT", 0): A("s_memrealtime s[90:91]")
    A(f"s_load_dwordx4 s[4:7], s[0:1], 64")
    A(f"s_load_dwordx4 s[84:87], s[0:1], 0")
    A(f"s_load_dwordx2 s[88:89], s[0:1], 16")
    A(f"s_load_dwordx8 s[92:99], s[0:1], 32")
    A("v_lshrrev_b32 v2, 6, v0")
    A("v_and_b32 v1, 63, v0")
    A("v_readfirstlane_b32 s20, v2")
    A("v_and_b32 v2, 31, v0")
    A("v_lshrrev_b32 v3, 5, v1")
    A("s_and_b32 s18, s2, 7")
    A("s_lshr_b32 s19, s2, 3")
    A("s_mov_b32 s16, 0"); A("s_mov_b32 s17, 0")
    A.wait_lg_all()
    if env("WSBASE", 0):
        A(f"s_add_u32 s{SWS}, s{SWS}, {env('WSBASE', 0) << 20:#x}"); A(f"s_addc_u32 s{SWS+1}, s{SWS+1}, 0")
    srd(A, SFL, SWS, WS_FL, FL_B)
    stamp(A, 0)
    phase1(A, True)
    A.label("L_layer"); reset(A)
    phase1(A, False); phase2(A); phase3(A); phase4(A); phase5(A)
    A("s_cmp_lg_u32 s16, 0"); A("s_cbranch_scc1 L_exit")
    A("s_mov_b32 s16, 1")
    A(f"s_add_u32 s{SWS}, s{SWS}, {LS:#x}"); A(f"s_addc_u32 s{SWS+1}, s{SWS+1}, 0")
    if STAMP: A("v_mov_b32 v254, v255")
    A.fence()
    A("s_branch L_layer")
    A.label("L_exit")
    if env("DIAGT", 0):
        A.label("L_diag")
        A("s_memrealtime s[22:23]"); A("s_waitcnt lgkmcnt(0)"); A.lg = []
        A("s_sub_u32 s22, s22, s90"); A(f"s_cmp_lt_u32 s22, {env('DIAGT', 0)}"); A("s_cbranch_scc1 L_diag")
    if STAMP:
        A("s_waitcnt vmcnt(0)")
        stamp(A, 31)
        srd(A, 76, SWS, WS_DBG - LS, 0x1000000)
        A("s_lshl_b32 s21, s2, 3"); A("s_add_u32 s21, s21, s20"); A("s_lshl_b32 s21, s21, 9")
        A("v_lshlrev_b32 v4, 2, v1"); A("v_add_u32 v4, s21, v4")
        A("buffer_store_dword v254, v4, s[76:79], 0 offen")
        A("buffer_store_dword v255, v4, s[76:79], 0 offen offset:256")
        if env("DBGOUT", 0):
            A("s_add_u32 s21, s2, s20"); A("s_cmp_lg_u32 s21, 0"); A("s_cbranch_scc1 L_end")
            srd(A, 76, SDBG, 0, 256)
            A("v_readlane_b32 s22, v254, 0")
            sel = [(254, 2), (254, 3), (254, 8), (254, 11), (254, 16), (254, 22), (255, 1), (255, 8), (255, 11), (255, 16), (255, 22), (255, 31)]
            slots = [2, 3, 4, 5, 6, 7, 10, 11, 12, 13, 14, 15]
            A("s_mov_b64 exec, 1")
            for (r, l), sl in zip(sel, slots):
                A(f"v_readlane_b32 s23, v{r}, {l}"); A("s_sub_u32 s23, s23, s22"); A("v_mov_b32 v6, s23"); A(f"v_mov_b32 v7, {sl*4}")
                A("buffer_store_dword v6, v7, s[76:79], 0 offen")
                A("s_waitcnt vmcnt(0)"); A.vm = []
    A.label("L_end"); A("s_endpgm")
    A.flush_tail()
    A.raw("    .p2align 4"); A.label("L_code_end")
    hdr = open(os.path.join(os.path.dirname(os.path.abspath(__file__)), "..", "cdna_kernels", NAME + ".s.ref")).read().split("; Override")[0]
    t = hdr + f"; @launch grid=(256,1,1) block=(512,1,1) lds={LDS_TOTAL}\n"
    t += '.amdgcn_target "amdgcn-amd-amdhsa--gfx950"\n.text\n' + A.text()
    t += '.section .rodata,"a"\n.p2align 6\n' + kernel_desc(name, 256, 0, 102)
    open(out_path, "w").write(t)

if __name__ == "__main__":
    main(sys.argv[1] if len(sys.argv) > 1 else f"cdna_kernels/{NAME}.s")
```

```python
import sys, os, struct
sys.path.insert(0, os.path.dirname(os.path.abspath(__file__)))
from asmdsl import *

NAME = "interleave_layers__sliding_block__glu_gated_geglu__prompt"
S_TOK, D, F = 2048, 640, 1728
XB = S_TOK * D * 2
LS = 0x2000000
WS_XIN = 0x0000000
WS_X1 = 0x0300000
WS_O = 0x0600000
WS_H = 0x0900000
H_B = S_TOK * F * 2
WS_QKV = 0x1000000
QKV_B = 480 * 16384
WS_STA = 0x1800000
WS_STB = 0x1840000
ST_B = 10 * S_TOK * 8
WS_FL = 0x1880000
FL_B = 0x20000
WS_QKL = 0x18a0000 + 0x60000
WS_DBG = 0x4000000
OOB = 0x80000000
LDS_TOTAL = 163840
RSV = LDS_TOTAL - 3072
CS_PART, CS1, CS4, L_MODE, L_CNT = RSV, RSV + 1024, RSV + 1536, RSV + 2048, RSV + 2064
P3W = RSV - 10 * 8448
SDBG, SWS, SX, SWQKV, SWO, SWG, SWU, SWD, SOUT = 4, 6, 84, 86, 88, 92, 94, 96, 98
SFL = 72
SPIN_MAX = 1 << 20
def env(n, d): return int(os.environ.get(n, str(d)))
def f32(x): return "0x%08x" % struct.unpack("<I", struct.pack("<f", x))[0]
STAMP = env("STAMP", 0)
FORCE_SLOW = env("FORCE_SLOW", 0)
LEAD = env("LEAD", 0)
DEFER = env("DEFER", 0)
S4 = env("S4", 2)
PLAIN = env("PLAIN", 0)
STF = "" if PLAIN else " sc1"
NT4 = " nt" if env("NT4", 0) else ""
NTX = " nt" if env("NTX", 0) else ""

def stamp(A, i):
    if STAMP:
        A("s_memtime s[100:101]" if STAMP == 1 else "s_memrealtime s[100:101]"); A.wait_lg_all()
        if STAMP == 1: A("s_sub_u32 s100, s100, s90")
        A(f"v_writelane_b32 v255, s100, {i}")

def srd(A, d, base, off, size, soff=None):
    A(f"s_add_u32 s{d}, s{base}, {off:#x}")
    A(f"s_addc_u32 s{d+1}, s{base+1}, 0")
    if soff is not None:
        A(f"s_add_u32 s{d}, s{d}, s{soff}")
        A(f"s_addc_u32 s{d+1}, s{d+1}, 0")
    A(f"s_mov_b32 s{d+2}, {size:#x}")
    A(f"s_mov_b32 s{d+3}, 0x20000")

def join(A, label):
    A.fence(); A.label(label)

def spin(A, body, name, sleep=1):
    lp = A.newlabel(name); out = A.newlabel(name + "x")
    A("s_mov_b32 s35, 0")
    A.fence(); A.label(lp)
    body()
    A("s_add_u32 s35, s35, 1")
    A(f"s_cmp_gt_u32 s35, {SPIN_MAX}"); A(f"s_cbranch_scc1 {out}")
    A(f"s_cbranch_vccz {out}")
    if sleep: A(f"s_sleep {sleep}")
    A(f"s_branch {lp}")
    A.fence(); A.label(out)

def acquire_if_slow(A):
    l = A.newlabel("acq")
    A("s_cmp_lg_u32 s17, 0"); A(f"s_cbranch_scc1 {l}")
    A("buffer_inv sc1"); A("s_waitcnt vmcnt(0)")
    A.label(l)

def signal_local(A, k, t0, sblk, sprod, nowait=False):
    A("s_lshl_b32 s21, s16, 3"); A(f"s_add_u32 s21, s21, {k}"); A("s_lshl_b32 s21, s21, 3"); A("s_add_u32 s21, s21, s18")
    A(f"s_lshl_b32 s21, s21, 3"); A(f"s_add_u32 s21, s21, s{sblk}"); A("s_lshl_b32 s21, s21, 5"); A(f"s_add_u32 s21, s21, s{sprod}")
    A(f"v_mov_b32 v{t0}, s21"); A(f"v_mov_b32 v{t0+1}, 1")
    if not nowait: A.wait_vm_all()
    slow = A.newlabel("sigslow"); done = A.newlabel("sigdone")
    A("s_mov_b64 exec, 1")
    A("s_cmp_eq_u32 s17, 0"); A(f"s_cbranch_scc1 {slow}")
    A(f"buffer_store_byte v{t0+1}, v{t0}, {s(SFL,4)}, 0 offen")
    A(f"s_branch {done}")
    A.label(slow)
    A(f"buffer_store_byte v{t0+1}, v{t0}, {s(SFL,4)}, 0 offen sc1")
    A.label(done)
    A("s_mov_b64 exec, -1")
    A.vm = [None]

def signal_defer(A, k, sblk, sprod):
    A("s_lshl_b32 s3, s16, 3"); A(f"s_add_u32 s3, s3, {k}"); A("s_lshl_b32 s3, s3, 3"); A("s_add_u32 s3, s3, s18")
    A(f"s_lshl_b32 s3, s3, 3"); A(f"s_add_u32 s3, s3, s{sblk}"); A("s_lshl_b32 s3, s3, 5"); A(f"s_add_u32 s3, s3, s{sprod}")

def signal_flush(A, t0):
    slow = A.newlabel("sfslow"); done = A.newlabel("sfdone")
    A(f"s_cmp_eq_u32 s3, {OOB:#x}"); A(f"s_cbranch_scc1 {done}")
    A(f"v_mov_b32 v{t0}, s3"); A(f"v_mov_b32 v{t0+1}, 1")
    A("s_waitcnt vmcnt(0)")
    A("s_mov_b64 exec, 1")
    A("s_cmp_eq_u32 s17, 0"); A(f"s_cbranch_scc1 {slow}")
    A(f"buffer_store_byte v{t0+1}, v{t0}, {s(SFL,4)}, 0 offen")
    A("s_mov_b64 exec, -1")
    A(f"s_branch {done}")
    A.label(slow)
    A(f"buffer_store_byte v{t0+1}, v{t0}, {s(SFL,4)}, 0 offen sc1")
    A("s_mov_b64 exec, -1")
    join(A, done)
    A(f"s_mov_b32 s3, {OOB:#x}")
    reset(A)

def wait_local(A, k, p0, p1, sblk, t0, layer_delta=0, sleep=1):
    A(f"v_and_b32 v{t0+1}, 7, v1"); A(f"v_lshlrev_b32 v{t0+2}, 5, v{t0+1}")
    A(f"v_mov_b32 v{t0}, 0")
    for j in range(8):
        m = sum(1 << (8 * q) for q in range(4) if p0 <= 4 * j + q < p1)
        if m == 0x01010101 or m == 0: continue
        A(f"v_cmp_eq_u32 vcc, {j}, v{t0+1}"); A(f"v_mov_b32 v{t0+2}, {m:#x}"); A(f"v_cndmask_b32 v{t0}, v{t0}, v{t0+2}, vcc")
    f0, f1 = (p0 + 3) // 4, p1 // 4
    A(f"v_subrev_u32 v{t0+2}, {f0}, v{t0+1}"); A(f"v_cmp_gt_u32 vcc, {f1 - f0}, v{t0+2}")
    A(f"v_mov_b32 v{t0+2}, 0x01010101"); A(f"v_cndmask_b32 v{t0}, v{t0}, v{t0+2}, vcc")
    A(f"v_lshlrev_b32 v{t0+1}, 2, v{t0+1 if sblk is not None else 1}")
    A(f"s_add_u32 s21, s16, {layer_delta & 0xffffffff:#x}")
    A("s_lshl_b32 s21, s21, 3"); A(f"s_add_u32 s21, s21, {k}"); A("s_lshl_b32 s21, s21, 3"); A("s_add_u32 s21, s21, s18"); A("s_lshl_b32 s21, s21, 3")
    if sblk is not None: A(f"s_add_u32 s21, s21, s{sblk}")
    A("s_lshl_b32 s21, s21, 5")
    def body():
        A(f"buffer_load_dword v{t0+2}, v{t0+1}, {s(SFL,4)}, s21 offen sc1")
        A.wait_vm_all()
        A(f"v_and_b32 v{t0+2}, v{t0+2}, v{t0}")
        A(f"v_cmp_ne_u32 vcc, v{t0+2}, v{t0}")
    spin(A, body, "wl", sleep)
    acquire_if_slow(A)

def census_wait(A, t0, sleep=8):
    srd(A, 76, SDBG, 0, 256)
    A("s_sub_u32 s21, s18, 1"); A("s_max_i32 s21, s21, 0")
    A(f"v_mov_b32 v{t0}, s18"); A(f"v_mov_b32 v{t0+1}, s21")
    A("v_cmp_eq_u32 vcc, 0, v1")
    A(f"v_cndmask_b32 v{t0}, v{t0+1}, v{t0}, vcc")
    A(f"v_lshlrev_b32 v{t0}, 5, v{t0}")
    def body():
        A(f"buffer_load_dwordx2 {v(t0+2,2)}, v{t0}, s[76:79], 0 offen sc1")
        A.wait_vm_all()
        A(f"v_sad_u8 v{t0+1}, v{t0+2}, 0, 0")
        A(f"v_sad_u8 v{t0+1}, v{t0+3}, 0, v{t0+1}")
        A(f"v_cmp_ne_u32 vcc, 32, v{t0+1}")
    spin(A, body, "cen", sleep)
    A(f"v_readfirstlane_b32 s22, v{t0+2}"); A(f"v_readfirstlane_b32 s23, v{t0+3}")
    A("s_bcnt1_i32_b64 s21, s[22:23]")
    A("s_cmp_eq_u32 s21, 1"); A(f"s_cselect_b32 s17, {0 if FORCE_SLOW else 1}, 0")
    A(f"v_mov_b32 v{t0}, {L_MODE}"); A(f"v_mov_b32 v{t0+2}, s17"); A(f"v_mov_b32 v{t0+3}, 0")
    A(f"ds_write_b64 v{t0}, {v(t0+2,2)}")
    A(f"v_mov_b32 v{t0+2}, 0")
    for q in range(3): A(f"ds_write_b64 v{t0}, {v(t0+2,2)} offset:{16 + 8*q}")

def cnt_add(A, k, t0):
    A(f"v_mov_b32 v{t0}, {L_CNT + 4*k}"); A(f"v_mov_b32 v{t0+1}, 1")
    A("s_mov_b64 exec, 1")
    A(f"ds_add_u32 v{t0}, v{t0+1}")
    A("s_mov_b64 exec, -1")

def cnt_wait(A, k, n, t0):
    A(f"s_mul_i32 s21, s16, {n}"); A(f"s_add_u32 s21, s21, {n}"); A(f"v_mov_b32 v{t0}, {L_CNT + 4*k}")
    def body():
        A(f"ds_read_b32 v{t0+1}, v{t0}"); A.wait_lg_all()
        A(f"v_cmp_gt_u32 vcc, s21, v{t0+1}")
    spin(A, body, "lc", 1)

def row_loads(A, b):
    srd(A, 36, SX, 0, XB)
    A("s_lshl_b32 s21, s18, 8"); A("s_lshl_b32 s22, s19, 3"); A("s_add_u32 s21, s21, s22"); A("s_and_b32 s22, s20, 3"); A("s_lshl_b32 s22, s22, 1"); A("s_add_u32 s21, s21, s22")
    A(f"v_add_u32 v{b+12}, s21, v3"); A(f"v_mul_u32_u24 v{b+13}, 1280, v{b+12}"); A(f"v_lshl_add_u32 v{b+13}, v2, 4, v{b+13}")
    A(f"buffer_load_dwordx4 {v(b,4)}, v{b+13}, s[36:39], 0 offen", "row")
    A(f"buffer_load_dwordx4 {v(b+4,4)}, v{b+13}, s[36:39], 0 offen offset:512", "row")
    A(f"v_lshrrev_b32 v{b+8}, 4, v2"); A(f"v_lshl_add_u32 v{b+13}, v{b+8}, 31, v{b+13}")
    A(f"buffer_load_dwordx4 {v(b+8,4)}, v{b+13}, s[36:39], 0 offen offset:1024", "row")

def row_stats(A, b, t):
    A.wait_vm(lambda g: g == "row")
    A(f"v_mov_b32 v{t}, 0"); A(f"v_mov_b32 v{t+1}, 0"); A(f"v_mov_b32 v{t+2}, 0x3f803f80")
    for q in range(12):
        A(f"v_dot2_f32_bf16 v{t}, v{b+q}, v{t+2}, v{t}"); A(f"v_dot2_f32_bf16 v{t+1}, v{b+q}, v{b+q}, v{t+1}")
    A("s_nop 3")
    for r in (1, 2, 4, 8):
        for k in range(2): A(f"v_add_f32_dpp v{t+k}, v{t+k}, v{t+k} row_ror:{r} row_mask:0xf bank_mask:0xf")
    A(f"v_mov_b32 v{t+2}, v{t}"); A(f"v_mov_b32 v{t+3}, v{t+1}")
    A(f"v_permlane16_swap_b32 v{t}, v{t+2}"); A(f"v_permlane16_swap_b32 v{t+1}, v{t+3}")
    A(f"v_add_f32 v{t}, v{t}, v{t+2}"); A(f"v_add_f32 v{t+1}, v{t+1}, v{t+3}")
    ln_finish(A, t, t + 4, t + 5)
    srd(A, 36, SWS, WS_STA, ST_B)
    A(f"v_lshlrev_b32 v{t}, 3, v{b+12}")
    A("s_mov_b32 exec_lo, 1"); A("s_mov_b32 exec_hi, 1")
    A(f"buffer_store_dwordx2 {v(t+4,2)}, v{t}, s[36:39], 0 offen sc1", "rst")
    A("s_mov_b64 exec, -1")

def read_mode(A, t0):
    A(f"v_mov_b32 v{t0}, {L_MODE}")
    A(f"ds_read_b32 v{t0}, v{t0}", "mode")
    A.wait_lg(lambda g: g == "mode")
    A(f"v_readfirstlane_b32 s17, v{t0}")

def flags_zero(A, t0):
    A(f"v_mov_b32 v{t0}, 0"); A(f"v_mov_b32 v{t0+1}, 0")
    A("s_lshl_b32 s21, s18, 8"); A("s_lshl_b32 s22, s19, 3"); A("s_add_u32 s21, s21, s22")
    A(f"v_lshlrev_b32 v{t0+2}, 11, v1"); A(f"v_add_u32 v{t0+2}, s21, v{t0+2}")
    A("s_lshl_b32 s21, s18, 5"); A("s_add_u32 s21, s21, s19"); A("s_lshl_b32 s21, s21, 7"); A(f"s_add_u32 s21, s21, {(0x10000 - 16*32768) & 0xffffffff:#x}")
    A(f"v_lshlrev_b32 v{t0+3}, 15, v1"); A(f"v_add_u32 v{t0+3}, s21, v{t0+3}")
    A("v_cmp_gt_u32 vcc, 16, v1"); A(f"v_cndmask_b32 v{t0+2}, v{t0+3}, v{t0+2}, vcc")
    A("s_lshl_b32 s21, s16, 3"); A("s_add_u32 s21, s21, s20")
    A("s_cmp_eq_u32 s21, 4"); A("s_cselect_b32 s22, 0x3ffff, 0"); A("s_mov_b32 s23, 0")
    A(f"v_mov_b32 v{t0+3}, {OOB:#x}")
    A(f"v_cndmask_b32 v{t0+2}, v{t0+3}, v{t0+2}, s[22:23]")
    A(f"buffer_store_dwordx2 {v(t0,2)}, v{t0+2}, {s(SFL,4)}, 0 offen sc1", "fz")

def census_post(A, t0):
    srd(A, 76, SDBG, 0, 256)
    A("s_getreg_b32 s21, hwreg(HW_REG_XCC_ID)"); A("s_and_b32 s21, s21, 7"); A("s_lshl_b32 s21, s21, 3")
    A("s_mov_b64 s[22:23], 1"); A("s_lshl_b64 s[22:23], s[22:23], s21")
    A(f"v_mov_b32 v{t0}, s22"); A(f"v_mov_b32 v{t0+1}, s23")
    A("s_lshl_b32 s21, s16, 3"); A("s_add_u32 s21, s21, s20"); A("s_lshl_b32 s22, s18, 5")
    A("s_cmp_eq_u32 s21, 4"); A(f"s_cselect_b32 s21, s22, {OOB:#x}")
    A(f"v_mov_b32 v{t0+2}, s21")
    A("s_mov_b64 exec, 1")
    A(f"buffer_atomic_add_x2 {v(t0,2)}, v{t0+2}, s[76:79], 0 offen sc1")
    A("s_mov_b64 exec, -1")

def stats_items(A, vtok_off, srd_st, tmp, sbase=None):
    def mk(i):
        def f():
            A(f"s_mov_b32 s21, {i*2048}" if sbase is None else f"s_add_u32 s21, s{sbase}, {i*2048}")
            A(f"buffer_load_dwordx2 {v(tmp+2*i,2)}, v{vtok_off}, {s(srd_st,4)}, s21 offen sc1", ("S",))
        return f
    return [mk(i) for i in range(5)]

def finish_stats(A, tmp, negmean, rstd, t2, single=False):
    if not single:
        A(f"v_pk_add_f32 {v(tmp,2)}, {v(tmp,2)}, {v(tmp+2,2)}")
        A(f"v_pk_add_f32 {v(tmp+4,2)}, {v(tmp+4,2)}, {v(tmp+6,2)}")
        A(f"v_pk_add_f32 {v(tmp,2)}, {v(tmp,2)}, {v(tmp+8,2)}")
        A(f"v_pk_add_f32 {v(tmp,2)}, {v(tmp,2)}, {v(tmp+4,2)}")
    A(f"v_mov_b32 v{t2}, v{tmp}")
    A(f"v_mov_b32 v{t2+1}, v{tmp+1}")
    A(f"v_permlane32_swap_b32 v{tmp}, v{t2}")
    A(f"v_permlane32_swap_b32 v{tmp+1}, v{t2+1}")
    A(f"v_pk_add_f32 {v(tmp,2)}, {v(tmp,2)}, {v(t2,2)}")
    ln_finish(A, tmp, negmean, rstd)

def bfr(A, r):
    A(f"v_cvt_pk_bf16_f32 v{r}, v{r}, v{r}"); A(f"v_and_b32 v{r}, 0xffff0000, v{r}")

def ln_finish(A, tmp, negmean, rstd):
    A(f"v_mul_f32 v{negmean}, {f32(-1.0/D)}, v{tmp}")
    A(f"v_mul_f32 v{tmp+1}, {f32(1.0/D)}, v{tmp+1}")
    A(f"v_fma_f32 v{tmp+1}, -v{negmean}, v{negmean}, v{tmp+1}")
    A(f"v_max_f32 v{tmp+1}, 0, v{tmp+1}")
    bfr(A, negmean); bfr(A, tmp + 1)
    A(f"v_add_f32 v{tmp+1}, {f32(1e-5)}, v{tmp+1}")
    bfr(A, tmp + 1)
    A(f"v_sqrt_f32 v{tmp+1}, v{tmp+1}")
    bfr(A, tmp + 1)
    A(f"v_rcp_f32 v{rstd}, v{tmp+1}")
    A(f"v_mul_f32 v{tmp+1}, v{tmp+1}, v{tmp+1}")

class Gemm:
    def __init__(self, A, NB, nstage, XS, WSL, slot_bytes, RB, nb_stride, acc, wf, xa,
                 vx, vwd, wd_srds, wd_lds, vtr, srd_x, w_row_stride, PRE, LA, npre=0):
        self.__dict__.update(locals())
        self.nbar = npre; self.issued = set()

    def load_list(self, do_x, do_w, wlead=0):
        L = []
        n = len(self.vwd)
        for t in range(min(0, wlead), self.nstage + max(0, wlead)):
            tw = t
            if do_w and max(self.npre, self.nland) <= tw < self.nstage:
                for j in range(n): L.append(("W", tw, j, j == n - 1))
            tx = t - wlead
            if do_x and 0 <= tx < self.nstage:
                for st in range(4): L.append(("X", tx, st, st == 3))
        return L

    def issue(self, item):
        A = self.A
        if callable(item): return item()
        kind, t, j, last = item
        self.issued.add((kind, t, j))
        if kind == "X" and self.xstage:
            xs = self.xstage
            assert t - xs["nslot"] < self.cur_stage or t < xs["nslot"], (t, self.cur_stage)
            A(f"s_add_u32 m0, s33, {(t % xs['nslot']) * 4096 + j * 1024}")
            A(f"buffer_load_dwordx4 v{xs['vdma'][j]}, {s(self.srd_x,4)}, s30 offen{NTX} lds", ("X", t, j))
            if last and t < self.nstage - 1:
                A("s_add_u32 s30, s30, 128"); A(f"s_cmp_ge_u32 s30, {self.nstage * 128}"); A("s_cselect_b32 s30, 0, s30")
        elif kind == "X":
            st = j
            assert t - self.XS < self.cur_stage or (t - self.XS == self.cur_stage and st < self.cur_step), (t, self.cur_stage)
            r = self.xa + ((t % self.XS) * 4 + st) * 4
            if self.xdyn:
                A(f"buffer_load_dwordx4 {v(r,4)}, v{self.vx + st}, {s(self.srd_x,4)}, s30 offen", ("X", t, st))
            else:
                A(f"buffer_load_dwordx4 {v(r,4)}, v{self.vx}, {s(self.srd_x,4)}, s30 offen offset:{st*512} sc1", ("X", t, st))
            if last and t < self.nstage - 1:
                A("s_add_u32 s30, s30, s33" if self.xdyn else "s_add_u32 s30, s30, 2048")
                A("s_cmp_ge_u32 s30, s34" if self.xdyn else f"s_cmp_ge_u32 s30, {self.nstage * 2048}")
                A("s_cselect_b32 s30, 0, s30")
        else:
            assert t < self.WSL or self.realbar >= t - self.WSL + 2, (t, self.realbar)
            A(f"s_add_u32 m0, s32, {(t % self.WSL) * self.slot_bytes + self.wd_lds[j]}")
            A(f"buffer_load_dwordx4 v{self.vwd[j]}, {s(self.wd_srds[j],4)}, s31 offen{self.wflags} lds", ("W", t))
            if self.throttle is not None: A(f"s_waitcnt vmcnt({self.throttle})"); A.vm = A.vm[-self.throttle:] if self.throttle else []
            if last and t < self.nstage - 1: self.adv_w()

    def adv_w(self):
        A = self.A
        A(f"s_add_u32 s31, s31, {64 * self.w_row_stride}")
        A(f"s_cmp_ge_u32 s31, {self.nstage * 64 * self.w_row_stride}")
        A("s_cselect_b32 s31, 0, s31")

    def tr_reads(self, t, st, buf):
        out = []
        kb, f = st >> 1, st & 1
        slot = t % self.WSL
        per = 65536 // self.slot_bytes
        va = self.vtr[slot // per]
        base = (slot % per) * self.slot_bytes
        for nb in range(self.NB):
            for rd in range(2):
                off = base + (8 * kb + 4 * rd + 2 * f) * self.RB + nb * self.nb_stride
                r = self.wf + (buf * self.NB + nb) * 4 + rd * 2
                out.append((f"ds_read_b64_tr_b16 {v(r,2)}, v{va} offset:{off}", ("F", t, st, nb)))
        return out

    realbar = -1
    xdyn = False
    bar_at = None
    bar_fn = None
    wgate = None
    pre_bar = {}
    LA0 = 0
    FD = 1
    xstage = None
    wflags = ""
    throttle = None
    lastbar = None
    nland = 0
    def barrier(self, t):
        if t < self.npre: return
        if self.lastbar is not None and t > self.lastbar: return
        if t in self.pre_bar: self.pre_bar[t]()
        tw = self.nstage - 1 if t == self.lastbar else t
        assert not self.do_w or tw < self.nland or ("W", tw, len(self.vwd) - 1) in self.issued, (t, tw)
        self.A.wait_vm(lambda g: g == ("W", tw))
        self.A("s_barrier")
        self.realbar = t

    def run_idle(self):
        for t in range(self.npre, self.nstage): self.A("s_barrier")

    def prefetch(self, n):
        self.do_w = True; self.cur_stage, self.cur_step = -1, 0
        for it in self.load_list(False, True):
            if it[1] < n: self.issue(it)

    def run_loader(self, after_bar=None, early=None, first=None):
        L = self.load_list(False, True); self.do_w = True
        self.cur_stage, self.cur_step = -1, 0
        k = 0
        for t in range(self.nstage + 1):
            if early and t > 0: early(t - 1)
            lim = max(self.LA, min(t + self.WSL - 2, t + self.LA))
            if t == 0 and self.LA0: lim = self.LA0
            while k < len(L) and L[k][1] < lim and (L[k][1] < self.WSL or self.realbar >= L[k][1] - self.WSL + 2):
                self.issue(L[k]); k += 1
                if first and k == env("FIRSTN", 8): first()
            if after_bar and t > 0: after_bar(t - 1)
            if t < self.nstage: self.barrier(t)
        assert k == len(L)

    def xread(self, t, st):
        xs = self.xstage
        r = self.xa + ((t % 2) * 4 + st) * 4
        self.A(f"ds_read_b128 {v(r,4)}, v{xs['vrd'][st]} offset:{(t % xs['nslot']) * 4096}", ("XR", t, st))

    def run(self, zero_init=True, do_w=True, extra=(), extra_at=3, wlead=0, sb=0, stage_end=None, per_mfma=None, tail=(), rate=None):
        A = self.A
        tail = list(tail)
        L = self.load_list(True, do_w, wlead); self.do_w = do_w
        pos = next(i for i, it in enumerate(L) if it[0] == "X" and it[1] == extra_at)
        L[pos:pos] = list(extra)
        self.cur_stage, self.cur_step = -1, 0
        k = min(self.PRE, len(L))
        for q, it in enumerate(L[:k]):
            if self.bar_at == q: (self.bar_fn() if self.bar_fn else A("s_barrier"))
            assert self.bar_at is None or q >= self.bar_at or it[0] == "X"
            self.issue(it)
        self.barrier(0)
        stamp(A, sb + 1)
        xs = self.xstage
        if xs:
            A.wait_vm(lambda g: g == ("X", 0, 3))
            for st in range(4): self.xread(0, st)
        FD = self.FD
        for q in range(FD):
            for ins, tag in self.tr_reads(0, q, q): A(ins, tag)
        gstep = 0
        nm = self.NB
        per_stage = 4 + (len(self.vwd) if do_w else 0)
        rate = (rate or per_stage) / (4.0 * nm)
        credit = 0.0
        for t in range(self.nstage):
            for st in range(4):
                self.cur_stage, self.cur_step = t, st
                buf = gstep % (FD + 1)
                if st == 4 - FD and t + 1 < self.nstage: self.barrier(t + 1)
                gn = gstep + FD
                nreads = self.tr_reads(gn // 4, gn % 4, gn % (FD + 1)) if gn < 4 * self.nstage else []
                if xs:
                    xr = self.xa + ((t % 2) * 4 + st) * 4
                    if st >= 2 and t + 1 < self.nstage:
                        if st == 2:
                            assert ("X", t + 1, 3) in self.issued
                            A.wait_vm(lambda g: g == ("X", t + 1, 3))
                        self.xread(t + 1, 2 * (st - 2)); self.xread(t + 1, 2 * (st - 2) + 1)
                else:
                    xr = self.xa + ((t % self.XS) * 4 + st) * 4
                    assert ("X", t, st) in self.issued
                    A.wait_vm(lambda g: g == ("X", t, st))
                for nb in range(self.NB):
                    A.wait_lg(lambda g: g == ("F", t, st, nb) or g == ("XR", t, st))
                    ac = self.acc + nb * 16
                    wr = self.wf + (buf * self.NB + nb) * 4
                    c = "0" if (zero_init and gstep == 0) else v(ac, 16)
                    A(f"v_mfma_f32_32x32x16_bf16 {v(ac,16)}, {v(wr,4)}, {v(xr,4)}, {c}")
                    for ins, tag in nreads[2 * nb:2 * nb + 2]: A(ins, tag)
                    if per_mfma: per_mfma(xr, nb)
                    if tail and self.realbar == self.lastbar and nb == 1: tail.pop(0)()
                    credit += rate
                    while credit >= 1.0 - 1e-9 and k < len(L):
                        it = L[k]
                        if not callable(it):
                            if it[0] == "X" and xs:
                                if not (it[1] - xs["nslot"] < t or it[1] < xs["nslot"]): break
                            elif it[0] == "X" and not (it[1] - self.XS < t or (it[1] - self.XS == t and it[2] < st)): break
                            if it[0] == "W" and not (it[1] < self.WSL or self.realbar >= it[1] - self.WSL + 2): break
                            if it[0] == "W" and self.wgate is not None and self.realbar < self.wgate: break
                            credit -= 1.0
                        else: credit -= 0.25
                        self.issue(it); k += 1
                gstep += 1
            if stage_end: stage_end(t)
        assert k == len(L), (k, len(L))
        assert not tail
        stamp(A, sb + 2)

ROT = env("ROT", 0)
def rot_calc(A, kind):
    n = 27 if kind == "p5" else 10
    A(f"s_mul_i32 s21, s18, {n}"); A("s_lshr_b32 s21, s21, 3")
    if kind == "p1r":
        A("s_and_b32 s22, s19, 1"); A("s_mul_i32 s22, s22, 5"); A("s_add_u32 s21, s21, s22")
        A("s_cmp_ge_u32 s21, 10"); A("s_cselect_b32 s22, 10, 0"); A("s_sub_u32 s21, s21, s22")
    elif ROT:
        if kind == "p1":
            A("s_lshr_b32 s22, s19, 1"); A("s_add_u32 s21, s21, s22")
            if ROT == 1: A("s_and_b32 s22, s19, 1"); A("s_mul_i32 s22, s22, 5"); A("s_add_u32 s21, s21, s22")
        elif kind == "p4":
            A("s_add_u32 s21, s21, s19")
        else:
            A("s_mul_i32 s22, s19, 171"); A("s_lshr_b32 s22, s22, 9")
            A("s_mul_i32 s23, s22, 3"); A("s_sub_u32 s23, s19, s23")
            if kind == "p5":
                A("s_mul_i32 s22, s22, 11"); A("s_lshr_b32 s22, s22, 2"); A("s_mul_i32 s23, s23, 9")
            else:
                A("s_mul_i32 s23, s23, 3")
            A("s_add_u32 s21, s21, s22")
            if ROT == 1: A("s_add_u32 s21, s21, s23")
        mag = (65536 + n - 1) // n
        A(f"s_mul_i32 s22, s21, {mag}"); A("s_lshr_b32 s22, s22, 16"); A(f"s_mul_i32 s22, s22, {n}"); A("s_sub_u32 s21, s21, s22")

def rot_init(A, kind, w_row_stride, wskip=0):
    nstage = 27 if kind == "p5" else 10
    rot_calc(A, kind)
    A("s_lshl_b32 s30, s21, 11")
    if wskip:
        A(f"s_add_u32 s21, s21, {wskip}"); A(f"s_cmp_ge_u32 s21, {nstage}"); A(f"s_cselect_b32 s22, {nstage}, 0"); A("s_sub_u32 s21, s21, s22")
    A(f"s_mul_i32 s31, s21, {64 * w_row_stride}")

def tr_lane_addr(A, dst, PS, RB, cg_stride, t0, base=0):
    A(f"v_bfe_u32 v{t0}, v1, 2, 2")
    A(f"v_mul_u32_u24 v{dst}, {PS}, v{t0}")
    A(f"v_mul_u32_u24 v{t0}, {RB}, v3")
    A(f"v_add_u32 v{dst}, v{dst}, v{t0}")
    A(f"v_bfe_u32 v{t0}, v1, 4, 1")
    A(f"v_mul_u32_u24 v{t0}, {cg_stride}, v{t0}")
    A(f"v_add_u32 v{dst}, v{dst}, v{t0}")
    A(f"v_and_b32 v{t0}, 3, v1")
    A(f"v_lshl_add_u32 v{dst}, v{t0}, 3, v{dst}")
    if base: A(f"v_add_u32 v{dst}, {base}, v{dst}")

def cl_lane_off(A, dst, stok, tb_stride, t0):
    A(f"v_lshrrev_b32 v{t0}, 4, v2")
    A(f"s_lshr_b32 s21, s{stok}, 4")
    A(f"v_add_u32 v{t0}, s21, v{t0}")
    A(f"s_mov_b32 s21, {tb_stride}")
    A(f"v_mul_lo_u32 v{dst}, v{t0}, s21")
    A(f"v_lshl_add_u32 v{dst}, v3, 8, v{dst}")
    A(f"v_and_b32 v{t0}, 15, v2")
    A(f"v_lshl_add_u32 v{dst}, v{t0}, 4, v{dst}")

def wdma_off(A, dst, n, lanes_per_row, row_stride, scol, splane, t0):
    sh = {8: 3, 16: 4}[lanes_per_row]; R = 64 // lanes_per_row
    A(f"v_lshrrev_b32 v{t0}, {sh}, v1")
    A(f"v_lshlrev_b32 v{t0}, 2, v{t0}")
    A(f"v_add_u32 v{t0}, s{splane}, v{t0}")
    A(f"v_mul_u32_u24 v{t0}, {row_stride}, v{t0}")
    A(f"v_and_b32 v{t0+1}, {lanes_per_row-1}, v1")
    A(f"v_lshl_add_u32 v{t0}, v{t0+1}, 4, v{t0}")
    A(f"v_add_u32 v{dst}, s{scol}, v{t0}")
    for j in range(1, n): A(f"v_add_u32 v{dst+j}, {4*R*j*row_stride}, v{dst}")

def stats_off(A, dst, stok_local, t0):
    A(f"v_add_u32 v{t0}, s{stok_local}, v2")
    A(f"v_lshlrev_b32 v{dst}, 3, v{t0}")
    A(f"v_mul_u32_u24 v{t0}, 10240, v3")
    A(f"v_add_u32 v{dst}, v{dst}, v{t0}")
    A("s_mul_i32 s21, s18, 20480")
    A(f"v_add_u32 v{dst}, s21, v{dst}")

def l0_only(A, fn, name):
    l = A.newlabel(name)
    A("s_cmp_lg_u32 s16, 0"); A(f"s_cbranch_scc1 {l}")
    h = list(A.hist)
    fn()
    A.fence(); A.label(l)
    A.hist = h

def reset(A): A.vm = []; A.lg = []

def phase1(A, L0):
    n = "p1a" if L0 else "p1b"
    PS, RB, SLOT = 4160, 256, 16640
    XSL = env("XSL1A", 4)
    WSL, XS = (9 - XSL, 2) if L0 else (env("WSL1", 9), 6)
    XST = (9 - XSL) * SLOT
    VX, VWD, VTR, VST, VCS, VOUT, NM, RS = 4, 4, 9, 12, 13, 14, 16, 18
    TMP = 20; WF = 32; ACC = 64; CS = 128; XA = 144; SA = 240; ONE = 244; VXR = 248
    A("s_cmp_ge_u32 s19, 30"); A(f"s_cbranch_scc1 L_{n}_idle")
    m0_ = len(A.lines)
    if L0:
        warm_tlb(A)
        l = A.newlabel("ir")
        A("s_cmp_lt_u32 s20, 4"); A(f"s_cbranch_scc1 {l}")
        row_loads(A, 32); flags_zero(A, 4); row_stats(A, 32, 16); A.wait_vm_all()
        join(A, l); reset(A)
        A("s_barrier")
        census_post(A, 4)
        warm_code(A); warm_mall(A)
        l = A.newlabel("cw")
        A("s_cmp_lg_u32 s20, 4"); A(f"s_cbranch_scc1 {l}")
        census_wait(A, 4, 64); A.wait_lg_all()
        join(A, l)
        A("s_barrier")
        read_mode(A, 4)
    A("s_branch L_p1_done")
    A.move_out(m0_, f"L_{n}_idle", jump=False); reset(A)
    A("s_and_b32 s26, s20, 3")
    A("s_and_b32 s24, s19, 1"); A("s_lshl_b32 s24, s24, 7")
    A("s_lshl_b32 s25, s26, 5"); A("s_add_u32 s24, s24, s25")
    A("s_lshl_b32 s27, s18, 8"); A("s_add_u32 s27, s27, s24")
    A("s_lshr_b32 s28, s19, 1")
    rot_init(A, "p1r" if (L0 and env("ROT1A", 0)) else "p1", 3840)
    def mk():
        g = Gemm(A, 4, 10, XS, WSL, SLOT, RB, 64, ACC, WF, XA, VX, [VWD + j for j in range(4)], [12] * 4,
                 [1024 * j for j in range(4)], [VTR, VTR + 1, VTR + 2], 8, 3840,
                 env("PRE1A", 12) if L0 else env("PRE1", 8), env("LA1A", 3) if L0 else env("LA1", 7))
        if L0: g.LA0 = env("LA0", 0)
        if L0: g.xstage = dict(vdma=[VX + j for j in range(4)], vrd=[VXR + j for j in range(4)], nslot=XSL)
        return g
    A("s_cmp_lt_u32 s20, 4"); A(f"s_cbranch_scc1 L_{n}_comp")
    srd(A, 12, SWQKV, 0, D * 1920 * 2)
    A(f"v_lshrrev_b32 v{TMP}, 4, v1"); A(f"v_lshlrev_b32 v{TMP}, {3 if L0 else 2}, v{TMP}"); A(f"v_add_u32 v{TMP}, s26, v{TMP}")
    A(f"v_mul_u32_u24 v{TMP}, 3840, v{TMP}")
    A(f"v_and_b32 v{TMP+1}, 15, v1"); A(f"v_lshl_add_u32 v{TMP}, v{TMP+1}, 4, v{TMP}")
    A("s_lshl_b32 s25, s28, 8"); A(f"v_add_u32 v{VWD}, s25, v{TMP}")
    A(f"v_add_u32 v{VWD+1}, {(4 if L0 else 16)*3840}, v{VWD}"); A(f"v_add_u32 v{VWD+2}, {32*3840}, v{VWD}"); A(f"v_add_u32 v{VWD+3}, {32*3840}, v{VWD+1}")
    A(f"s_mul_i32 s32, s26, {PS}")
    def st_publish(pair):
        A("s_cmp_lt_u32 s28, 5")
        A(f"s_cselect_b32 s21, {f32(20 ** -0.5 * 1.4426950408889634)}, 1.0")
        A(f"v_mul_f32 v{pair+1}, s21, v{pair+1}")
        A("s_lshl_b32 s21, s26, 8"); A(f"s_add_u32 s21, s21, {CS_PART}")
        A(f"v_lshlrev_b32 v{TMP}, 3, v2"); A(f"v_add_u32 v{TMP}, s21, v{TMP}")
        A(f"ds_write_b64 v{TMP}, {v(pair,2)}")
    if not L0:
        stats_off(A, VST, 24, TMP)
        srd(A, 36, SWS, WS_STA, ST_B)
        def after(t):
            if t == 4:
                for f in stats_items(A, VST, 36, TMP): f()
            if t == 7:
                A.wait_vm(lambda g: g == ("S",))
                finish_stats(A, TMP, NM, NM + 1, TMP + 10)
                st_publish(NM)
        mk().run_loader(after_bar=after)
        A.wait_lg_all()
        A("s_barrier")
        A("s_branch L_p1_done")
    else:
        mark = {}
        def first():
            mark["m"] = len(A.lines)
            row_loads(A, ACC)
            flags_zero(A, TMP)
        def early(t):
            if t == 0: row_stats(A, ACC, ACC + 16)
        def after(t):
            if t == 0:
                tr_lane_addr(A, VTR, PS, RB, 32, TMP)
                A("s_lshl_b32 s21, s26, 6"); A(f"v_add_u32 v{VTR}, s21, v{VTR}"); A(f"v_add_u32 v{VTR+1}, {3*SLOT}, v{VTR}")
                A(f"v_mov_b32 v{ONE}, 0x3f803f80")
                for k in range(4): A(f"v_mov_b32 v{SA+k}, 0")
            if t == env("CPOST", 3):
                assert "rst" not in A.vm
                census_post(A, TMP)
            slot = t % WSL
            for q in range(8):
                A(f"ds_read_b64_tr_b16 {v(WF + 2*q, 2)}, v{VTR + slot // 3} offset:{(slot % 3) * SLOT + 2 * q * RB}")
            if t == 8:
                A(f"v_add_u32 v{TMP}, s27, v2"); A(f"v_lshlrev_b32 v{TMP}, 3, v{TMP}")
                A(f"buffer_load_dwordx2 {v(NM,2)}, v{TMP}, s[36:39], 0 offen sc1", "S")
            A.wait_lg_all()
            for q in range(16): A(f"v_dot2_f32_bf16 v{SA + (q & 3)}, v{WF+q}, v{ONE}, v{SA + (q & 3)}")
            if t == 7:
                keep = list(A.vm)
                l = A.newlabel("cw")
                A("s_cmp_lg_u32 s20, 4"); A(f"s_cbranch_scc1 {l}")
                census_wait(A, TMP, 4)
                join(A, l)
                A.vm = keep
        mk().run_loader(after_bar=after, early=early, first=first)
        A("s_nop 3")
        A(f"v_add_f32 v{SA}, v{SA}, v{SA+1}"); A(f"v_add_f32 v{SA+2}, v{SA+2}, v{SA+3}"); A(f"v_add_f32 v{SA}, v{SA}, v{SA+2}")
        A(f"v_mov_b32 v{SA+1}, v{SA}"); A(f"v_permlane32_swap_b32 v{SA}, v{SA+1}"); A(f"v_add_f32 v{SA}, v{SA}, v{SA+1}")
        A("s_lshl_b32 s21, s26, 7"); A(f"s_add_u32 s21, s21, {CS1}")
        A(f"v_lshlrev_b32 v{TMP}, 2, v2"); A(f"v_add_u32 v{TMP}, s21, v{TMP}")
        A(f"ds_write_b32 v{TMP}, v{SA}")
        A.wait_vm_all()
        st_publish(NM)
        A.wait_lg_all()
        A("s_barrier")
        read_mode(A, TMP)
        A("s_branch L_p1_done")
        A.move_out(mark["m"], "L_p1a_ld")
    A.label(f"L_{n}_comp"); reset(A)
    if L0:
        srd(A, 8, SX, 0, XB)
        A(f"v_lshrrev_b32 v{TMP}, 3, v1"); A(f"v_add_u32 v{TMP}, s27, v{TMP}"); A(f"v_mul_u32_u24 v{TMP}, 1280, v{TMP}")
        A(f"v_lshrrev_b32 v{TMP+1}, 4, v1"); A(f"v_and_b32 v{TMP+2}, 7, v1"); A(f"v_xor_b32 v{TMP+1}, v{TMP+1}, v{TMP+2}")
        A(f"v_lshl_add_u32 v{VX}, v{TMP+1}, 4, v{TMP}")
        A(f"v_xor_b32 v{TMP+1}, 4, v{TMP+1}"); A(f"v_lshl_add_u32 v{VX+1}, v{TMP+1}, 4, v{TMP}"); A(f"v_add_u32 v{VX+1}, {8*1280}, v{VX+1}")
        A(f"v_add_u32 v{VX+2}, {16*1280}, v{VX}"); A(f"v_add_u32 v{VX+3}, {16*1280}, v{VX+1}")
        A("s_lshr_b32 s30, s30, 4")
        A(f"s_mul_i32 s33, s26, {XSL*4096}"); A(f"s_add_u32 s33, s33, {XST}")
    else:
        cl_lane_off(A, VX, 27, 20480, TMP)
        srd(A, 8, SWS, WS_XIN, XB)
    def setup():
        tr_lane_addr(A, VTR, PS, RB, 32, TMP)
        A(f"v_add_u32 v{VTR+1}, {3*SLOT}, v{VTR}")
        A(f"v_add_u32 v{VTR+2}, {6*SLOT}, v{VTR}")
        A(f"v_and_b32 v{TMP}, 15, v1"); A(f"v_lshlrev_b32 v{VOUT}, 4, v{TMP}"); A(f"v_lshl_add_u32 v{VOUT}, v3, 11, v{VOUT}")
        A(f"v_bfe_u32 v{TMP}, v1, 4, 1"); A(f"v_lshl_add_u32 v{VOUT}, v{TMP}, 12, v{VOUT}")
        A("s_lshl_b32 s21, s24, 3"); A(f"v_add_u32 v{VOUT}, s21, v{VOUT}")
        A(f"v_lshlrev_b32 v{VCS}, 4, v3"); A(f"v_add_u32 v{VCS}, {CS1}, v{VCS}")
        srd(A, 80, SWS, WS_QKV, QKV_B)
        if L0:
            A(f"v_bfe_u32 v{TMP}, v1, 1, 3"); A(f"v_xor_b32 v{TMP}, v{TMP}, v3")
            A(f"v_lshlrev_b32 v{TMP+1}, 7, v2"); A(f"v_add_u32 v{TMP+1}, s33, v{TMP+1}")
            for st in range(4):
                A(f"v_xor_b32 v{TMP+2}, {2*st}, v{TMP}"); A(f"v_lshl_add_u32 v{VXR+st}, v{TMP+2}, 4, v{TMP+1}")
        A("s_lshl_b32 s21, s26, 8"); A(f"s_add_u32 s21, s21, {CS_PART}")
        A(f"v_lshlrev_b32 v{VST}, 3, v2"); A(f"v_add_u32 v{VST}, s21, v{VST}")
    if L0:
        stamp(A, 1)
        g = mk()
        g.PRE += 1
        g.run(do_w=False, extra=[setup], extra_at=(g.PRE - 1) // 4, sb=1, rate=env("RATE1A", 4))
        A("s_branch L_p1_epi")
        return
    setup()
    A("s_lshr_b32 s29, s24, 5")
    if DEFER: signal_flush(A, TMP)
    wait_local(A, 3, 0, 10, 29, TMP, layer_delta=-1)
    reset(A)
    stamp(A, 1)
    mk().run(do_w=False, sb=1)
    A.label("L_p1_epi"); reset(A)
    A("s_barrier")
    A(f"ds_read_b64 {v(NM,2)}, v{VST}", ("C", 0, 0))
    csr = lambda nb: (WF + (nb & 1) * 16) if nb != 0 else CS
    def csread(nb):
        for i in range(4): A(f"ds_read_b128 {v(csr(nb) + i*4, 4)}, v{VCS} offset:{nb*128 + i*32}", ("C", nb, i))
    csread(0); csread(1); csread(2)
    A("s_lshr_b32 s29, s24, 5")
    A("s_mul_i32 s24, s18, 480"); A("s_lshl_b32 s25, s28, 5"); A("s_add_u32 s24, s24, s25"); A("s_lshl_b32 s24, s24, 11")
    for nb in range(4):
        if nb == 2: csread(3)
        for ip in range(2):
            r = ACC + nb * 16 + ip * 8; c = csr(nb) + ip * 8
            A.wait_lg(lambda g: g == ("C", nb, 2 * ip + 1))
            for k in range(0, 8, 2):
                A(f"v_pk_fma_f32 {v(r+k,2)}, {v(c+k,2)}, {v(NM,2)}, {v(r+k,2)} op_sel_hi:[1,0,1]")
            for k in range(0, 8, 2):
                A(f"v_pk_mul_f32 {v(r+k,2)}, {v(r+k,2)}, {v(NM,2)} op_sel:[0,1] op_sel_hi:[1,1]")
            for k in range(4):
                A(f"v_cvt_pk_bf16_f32 v{r+k}, v{r+2*k}, v{r+2*k+1}")
            A(f"s_add_u32 s21, s24, {(8*nb + 4*ip) * 2048}")
            A(f"v_permlane16_swap_b32 v{r}, v{r+2}")
            A(f"v_permlane16_swap_b32 v{r+1}, v{r+3}")
            A(f"buffer_store_dwordx4 {v(r,4)}, v{VOUT}, s[80:83], s21 offen sc1")
    read_mode(A, TMP)
    stamp(A, 4)
    A("s_lshl_b32 s21, s16, 3"); A("s_add_u32 s21, s21, s18"); A("s_lshl_b32 s21, s21, 5"); A("s_add_u32 s21, s21, s19")
    A("s_lshl_b32 s21, s21, 7"); A("s_add_u32 s21, s21, s20"); A("s_add_u32 s21, s21, 0x10000")
    A(f"v_mov_b32 v{TMP}, s21"); A(f"v_mov_b32 v{TMP+1}, 1")
    A.wait_vm_all()
    A("s_mov_b64 exec, 1")
    A(f"buffer_store_byte v{TMP+1}, v{TMP}, {s(SFL,4)}, 0 offen sc1")
    A("s_mov_b64 exec, -1")
    signal_local(A, 4, TMP + 2, 29, 28, nowait=True)
    stamp(A, 5)
    join(A, "L_p1_done"); reset(A)

P35 = dict(PS=2112, RB=128, SLOT=8448)
def p35_ids(A):
    A("s_mul_i32 s28, s19, 171"); A("s_lshr_b32 s28, s28, 9")
    A("s_mul_i32 s25, s28, 3"); A("s_sub_u32 s24, s19, s25")
    A("s_and_b32 s26, s20, 3")
    A("s_lshl_b32 s24, s24, 2"); A("s_add_u32 s24, s24, s26"); A("s_lshl_b32 s24, s24, 2")
    tab = [0, 1, 4, 8, 2, 5, 6, 8, 3, 7, 8, 8]
    t64 = sum(x << (4 * i) for i, x in enumerate(tab))
    A(f"s_mov_b32 s22, {t64 & 0xffffffff:#x}"); A(f"s_mov_b32 s23, {t64 >> 32:#x}")
    A("s_lshr_b64 s[22:23], s[22:23], s24"); A("s_and_b32 s29, s22, 15")
    A("s_lshl_b32 s24, s29, 5")
    A("s_lshl_b32 s27, s18, 8"); A("s_add_u32 s27, s27, s24")

def p35_gemm(A, nstage, WSL, PRE, LA, npre):
    g = Gemm(A, 2, nstage, 9, WSL, 8448, 128, 64, 48, 24, 96, 4, [6, 7], [12] * 2,
             [0, 1024], [8, 9, 13], 8, D * 2, PRE, LA, npre)
    g.FD = env("FD35", 2)
    return g

def p35_loader_setup(A, sw, K, base):
    A("s_lshl_b32 s25, s28, 7")
    wdma_off(A, 6, 2, 8, D * 2, 25, 26, 16)
    A(f"s_mul_i32 s32, s26, 2112")
    if base: A(f"s_add_u32 s32, s32, {base}")
    srd(A, 12, sw, 0, K * D * 2)

def p35_compute(A, nstage, WSL, npre, base, ws_x, x_bytes, ws_res, ws_out, ws_st, waitf, sigk, can_final, sb, PRE):
    VX, VTR, VRES, VST, VOUT = 4, 8, 10, 11, 12
    TMP = 16; ACC = 48; RES = 80
    cl_lane_off(A, VX, 27, nstage * 2048, TMP)
    tr_lane_addr(A, VTR, 2112, 128, 32, TMP, base)
    A(f"v_add_u32 v{VTR+1}, {7*8448}, v{VTR}"); A(f"v_add_u32 v13, {14*8448}, v{VTR}")
    cl_lane_off(A, VRES, 27, 20480, TMP)
    A("s_lshl_b32 s21, s28, 11")
    A(f"v_add_u32 v{VRES}, s21, v{VRES}")
    if True:
        A(f"v_add_u32 v{TMP}, s27, v2")
        A(f"v_mul_u32_u24 v{VOUT}, {D*2}, v{TMP}")
        A("s_lshl_b32 s21, s28, 7")
        A(f"v_add_u32 v{VOUT}, s21, v{VOUT}")
        A(f"v_lshl_add_u32 v{VOUT}, v3, {5 if can_final else 3}, v{VOUT}")
    A(f"v_add_u32 v{TMP}, s24, v2"); A(f"v_lshlrev_b32 v{VST}, 3, v{TMP}")
    A("s_mul_i32 s21, s18, 10"); A("s_add_u32 s21, s21, s28"); A("s_lshl_b32 s21, s21, 11")
    A(f"v_add_u32 v{VST}, s21, v{VST}")
    srd(A, 8, SWS, ws_x, x_bytes)
    srd(A, 36, SWS, ws_res, XB)
    srd(A, 76, SWS, ws_out, XB)
    srd(A, 80, SWS, ws_st, ST_B)
    if not can_final:
        A("s_cmp_lg_u32 s16, 0"); A("s_cbranch_scc1 L_p3_rescl")
        srd(A, 36, SX, 0, XB)
        for nb in range(2):
            for half in range(2):
                p = RES + (nb * 2 + half) * 4
                A(f"buffer_load_dwordx2 {v(p,2)}, v{VOUT}, s[36:39], 0 offen offset:{(32*nb + 8*half)*2}")
                A(f"buffer_load_dwordx2 {v(p+2,2)}, v{VOUT}, s[36:39], 0 offen offset:{(32*nb + 16 + 8*half)*2}")
        A("s_branch L_p3_resdone")
        A.label("L_p3_rescl")
    for nb in range(2):
        for half in range(2):
            A(f"buffer_load_dwordx4 {v(RES + (nb*2+half)*4, 4)}, v{VRES}, s[36:39], 0 offen offset:{nb*1024 + half*512} sc1", ("R",))
    if not can_final: A.label("L_p3_resdone")
    CINIT = env("CINIT", 1)
    if CINIT:
        A("s_waitcnt vmcnt(0)")
        for nb in range(2):
            for half in range(2):
                p = RES + (nb * 2 + half) * 4
                for j in range(4):
                    dst = ACC + nb * 16 + 4 * half + (j >> 1) * 8 + (j & 1) * 2
                    A(f"v_lshlrev_b32 v{dst}, 16, v{p+j}")
                    A(f"v_and_b32 v{dst+1}, 0xffff0000, v{p+j}")
    waitf(TMP); reset(A)
    stamp(A, sb)
    gate = (lambda: cnt_wait(A, 1, 8, TMP)) if (LEAD and not can_final) else (lambda: A("s_barrier"))
    p35_gemm(A, nstage, WSL, PRE + 1, 0, npre).run(do_w=False, zero_init=not CINIT, sb=sb, extra=[gate], extra_at=PRE // 4)
    if LEAD and not can_final: cnt_add(A, 4, TMP)
    late = env("E5LATE", 0) if can_final else 0
    if can_final and not late: A("s_barrier")
    for nb in range(2):
        for half in range(2):
            p = RES + (nb * 2 + half) * 4
            for j in range(4):
                src = ACC + nb * 16 + 4 * half + (j >> 1) * 8 + (j & 1) * 2
                if not CINIT:
                    A(f"v_lshlrev_b32 v{TMP}, 16, v{p+j}")
                    A(f"v_and_b32 v{TMP+1}, 0xffff0000, v{p+j}")
                    A(f"v_pk_add_f32 {v(src,2)}, {v(src,2)}, {v(TMP,2)}")
                A(f"v_cvt_pk_bf16_f32 v{p+j}, v{src}, v{src+1}")
    if can_final:
        A("s_cmp_eq_u32 s16, 0"); A("s_cbranch_scc1 L_p5_notfinal")
        srd(A, 76, SOUT, 0, XB)
        for nb in range(2):
            for half in range(2):
                p = RES + (nb * 2 + half) * 4
                A(f"v_permlane32_swap_b32 v{p}, v{p+2}")
                A(f"v_permlane32_swap_b32 v{p+1}, v{p+3}")
                A(f"buffer_store_dwordx4 {v(p,4)}, v{VOUT}, s[76:79], 0 offen offset:{(32*nb + 8*half)*2}")
        A("s_branch L_exit")
        A.label("L_p5_notfinal"); reset(A)
    for nb in range(2):
        for half in range(2):
            p = RES + (nb * 2 + half) * 4
            A(f"buffer_store_dwordx4 {v(p,4)}, v{VRES}, s[76:79], 0 offen offset:{nb*1024 + half*512}{STF}")
    for k in range(4): A(f"v_mov_b32 v{TMP+k}, 0")
    A(f"v_mov_b32 v{TMP+4}, 0x3f803f80")
    for j in range(16):
        o = 2 * (j & 1)
        A(f"v_dot2_f32_bf16 v{TMP+o}, v{RES+j}, v{TMP+4}, v{TMP+o}")
        A(f"v_dot2_f32_bf16 v{TMP+o+1}, v{RES+j}, v{RES+j}, v{TMP+o+1}")
    A("s_nop 3")
    A(f"v_pk_add_f32 {v(TMP,2)}, {v(TMP,2)}, {v(TMP+2,2)}")
    A(f"v_mov_b32 v{TMP+2}, v{TMP}"); A(f"v_mov_b32 v{TMP+3}, v{TMP+1}")
    A(f"v_permlane32_swap_b32 v{TMP}, v{TMP+2}")
    A(f"v_permlane32_swap_b32 v{TMP+1}, v{TMP+3}")
    A(f"v_pk_add_f32 {v(TMP,2)}, {v(TMP,2)}, {v(TMP+2,2)}")
    A(f"buffer_store_dwordx2 {v(TMP,2)}, v{VST}, s[80:83], 0 offen{STF}")
    stamp(A, sb + 3)
    if DEFER: signal_defer(A, sigk, 29, 28)
    else: signal_local(A, sigk, TMP + 4, 29, 28)
    stamp(A, sb + 4)
    if late: A("s_barrier")

def phase2(A):
    PSK, PSV = 4096, 4160
    KOFF, VOFF = 0, 51200
    QOFF = 6 * 4096
    VL16, VQ, VQ2, VK1, VK2, VV, VO, VWA, VWB, VW4 = 4, 5, 6, 7, 8, 9, 10, 12, 13, 252
    TMP = 14; Q1, Q2 = 20, 24; MSK = 26; KF = 34; VF = 52; O = 68; PB = 84; S = 100; MX = 244; DUM = 248
    A("s_mul_i32 s25, s19, 5")
    A(f"v_lshlrev_b32 v{VL16}, 4, v1")
    srd(A, 8, SWS, WS_QKV, QKV_B)
    A("s_lshl_b32 s24, s20, 5")
    A(f"v_and_b32 v{TMP+4}, 15, v1"); A(f"v_bfe_u32 v{TMP+5}, v1, 4, 1")
    A(f"v_lshlrev_b32 v{VK2}, 4, v{TMP+4}"); A(f"v_lshl_add_u32 v{VK2}, v{TMP+5}, 3, v{VK2}")
    A("s_lshl_b32 s21, s20, 8"); A(f"v_add_u32 v{VK2}, s21, v{VK2}")
    A(f"v_lshl_add_u32 v{VK1}, v3, 12, v{VK2}")
    A(f"v_add_u32 v{VQ2}, {QOFF}, v{VK2}"); A(f"v_lshl_add_u32 v{VQ}, v3, 11, v{VQ2}")
    srd(A, 12, SWS, WS_O, XB)
    A(f"v_mov_b32 v{TMP+2}, 0x3f803f80"); A(f"v_mov_b32 v{TMP+3}, 0x3f803f80")
    A(f"v_lshlrev_b32 v{TMP+1}, 3, v0")
    A(f"v_add_u32 v{TMP}, {VOFF}, v{TMP+1}")
    A(f"ds_write_b64 v{TMP}, {v(TMP+2,2)} offset:{5*PSV}")
    A("s_lshr_b32 s22, s20, 2"); A("s_add_u32 s22, s22, s18"); A("s_cmp_eq_u32 s22, 0"); A("s_cselect_b32 s22, 0xf149, 0")
    A(f"v_mov_b32 v{Q1}, s22"); A(f"v_mov_b32 v{Q1+1}, 0")
    A(f"ds_write_b64 v{TMP+1}, {v(Q1,2)} offset:{KOFF + 5*PSK}")
    A(f"v_and_b32 v{TMP}, 3, v1")
    A(f"v_lshl_add_u32 v{TMP+1}, v{TMP+5}, 2, v{TMP}"); A(f"v_min_u32 v{TMP+1}, 5, v{TMP+1}")
    A(f"v_mul_u32_u24 v{VV}, {PSV}, v{TMP+1}")
    A(f"v_bfe_u32 v{TMP+1}, v1, 2, 2"); A(f"v_lshl_add_u32 v{TMP+1}, v3, 2, v{TMP+1}")
    A(f"v_lshl_add_u32 v{VV}, v{TMP+1}, 4, v{VV}"); A(f"v_add_u32 v{VV}, s21, v{VV}"); A(f"v_add_u32 v{VV}, {VOFF}, v{VV}")
    A("s_lshl_b32 s21, s18, 4"); A("s_lshl_b32 s22, s20, 1"); A("s_add_u32 s21, s21, s22")
    A(f"v_add_u32 v{TMP+1}, s21, v{TMP+5}"); A(f"v_mul_u32_u24 v{TMP+1}, 20480, v{TMP+1}")
    A(f"v_lshl_add_u32 v{TMP+1}, v{TMP+4}, 4, v{TMP+1}")
    A("s_lshl_b32 s21, s19, 9"); A(f"v_add_u32 v{VO}, s21, v{TMP+1}"); A(f"v_lshl_add_u32 v{VO}, v3, 8, v{VO}")
    A("s_lshr_b32 s21, s19, 1"); A("s_lshl_b32 s21, s21, 8"); A("s_and_b32 s22, s19, 1"); A("s_lshl_b32 s22, s22, 3"); A("s_add_u32 s21, s21, s22"); A(f"s_add_u32 s21, s21, {64*256}")
    A(f"v_add_u32 v{VO+1}, s21, v{TMP+1}"); A(f"v_lshl_add_u32 v{VO+1}, v3, 31, v{VO+1}")
    A("s_mul_i32 s28, s19, 171"); A("s_lshr_b32 s28, s28, 9")
    A("s_and_b32 s26, s20, 3"); A("s_lshr_b32 s27, s20, 2")
    A(f"v_bfe_u32 v{TMP}, v1, 3, 1"); A(f"v_mul_u32_u24 v{TMP+1}, 5, v{TMP+5}"); A(f"v_add_u32 v{TMP}, v{TMP}, v{TMP+1}")
    A(f"v_lshl_add_u32 v{TMP}, v3, 1, v{TMP}"); A("s_mul_i32 s21, s27, 10"); A(f"v_add_u32 v{TMP}, s21, v{TMP}")
    A(f"v_bfe_u32 v{TMP+1}, v1, 3, 2"); A(f"v_mul_u32_u24 v{TMP+1}, 10, v{TMP+1}"); A(f"v_mul_u32_u24 v{TMP+2}, 5, v3"); A(f"v_add_u32 v{TMP+1}, v{TMP+1}, v{TMP+2}")
    A("s_mul_i32 s21, s27, 40"); A("s_add_u32 s21, s21, 4"); A(f"v_add_u32 v{TMP+1}, s21, v{TMP+1}")
    A(f"v_and_b32 v{TMP+2}, 7, v1"); A(f"v_lshlrev_b32 v{TMP+2}, 4, v{TMP+2}")
    A("s_mul_i32 s21, s26, 1280"); A("s_lshl_b32 s22, s28, 7"); A("s_add_u32 s21, s21, s22")
    A("s_cmp_ge_u32 s19, 30"); A(f"s_cselect_b32 s21, {OOB:#x}, s21")
    A(f"v_add_u32 v{TMP+2}, s21, v{TMP+2}")
    A(f"v_mul_u32_u24 v{VWA}, 5120, v{TMP}"); A(f"v_add_u32 v{VWA}, v{VWA}, v{TMP+2}")
    A(f"v_mul_u32_u24 v{VWB}, 5120, v{TMP+1}"); A(f"v_add_u32 v{VWB}, v{VWB}, v{TMP+2}")
    A("s_mul_i32 s32, s26, 2112"); A("s_lshl_b32 s21, s27, 10"); A("s_add_u32 s32, s32, s21"); A(f"s_add_u32 s32, s32, {P3W}")
    A(f"s_add_u32 s34, s32, {10*8448}")
    rot_calc(A, "p3")
    A("s_sub_u32 s21, 10, s21"); A("s_cmp_eq_u32 s21, 10"); A("s_cselect_b32 s21, 0, s21"); A("s_mul_i32 s21, s21, 8448"); A("s_add_u32 s29, s32, s21")
    srd(A, 36, SWO, 0, D * D * 2)
    if S4:
        A("s_lshl_b32 s25, s19, 7"); A("s_cmp_ge_u32 s19, 27"); A(f"s_cselect_b32 s25, {OOB:#x}, s25")
        wdma_off(A, VW4, 2, 8, F * 2, 25, 26, TMP)
        rot_init(A, "p4", F * 2)
        A("s_cmp_eq_u32 s27, 0")
        A(f"s_cselect_b32 s22, s{SWG}, s{SWU}"); A(f"s_cselect_b32 s23, s{SWG+1}, s{SWU+1}")
        srd(A, 76, 22, 0, D * F * 2)
        A("s_mul_i32 s30, s26, 2112"); A("s_mul_i32 s21, s27, 8480"); A("s_add_u32 s30, s30, s21")
    side = []
    for t in range(10):
        def f(t=t):
            A("s_mov_b32 m0, s29")
            A(f"s_mov_b32 s21, {t*80*1280 if t < 8 else (t-8)*320*1280}")
            A(f"buffer_load_dwordx4 v{VWA if t < 8 else VWB}, s[36:39], s21 offen lds", "wo")
            A("s_add_u32 s29, s29, 8448"); A("s_cmp_ge_u32 s29, s34"); A("s_cselect_b32 s29, s32, s29")
        side.append(f)
    if env("WOEARLY", 0):
        l = A.newlabel("woe")
        A("s_cmp_lt_u32 s20, 4"); A(f"s_cbranch_scc1 {l}")
        for t in range(10):
            for j in range(2):
                A(f"s_sub_u32 m0, s29, {1024 * (1 - j)}")
                off = (t * 80 * 1280 if t < 8 else (t - 8) * 320 * 1280)
                A(f"s_mov_b32 s21, {off}")
                if j == 0: A(f"v_subrev_u32 v{TMP}, {(10 if t < 8 else 40) * 5120}, v{VWA if t < 8 else VWB}")
                A(f"buffer_load_dwordx4 v{TMP if j == 0 else (VWA if t < 8 else VWB)}, s[36:39], s21 offen lds")
            A("s_add_u32 s29, s29, 8448"); A("s_cmp_ge_u32 s29, s34"); A("s_cselect_b32 s29, s32, s29")
        A("s_cmp_lg_u32 s20, 7"); A(f"s_cbranch_scc1 {l}"); A("s_waitcnt vmcnt(0)")
        join(A, l); reset(A)
        side = []
    for t in range(S4):
        for j in range(2):
            def f(t=t, j=j):
                A(f"s_add_u32 m0, s30, {t*16960 + j*1024}")
                A(f"buffer_load_dwordx4 v{VW4+j}, s[76:79], s31 offen lds", "w4")
                if j == 1:
                    A(f"s_add_u32 s31, s31, {64*F*2}"); A(f"s_cmp_ge_u32 s31, {640*F*2}"); A("s_cselect_b32 s31, 0, s31")
            side.append(f)
    for r in range(16):
        k0 = 8 * (r >> 2) + (r & 3)
        A(f"s_mov_b32 s{40+2*r}, {(0xFFFFFFFF << k0) & 0xFFFFFFFF:#x}")
        A(f"s_mov_b32 s{41+2*r}, {(0xFFFFFFFF << (k0+4)) & 0xFFFFFFFF:#x}")
    A(f"v_mov_b32 v{TMP+4}, 0xffff"); A(f"v_mov_b32 v{TMP+5}, 0xffff0000")
    for j in range(8):
        A(f"v_cndmask_b32 v{MSK+j}, 0, v{TMP+4}, {s(40+4*j,2)}")
        A(f"v_cndmask_b32 v{TMP+1}, 0, v{TMP+5}, {s(42+4*j,2)}")
        A(f"v_or_b32 v{MSK+j}, v{MSK+j}, v{TMP+1}")
    stamp(A, 6)
    A("s_sub_u32 s21, s20, 4"); A("s_cmp_ge_u32 s21, 3"); A("s_cbranch_scc1 L_p2_setup")
    A("s_mul_i32 s25, s19, 5"); A("s_mul_i32 s80, s18, 480"); A("s_add_u32 s80, s80, s25"); A("s_lshl_b32 s80, s80, 11")
    A(f"s_add_u32 s81, s80, {320*2048}")
    A("s_cmp_eq_u32 s20, 6"); A("s_cbranch_scc1 L_p2_halo")
    A("s_cmp_eq_u32 s20, 4")
    A(f"s_cselect_b32 s22, 0, {160*2048}"); A(f"s_cselect_b32 s82, {QOFF}, 0"); A("s_cselect_b32 s83, 0, 1")
    A("s_add_u32 s80, s80, s22"); A("s_lshl_b32 s83, s83, 11"); A("s_add_u32 s82, s82, s83"); A("s_add_u32 s83, s83, 2048")
    A(f"s_mov_b32 s33, {VOFF + 2048}")
    wait_local(A, 4, 0, 15, None, KF)
    A("s_branch L_p2_ld")
    A.label("L_p2_halo"); reset(A)
    A(f"s_sub_u32 s80, s80, {320*2048}"); A(f"s_sub_u32 s81, s81, {480*2048}")
    A("s_mov_b32 s82, 0"); A("s_mov_b32 s83, 4096"); A(f"s_mov_b32 s33, {VOFF}")
    A("s_cmp_eq_u32 s18, 0"); A(f"s_cselect_b32 s80, {OOB:#x}, s80"); A(f"s_cselect_b32 s81, {OOB:#x}, s81"); A("s_cbranch_scc1 L_p2_ld")
    A(f"v_min_u32 v{KF}, 19, v1"); A(f"v_lshlrev_b32 v{KF}, 7, v{KF}")
    A("s_lshl_b32 s21, s16, 3"); A("s_add_u32 s21, s21, s18"); A("s_lshl_b32 s21, s21, 12"); A(f"s_add_u32 s21, s21, {0x10000 - 4096 + 10*128}")
    A(f"v_add_u32 v{KF}, s21, v{KF}")
    A(f"v_mov_b32 v{KF+1}, 0x01010101")
    def body():
        A(f"buffer_load_dword v{KF+2}, v{KF}, {s(SFL,4)}, 0 offen sc1")
        A.wait_vm_all()
        A(f"v_cmp_ne_u32 vcc, v{KF+2}, v{KF+1}")
    spin(A, body, "p1w", 1)
    join(A, "L_p2_ld"); reset(A)
    stamp(A, 7)
    for i in range(5):
        for c in range(2):
            A(f"s_add_u32 m0, s82, {c*1024}")
            A(f"buffer_load_dwordx4 v{VL16}, s[8:11], s80 offen sc1 lds")
            A("s_add_u32 s80, s80, 1024")
        A("s_add_u32 s82, s82, s83")
    A("s_cmp_eq_u32 s20, 5"); A("s_cbranch_scc1 L_p2_w5")
    for i in range(5):
        for c in range(2):
            A(f"s_add_u32 m0, s33, {i*PSV + c*1024}")
            A(f"buffer_load_dwordx4 v{VL16}, s[8:11], s81 offen sc1 lds")
            A("s_add_u32 s81, s81, 1024")
    A("s_branch L_p2_setup")
    A.label("L_p2_w5")
    A("s_waitcnt vmcnt(0)")
    join(A, "L_p2_setup"); reset(A)
    A("s_waitcnt vmcnt(10)"); A.wait_lg_all()
    A.vm = ["V"] * 10
    A("s_barrier")
    STAG = env("STAG", 0)
    if STAG:
        l = A.newlabel("pr2")
        A("s_cmp_ge_u32 s20, 4"); A(f"s_cbranch_scc1 {l}"); A("s_setprio 2"); A.label(l)
    stamp(A, 8)
    A(f"ds_read_b64 {v(Q1,2)}, v{VQ}", ("K", 0))
    A(f"ds_read_b64 {v(Q1+2,2)}, v{VQ} offset:4096", ("K", 0))
    A(f"ds_read_b64 {v(Q2,2)}, v{VQ2} offset:8192", ("K", 0))
    qorder = [0, 8, 1, 2, 3, 4, 5, 6, 7]
    def kreads(n):
        d = qorder[n]; b = KF + (n % 3) * 6
        for q in range(3):
            A(f"ds_read_b64 {v(b+2*q,2)}, v{VK1} offset:{KOFF + 2*q*PSK + d*256}", ("K", n))
    work = {}
    work[1] = [f"v_cndmask_b32 v{S+r}, v{S+r}, v{S+128+r}, {s(40+2*r,2)}" for r in range(16)]
    work[1] += [f"v_max_f32 v{MX+c}, v{S+2*c}, v{S+2*c+1}" for c in range(2)]
    work[1] += [f"v_max3_f32 v{MX+(k&1)}, v{MX+(k&1)}, v{S+2*k}, v{S+2*k+1}" for k in range(2, 8)]
    for n in range(2, 9):
        sb = S + 16 * qorder[n]
        work[n] = [f"v_max3_f32 v{MX+(k&1)}, v{MX+(k&1)}, v{sb+2*k}, v{sb+2*k+1}" for k in range(8)]
    pend = []
    kreads(0); kreads(1)
    for n in range(9):
        d = qorder[n]
        if n + 2 < 9: kreads(n + 2)
        A.wait_lg(lambda g: g == ("K", n))
        b = KF + (n % 3) * 6
        if n == 0:
            A("s_mov_b32 s22, -1"); A("s_mov_b32 s23, 0"); A(f"v_mov_b32 v{MX+2}, 0x3f80")
            A(f"v_cndmask_b32 v{Q2}, v{MX+2}, v{Q2}, s[22:23]"); A(f"v_cndmask_b32 v{Q2+1}, 0, v{Q2+1}, s[22:23]")
        if n - 2 in work: pend += work[n - 2]
        A(f"v_mfma_f32_32x32x16_bf16 {v(S+16*d,16)}, {v(b,4)}, {v(Q1,4)}, 0")
        for _ in range(6):
            if pend: A(pend.pop(0))
        A(f"v_mfma_f32_32x32x8_bf16 {v(S+16*d,16)}, {v(b+4,2)}, {v(Q2,2)}, {v(S+16*d,16)}")
        for _ in range(6):
            if pend: A(pend.pop(0))
    for w_ in pend + work[7] + work[8]: A(w_)
    A(f"v_max_f32 v{MX}, v{MX}, v{MX+1}")
    A(f"v_mov_b32 v{MX+1}, v{MX}")
    A(f"v_permlane32_swap_b32 v{MX}, v{MX+1}")
    A(f"v_max_f32 v{MX}, v{MX}, v{MX+1}")
    stamp(A, 27)
    A.wait_vm_all()
    if STAG:
        cnt_add(A, 0, KF)
        if env("STAG", 1) == 2: A("s_setprio 0")
    else: A("s_barrier")
    stamp(A, 28)
    if env("NOSIDE", 0): side = []
    vbuf = lambda k: (VF + 8 * k) if k < 2 else (PB + 8 * (k - 2))
    vseq = [0, 8, 1, 2, 3, 4, 5, 6, 7]
    def vreads(i):
        d = vseq[i]
        for u in range(2):
            for rd in range(2):
                A(f"ds_read_b64_tr_b16 {v(vbuf(i % 4) + u*4 + rd*2, 2)}, v{VV} offset:{d*256 + rd*128 + u*8}", ("V", i))
    mq = []; st_ = dict(first=True, nv=0)
    def pv():
        if not mq: return
        i, u = mq.pop(0)
        A.wait_lg(lambda g: g == ("V", i))
        c = "0" if st_["first"] else v(O, 16); st_["first"] = False
        A(f"v_mfma_f32_32x32x16_bf16 {v(O,16)}, {v(vbuf(i % 4) + u*4, 4)}, {v(S + 16*vseq[i] + u*4, 4)}, {c}")
    VD = env("VD", 1) if STAG else 0
    if not VD: vreads(0); vreads(1)
    per = 4 if LEAD else -(-len(side) // env("SIDET", 6))
    for d in range(8):
        sb = S + 16 * d
        if LEAD and d == 6:
            A.wait_vm_all(); cnt_add(A, 1, KF)
        for r in range(0, 16, 2): A(f"v_pk_add_f32 {v(sb+r,2)}, {v(sb+r,2)}, {v(MX,2)} op_sel_hi:[1,0] neg_lo:[0,1] neg_hi:[0,1]")
        q = 0
        for r in range(16):
            A(f"v_exp_f32 v{sb+r}, v{sb+r}")
            if d > VD and (r in (1, 6) or (r == 11 and len(mq) > 0 and d < 7)): pv()
            if r == 13:
                if VD and d == VD:
                    cnt_wait(A, 0, 8, KF)
                while d >= VD and st_["nv"] < 9 and st_["nv"] <= d + 2 and st_["nv"] - 4 < min([i for i, u in mq] + [d + 1]):
                    if VD or st_["nv"] >= 2: vreads(st_["nv"])
                    st_["nv"] += 1
            if r % 4 == 3 and side and q < per: side.pop(0)(); q += 1
        for j in range(8): A(f"v_cvt_pk_bf16_f32 v{sb+j}, v{sb+2*j}, v{sb+2*j+1}")
        if d == 0:
            for j in range(8): A(f"v_and_b32 v{S+128+j}, v{sb+j}, v{MSK+j}")
            for j in range(8): A(f"v_bfi_b32 v{sb+j}, v{MSK+j}, 0, v{sb+j}")
            mq += [(0, 0), (0, 1), (1, 0), (1, 1)]
        else:
            mq += [(d + 1, 0), (d + 1, 1)]
    while mq: pv()
    assert not side
    if LEAD: cnt_add(A, 2, KF)
    stamp(A, 9)
    A(f"v_rcp_f32 v{MX}, v{O+12}")
    for k in range(0, 12, 2):
        A(f"v_pk_mul_f32 {v(O+k,2)}, {v(O+k,2)}, {v(MX,2)} op_sel_hi:[1,0]")
    for k in range(6): A(f"v_cvt_pk_bf16_f32 v{PB+k}, v{O+2*k}, v{O+2*k+1}")
    A(f"buffer_store_dwordx4 {v(PB,4)}, v{VO}, s[12:15], 0 offen{STF}")
    A(f"buffer_store_dwordx2 {v(PB+4,2)}, v{VO+1}, s[12:15], 0 offen{STF}")
    if STAG: A("s_setprio 0")
    signal_local(A, 0, 20, 20, 19)
    stamp(A, 10)
    A.fence(); reset(A)

def touch_range(A, off, grp_bytes, nwg, base_idx, depth=8):
    per = nwg * 8 * 1024
    n = -(-grp_bytes // per)
    A(f"s_mul_i32 s21, s18, {grp_bytes}")
    srd(A, 36, SWS, off, grp_bytes, soff=21)
    A(f"s_sub_u32 s31, s19, {base_idx}"); A("s_lshl_b32 s31, s31, 3"); A("s_add_u32 s31, s31, s20"); A("s_lshl_b32 s31, s31, 10")
    A("v_lshlrev_b32 v4, 4, v1")
    A("s_mov_b32 s22, 0")
    lp = A.newlabel("tr")
    A.label(lp)
    A("buffer_load_dwordx4 v[8:11], v4, s[36:39], s31 offen sc1")
    A(f"s_waitcnt vmcnt({depth})"); A.vm = []
    A(f"s_add_u32 s31, s31, {per}")
    A("s_add_u32 s22, s22, 1"); A(f"s_cmp_lt_u32 s22, {n}"); A(f"s_cbranch_scc1 {lp}")

def warm_code(A, thr=31):
    if not env("WARMC", 1): return
    skip = A.newlabel("wc"); here = A.newlabel("pc"); lp = A.newlabel("wcl")
    A(f"s_cmp_lt_u32 s19, {thr}"); A(f"s_cbranch_scc1 {skip}")
    A("s_getpc_b64 s[22:23]")
    A.label(here)
    A(f"s_sub_u32 s22, s22, {here}-{NAME}_kernel"); A("s_subb_u32 s23, s23, 0")
    A("v_lshlrev_b32 v6, 4, v0")
    A.label(lp)
    A(f"v_min_u32 v7, L_code_end-{NAME}_kernel-16, v6")
    A("v_mov_b32 v5, s23"); A("v_add_co_u32 v4, vcc, s22, v7"); A("v_addc_co_u32 v5, vcc, 0, v5, vcc")
    A("global_load_dwordx4 v[8:11], v[4:5], off"); A.vm = []
    A("v_add_u32 v6, 8192, v6")
    A("v_readfirstlane_b32 s21, v6")
    A(f"s_cmp_lt_u32 s21, L_code_end-{NAME}_kernel"); A(f"s_cbranch_scc1 {lp}")
    A("s_waitcnt vmcnt(0)")
    join(A, skip); reset(A)

def warm_tlb(A):
    if not env("WARMT", 0): return
    skip = A.newlabel("wt")
    A("s_cmp_lg_u32 s19, 30"); A(f"s_cbranch_scc1 {skip}")
    A("s_cmp_lg_u32 s20, 0"); A(f"s_cbranch_scc1 {skip}")
    sh = env("WARMT_SH", 20)
    A(f"v_lshlrev_b32 v6, {sh}, v0")
    for base, size in ((SWO, D*D*2), (SWG, D*F*2), (SWU, D*F*2), (SWD, D*F*2), (SOUT, XB)):
        srd(A, 36, base, 0, size)
        A("buffer_load_dword v8, v6, s[36:39], 0 offen")
    srd(A, 36, SWS, 0, 2 * LS)
    for k in range(max(1, (2 * LS) >> (sh + 9))):
        A(f"s_mov_b32 s21, {k << (sh + 9):#x}"); A("buffer_load_dword v8, v6, s[36:39], s21 offen")
    join(A, skip); reset(A)

def warm_stream(A, sbase, size, sstart, step, n, depth, wrap=None):
    srd(A, 36, sbase, 0, size)
    A("v_lshlrev_b32 v4, 4, v0")
    A("s_mov_b32 s22, 0")
    lp = A.newlabel("ws")
    A.label(lp)
    A(f"buffer_load_dwordx4 v[8:11], v4, s[36:39], s{sstart} offen")
    A(f"s_waitcnt vmcnt({depth})"); A.vm = []
    A(f"s_add_u32 s{sstart}, s{sstart}, {step}")
    if wrap:
        A(f"s_cmp_ge_u32 s{sstart}, {wrap}"); A(f"s_cselect_b32 s23, {wrap}, 0"); A(f"s_sub_u32 s{sstart}, s{sstart}, s23")
    A("s_add_u32 s22, s22, 1"); A(f"s_cmp_lt_u32 s22, {n}"); A(f"s_cbranch_scc1 {lp}")

def warm_mall(A):
    n = env("WMALL", 0)
    if not n: return
    for sb, size in ((SWO, D * D * 2), (SWG, D * F * 2), (SWU, D * F * 2))[:n]:
        A("s_lshl_b32 s24, s18, 1"); A("s_add_u32 s24, s24, s19"); A("s_sub_u32 s24, s24, 30"); A("s_lshl_b32 s24, s24, 13")
        warm_stream(A, sb, size, 24, 16 * 8192, -(-size // (16 * 8192)), 8)
    A("s_waitcnt vmcnt(0)")

def idle4(A):
    l0_only(A, lambda: warm_code(A), "wc4")
    if env("WW5", 0):
        rot_init(A, "p5", D * 2, wskip=env("WW5S", 10))
        A("s_sub_u32 s24, s19, 27"); A("s_lshl_b32 s24, s24, 13"); A("s_add_u32 s24, s24, s31")
        warm_stream(A, SWD, F * D * 2, 24, 40960, env("WW5", 0) * 2, env("WW5D", 2), wrap=F * D * 2)
        A("s_waitcnt vmcnt(0)")
    if PLAIN:
        touch_range(A, WS_H, H_B // 8, 5, 27, env("TDEP", 4))
        A("s_waitcnt vmcnt(0)")

def idle5(A):
    def f():
        l = A.newlabel("i5")
        A("s_cmp_lg_u32 s20, 0"); A(f"s_cbranch_scc1 {l}")
        wait_local(A, 2, 0, 27, None, 4, sleep=16)
        join(A, l); reset(A)
        A("s_barrier")
        warm_code(A)
        if env("WW1", 4):
            rot_init(A, "p1", 3840)
            A("s_sub_u32 s24, s19, 30"); A("s_lshl_b32 s24, s24, 13"); A("s_add_u32 s24, s24, s31")
            warm_stream(A, SWQKV, D * 1920 * 2, 24, 16384, env("WW1", 4) * 15, 6, wrap=D * 1920 * 2)
            A("s_waitcnt vmcnt(0)")
    l0_only(A, f, "i5l0")

P4PRE = env("P4PRE", 4)
P4 = dict(PS=2112, RB=128, UOFF=8480, SLOT=16960)
def phase3(A):
    A("s_cmp_ge_u32 s19, 30"); A("s_cbranch_scc1 L_p3_skip")
    p35_ids(A)
    A("s_lshl_b32 s21, s20, 1"); A("s_or_b32 s21, s21, s29"); A("s_cmp_lt_u32 s21, 8"); A("s_cbranch_scc1 L_p3_comp")
    if not LEAD: A("s_barrier")
    A("s_cmp_lt_u32 s20, 4"); A("s_cbranch_scc1 L_p3_noblk")
    A("s_cmp_ge_u32 s19, 27"); A("s_cbranch_scc1 L_p3_skip")
    A("s_lshl_b32 s25, s19, 7")
    wdma_off(A, 6, 2, 8, F * 2, 25, 26, 16)
    A("s_mul_i32 s32, s26, 2112")
    rot_init(A, "p4", F * 2, wskip=S4)
    srd(A, 12, SWG, 0, D * F * 2); srd(A, 36, SWU, 0, D * F * 2)
    g = Gemm(A, 4, 10, 6, 9, 16960, 128, 32, 0, 0, 0, 0, [6, 7, 6, 7], [12, 12, 36, 36], [0, 1024, 8480, 8480 + 1024],
             [], 8, F * 2, 0, 0)
    g.throttle = env("THR3", 3) or None; g.wflags = NT4; g.nland = S4
    if LEAD: cnt_wait(A, 2, 8, 16)
    g.prefetch(P4PRE)
    A.wait_vm_all()
    if LEAD: cnt_add(A, 3, 16)
    A("s_branch L_p3_done")
    A.label("L_p3_noblk")
    if LEAD: cnt_add(A, 4, 16)
    join(A, "L_p3_skip"); reset(A)
    A("s_branch L_p3_done")
    A.label("L_p3_comp"); reset(A)
    rot_init(A, "p3", D * 2)
    p35_compute(A, 10, 10, 10, P3W, WS_O, XB, WS_XIN, WS_X1, WS_STB,
                lambda t0: wait_local(A, 0, 0, 32, 29, t0), 1, False, 11, env("PRE3", 32))
    join(A, "L_p3_done"); reset(A)

B5 = 16960
N5 = env("N5", 10)
N5B = env("N5B", 0)
def phase5(A):
    A("s_cmp_lt_u32 s19, 30"); A("s_cbranch_scc1 L_p5_go")
    idle5(A)
    A("s_branch L_p5_done")
    A.label("L_p5_go"); reset(A)
    WSL = env("WSL5", 17)
    p35_ids(A); rot_init(A, "p5", D * 2)
    A("s_lshl_b32 s21, s20, 1"); A("s_or_b32 s21, s21, s29"); A("s_cmp_lt_u32 s21, 8"); A("s_cbranch_scc1 L_p5_comp")
    A("s_cmp_lt_u32 s20, 4"); A("s_cbranch_scc1 L_p5_idle")
    p35_loader_setup(A, SWD, F, B5)
    A("s_cmp_lt_u32 s19, 27"); A("s_cbranch_scc1 L_p5_pre")
    p35_gemm(A, 27, WSL, 0, 0, 0).prefetch(N5 + N5B)
    A.wait_vm_all()
    join(A, "L_p5_pre"); reset(A)
    rot_init(A, "p5", D * 2, wskip=N5 + N5B)
    A("s_barrier")
    g = p35_gemm(A, 27, WSL, 0, env("LA5", 14), 0); g.nland = N5 + N5B
    g.run_loader()
    A("s_barrier")
    A("s_branch L_p5_done")
    A.label("L_p5_idle"); reset(A)
    if N5B:
        A("s_cmp_lg_u32 s20, 3"); A("s_cbranch_scc1 L_p5_idle2")
        A("s_cmp_ge_u32 s19, 27"); A("s_cbranch_scc1 L_p5_idle2")
        A("s_lshl_b32 s25, s28, 7"); A("s_mov_b32 s26, 0")
        wdma_off(A, 4, 1, 8, D * 2, 25, 26, 16)
        for q in range(1, 8): A(f"v_add_u32 v{4+q}, {((q & 3) + 32 * (q >> 2)) * D * 2}, v4")
        srd(A, 12, SWD, 0, F * D * 2)
        rot_init(A, "p5", D * 2, wskip=N5)
        A(f"s_mov_b32 s32, {B5}")
        A("s_lshl_b32 s24, s16, 3"); A("s_add_u32 s24, s24, 8"); A(f"v_mov_b32 v16, {L_CNT}")
        def body():
            A("ds_read_b32 v17, v16"); A.wait_lg_all()
            A("v_cmp_gt_u32 vcc, s24, v17")
        spin(A, body, "lc", 1)
        g = Gemm(A, 2, 27, 9, WSL, 8448, 128, 64, 0, 0, 0, 0, [4 + q for q in range(8)], [12] * 8,
                 [(q & 3) * 2112 + (q >> 2) * 1024 for q in range(8)], [], 8, D * 2, 0, 0)
        g.nland = N5; g.throttle = env("THR5", 0) or None
        g.prefetch(N5 + N5B)
        join(A, "L_p5_idle2"); reset(A)
    A("s_mov_b32 s21, 0")
    A.label("L_p5_idle_loop")
    A("s_cmp_lg_u32 s21, 6"); A("s_cbranch_scc1 L_p5_idle3"); A("s_waitcnt vmcnt(0)")
    A.label("L_p5_idle3")
    A("s_barrier"); A("s_add_u32 s21, s21, 1"); A("s_cmp_lt_u32 s21, 29"); A("s_cbranch_scc1 L_p5_idle_loop")
    A("s_branch L_p5_done")
    A.label("L_p5_comp"); reset(A)
    p35_compute(A, 27, WSL, 0, B5, WS_H, H_B, WS_X1, WS_XIN + LS, WS_STA + LS,
                lambda t0: wait_local(A, 2, 0, 27, 29, t0), 3, True, 22, env("PRE5", 16))
    join(A, "L_p5_done"); reset(A)

def phase4(A):
    A("s_cmp_lt_u32 s19, 27"); A("s_cbranch_scc1 L_p4_go")
    if DEFER: signal_flush(A, 4)
    A("s_barrier")
    idle4(A)
    A("s_branch L_p4_done")
    A.label("L_p4_go"); reset(A)
    A(f"s_xor_b32 s28, s20, {4 if LEAD else 0}")
    A("s_lshl_b32 s24, s28, 5")
    A("s_lshl_b32 s27, s18, 8"); A("s_add_u32 s27, s27, s24")
    A("s_and_b32 s26, s20, 3"); A("s_lshr_b32 s29, s20, 2")
    PS, RB, UOFF, SLOT = 2112, 128, 8480, 16960
    WSL, XS = 9, 5
    VX, VWD, VTR, VST, VCS, VOUT, VPL = 4, 6, 8, 11, 12, 13, 144
    NM, CA, CB, IR = 14, 16, 18, 20
    TMP = 24; WF = 40; ACC = 72; T = 136; CSA = 148; CSB = 156; CT = 164; V5 = 165; XA = 168
    cl_lane_off(A, VX, 27, 20480, TMP)
    A("s_lshl_b32 s25, s19, 7")
    wdma_off(A, VWD, 2, 8, F * 2, 25, 26, TMP)
    tr_lane_addr(A, VTR, PS, RB, UOFF, TMP)
    A(f"v_add_u32 v{VTR+1}, {3*SLOT}, v{VTR}"); A(f"v_add_u32 v{VTR+2}, {6*SLOT}, v{VTR}")
    stats_off(A, VST, 24, TMP)
    cl_lane_off(A, VOUT, 27, 54 * 1024, TMP)
    A("s_lshl_b32 s21, s19, 11")
    A(f"v_add_u32 v{VOUT}, s21, v{VOUT}")
    A(f"v_lshlrev_b32 v{VCS}, 4, v3"); A(f"v_add_u32 v{VCS}, {CS4}, v{VCS}")
    A(f"s_mul_i32 s32, s26, {PS}"); A(f"s_mul_i32 s21, s29, {UOFF}"); A("s_add_u32 s32, s32, s21")
    A("s_lshl_b32 s21, s26, 5"); A(f"s_mul_i32 s22, s29, {8*RB}"); A("s_add_u32 s21, s21, s22")
    A(f"v_add_u32 v{VPL}, s21, v{VTR}")
    A(f"v_add_u32 v{VPL+1}, {3*SLOT}, v{VPL}"); A(f"v_add_u32 v{VPL+2}, {6*SLOT}, v{VPL}")
    for k in range(2): A(f"v_mov_b32 v{CSA+k}, 0")
    A(f"v_mov_b32 v{CT}, 0x3f803f80")
    NA = 2 if LEAD else 0
    if LEAD:
        rot_init(A, "p4", F * 2, wskip=P4PRE); A("s_mov_b32 s44, s31")
        srd(A, 40, SWG, 0, D * F * 2)
    rot_init(A, "p4", F * 2, wskip=P4PRE + NA)
    A("s_cmp_eq_u32 s29, 0")
    A(f"s_cselect_b32 s22, s{SWG}, s{SWU}"); A(f"s_cselect_b32 s23, s{SWG+1}, s{SWU+1}")
    srd(A, 12, 22, 0, D * F * 2)
    srd(A, 8, SWS, WS_X1, XB)
    srd(A, 36, SWS, WS_STB, ST_B)
    srd(A, 80, SWS, WS_H, H_B)
    def late_setup():
        A("s_mov_b32 s34, s30"); A("s_mov_b32 s25, s31")
        rot_init(A, "p5", D * 2)
        A("s_mov_b32 s33, s31"); A("s_mov_b32 s30, s34"); A("s_mov_b32 s31, s25")
        A("s_mul_i32 s25, s19, 171"); A("s_lshr_b32 s25, s25, 9"); A("s_lshl_b32 s25, s25, 7")
        A(f"s_mul_i32 s21, s29, {32*D*2}"); A("s_add_u32 s25, s25, s21")
        wdma_off(A, V5, 1, 8, D * 2, 25, 26, T)
        A("s_mul_i32 s34, s26, 2112"); A("s_lshl_b32 s21, s29, 10"); A("s_add_u32 s34, s34, s21"); A(f"s_add_u32 s34, s34, {B5}")
        srd(A, 76, SWD, 0, F * D * 2)
    def t5(t):
        def f():
            A(f"s_add_u32 m0, s34, {t*8448}")
            A(f"buffer_load_dwordx4 v{V5}, s[76:79], s33 offen lds", "w5")
            A(f"s_add_u32 s33, s33, {64*D*2}"); A(f"s_cmp_ge_u32 s33, {F*D*2}"); A("s_cselect_b32 s33, 0, s33")
        return f
    if env("PRIO4", 1):
        l = A.newlabel("prio")
        A("s_cmp_ge_u32 s20, 4"); A(f"s_cbranch_scc1 {l}"); A("s_setprio 1"); A.label(l)
    if env("E3POS", 1) == 0: A("s_barrier")
    if DEFER: signal_flush(A, TMP)
    wait_local(A, 1, 0, 10, 28, TMP, sleep=2); reset(A)
    stamp(A, 16)
    g = Gemm(A, 4, 10, XS, WSL, SLOT, RB, 32, ACC, WF, XA, VX, [VWD, VWD + 1], [12, 12],
             [0, 1024], [VTR, VTR + 1, VTR + 2], 8, F * 2, env("PRE4", 6), 0, P4PRE)
    def csum(t):
        slot = t % WSL
        def f():
            for q in range(4):
                A(f"ds_read_b64_tr_b16 {v(CSB + 2*q, 2)}, v{VPL + slot // 3} offset:{(slot % 3) * SLOT + 2 * q * RB}")
            A("s_waitcnt lgkmcnt(0)")
            for q in range(8):
                if env("CSDOT", 1): A(f"v_dot2_f32_bf16 v{CSA + (q & 1)}, v{CSB+q}, v{CT}, v{CSA + (q & 1)}")
                else:
                    A(f"v_lshlrev_b32 v{CSA+2}, 16, v{CSB+q}"); A(f"v_and_b32 v{CSA+3}, 0xffff0000, v{CSB+q}")
                    A(f"v_add_f32 v{CSA}, v{CSA}, v{CSA+2}"); A(f"v_add_f32 v{CSA+1}, v{CSA+1}, v{CSA+3}")
        keep = list(A.lg)
        l0_only(A, f, "p4cs")
        A.lg = keep
    kk = -2.0 * 1.4426950408889634 * 0.7978845608028654
    def mid(t):
        csum(t)
        if t == 2: late_setup()
        if t == 6:
            tt = TMP
            A.wait_vm(lambda g: g == ("S",))
            finish_stats(A, tt, NM, tt + 2, tt + 10)
            A(f"v_mov_b32 v{IR}, v{tt+1}")
            A(f"v_mul_f32 v{CB}, {f32(kk)}, v{tt+2}")
            A(f"v_mul_f32 v{tt+3}, v{tt+2}, v{tt+2}")
            A(f"v_mul_f32 v{tt+3}, {f32(0.044715)}, v{tt+3}")
            A(f"v_mul_f32 v{CA}, v{CB}, v{tt+3}")
    g.wflags = NT4
    g.lastbar = env("LB4", 7)
    if LEAD:
        g.bar_at = env("E3AT", 4); g.bar_fn = lambda: cnt_wait(A, 3, 4, T)
        g.nland = P4PRE + NA; g.wgate = P4PRE
        def gate4():
            l = A.newlabel("g4")
            kv, kl, h = list(A.vm), list(A.lg), None
            A("s_cmp_lt_u32 s20, 4"); A(f"s_cbranch_scc1 {l}")
            h = list(A.hist)
            cnt_wait(A, 4, 4, T)
            for t in range(P4PRE, P4PRE + NA):
                for q in range(4):
                    A(f"s_add_u32 m0, s32, {t * SLOT + (q & 1) * 1024 - (UOFF if q < 2 else 0)}")
                    A(f"buffer_load_dwordx4 v{VWD + (q & 1)}, {s(40 if q < 2 else 12, 4)}, s44 offen lds")
                A(f"s_add_u32 s44, s44, {64*F*2}"); A(f"s_cmp_ge_u32 s44, {640*F*2}"); A("s_cselect_b32 s44, 0, s44")
            A("s_waitcnt vmcnt(0)")
            A.fence(); A.label(l)
            A.vm, A.lg, A.hist = kv, kl, h
        g.pre_bar = {P4PRE: gate4}
    elif env("E3POS", 1): g.bar_at = env("E3AT", 4)
    g.run(extra=stats_items(A, VST, 36, TMP), wlead=env("WLEAD4", -1 if LEAD else 3), sb=16, stage_end=mid, tail=[t5(t) for t in range(N5)], rate=env("RATE4", 7))
    if N5B:
        A(f"v_mov_b32 v{CSB}, {L_CNT}"); A(f"v_mov_b32 v{CSB+1}, 1")
        A("s_mov_b64 exec, 1")
        A(f"ds_add_u32 v{CSB}, v{CSB+1}")
        A("s_mov_b64 exec, -1")
    def cpart():
        A("s_nop 3")
        A(f"v_add_f32 v{CSA}, v{CSA}, v{CSA+1}")
        A(f"v_mov_b32 v{CSA+1}, v{CSA}"); A(f"v_permlane32_swap_b32 v{CSA}, v{CSA+1}"); A(f"v_add_f32 v{CSA}, v{CSA}, v{CSA+1}")
        A(f"v_bfe_u32 v{CSB}, v1, 4, 1"); A(f"v_lshlrev_b32 v{CSB}, 8, v{CSB}")
        A(f"v_and_b32 v{CSB+1}, 15, v1"); A(f"v_lshl_add_u32 v{CSB}, v{CSB+1}, 2, v{CSB}")
        A("s_lshl_b32 s21, s26, 6"); A("s_lshl_b32 s22, s29, 9"); A("s_add_u32 s21, s21, s22"); A(f"s_add_u32 s21, s21, {CS_PART}")
        A(f"v_add_u32 v{CSB}, s21, v{CSB}")
        A(f"ds_write_b32 v{CSB}, v{CSA}")
    l0_only(A, cpart, "p4cp")
    def cfin():
        A.wait_lg_all()
        A("s_barrier")
        A(f"v_lshlrev_b32 v{CSB}, 3, v1"); A(f"v_add_u32 v{CSB}, {CS_PART}, v{CSB}")
        A(f"ds_read_b64 {v(CSB+2,2)}, v{CSB}"); A(f"ds_read_b64 {v(CSB+4,2)}, v{CSB} offset:512")
        A.wait_lg_all()
        A(f"v_pk_add_f32 {v(CSB+2,2)}, {v(CSB+2,2)}, {v(CSB+4,2)}")
        A(f"ds_write_b64 v{CSB}, {v(CSB+2,2)} offset:{CS4 - CS_PART}")
        A.wait_lg_all()
    l0_only(A, cfin, "p4cf")
    csr = lambda nb: WF + (nb & 1) * 16
    def csread(nb):
        for i in range(2):
            A(f"ds_read_b128 {v(csr(nb) + i*4, 4)}, v{VCS} offset:{nb*64 + i*32}", ("C", nb))
            A(f"ds_read_b128 {v(csr(nb) + 8 + i*4, 4)}, v{VCS} offset:{256 + nb*64 + i*32}", ("C", nb))
    csread(0); csread(1)
    for kkb in range(2):
        for e in range(2):
            nb = 2 * kkb + e
            A.wait_lg(lambda g: g == ("C", nb))
            for k in range(0, 16, 2):
                r = ACC + nb * 16 + k
                A(f"v_pk_fma_f32 {v(r,2)}, {v(csr(nb)+k,2)}, {v(NM,2)}, {v(r,2)} op_sel_hi:[1,0,1]")
        if kkb == 0: csread(2); csread(3)
        for half in range(2):
            out = TMP + 4 * ((2 * kkb + half) & 3)
            for e in range(2):
                nb = 2 * kkb + e
                gq = ACC + nb * 16 + 4 * half
                uq = gq + 8
                Tt = T + 4 * e
                for k in (0, 2): A(f"v_pk_mul_f32 {v(Tt+k,2)}, {v(gq+k,2)}, {v(gq+k,2)}")
                for k in (0, 2): A(f"v_pk_fma_f32 {v(Tt+k,2)}, {v(Tt+k,2)}, {v(CA,2)}, {v(CB,2)} op_sel_hi:[1,0,0]")
                for k in (0, 2): A(f"v_pk_mul_f32 {v(Tt+k,2)}, {v(Tt+k,2)}, {v(gq+k,2)}")
                for k in range(4): A(f"v_exp_f32 v{Tt+k}, v{Tt+k}")
                for k in (0, 2): A(f"v_pk_mul_f32 {v(gq+k,2)}, {v(gq+k,2)}, {v(uq+k,2)}")
                for k in (0, 2): A(f"v_pk_fma_f32 {v(Tt+k,2)}, {v(Tt+k,2)}, {v(IR,2)}, {v(IR,2)} op_sel_hi:[1,0,0]")
                for k in range(4): A(f"v_rcp_f32 v{Tt+k}, v{Tt+k}")
                for k in (0, 2): A(f"v_pk_mul_f32 {v(gq+k,2)}, {v(gq+k,2)}, {v(Tt+k,2)}")
                A(f"v_cvt_pk_bf16_f32 v{out+2*e}, v{gq}, v{gq+1}")
                A(f"v_cvt_pk_bf16_f32 v{out+2*e+1}, v{gq+2}, v{gq+3}")
            A(f"buffer_store_dwordx4 {v(out,4)}, v{VOUT}, s[80:83], 0 offen offset:{kkb*1024 + half*512}{STF}")
    stamp(A, 19)
    signal_local(A, 2, T, 28, 19)
    stamp(A, 20)
    A("s_setprio 0")
    join(A, "L_p4_done"); reset(A)

def main(out_path):
    A = Asm(); name = NAME + "_kernel"
    A.raw(kernel_header(name))
    A("s_cmp_ge_u32 s2, 256"); A("s_cbranch_scc1 L_end")
    if STAMP:
        A("s_memtime s[90:91]"); A("v_mov_b32 v255, 0"); A("v_mov_b32 v254, 0")
    if env("DIAGT", 0): A("s_memrealtime s[90:91]")
    A(f"s_load_dwordx4 s[4:7], s[0:1], 64")
    A(f"s_load_dwordx4 s[84:87], s[0:1], 0")
    A(f"s_load_dwordx2 s[88:89], s[0:1], 16")
    A(f"s_load_dwordx8 s[92:99], s[0:1], 32")
    A("v_lshrrev_b32 v2, 6, v0")
    A("v_and_b32 v1, 63, v0")
    A("v_readfirstlane_b32 s20, v2")
    A("v_and_b32 v2, 31, v0")
    A("v_lshrrev_b32 v3, 5, v1")
    A("s_and_b32 s18, s2, 7")
    A("s_lshr_b32 s19, s2, 3")
    A("s_mov_b32 s16, 0"); A("s_mov_b32 s17, 0"); A(f"s_mov_b32 s3, {OOB:#x}")
    A.wait_lg_all()
    if env("WSBASE", 0):
        A(f"s_add_u32 s{SWS}, s{SWS}, {env('WSBASE', 0) << 20:#x}"); A(f"s_addc_u32 s{SWS+1}, s{SWS+1}, 0")
    srd(A, SFL, SWS, WS_FL, FL_B)
    stamp(A, 0)
    phase1(A, True)
    A.label("L_layer"); reset(A)
    phase1(A, False); phase2(A); phase3(A); phase4(A); phase5(A)
    A("s_cmp_lg_u32 s16, 0"); A("s_cbranch_scc1 L_exit")
    A("s_mov_b32 s16, 1")
    A(f"s_add_u32 s{SWS}, s{SWS}, {LS:#x}"); A(f"s_addc_u32 s{SWS+1}, s{SWS+1}, 0")
    if STAMP: A("v_mov_b32 v254, v255")
    A.fence()
    A("s_branch L_layer")
    A.label("L_exit")
    if env("DIAGT", 0):
        A.label("L_diag")
        A("s_memrealtime s[22:23]"); A("s_waitcnt lgkmcnt(0)"); A.lg = []
        A("s_sub_u32 s22, s22, s90"); A(f"s_cmp_lt_u32 s22, {env('DIAGT', 0)}"); A("s_cbranch_scc1 L_diag")
    if STAMP:
        A("s_waitcnt vmcnt(0)")
        stamp(A, 31)
        srd(A, 76, SWS, WS_DBG - LS, 0x1000000)
        A("s_lshl_b32 s21, s2, 3"); A("s_add_u32 s21, s21, s20"); A("s_lshl_b32 s21, s21, 9")
        A("v_lshlrev_b32 v4, 2, v1"); A("v_add_u32 v4, s21, v4")
        A("buffer_store_dword v254, v4, s[76:79], 0 offen")
        A("buffer_store_dword v255, v4, s[76:79], 0 offen offset:256")
        if env("DBGOUT", 0):
            A("s_add_u32 s21, s2, s20"); A("s_cmp_lg_u32 s21, 0"); A("s_cbranch_scc1 L_end")
            srd(A, 76, SDBG, 0, 256)
            A("v_readlane_b32 s22, v254, 0")
            sel = [(254, 2), (254, 3), (254, 8), (254, 11), (254, 16), (254, 22), (255, 1), (255, 8), (255, 11), (255, 16), (255, 22), (255, 31)]
            slots = [2, 3, 4, 5, 6, 7, 10, 11, 12, 13, 14, 15]
            A("s_mov_b64 exec, 1")
            for (r, l), sl in zip(sel, slots):
                A(f"v_readlane_b32 s23, v{r}, {l}"); A("s_sub_u32 s23, s23, s22"); A("v_mov_b32 v6, s23"); A(f"v_mov_b32 v7, {sl*4}")
                A("buffer_store_dword v6, v7, s[76:79], 0 offen")
                A("s_waitcnt vmcnt(0)"); A.vm = []
    A.label("L_end"); A("s_endpgm")
    A.flush_tail()
    A.raw("    .p2align 4"); A.label("L_code_end")
    hdr = open(os.path.join(os.path.dirname(os.path.abspath(__file__)), "..", "cdna_kernels", NAME + ".s.ref")).read().split("; Override")[0]
    t = hdr + f"; @launch grid=(256,1,1) block=(512,1,1) lds={LDS_TOTAL}\n"
    t += '.amdgcn_target "amdgcn-amd-amdhsa--gfx950"\n.text\n' + A.text()
    t += '.section .rodata,"a"\n.p2align 6\n' + kernel_desc(name, 256, 0, 102)
    open(out_path, "w").write(t)

if __name__ == "__main__":
    main(sys.argv[1] if len(sys.argv) > 1 else f"cdna_kernels/{NAME}.s")
```

```python
import sys, os, struct
sys.path.insert(0, os.path.dirname(os.path.abspath(__file__)))
from asmdsl import *

NAME = "interleave_layers__sliding_block__glu_gated_geglu__prompt"
S_TOK, D, F = 2048, 640, 1728
XB = S_TOK * D * 2
LS = 0x2000000
WS_XIN = 0x0000000
WS_X1 = 0x0300000
WS_O = 0x0600000
WS_H = 0x0900000
H_B = S_TOK * F * 2
WS_QKV = 0x1000000
QKV_B = 480 * 16384
WS_STA = 0x1800000
WS_STB = 0x1840000
ST_B = 10 * S_TOK * 8
WS_FL = 0x1880000
FL_B = 0x20000
WS_QKL = 0x18a0000 + 0x60000
WS_DBG = 0x4000000
OOB = 0x80000000
LDS_TOTAL = 163840
RSV = LDS_TOTAL - 3072
CS_PART, CS1, CS4, L_MODE, L_CNT = RSV, RSV + 1024, RSV + 1536, RSV + 2048, RSV + 2064
P3W = RSV - 10 * 8448
SDBG, SWS, SX, SWQKV, SWO, SWG, SWU, SWD, SOUT = 4, 6, 84, 86, 88, 92, 94, 96, 98
SFL = 72
SPIN_MAX = 1 << 20
def env(n, d): return int(os.environ.get(n, str(d)))
def f32(x): return "0x%08x" % struct.unpack("<I", struct.pack("<f", x))[0]
STAMP = env("STAMP", 0)
FORCE_SLOW = env("FORCE_SLOW", 0)
LEAD = env("LEAD", 0)
DEFER = env("DEFER", 0)
S4 = env("S4", 2)
PLAIN = env("PLAIN", 0)
STF = "" if PLAIN else " sc1"
NT4 = " nt" if env("NT4", 0) else ""
NTX = " nt" if env("NTX", 0) else ""

def stamp(A, i):
    if STAMP:
        A("s_memtime s[100:101]" if STAMP == 1 else "s_memrealtime s[100:101]"); A.wait_lg_all()
        if STAMP == 1: A("s_sub_u32 s100, s100, s90")
        A(f"v_writelane_b32 v255, s100, {i}")

def srd(A, d, base, off, size, soff=None):
    A(f"s_add_u32 s{d}, s{base}, {off:#x}")
    A(f"s_addc_u32 s{d+1}, s{base+1}, 0")
    if soff is not None:
        A(f"s_add_u32 s{d}, s{d}, s{soff}")
        A(f"s_addc_u32 s{d+1}, s{d+1}, 0")
    A(f"s_mov_b32 s{d+2}, {size:#x}")
    A(f"s_mov_b32 s{d+3}, 0x20000")

def join(A, label):
    A.fence(); A.label(label)

def spin(A, body, name, sleep=1):
    lp = A.newlabel(name); out = A.newlabel(name + "x")
    A("s_mov_b32 s35, 0")
    A.fence(); A.label(lp)
    body()
    A("s_add_u32 s35, s35, 1")
    A(f"s_cmp_gt_u32 s35, {SPIN_MAX}"); A(f"s_cbranch_scc1 {out}")
    A(f"s_cbranch_vccz {out}")
    if sleep: A(f"s_sleep {sleep}")
    A(f"s_branch {lp}")
    A.fence(); A.label(out)

def acquire_if_slow(A):
    l = A.newlabel("acq")
    A("s_cmp_lg_u32 s17, 0"); A(f"s_cbranch_scc1 {l}")
    A("buffer_inv sc1"); A("s_waitcnt vmcnt(0)")
    A.label(l)

def signal_local(A, k, t0, sblk, sprod, nowait=False):
    A("s_lshl_b32 s21, s16, 3"); A(f"s_add_u32 s21, s21, {k}"); A("s_lshl_b32 s21, s21, 3"); A("s_add_u32 s21, s21, s18")
    A(f"s_lshl_b32 s21, s21, 3"); A(f"s_add_u32 s21, s21, s{sblk}"); A("s_lshl_b32 s21, s21, 5"); A(f"s_add_u32 s21, s21, s{sprod}")
    A(f"v_mov_b32 v{t0}, s21"); A(f"v_mov_b32 v{t0+1}, 1")
    if not nowait: A.wait_vm_all()
    slow = A.newlabel("sigslow"); done = A.newlabel("sigdone")
    A("s_mov_b64 exec, 1")
    A("s_cmp_eq_u32 s17, 0"); A(f"s_cbranch_scc1 {slow}")
    A(f"buffer_store_byte v{t0+1}, v{t0}, {s(SFL,4)}, 0 offen")
    A(f"s_branch {done}")
    A.label(slow)
    A(f"buffer_store_byte v{t0+1}, v{t0}, {s(SFL,4)}, 0 offen sc1")
    A.label(done)
    A("s_mov_b64 exec, -1")
    A.vm = [None]

def signal_defer(A, k, sblk, sprod):
    A("s_lshl_b32 s3, s16, 3"); A(f"s_add_u32 s3, s3, {k}"); A("s_lshl_b32 s3, s3, 3"); A("s_add_u32 s3, s3, s18")
    A(f"s_lshl_b32 s3, s3, 3"); A(f"s_add_u32 s3, s3, s{sblk}"); A("s_lshl_b32 s3, s3, 5"); A(f"s_add_u32 s3, s3, s{sprod}")

def signal_flush(A, t0):
    slow = A.newlabel("sfslow"); done = A.newlabel("sfdone")
    A(f"s_cmp_eq_u32 s3, {OOB:#x}"); A(f"s_cbranch_scc1 {done}")
    A(f"v_mov_b32 v{t0}, s3"); A(f"v_mov_b32 v{t0+1}, 1")
    A("s_waitcnt vmcnt(0)")
    A("s_mov_b64 exec, 1")
    A("s_cmp_eq_u32 s17, 0"); A(f"s_cbranch_scc1 {slow}")
    A(f"buffer_store_byte v{t0+1}, v{t0}, {s(SFL,4)}, 0 offen")
    A("s_mov_b64 exec, -1")
    A(f"s_branch {done}")
    A.label(slow)
    A(f"buffer_store_byte v{t0+1}, v{t0}, {s(SFL,4)}, 0 offen sc1")
    A("s_mov_b64 exec, -1")
    join(A, done)
    A(f"s_mov_b32 s3, {OOB:#x}")
    reset(A)

def wait_local(A, k, p0, p1, sblk, t0, layer_delta=0, sleep=1):
    A(f"v_and_b32 v{t0+1}, 7, v1"); A(f"v_lshlrev_b32 v{t0+2}, 5, v{t0+1}")
    A(f"v_mov_b32 v{t0}, 0")
    for j in range(8):
        m = sum(1 << (8 * q) for q in range(4) if p0 <= 4 * j + q < p1)
        if m == 0x01010101 or m == 0: continue
        A(f"v_cmp_eq_u32 vcc, {j}, v{t0+1}"); A(f"v_mov_b32 v{t0+2}, {m:#x}"); A(f"v_cndmask_b32 v{t0}, v{t0}, v{t0+2}, vcc")
    f0, f1 = (p0 + 3) // 4, p1 // 4
    A(f"v_subrev_u32 v{t0+2}, {f0}, v{t0+1}"); A(f"v_cmp_gt_u32 vcc, {f1 - f0}, v{t0+2}")
    A(f"v_mov_b32 v{t0+2}, 0x01010101"); A(f"v_cndmask_b32 v{t0}, v{t0}, v{t0+2}, vcc")
    A(f"v_lshlrev_b32 v{t0+1}, 2, v{t0+1 if sblk is not None else 1}")
    A(f"s_add_u32 s21, s16, {layer_delta & 0xffffffff:#x}")
    A("s_lshl_b32 s21, s21, 3"); A(f"s_add_u32 s21, s21, {k}"); A("s_lshl_b32 s21, s21, 3"); A("s_add_u32 s21, s21, s18"); A("s_lshl_b32 s21, s21, 3")
    if sblk is not None: A(f"s_add_u32 s21, s21, s{sblk}")
    A("s_lshl_b32 s21, s21, 5")
    def body():
        A(f"buffer_load_dword v{t0+2}, v{t0+1}, {s(SFL,4)}, s21 offen sc1")
        A.wait_vm_all()
        A(f"v_and_b32 v{t0+2}, v{t0+2}, v{t0}")
        A(f"v_cmp_ne_u32 vcc, v{t0+2}, v{t0}")
    spin(A, body, "wl", sleep)
    acquire_if_slow(A)

def census_wait(A, t0, sleep=8):
    srd(A, 76, SDBG, 0, 256)
    A("s_sub_u32 s21, s18, 1"); A("s_max_i32 s21, s21, 0")
    A(f"v_mov_b32 v{t0}, s18"); A(f"v_mov_b32 v{t0+1}, s21")
    A("v_cmp_eq_u32 vcc, 0, v1")
    A(f"v_cndmask_b32 v{t0}, v{t0+1}, v{t0}, vcc")
    A(f"v_lshlrev_b32 v{t0}, 5, v{t0}")
    def body():
        A(f"buffer_load_dwordx2 {v(t0+2,2)}, v{t0}, s[76:79], 0 offen sc1")
        A.wait_vm_all()
        A(f"v_sad_u8 v{t0+1}, v{t0+2}, 0, 0")
        A(f"v_sad_u8 v{t0+1}, v{t0+3}, 0, v{t0+1}")
        A(f"v_cmp_ne_u32 vcc, 32, v{t0+1}")
    spin(A, body, "cen", sleep)
    A(f"v_readfirstlane_b32 s22, v{t0+2}"); A(f"v_readfirstlane_b32 s23, v{t0+3}")
    A("s_bcnt1_i32_b64 s21, s[22:23]")
    A("s_cmp_eq_u32 s21, 1"); A(f"s_cselect_b32 s17, {0 if FORCE_SLOW else 1}, 0")
    A(f"v_mov_b32 v{t0}, {L_MODE}"); A(f"v_mov_b32 v{t0+2}, s17"); A(f"v_mov_b32 v{t0+3}, 0")
    A(f"ds_write_b64 v{t0}, {v(t0+2,2)}")
    A(f"v_mov_b32 v{t0+2}, 0")
    for q in range(3): A(f"ds_write_b64 v{t0}, {v(t0+2,2)} offset:{16 + 8*q}")

def cnt_add(A, k, t0):
    A(f"v_mov_b32 v{t0}, {L_CNT + 4*k}"); A(f"v_mov_b32 v{t0+1}, 1")
    A("s_mov_b64 exec, 1")
    A(f"ds_add_u32 v{t0}, v{t0+1}")
    A("s_mov_b64 exec, -1")

def cnt_wait(A, k, n, t0):
    A(f"s_mul_i32 s21, s16, {n}"); A(f"s_add_u32 s21, s21, {n}"); A(f"v_mov_b32 v{t0}, {L_CNT + 4*k}")
    def body():
        A(f"ds_read_b32 v{t0+1}, v{t0}"); A.wait_lg_all()
        A(f"v_cmp_gt_u32 vcc, s21, v{t0+1}")
    spin(A, body, "lc", 1)

def row_loads(A, b):
    srd(A, 36, SX, 0, XB)
    A("s_lshl_b32 s21, s18, 8"); A("s_lshl_b32 s22, s19, 3"); A("s_add_u32 s21, s21, s22"); A("s_and_b32 s22, s20, 3"); A("s_lshl_b32 s22, s22, 1"); A("s_add_u32 s21, s21, s22")
    A(f"v_add_u32 v{b+12}, s21, v3"); A(f"v_mul_u32_u24 v{b+13}, 1280, v{b+12}"); A(f"v_lshl_add_u32 v{b+13}, v2, 4, v{b+13}")
    A(f"buffer_load_dwordx4 {v(b,4)}, v{b+13}, s[36:39], 0 offen", "row")
    A(f"buffer_load_dwordx4 {v(b+4,4)}, v{b+13}, s[36:39], 0 offen offset:512", "row")
    A(f"v_lshrrev_b32 v{b+8}, 4, v2"); A(f"v_lshl_add_u32 v{b+13}, v{b+8}, 31, v{b+13}")
    A(f"buffer_load_dwordx4 {v(b+8,4)}, v{b+13}, s[36:39], 0 offen offset:1024", "row")

def row_stats(A, b, t):
    A.wait_vm(lambda g: g == "row")
    A(f"v_mov_b32 v{t}, 0"); A(f"v_mov_b32 v{t+1}, 0"); A(f"v_mov_b32 v{t+2}, 0x3f803f80")
    for q in range(12):
        A(f"v_dot2_f32_bf16 v{t}, v{b+q}, v{t+2}, v{t}"); A(f"v_dot2_f32_bf16 v{t+1}, v{b+q}, v{b+q}, v{t+1}")
    A("s_nop 3")
    for r in (1, 2, 4, 8):
        for k in range(2): A(f"v_add_f32_dpp v{t+k}, v{t+k}, v{t+k} row_ror:{r} row_mask:0xf bank_mask:0xf")
    A(f"v_mov_b32 v{t+2}, v{t}"); A(f"v_mov_b32 v{t+3}, v{t+1}")
    A(f"v_permlane16_swap_b32 v{t}, v{t+2}"); A(f"v_permlane16_swap_b32 v{t+1}, v{t+3}")
    A(f"v_add_f32 v{t}, v{t}, v{t+2}"); A(f"v_add_f32 v{t+1}, v{t+1}, v{t+3}")
    ln_finish(A, t, t + 4, t + 5)
    srd(A, 36, SWS, WS_STA, ST_B)
    A(f"v_lshlrev_b32 v{t}, 3, v{b+12}")
    A("s_mov_b32 exec_lo, 1"); A("s_mov_b32 exec_hi, 1")
    A(f"buffer_store_dwordx2 {v(t+4,2)}, v{t}, s[36:39], 0 offen sc1", "rst")
    A("s_mov_b64 exec, -1")

def read_mode(A, t0):
    A(f"v_mov_b32 v{t0}, {L_MODE}")
    A(f"ds_read_b32 v{t0}, v{t0}", "mode")
    A.wait_lg(lambda g: g == "mode")
    A(f"v_readfirstlane_b32 s17, v{t0}")

def flags_zero(A, t0):
    A(f"v_mov_b32 v{t0}, 0"); A(f"v_mov_b32 v{t0+1}, 0")
    A("s_lshl_b32 s21, s18, 8"); A("s_lshl_b32 s22, s19, 3"); A("s_add_u32 s21, s21, s22")
    A(f"v_lshlrev_b32 v{t0+2}, 11, v1"); A(f"v_add_u32 v{t0+2}, s21, v{t0+2}")
    A("s_lshl_b32 s21, s18, 5"); A("s_add_u32 s21, s21, s19"); A("s_lshl_b32 s21, s21, 7"); A(f"s_add_u32 s21, s21, {(0x10000 - 16*32768) & 0xffffffff:#x}")
    A(f"v_lshlrev_b32 v{t0+3}, 15, v1"); A(f"v_add_u32 v{t0+3}, s21, v{t0+3}")
    A("v_cmp_gt_u32 vcc, 16, v1"); A(f"v_cndmask_b32 v{t0+2}, v{t0+3}, v{t0+2}, vcc")
    A("s_lshl_b32 s21, s16, 3"); A("s_add_u32 s21, s21, s20")
    A("s_cmp_eq_u32 s21, 4"); A("s_cselect_b32 s22, 0x3ffff, 0"); A("s_mov_b32 s23, 0")
    A(f"v_mov_b32 v{t0+3}, {OOB:#x}")
    A(f"v_cndmask_b32 v{t0+2}, v{t0+3}, v{t0+2}, s[22:23]")
    A(f"buffer_store_dwordx2 {v(t0,2)}, v{t0+2}, {s(SFL,4)}, 0 offen sc1", "fz")

def census_post(A, t0):
    srd(A, 76, SDBG, 0, 256)
    A("s_getreg_b32 s21, hwreg(HW_REG_XCC_ID)"); A("s_and_b32 s21, s21, 7"); A("s_lshl_b32 s21, s21, 3")
    A("s_mov_b64 s[22:23], 1"); A("s_lshl_b64 s[22:23], s[22:23], s21")
    A(f"v_mov_b32 v{t0}, s22"); A(f"v_mov_b32 v{t0+1}, s23")
    A("s_lshl_b32 s21, s16, 3"); A("s_add_u32 s21, s21, s20"); A("s_lshl_b32 s22, s18, 5")
    A("s_cmp_eq_u32 s21, 4"); A(f"s_cselect_b32 s21, s22, {OOB:#x}")
    A(f"v_mov_b32 v{t0+2}, s21")
    A("s_mov_b64 exec, 1")
    A(f"buffer_atomic_add_x2 {v(t0,2)}, v{t0+2}, s[76:79], 0 offen sc1")
    A("s_mov_b64 exec, -1")

def stats_items(A, vtok_off, srd_st, tmp, sbase=None):
    def mk(i):
        def f():
            A(f"s_mov_b32 s21, {i*2048}" if sbase is None else f"s_add_u32 s21, s{sbase}, {i*2048}")
            A(f"buffer_load_dwordx2 {v(tmp+2*i,2)}, v{vtok_off}, {s(srd_st,4)}, s21 offen sc1", ("S",))
        return f
    return [mk(i) for i in range(5)]

def finish_stats(A, tmp, negmean, rstd, t2, single=False):
    if not single:
        A(f"v_pk_add_f32 {v(tmp,2)}, {v(tmp,2)}, {v(tmp+2,2)}")
        A(f"v_pk_add_f32 {v(tmp+4,2)}, {v(tmp+4,2)}, {v(tmp+6,2)}")
        A(f"v_pk_add_f32 {v(tmp,2)}, {v(tmp,2)}, {v(tmp+8,2)}")
        A(f"v_pk_add_f32 {v(tmp,2)}, {v(tmp,2)}, {v(tmp+4,2)}")
    A(f"v_mov_b32 v{t2}, v{tmp}")
    A(f"v_mov_b32 v{t2+1}, v{tmp+1}")
    A(f"v_permlane32_swap_b32 v{tmp}, v{t2}")
    A(f"v_permlane32_swap_b32 v{tmp+1}, v{t2+1}")
    A(f"v_pk_add_f32 {v(tmp,2)}, {v(tmp,2)}, {v(t2,2)}")
    ln_finish(A, tmp, negmean, rstd)

def bfr(A, r):
    A(f"v_cvt_pk_bf16_f32 v{r}, v{r}, v{r}"); A(f"v_and_b32 v{r}, 0xffff0000, v{r}")

def ln_finish(A, tmp, negmean, rstd):
    A(f"v_mul_f32 v{negmean}, {f32(-1.0/D)}, v{tmp}")
    A(f"v_mul_f32 v{tmp+1}, {f32(1.0/D)}, v{tmp+1}")
    A(f"v_fma_f32 v{tmp+1}, -v{negmean}, v{negmean}, v{tmp+1}")
    A(f"v_max_f32 v{tmp+1}, 0, v{tmp+1}")
    bfr(A, negmean); bfr(A, tmp + 1)
    A(f"v_add_f32 v{tmp+1}, {f32(1e-5)}, v{tmp+1}")
    bfr(A, tmp + 1)
    A(f"v_sqrt_f32 v{tmp+1}, v{tmp+1}")
    bfr(A, tmp + 1)
    A(f"v_rcp_f32 v{rstd}, v{tmp+1}")
    A(f"v_mul_f32 v{tmp+1}, v{tmp+1}, v{tmp+1}")

class Gemm:
    def __init__(self, A, NB, nstage, XS, WSL, slot_bytes, RB, nb_stride, acc, wf, xa,
                 vx, vwd, wd_srds, wd_lds, vtr, srd_x, w_row_stride, PRE, LA, npre=0):
        self.__dict__.update(locals())
        self.nbar = npre; self.issued = set()

    def load_list(self, do_x, do_w, wlead=0):
        L = []
        n = len(self.vwd)
        for t in range(min(0, wlead), self.nstage + max(0, wlead)):
            tw = t
            if do_w and max(self.npre, self.nland) <= tw < self.nstage:
                for j in range(n): L.append(("W", tw, j, j == n - 1))
            tx = t - wlead
            if do_x and 0 <= tx < self.nstage:
                for st in range(4): L.append(("X", tx, st, st == 3))
        return L

    def issue(self, item):
        A = self.A
        if callable(item): return item()
        kind, t, j, last = item
        self.issued.add((kind, t, j))
        if kind == "X" and self.xstage:
            xs = self.xstage
            assert t - xs["nslot"] < self.cur_stage or t < xs["nslot"], (t, self.cur_stage)
            A(f"s_add_u32 m0, s33, {(t % xs['nslot']) * 4096 + j * 1024}")
            A(f"buffer_load_dwordx4 v{xs['vdma'][j]}, {s(self.srd_x,4)}, s30 offen{NTX} lds", ("X", t, j))
            if last and t < self.nstage - 1:
                A("s_add_u32 s30, s30, 128"); A(f"s_cmp_ge_u32 s30, {self.nstage * 128}"); A("s_cselect_b32 s30, 0, s30")
        elif kind == "X":
            st = j
            assert t - self.XS < self.cur_stage or (t - self.XS == self.cur_stage and st < self.cur_step), (t, self.cur_stage)
            r = self.xa + ((t % self.XS) * 4 + st) * 4
            if self.xdyn:
                A(f"buffer_load_dwordx4 {v(r,4)}, v{self.vx + st}, {s(self.srd_x,4)}, s30 offen", ("X", t, st))
            else:
                A(f"buffer_load_dwordx4 {v(r,4)}, v{self.vx}, {s(self.srd_x,4)}, s30 offen offset:{st*512} sc1", ("X", t, st))
            if last and t < self.nstage - 1:
                A("s_add_u32 s30, s30, s33" if self.xdyn else "s_add_u32 s30, s30, 2048")
                A("s_cmp_ge_u32 s30, s34" if self.xdyn else f"s_cmp_ge_u32 s30, {self.nstage * 2048}")
                A("s_cselect_b32 s30, 0, s30")
        else:
            assert t < self.WSL or self.realbar >= t - self.WSL + 2, (t, self.realbar)
            A(f"s_add_u32 m0, s32, {(t % self.WSL) * self.slot_bytes + self.wd_lds[j]}")
            A(f"buffer_load_dwordx4 v{self.vwd[j]}, {s(self.wd_srds[j],4)}, s31 offen{self.wflags} lds", ("W", t))
            if self.throttle is not None: A(f"s_waitcnt vmcnt({self.throttle})"); A.vm = A.vm[-self.throttle:] if self.throttle else []
            if last and t < self.nstage - 1: self.adv_w()

    def adv_w(self):
        A = self.A
        A(f"s_add_u32 s31, s31, {64 * self.w_row_stride}")
        A(f"s_cmp_ge_u32 s31, {self.nstage * 64 * self.w_row_stride}")
        A("s_cselect_b32 s31, 0, s31")

    def tr_reads(self, t, st, buf):
        out = []
        kb, f = st >> 1, st & 1
        slot = t % self.WSL
        per = 65536 // self.slot_bytes
        va = self.vtr[slot // per]
        base = (slot % per) * self.slot_bytes
        for nb in range(self.NB):
            for rd in range(2):
                off = base + (8 * kb + 4 * rd + 2 * f) * self.RB + nb * self.nb_stride
                r = self.wf + (buf * self.NB + nb) * 4 + rd * 2
                out.append((f"ds_read_b64_tr_b16 {v(r,2)}, v{va} offset:{off}", ("F", t, st, nb)))
        return out

    realbar = -1
    xdyn = False
    bar_at = None
    bar_fn = None
    wgate = None
    pre_bar = {}
    LA0 = 0
    FD = 1
    xstage = None
    wflags = ""
    throttle = None
    lastbar = None
    nland = 0
    def barrier(self, t):
        if t < self.npre: return
        if self.lastbar is not None and t > self.lastbar: return
        if t in self.pre_bar: self.pre_bar[t]()
        tw = self.nstage - 1 if t == self.lastbar else t
        assert not self.do_w or tw < self.nland or ("W", tw, len(self.vwd) - 1) in self.issued, (t, tw)
        self.A.wait_vm(lambda g: g == ("W", tw))
        self.A("s_barrier")
        self.realbar = t

    def run_idle(self):
        for t in range(self.npre, self.nstage): self.A("s_barrier")

    def prefetch(self, n):
        self.do_w = True; self.cur_stage, self.cur_step = -1, 0
        for it in self.load_list(False, True):
            if it[1] < n: self.issue(it)

    def run_loader(self, after_bar=None, early=None, first=None):
        L = self.load_list(False, True); self.do_w = True
        self.cur_stage, self.cur_step = -1, 0
        k = 0
        for t in range(self.nstage + 1):
            if early and t > 0: early(t - 1)
            lim = max(self.LA, min(t + self.WSL - 2, t + self.LA))
            if t == 0 and self.LA0: lim = self.LA0
            while k < len(L) and L[k][1] < lim and (L[k][1] < self.WSL or self.realbar >= L[k][1] - self.WSL + 2):
                self.issue(L[k]); k += 1
                if first and k == env("FIRSTN", 8): first()
            if after_bar and t > 0: after_bar(t - 1)
            if t < self.nstage: self.barrier(t)
        assert k == len(L)

    def xread(self, t, st):
        xs = self.xstage
        r = self.xa + ((t % 2) * 4 + st) * 4
        self.A(f"ds_read_b128 {v(r,4)}, v{xs['vrd'][st]} offset:{(t % xs['nslot']) * 4096}", ("XR", t, st))

    def run(self, zero_init=True, do_w=True, extra=(), extra_at=3, wlead=0, sb=0, stage_end=None, per_mfma=None, tail=(), rate=None):
        A = self.A
        tail = list(tail)
        L = self.load_list(True, do_w, wlead); self.do_w = do_w
        pos = next(i for i, it in enumerate(L) if it[0] == "X" and it[1] == extra_at)
        L[pos:pos] = list(extra)
        self.cur_stage, self.cur_step = -1, 0
        k = min(self.PRE, len(L))
        for q, it in enumerate(L[:k]):
            if self.bar_at == q: (self.bar_fn() if self.bar_fn else A("s_barrier"))
            assert self.bar_at is None or q >= self.bar_at or it[0] == "X"
            self.issue(it)
        self.barrier(0)
        stamp(A, sb + 1)
        xs = self.xstage
        if xs:
            A.wait_vm(lambda g: g == ("X", 0, 3))
            for st in range(4): self.xread(0, st)
        FD = self.FD
        for q in range(FD):
            for ins, tag in self.tr_reads(0, q, q): A(ins, tag)
        gstep = 0
        nm = self.NB
        per_stage = 4 + (len(self.vwd) if do_w else 0)
        rate = (rate or per_stage) / (4.0 * nm)
        credit = 0.0
        for t in range(self.nstage):
            for st in range(4):
                self.cur_stage, self.cur_step = t, st
                buf = gstep % (FD + 1)
                if st == 4 - FD and t + 1 < self.nstage: self.barrier(t + 1)
                gn = gstep + FD
                nreads = self.tr_reads(gn // 4, gn % 4, gn % (FD + 1)) if gn < 4 * self.nstage else []
                if xs:
                    xr = self.xa + ((t % 2) * 4 + st) * 4
                    if st >= 2 and t + 1 < self.nstage:
                        if st == 2:
                            assert ("X", t + 1, 3) in self.issued
                            A.wait_vm(lambda g: g == ("X", t + 1, 3))
                        self.xread(t + 1, 2 * (st - 2)); self.xread(t + 1, 2 * (st - 2) + 1)
                else:
                    xr = self.xa + ((t % self.XS) * 4 + st) * 4
                    assert ("X", t, st) in self.issued
                    A.wait_vm(lambda g: g == ("X", t, st))
                for nb in range(self.NB):
                    A.wait_lg(lambda g: g == ("F", t, st, nb) or g == ("XR", t, st))
                    ac = self.acc + nb * 16
                    wr = self.wf + (buf * self.NB + nb) * 4
                    c = "0" if (zero_init and gstep == 0) else v(ac, 16)
                    A(f"v_mfma_f32_32x32x16_bf16 {v(ac,16)}, {v(wr,4)}, {v(xr,4)}, {c}")
                    for ins, tag in nreads[2 * nb:2 * nb + 2]: A(ins, tag)
                    if per_mfma: per_mfma(xr, nb)
                    if tail and self.realbar == self.lastbar and nb == 1: tail.pop(0)()
                    credit += rate
                    while credit >= 1.0 - 1e-9 and k < len(L):
                        it = L[k]
                        if not callable(it):
                            if it[0] == "X" and xs:
                                if not (it[1] - xs["nslot"] < t or it[1] < xs["nslot"]): break
                            elif it[0] == "X" and not (it[1] - self.XS < t or (it[1] - self.XS == t and it[2] < st)): break
                            if it[0] == "W" and not (it[1] < self.WSL or self.realbar >= it[1] - self.WSL + 2): break
                            if it[0] == "W" and self.wgate is not None and self.realbar < self.wgate: break
                            credit -= 1.0
                        else: credit -= 0.25
                        self.issue(it); k += 1
                gstep += 1
            if stage_end: stage_end(t)
        assert k == len(L), (k, len(L))
        assert not tail
        stamp(A, sb + 2)

ROT = env("ROT", 0)
def rot_calc(A, kind):
    n = 27 if kind == "p5" else 10
    A(f"s_mul_i32 s21, s18, {n}"); A("s_lshr_b32 s21, s21, 3")
    if kind == "p1r":
        A("s_and_b32 s22, s19, 1"); A("s_mul_i32 s22, s22, 5"); A("s_add_u32 s21, s21, s22")
        A("s_cmp_ge_u32 s21, 10"); A("s_cselect_b32 s22, 10, 0"); A("s_sub_u32 s21, s21, s22")
    elif ROT:
        if kind == "p1":
            A("s_lshr_b32 s22, s19, 1"); A("s_add_u32 s21, s21, s22")
            if ROT == 1: A("s_and_b32 s22, s19, 1"); A("s_mul_i32 s22, s22, 5"); A("s_add_u32 s21, s21, s22")
        elif kind == "p4":
            A("s_add_u32 s21, s21, s19")
        else:
            A("s_mul_i32 s22, s19, 171"); A("s_lshr_b32 s22, s22, 9")
            A("s_mul_i32 s23, s22, 3"); A("s_sub_u32 s23, s19, s23")
            if kind == "p5":
                A("s_mul_i32 s22, s22, 11"); A("s_lshr_b32 s22, s22, 2"); A("s_mul_i32 s23, s23, 9")
            else:
                A("s_mul_i32 s23, s23, 3")
            A("s_add_u32 s21, s21, s22")
            if ROT == 1: A("s_add_u32 s21, s21, s23")
        mag = (65536 + n - 1) // n
        A(f"s_mul_i32 s22, s21, {mag}"); A("s_lshr_b32 s22, s22, 16"); A(f"s_mul_i32 s22, s22, {n}"); A("s_sub_u32 s21, s21, s22")

def rot_init(A, kind, w_row_stride, wskip=0):
    nstage = 27 if kind == "p5" else 10
    rot_calc(A, kind)
    A("s_lshl_b32 s30, s21, 11")
    if wskip:
        A(f"s_add_u32 s21, s21, {wskip}"); A(f"s_cmp_ge_u32 s21, {nstage}"); A(f"s_cselect_b32 s22, {nstage}, 0"); A("s_sub_u32 s21, s21, s22")
    A(f"s_mul_i32 s31, s21, {64 * w_row_stride}")

def tr_lane_addr(A, dst, PS, RB, cg_stride, t0, base=0):
    A(f"v_bfe_u32 v{t0}, v1, 2, 2")
    A(f"v_mul_u32_u24 v{dst}, {PS}, v{t0}")
    A(f"v_mul_u32_u24 v{t0}, {RB}, v3")
    A(f"v_add_u32 v{dst}, v{dst}, v{t0}")
    A(f"v_bfe_u32 v{t0}, v1, 4, 1")
    A(f"v_mul_u32_u24 v{t0}, {cg_stride}, v{t0}")
    A(f"v_add_u32 v{dst}, v{dst}, v{t0}")
    A(f"v_and_b32 v{t0}, 3, v1")
    A(f"v_lshl_add_u32 v{dst}, v{t0}, 3, v{dst}")
    if base: A(f"v_add_u32 v{dst}, {base}, v{dst}")

def cl_lane_off(A, dst, stok, tb_stride, t0):
    A(f"v_lshrrev_b32 v{t0}, 4, v2")
    A(f"s_lshr_b32 s21, s{stok}, 4")
    A(f"v_add_u32 v{t0}, s21, v{t0}")
    A(f"s_mov_b32 s21, {tb_stride}")
    A(f"v_mul_lo_u32 v{dst}, v{t0}, s21")
    A(f"v_lshl_add_u32 v{dst}, v3, 8, v{dst}")
    A(f"v_and_b32 v{t0}, 15, v2")
    A(f"v_lshl_add_u32 v{dst}, v{t0}, 4, v{dst}")

def wdma_off(A, dst, n, lanes_per_row, row_stride, scol, splane, t0):
    sh = {8: 3, 16: 4}[lanes_per_row]; R = 64 // lanes_per_row
    A(f"v_lshrrev_b32 v{t0}, {sh}, v1")
    A(f"v_lshlrev_b32 v{t0}, 2, v{t0}")
    A(f"v_add_u32 v{t0}, s{splane}, v{t0}")
    A(f"v_mul_u32_u24 v{t0}, {row_stride}, v{t0}")
    A(f"v_and_b32 v{t0+1}, {lanes_per_row-1}, v1")
    A(f"v_lshl_add_u32 v{t0}, v{t0+1}, 4, v{t0}")
    A(f"v_add_u32 v{dst}, s{scol}, v{t0}")
    for j in range(1, n): A(f"v_add_u32 v{dst+j}, {4*R*j*row_stride}, v{dst}")

def stats_off(A, dst, stok_local, t0):
    A(f"v_add_u32 v{t0}, s{stok_local}, v2")
    A(f"v_lshlrev_b32 v{dst}, 3, v{t0}")
    A(f"v_mul_u32_u24 v{t0}, 10240, v3")
    A(f"v_add_u32 v{dst}, v{dst}, v{t0}")
    A("s_mul_i32 s21, s18, 20480")
    A(f"v_add_u32 v{dst}, s21, v{dst}")

def l0_only(A, fn, name):
    l = A.newlabel(name)
    A("s_cmp_lg_u32 s16, 0"); A(f"s_cbranch_scc1 {l}")
    h = list(A.hist)
    fn()
    A.fence(); A.label(l)
    A.hist = h

def reset(A): A.vm = []; A.lg = []

def phase1(A, L0):
    n = "p1a" if L0 else "p1b"
    PS, RB, SLOT = 4160, 256, 16640
    XSL = env("XSL1A", 4)
    WSL, XS = (9 - XSL, 2) if L0 else (env("WSL1", 9), 6)
    XST = (9 - XSL) * SLOT
    VX, VWD, VTR, VST, VCS, VOUT, NM, RS = 4, 4, 9, 12, 13, 14, 16, 18
    TMP = 20; WF = 32; ACC = 64; CS = 128; XA = 144; SA = 240; ONE = 244; VXR = 248
    A("s_cmp_ge_u32 s19, 30"); A(f"s_cbranch_scc1 L_{n}_idle")
    m0_ = len(A.lines)
    if L0:
        warm_tlb(A)
        l = A.newlabel("ir")
        A("s_cmp_lt_u32 s20, 4"); A(f"s_cbranch_scc1 {l}")
        row_loads(A, 32); flags_zero(A, 4); row_stats(A, 32, 16); A.wait_vm_all()
        join(A, l); reset(A)
        A("s_barrier")
        census_post(A, 4)
        warm_code(A); warm_mall(A)
        l = A.newlabel("cw")
        A("s_cmp_lg_u32 s20, 4"); A(f"s_cbranch_scc1 {l}")
        census_wait(A, 4, 64); A.wait_lg_all()
        join(A, l)
        A("s_barrier")
        read_mode(A, 4)
    A("s_branch L_p1_done")
    A.move_out(m0_, f"L_{n}_idle", jump=False); reset(A)
    A("s_and_b32 s26, s20, 3")
    A("s_and_b32 s24, s19, 1"); A("s_lshl_b32 s24, s24, 7")
    A("s_lshl_b32 s25, s26, 5"); A("s_add_u32 s24, s24, s25")
    A("s_lshl_b32 s27, s18, 8"); A("s_add_u32 s27, s27, s24")
    A("s_lshr_b32 s28, s19, 1")
    rot_init(A, "p1r" if (L0 and env("ROT1A", 0)) else "p1", 3840)
    def mk():
        g = Gemm(A, 4, 10, XS, WSL, SLOT, RB, 64, ACC, WF, XA, VX, [VWD + j for j in range(4)], [12] * 4,
                 [1024 * j for j in range(4)], [VTR, VTR + 1, VTR + 2], 8, 3840,
                 env("PRE1A", 12) if L0 else env("PRE1", 8), env("LA1A", 3) if L0 else env("LA1", 7))
        if L0: g.LA0 = env("LA0", 0)
        if L0: g.xstage = dict(vdma=[VX + j for j in range(4)], vrd=[VXR + j for j in range(4)], nslot=XSL)
        return g
    A("s_cmp_lt_u32 s20, 4"); A(f"s_cbranch_scc1 L_{n}_comp")
    srd(A, 12, SWQKV, 0, D * 1920 * 2)
    A(f"v_lshrrev_b32 v{TMP}, 4, v1"); A(f"v_lshlrev_b32 v{TMP}, {3 if L0 else 2}, v{TMP}"); A(f"v_add_u32 v{TMP}, s26, v{TMP}")
    A(f"v_mul_u32_u24 v{TMP}, 3840, v{TMP}")
    A(f"v_and_b32 v{TMP+1}, 15, v1"); A(f"v_lshl_add_u32 v{TMP}, v{TMP+1}, 4, v{TMP}")
    A("s_lshl_b32 s25, s28, 8"); A(f"v_add_u32 v{VWD}, s25, v{TMP}")
    A(f"v_add_u32 v{VWD+1}, {(4 if L0 else 16)*3840}, v{VWD}"); A(f"v_add_u32 v{VWD+2}, {32*3840}, v{VWD}"); A(f"v_add_u32 v{VWD+3}, {32*3840}, v{VWD+1}")
    A(f"s_mul_i32 s32, s26, {PS}")
    def st_publish(pair):
        A("s_cmp_lt_u32 s28, 5")
        A(f"s_cselect_b32 s21, {f32(20 ** -0.5 * 1.4426950408889634)}, 1.0")
        A(f"v_mul_f32 v{pair+1}, s21, v{pair+1}")
        A("s_lshl_b32 s21, s26, 8"); A(f"s_add_u32 s21, s21, {CS_PART}")
        A(f"v_lshlrev_b32 v{TMP}, 3, v2"); A(f"v_add_u32 v{TMP}, s21, v{TMP}")
        A(f"ds_write_b64 v{TMP}, {v(pair,2)}")
    if not L0:
        stats_off(A, VST, 24, TMP)
        srd(A, 36, SWS, WS_STA, ST_B)
        def after(t):
            if t == 4:
                for f in stats_items(A, VST, 36, TMP): f()
            if t == 7:
                A.wait_vm(lambda g: g == ("S",))
                finish_stats(A, TMP, NM, NM + 1, TMP + 10)
                st_publish(NM)
        mk().run_loader(after_bar=after)
        A.wait_lg_all()
        A("s_barrier")
        A("s_branch L_p1_done")
    else:
        mark = {}
        def first():
            mark["m"] = len(A.lines)
            row_loads(A, ACC)
            flags_zero(A, TMP)
        def early(t):
            if t == 0: row_stats(A, ACC, ACC + 16)
        def after(t):
            if t == 0:
                tr_lane_addr(A, VTR, PS, RB, 32, TMP)
                A("s_lshl_b32 s21, s26, 6"); A(f"v_add_u32 v{VTR}, s21, v{VTR}"); A(f"v_add_u32 v{VTR+1}, {3*SLOT}, v{VTR}")
                A(f"v_mov_b32 v{ONE}, 0x3f803f80")
                for k in range(4): A(f"v_mov_b32 v{SA+k}, 0")
            if t == env("CPOST", 3):
                assert "rst" not in A.vm
                census_post(A, TMP)
            slot = t % WSL
            for q in range(8):
                A(f"ds_read_b64_tr_b16 {v(WF + 2*q, 2)}, v{VTR + slot // 3} offset:{(slot % 3) * SLOT + 2 * q * RB}")
            if t == 8:
                A(f"v_add_u32 v{TMP}, s27, v2"); A(f"v_lshlrev_b32 v{TMP}, 3, v{TMP}")
                A(f"buffer_load_dwordx2 {v(NM,2)}, v{TMP}, s[36:39], 0 offen sc1", "S")
            A.wait_lg_all()
            for q in range(16): A(f"v_dot2_f32_bf16 v{SA + (q & 3)}, v{WF+q}, v{ONE}, v{SA + (q & 3)}")
            if t == 7:
                keep = list(A.vm)
                l = A.newlabel("cw")
                A("s_cmp_lg_u32 s20, 4"); A(f"s_cbranch_scc1 {l}")
                census_wait(A, TMP, 4)
                join(A, l)
                A.vm = keep
        mk().run_loader(after_bar=after, early=early, first=first)
        A("s_nop 3")
        A(f"v_add_f32 v{SA}, v{SA}, v{SA+1}"); A(f"v_add_f32 v{SA+2}, v{SA+2}, v{SA+3}"); A(f"v_add_f32 v{SA}, v{SA}, v{SA+2}")
        A(f"v_mov_b32 v{SA+1}, v{SA}"); A(f"v_permlane32_swap_b32 v{SA}, v{SA+1}"); A(f"v_add_f32 v{SA}, v{SA}, v{SA+1}")
        A("s_lshl_b32 s21, s26, 7"); A(f"s_add_u32 s21, s21, {CS1}")
        A(f"v_lshlrev_b32 v{TMP}, 2, v2"); A(f"v_add_u32 v{TMP}, s21, v{TMP}")
        A(f"ds_write_b32 v{TMP}, v{SA}")
        A.wait_vm_all()
        st_publish(NM)
        A.wait_lg_all()
        A("s_barrier")
        read_mode(A, TMP)
        A("s_branch L_p1_done")
        A.move_out(mark["m"], "L_p1a_ld")
    A.label(f"L_{n}_comp"); reset(A)
    if L0:
        srd(A, 8, SX, 0, XB)
        A(f"v_lshrrev_b32 v{TMP}, 3, v1"); A(f"v_add_u32 v{TMP}, s27, v{TMP}"); A(f"v_mul_u32_u24 v{TMP}, 1280, v{TMP}")
        A(f"v_lshrrev_b32 v{TMP+1}, 4, v1"); A(f"v_and_b32 v{TMP+2}, 7, v1"); A(f"v_xor_b32 v{TMP+1}, v{TMP+1}, v{TMP+2}")
        A(f"v_lshl_add_u32 v{VX}, v{TMP+1}, 4, v{TMP}")
        A(f"v_xor_b32 v{TMP+1}, 4, v{TMP+1}"); A(f"v_lshl_add_u32 v{VX+1}, v{TMP+1}, 4, v{TMP}"); A(f"v_add_u32 v{VX+1}, {8*1280}, v{VX+1}")
        A(f"v_add_u32 v{VX+2}, {16*1280}, v{VX}"); A(f"v_add_u32 v{VX+3}, {16*1280}, v{VX+1}")
        A("s_lshr_b32 s30, s30, 4")
        A(f"s_mul_i32 s33, s26, {XSL*4096}"); A(f"s_add_u32 s33, s33, {XST}")
    else:
        cl_lane_off(A, VX, 27, 20480, TMP)
        srd(A, 8, SWS, WS_XIN, XB)
    def setup():
        tr_lane_addr(A, VTR, PS, RB, 32, TMP)
        A(f"v_add_u32 v{VTR+1}, {3*SLOT}, v{VTR}")
        A(f"v_add_u32 v{VTR+2}, {6*SLOT}, v{VTR}")
        A(f"v_and_b32 v{TMP}, 15, v1"); A(f"v_lshlrev_b32 v{VOUT}, 4, v{TMP}"); A(f"v_lshl_add_u32 v{VOUT}, v3, 11, v{VOUT}")
        A(f"v_bfe_u32 v{TMP}, v1, 4, 1"); A(f"v_lshl_add_u32 v{VOUT}, v{TMP}, 12, v{VOUT}")
        A("s_lshl_b32 s21, s24, 3"); A(f"v_add_u32 v{VOUT}, s21, v{VOUT}")
        A(f"v_lshlrev_b32 v{VCS}, 4, v3"); A(f"v_add_u32 v{VCS}, {CS1}, v{VCS}")
        srd(A, 80, SWS, WS_QKV, QKV_B)
        if L0:
            A(f"v_bfe_u32 v{TMP}, v1, 1, 3"); A(f"v_xor_b32 v{TMP}, v{TMP}, v3")
            A(f"v_lshlrev_b32 v{TMP+1}, 7, v2"); A(f"v_add_u32 v{TMP+1}, s33, v{TMP+1}")
            for st in range(4):
                A(f"v_xor_b32 v{TMP+2}, {2*st}, v{TMP}"); A(f"v_lshl_add_u32 v{VXR+st}, v{TMP+2}, 4, v{TMP+1}")
        A("s_lshl_b32 s21, s26, 8"); A(f"s_add_u32 s21, s21, {CS_PART}")
        A(f"v_lshlrev_b32 v{VST}, 3, v2"); A(f"v_add_u32 v{VST}, s21, v{VST}")
    if L0:
        stamp(A, 1)
        g = mk()
        g.PRE += 1
        g.run(do_w=False, extra=[setup], extra_at=(g.PRE - 1) // 4, sb=1, rate=env("RATE1A", 4))
        A("s_branch L_p1_epi")
        return
    setup()
    A("s_lshr_b32 s29, s24, 5")
    if DEFER: signal_flush(A, TMP)
    wait_local(A, 3, 0, 10, 29, TMP, layer_delta=-1)
    reset(A)
    stamp(A, 1)
    mk().run(do_w=False, sb=1)
    A.label("L_p1_epi"); reset(A)
    A("s_barrier")
    A(f"ds_read_b64 {v(NM,2)}, v{VST}", ("C", 0, 0))
    csr = lambda nb: (WF + (nb & 1) * 16) if nb != 0 else CS
    def csread(nb):
        for i in range(4): A(f"ds_read_b128 {v(csr(nb) + i*4, 4)}, v{VCS} offset:{nb*128 + i*32}", ("C", nb, i))
    csread(0); csread(1); csread(2)
    A("s_lshr_b32 s29, s24, 5")
    A("s_mul_i32 s24, s18, 480"); A("s_lshl_b32 s25, s28, 5"); A("s_add_u32 s24, s24, s25"); A("s_lshl_b32 s24, s24, 11")
    for nb in range(4):
        if nb == 2: csread(3)
        for ip in range(2):
            r = ACC + nb * 16 + ip * 8; c = csr(nb) + ip * 8
            A.wait_lg(lambda g: g == ("C", nb, 2 * ip + 1))
            for k in range(0, 8, 2):
                A(f"v_pk_fma_f32 {v(r+k,2)}, {v(c+k,2)}, {v(NM,2)}, {v(r+k,2)} op_sel_hi:[1,0,1]")
            for k in range(0, 8, 2):
                A(f"v_pk_mul_f32 {v(r+k,2)}, {v(r+k,2)}, {v(NM,2)} op_sel:[0,1] op_sel_hi:[1,1]")
            for k in range(4):
                A(f"v_cvt_pk_bf16_f32 v{r+k}, v{r+2*k}, v{r+2*k+1}")
            A(f"s_add_u32 s21, s24, {(8*nb + 4*ip) * 2048}")
            A(f"v_permlane16_swap_b32 v{r}, v{r+2}")
            A(f"v_permlane16_swap_b32 v{r+1}, v{r+3}")
            A(f"buffer_store_dwordx4 {v(r,4)}, v{VOUT}, s[80:83], s21 offen sc1")
    read_mode(A, TMP)
    stamp(A, 4)
    A("s_lshl_b32 s21, s16, 3"); A("s_add_u32 s21, s21, s18"); A("s_lshl_b32 s21, s21, 5"); A("s_add_u32 s21, s21, s19")
    A("s_lshl_b32 s21, s21, 7"); A("s_add_u32 s21, s21, s20"); A("s_add_u32 s21, s21, 0x10000")
    A(f"v_mov_b32 v{TMP}, s21"); A(f"v_mov_b32 v{TMP+1}, 1")
    A.wait_vm_all()
    A("s_mov_b64 exec, 1")
    A(f"buffer_store_byte v{TMP+1}, v{TMP}, {s(SFL,4)}, 0 offen sc1")
    A("s_mov_b64 exec, -1")
    signal_local(A, 4, TMP + 2, 29, 28, nowait=True)
    stamp(A, 5)
    join(A, "L_p1_done"); reset(A)

P35 = dict(PS=2112, RB=128, SLOT=8448)
def p35_ids(A):
    A("s_mul_i32 s28, s19, 171"); A("s_lshr_b32 s28, s28, 9")
    A("s_mul_i32 s25, s28, 3"); A("s_sub_u32 s24, s19, s25")
    A("s_and_b32 s26, s20, 3")
    A("s_lshl_b32 s24, s24, 2"); A("s_add_u32 s24, s24, s26"); A("s_lshl_b32 s24, s24, 2")
    tab = [0, 1, 4, 8, 2, 5, 6, 8, 3, 7, 8, 8]
    t64 = sum(x << (4 * i) for i, x in enumerate(tab))
    A(f"s_mov_b32 s22, {t64 & 0xffffffff:#x}"); A(f"s_mov_b32 s23, {t64 >> 32:#x}")
    A("s_lshr_b64 s[22:23], s[22:23], s24"); A("s_and_b32 s29, s22, 15")
    A("s_lshl_b32 s24, s29, 5")
    A("s_lshl_b32 s27, s18, 8"); A("s_add_u32 s27, s27, s24")

def p35_gemm(A, nstage, WSL, PRE, LA, npre):
    g = Gemm(A, 2, nstage, 9, WSL, 8448, 128, 64, 48, 24, 96, 4, [6, 7], [12] * 2,
             [0, 1024], [8, 9, 13], 8, D * 2, PRE, LA, npre)
    g.FD = env("FD35", 2)
    return g

def p35_loader_setup(A, sw, K, base):
    A("s_lshl_b32 s25, s28, 7")
    wdma_off(A, 6, 2, 8, D * 2, 25, 26, 16)
    A(f"s_mul_i32 s32, s26, 2112")
    if base: A(f"s_add_u32 s32, s32, {base}")
    srd(A, 12, sw, 0, K * D * 2)

def p35_compute(A, nstage, WSL, npre, base, ws_x, x_bytes, ws_res, ws_out, ws_st, waitf, sigk, can_final, sb, PRE):
    VX, VTR, VRES, VST, VOUT = 4, 8, 10, 11, 12
    TMP = 16; ACC = 48; RES = 80
    cl_lane_off(A, VX, 27, nstage * 2048, TMP)
    tr_lane_addr(A, VTR, 2112, 128, 32, TMP, base)
    A(f"v_add_u32 v{VTR+1}, {7*8448}, v{VTR}"); A(f"v_add_u32 v13, {14*8448}, v{VTR}")
    cl_lane_off(A, VRES, 27, 20480, TMP)
    A("s_lshl_b32 s21, s28, 11")
    A(f"v_add_u32 v{VRES}, s21, v{VRES}")
    if True:
        A(f"v_add_u32 v{TMP}, s27, v2")
        A(f"v_mul_u32_u24 v{VOUT}, {D*2}, v{TMP}")
        A("s_lshl_b32 s21, s28, 7")
        A(f"v_add_u32 v{VOUT}, s21, v{VOUT}")
        A(f"v_lshl_add_u32 v{VOUT}, v3, {5 if can_final else 3}, v{VOUT}")
    A(f"v_add_u32 v{TMP}, s24, v2"); A(f"v_lshlrev_b32 v{VST}, 3, v{TMP}")
    A("s_mul_i32 s21, s18, 10"); A("s_add_u32 s21, s21, s28"); A("s_lshl_b32 s21, s21, 11")
    A(f"v_add_u32 v{VST}, s21, v{VST}")
    srd(A, 8, SWS, ws_x, x_bytes)
    srd(A, 36, SWS, ws_res, XB)
    srd(A, 76, SWS, ws_out, XB)
    srd(A, 80, SWS, ws_st, ST_B)
    if not can_final:
        A("s_cmp_lg_u32 s16, 0"); A("s_cbranch_scc1 L_p3_rescl")
        srd(A, 36, SX, 0, XB)
        for nb in range(2):
            for half in range(2):
                p = RES + (nb * 2 + half) * 4
                A(f"buffer_load_dwordx2 {v(p,2)}, v{VOUT}, s[36:39], 0 offen offset:{(32*nb + 8*half)*2}")
                A(f"buffer_load_dwordx2 {v(p+2,2)}, v{VOUT}, s[36:39], 0 offen offset:{(32*nb + 16 + 8*half)*2}")
        A("s_branch L_p3_resdone")
        A.label("L_p3_rescl")
    for nb in range(2):
        for half in range(2):
            A(f"buffer_load_dwordx4 {v(RES + (nb*2+half)*4, 4)}, v{VRES}, s[36:39], 0 offen offset:{nb*1024 + half*512} sc1", ("R",))
    if not can_final: A.label("L_p3_resdone")
    CINIT = env("CINIT", 1)
    if CINIT:
        A("s_waitcnt vmcnt(0)")
        for nb in range(2):
            for half in range(2):
                p = RES + (nb * 2 + half) * 4
                for j in range(4):
                    dst = ACC + nb * 16 + 4 * half + (j >> 1) * 8 + (j & 1) * 2
                    A(f"v_lshlrev_b32 v{dst}, 16, v{p+j}")
                    A(f"v_and_b32 v{dst+1}, 0xffff0000, v{p+j}")
    waitf(TMP); reset(A)
    stamp(A, sb)
    gate = (lambda: cnt_wait(A, 1, 8, TMP)) if (LEAD and not can_final) else (lambda: A("s_barrier"))
    p35_gemm(A, nstage, WSL, PRE + 1, 0, npre).run(do_w=False, zero_init=not CINIT, sb=sb, extra=[gate], extra_at=PRE // 4)
    if LEAD and not can_final: cnt_add(A, 4, TMP)
    late = env("E5LATE", 0) if can_final else 0
    if can_final and not late: A("s_barrier")
    for nb in range(2):
        for half in range(2):
            p = RES + (nb * 2 + half) * 4
            for j in range(4):
                src = ACC + nb * 16 + 4 * half + (j >> 1) * 8 + (j & 1) * 2
                if not CINIT:
                    A(f"v_lshlrev_b32 v{TMP}, 16, v{p+j}")
                    A(f"v_and_b32 v{TMP+1}, 0xffff0000, v{p+j}")
                    A(f"v_pk_add_f32 {v(src,2)}, {v(src,2)}, {v(TMP,2)}")
                A(f"v_cvt_pk_bf16_f32 v{p+j}, v{src}, v{src+1}")
    if can_final:
        A("s_cmp_eq_u32 s16, 0"); A("s_cbranch_scc1 L_p5_notfinal")
        srd(A, 76, SOUT, 0, XB)
        for nb in range(2):
            for half in range(2):
                p = RES + (nb * 2 + half) * 4
                A(f"v_permlane32_swap_b32 v{p}, v{p+2}")
                A(f"v_permlane32_swap_b32 v{p+1}, v{p+3}")
                A(f"buffer_store_dwordx4 {v(p,4)}, v{VOUT}, s[76:79], 0 offen offset:{(32*nb + 8*half)*2}{['', ' sc1', ' nt', ' sc0 sc1'][env('FINF', 0)]}")
        A("s_branch L_exit")
        A.label("L_p5_notfinal"); reset(A)
    for nb in range(2):
        for half in range(2):
            p = RES + (nb * 2 + half) * 4
            A(f"buffer_store_dwordx4 {v(p,4)}, v{VRES}, s[76:79], 0 offen offset:{nb*1024 + half*512}{STF}")
    for k in range(4): A(f"v_mov_b32 v{TMP+k}, 0")
    A(f"v_mov_b32 v{TMP+4}, 0x3f803f80")
    for j in range(16):
        o = 2 * (j & 1)
        A(f"v_dot2_f32_bf16 v{TMP+o}, v{RES+j}, v{TMP+4}, v{TMP+o}")
        A(f"v_dot2_f32_bf16 v{TMP+o+1}, v{RES+j}, v{RES+j}, v{TMP+o+1}")
    A("s_nop 3")
    A(f"v_pk_add_f32 {v(TMP,2)}, {v(TMP,2)}, {v(TMP+2,2)}")
    A(f"v_mov_b32 v{TMP+2}, v{TMP}"); A(f"v_mov_b32 v{TMP+3}, v{TMP+1}")
    A(f"v_permlane32_swap_b32 v{TMP}, v{TMP+2}")
    A(f"v_permlane32_swap_b32 v{TMP+1}, v{TMP+3}")
    A(f"v_pk_add_f32 {v(TMP,2)}, {v(TMP,2)}, {v(TMP+2,2)}")
    A(f"buffer_store_dwordx2 {v(TMP,2)}, v{VST}, s[80:83], 0 offen{STF}")
    stamp(A, sb + 3)
    if DEFER: signal_defer(A, sigk, 29, 28)
    else: signal_local(A, sigk, TMP + 4, 29, 28)
    stamp(A, sb + 4)
    if late: A("s_barrier")

def phase2(A):
    PSK, PSV = 4096, 4160
    KOFF, VOFF = 0, 51200
    QOFF = 6 * 4096
    VL16, VQ, VQ2, VK1, VK2, VV, VO, VWA, VWB, VW4 = 4, 5, 6, 7, 8, 9, 10, 12, 13, 252
    TMP = 14; Q1, Q2 = 20, 24; MSK = 26; KF = 34; VF = 52; O = 68; PB = 84; S = 100; MX = 244; DUM = 248
    A("s_mul_i32 s25, s19, 5")
    A(f"v_lshlrev_b32 v{VL16}, 4, v1")
    srd(A, 8, SWS, WS_QKV, QKV_B)
    A("s_lshl_b32 s24, s20, 5")
    A(f"v_and_b32 v{TMP+4}, 15, v1"); A(f"v_bfe_u32 v{TMP+5}, v1, 4, 1")
    A(f"v_lshlrev_b32 v{VK2}, 4, v{TMP+4}"); A(f"v_lshl_add_u32 v{VK2}, v{TMP+5}, 3, v{VK2}")
    A("s_lshl_b32 s21, s20, 8"); A(f"v_add_u32 v{VK2}, s21, v{VK2}")
    A(f"v_lshl_add_u32 v{VK1}, v3, 12, v{VK2}")
    A(f"v_add_u32 v{VQ2}, {QOFF}, v{VK2}"); A(f"v_lshl_add_u32 v{VQ}, v3, 11, v{VQ2}")
    srd(A, 12, SWS, WS_O, XB)
    A(f"v_mov_b32 v{TMP+2}, 0x3f803f80"); A(f"v_mov_b32 v{TMP+3}, 0x3f803f80")
    A(f"v_lshlrev_b32 v{TMP+1}, 3, v0")
    A(f"v_add_u32 v{TMP}, {VOFF}, v{TMP+1}")
    A(f"ds_write_b64 v{TMP}, {v(TMP+2,2)} offset:{5*PSV}")
    A("s_lshr_b32 s22, s20, 2"); A("s_add_u32 s22, s22, s18"); A("s_cmp_eq_u32 s22, 0"); A("s_cselect_b32 s22, 0xf149, 0")
    A(f"v_mov_b32 v{Q1}, s22"); A(f"v_mov_b32 v{Q1+1}, 0")
    A(f"ds_write_b64 v{TMP+1}, {v(Q1,2)} offset:{KOFF + 5*PSK}")
    A(f"v_and_b32 v{TMP}, 3, v1")
    A(f"v_lshl_add_u32 v{TMP+1}, v{TMP+5}, 2, v{TMP}"); A(f"v_min_u32 v{TMP+1}, 5, v{TMP+1}")
    A(f"v_mul_u32_u24 v{VV}, {PSV}, v{TMP+1}")
    A(f"v_bfe_u32 v{TMP+1}, v1, 2, 2"); A(f"v_lshl_add_u32 v{TMP+1}, v3, 2, v{TMP+1}")
    A(f"v_lshl_add_u32 v{VV}, v{TMP+1}, 4, v{VV}"); A(f"v_add_u32 v{VV}, s21, v{VV}"); A(f"v_add_u32 v{VV}, {VOFF}, v{VV}")
    A("s_lshl_b32 s21, s18, 4"); A("s_lshl_b32 s22, s20, 1"); A("s_add_u32 s21, s21, s22")
    A(f"v_add_u32 v{TMP+1}, s21, v{TMP+5}"); A(f"v_mul_u32_u24 v{TMP+1}, 20480, v{TMP+1}")
    A(f"v_lshl_add_u32 v{TMP+1}, v{TMP+4}, 4, v{TMP+1}")
    A("s_lshl_b32 s21, s19, 9"); A(f"v_add_u32 v{VO}, s21, v{TMP+1}"); A(f"v_lshl_add_u32 v{VO}, v3, 8, v{VO}")
    A("s_lshr_b32 s21, s19, 1"); A("s_lshl_b32 s21, s21, 8"); A("s_and_b32 s22, s19, 1"); A("s_lshl_b32 s22, s22, 3"); A("s_add_u32 s21, s21, s22"); A(f"s_add_u32 s21, s21, {64*256}")
    A(f"v_add_u32 v{VO+1}, s21, v{TMP+1}"); A(f"v_lshl_add_u32 v{VO+1}, v3, 31, v{VO+1}")
    A("s_mul_i32 s28, s19, 171"); A("s_lshr_b32 s28, s28, 9")
    A("s_and_b32 s26, s20, 3"); A("s_lshr_b32 s27, s20, 2")
    A(f"v_bfe_u32 v{TMP}, v1, 3, 1"); A(f"v_mul_u32_u24 v{TMP+1}, 5, v{TMP+5}"); A(f"v_add_u32 v{TMP}, v{TMP}, v{TMP+1}")
    A(f"v_lshl_add_u32 v{TMP}, v3, 1, v{TMP}"); A("s_mul_i32 s21, s27, 10"); A(f"v_add_u32 v{TMP}, s21, v{TMP}")
    A(f"v_bfe_u32 v{TMP+1}, v1, 3, 2"); A(f"v_mul_u32_u24 v{TMP+1}, 10, v{TMP+1}"); A(f"v_mul_u32_u24 v{TMP+2}, 5, v3"); A(f"v_add_u32 v{TMP+1}, v{TMP+1}, v{TMP+2}")
    A("s_mul_i32 s21, s27, 40"); A("s_add_u32 s21, s21, 4"); A(f"v_add_u32 v{TMP+1}, s21, v{TMP+1}")
    A(f"v_and_b32 v{TMP+2}, 7, v1"); A(f"v_lshlrev_b32 v{TMP+2}, 4, v{TMP+2}")
    A("s_mul_i32 s21, s26, 1280"); A("s_lshl_b32 s22, s28, 7"); A("s_add_u32 s21, s21, s22")
    A("s_cmp_ge_u32 s19, 30"); A(f"s_cselect_b32 s21, {OOB:#x}, s21")
    A(f"v_add_u32 v{TMP+2}, s21, v{TMP+2}")
    A(f"v_mul_u32_u24 v{VWA}, 5120, v{TMP}"); A(f"v_add_u32 v{VWA}, v{VWA}, v{TMP+2}")
    A(f"v_mul_u32_u24 v{VWB}, 5120, v{TMP+1}"); A(f"v_add_u32 v{VWB}, v{VWB}, v{TMP+2}")
    A("s_mul_i32 s32, s26, 2112"); A("s_lshl_b32 s21, s27, 10"); A("s_add_u32 s32, s32, s21"); A(f"s_add_u32 s32, s32, {P3W}")
    A(f"s_add_u32 s34, s32, {10*8448}")
    rot_calc(A, "p3")
    A("s_sub_u32 s21, 10, s21"); A("s_cmp_eq_u32 s21, 10"); A("s_cselect_b32 s21, 0, s21"); A("s_mul_i32 s21, s21, 8448"); A("s_add_u32 s29, s32, s21")
    srd(A, 36, SWO, 0, D * D * 2)
    if S4:
        A("s_lshl_b32 s25, s19, 7"); A("s_cmp_ge_u32 s19, 27"); A(f"s_cselect_b32 s25, {OOB:#x}, s25")
        wdma_off(A, VW4, 2, 8, F * 2, 25, 26, TMP)
        rot_init(A, "p4", F * 2)
        A("s_cmp_eq_u32 s27, 0")
        A(f"s_cselect_b32 s22, s{SWG}, s{SWU}"); A(f"s_cselect_b32 s23, s{SWG+1}, s{SWU+1}")
        srd(A, 76, 22, 0, D * F * 2)
        A("s_mul_i32 s30, s26, 2112"); A("s_mul_i32 s21, s27, 8480"); A("s_add_u32 s30, s30, s21")
    side = []
    for t in range(10):
        def f(t=t):
            A("s_mov_b32 m0, s29")
            A(f"s_mov_b32 s21, {t*80*1280 if t < 8 else (t-8)*320*1280}")
            A(f"buffer_load_dwordx4 v{VWA if t < 8 else VWB}, s[36:39], s21 offen lds", "wo")
            A("s_add_u32 s29, s29, 8448"); A("s_cmp_ge_u32 s29, s34"); A("s_cselect_b32 s29, s32, s29")
        side.append(f)
    if env("WOEARLY", 0):
        l = A.newlabel("woe")
        A("s_cmp_lt_u32 s20, 4"); A(f"s_cbranch_scc1 {l}")
        for t in range(10):
            for j in range(2):
                A(f"s_sub_u32 m0, s29, {1024 * (1 - j)}")
                off = (t * 80 * 1280 if t < 8 else (t - 8) * 320 * 1280)
                A(f"s_mov_b32 s21, {off}")
                if j == 0: A(f"v_subrev_u32 v{TMP}, {(10 if t < 8 else 40) * 5120}, v{VWA if t < 8 else VWB}")
                A(f"buffer_load_dwordx4 v{TMP if j == 0 else (VWA if t < 8 else VWB)}, s[36:39], s21 offen lds")
            A("s_add_u32 s29, s29, 8448"); A("s_cmp_ge_u32 s29, s34"); A("s_cselect_b32 s29, s32, s29")
        A("s_cmp_lg_u32 s20, 7"); A(f"s_cbranch_scc1 {l}"); A("s_waitcnt vmcnt(0)")
        join(A, l); reset(A)
        side = []
    for t in range(S4):
        for j in range(2):
            def f(t=t, j=j):
                A(f"s_add_u32 m0, s30, {t*16960 + j*1024}")
                A(f"buffer_load_dwordx4 v{VW4+j}, s[76:79], s31 offen lds", "w4")
                if j == 1:
                    A(f"s_add_u32 s31, s31, {64*F*2}"); A(f"s_cmp_ge_u32 s31, {640*F*2}"); A("s_cselect_b32 s31, 0, s31")
            side.append(f)
    for r in range(16):
        k0 = 8 * (r >> 2) + (r & 3)
        A(f"s_mov_b32 s{40+2*r}, {(0xFFFFFFFF << k0) & 0xFFFFFFFF:#x}")
        A(f"s_mov_b32 s{41+2*r}, {(0xFFFFFFFF << (k0+4)) & 0xFFFFFFFF:#x}")
    A(f"v_mov_b32 v{TMP+4}, 0xffff"); A(f"v_mov_b32 v{TMP+5}, 0xffff0000")
    for j in range(8):
        A(f"v_cndmask_b32 v{MSK+j}, 0, v{TMP+4}, {s(40+4*j,2)}")
        A(f"v_cndmask_b32 v{TMP+1}, 0, v{TMP+5}, {s(42+4*j,2)}")
        A(f"v_or_b32 v{MSK+j}, v{MSK+j}, v{TMP+1}")
    stamp(A, 6)
    A("s_sub_u32 s21, s20, 4"); A("s_cmp_ge_u32 s21, 3"); A("s_cbranch_scc1 L_p2_setup")
    A("s_mul_i32 s25, s19, 5"); A("s_mul_i32 s80, s18, 480"); A("s_add_u32 s80, s80, s25"); A("s_lshl_b32 s80, s80, 11")
    A(f"s_add_u32 s81, s80, {320*2048}")
    A("s_cmp_eq_u32 s20, 6"); A("s_cbranch_scc1 L_p2_halo")
    A("s_cmp_eq_u32 s20, 4")
    A(f"s_cselect_b32 s22, 0, {160*2048}"); A(f"s_cselect_b32 s82, {QOFF}, 0"); A("s_cselect_b32 s83, 0, 1")
    A("s_add_u32 s80, s80, s22"); A("s_lshl_b32 s83, s83, 11"); A("s_add_u32 s82, s82, s83"); A("s_add_u32 s83, s83, 2048")
    A(f"s_mov_b32 s33, {VOFF + 2048}")
    wait_local(A, 4, 0, 15, None, KF)
    A("s_branch L_p2_ld")
    A.label("L_p2_halo"); reset(A)
    A(f"s_sub_u32 s80, s80, {320*2048}"); A(f"s_sub_u32 s81, s81, {480*2048}")
    A("s_mov_b32 s82, 0"); A("s_mov_b32 s83, 4096"); A(f"s_mov_b32 s33, {VOFF}")
    A("s_cmp_eq_u32 s18, 0"); A(f"s_cselect_b32 s80, {OOB:#x}, s80"); A(f"s_cselect_b32 s81, {OOB:#x}, s81"); A("s_cbranch_scc1 L_p2_ld")
    A(f"v_min_u32 v{KF}, 19, v1"); A(f"v_lshlrev_b32 v{KF}, 7, v{KF}")
    A("s_lshl_b32 s21, s16, 3"); A("s_add_u32 s21, s21, s18"); A("s_lshl_b32 s21, s21, 12"); A(f"s_add_u32 s21, s21, {0x10000 - 4096 + 10*128}")
    A(f"v_add_u32 v{KF}, s21, v{KF}")
    A(f"v_mov_b32 v{KF+1}, 0x01010101")
    def body():
        A(f"buffer_load_dword v{KF+2}, v{KF}, {s(SFL,4)}, 0 offen sc1")
        A.wait_vm_all()
        A(f"v_cmp_ne_u32 vcc, v{KF+2}, v{KF+1}")
    spin(A, body, "p1w", 1)
    join(A, "L_p2_ld"); reset(A)
    stamp(A, 7)
    for i in range(5):
        for c in range(2):
            A(f"s_add_u32 m0, s82, {c*1024}")
            A(f"buffer_load_dwordx4 v{VL16}, s[8:11], s80 offen sc1 lds")
            A("s_add_u32 s80, s80, 1024")
        A("s_add_u32 s82, s82, s83")
    A("s_cmp_eq_u32 s20, 5"); A("s_cbranch_scc1 L_p2_w5")
    for i in range(5):
        for c in range(2):
            A(f"s_add_u32 m0, s33, {i*PSV + c*1024}")
            A(f"buffer_load_dwordx4 v{VL16}, s[8:11], s81 offen sc1 lds")
            A("s_add_u32 s81, s81, 1024")
    A("s_branch L_p2_setup")
    A.label("L_p2_w5")
    A("s_waitcnt vmcnt(0)")
    join(A, "L_p2_setup"); reset(A)
    A("s_waitcnt vmcnt(10)"); A.wait_lg_all()
    A.vm = ["V"] * 10
    A("s_barrier")
    STAG = env("STAG", 0)
    if STAG:
        l = A.newlabel("pr2")
        A("s_cmp_ge_u32 s20, 4"); A(f"s_cbranch_scc1 {l}"); A("s_setprio 2"); A.label(l)
    stamp(A, 8)
    A(f"ds_read_b64 {v(Q1,2)}, v{VQ}", ("K", 0))
    A(f"ds_read_b64 {v(Q1+2,2)}, v{VQ} offset:4096", ("K", 0))
    A(f"ds_read_b64 {v(Q2,2)}, v{VQ2} offset:8192", ("K", 0))
    qorder = [0, 8, 1, 2, 3, 4, 5, 6, 7]
    def kreads(n):
        d = qorder[n]; b = KF + (n % 3) * 6
        for q in range(3):
            A(f"ds_read_b64 {v(b+2*q,2)}, v{VK1} offset:{KOFF + 2*q*PSK + d*256}", ("K", n))
    work = {}
    work[1] = [f"v_cndmask_b32 v{S+r}, v{S+r}, v{S+128+r}, {s(40+2*r,2)}" for r in range(16)]
    work[1] += [f"v_max_f32 v{MX+c}, v{S+2*c}, v{S+2*c+1}" for c in range(2)]
    work[1] += [f"v_max3_f32 v{MX+(k&1)}, v{MX+(k&1)}, v{S+2*k}, v{S+2*k+1}" for k in range(2, 8)]
    for n in range(2, 9):
        sb = S + 16 * qorder[n]
        work[n] = [f"v_max3_f32 v{MX+(k&1)}, v{MX+(k&1)}, v{sb+2*k}, v{sb+2*k+1}" for k in range(8)]
    pend = []
    kreads(0); kreads(1)
    for n in range(9):
        d = qorder[n]
        if n + 2 < 9: kreads(n + 2)
        A.wait_lg(lambda g: g == ("K", n))
        b = KF + (n % 3) * 6
        if n == 0:
            A("s_mov_b32 s22, -1"); A("s_mov_b32 s23, 0"); A(f"v_mov_b32 v{MX+2}, 0x3f80")
            A(f"v_cndmask_b32 v{Q2}, v{MX+2}, v{Q2}, s[22:23]"); A(f"v_cndmask_b32 v{Q2+1}, 0, v{Q2+1}, s[22:23]")
        if n - 2 in work: pend += work[n - 2]
        A(f"v_mfma_f32_32x32x16_bf16 {v(S+16*d,16)}, {v(b,4)}, {v(Q1,4)}, 0")
        for _ in range(6):
            if pend: A(pend.pop(0))
        A(f"v_mfma_f32_32x32x8_bf16 {v(S+16*d,16)}, {v(b+4,2)}, {v(Q2,2)}, {v(S+16*d,16)}")
        for _ in range(6):
            if pend: A(pend.pop(0))
    for w_ in pend + work[7] + work[8]: A(w_)
    A(f"v_max_f32 v{MX}, v{MX}, v{MX+1}")
    A(f"v_mov_b32 v{MX+1}, v{MX}")
    A(f"v_permlane32_swap_b32 v{MX}, v{MX+1}")
    A(f"v_max_f32 v{MX}, v{MX}, v{MX+1}")
    stamp(A, 27)
    A.wait_vm_all()
    if STAG:
        cnt_add(A, 0, KF)
        if env("STAG", 1) == 2: A("s_setprio 0")
    else: A("s_barrier")
    stamp(A, 28)
    if env("NOSIDE", 0): side = []
    vbuf = lambda k: (VF + 8 * k) if k < 2 else (PB + 8 * (k - 2))
    vseq = [0, 8, 1, 2, 3, 4, 5, 6, 7]
    def vreads(i):
        d = vseq[i]
        for u in range(2):
            for rd in range(2):
                A(f"ds_read_b64_tr_b16 {v(vbuf(i % 4) + u*4 + rd*2, 2)}, v{VV} offset:{d*256 + rd*128 + u*8}", ("V", i))
    mq = []; st_ = dict(first=True, nv=0)
    def pv():
        if not mq: return
        i, u = mq.pop(0)
        A.wait_lg(lambda g: g == ("V", i))
        c = "0" if st_["first"] else v(O, 16); st_["first"] = False
        A(f"v_mfma_f32_32x32x16_bf16 {v(O,16)}, {v(vbuf(i % 4) + u*4, 4)}, {v(S + 16*vseq[i] + u*4, 4)}, {c}")
    VD = env("VD", 1) if STAG else 0
    if not VD: vreads(0); vreads(1)
    per = 4 if LEAD else -(-len(side) // env("SIDET", 6))
    for d in range(8):
        sb = S + 16 * d
        if LEAD and d == 6:
            A.wait_vm_all(); cnt_add(A, 1, KF)
        for r in range(0, 16, 2): A(f"v_pk_add_f32 {v(sb+r,2)}, {v(sb+r,2)}, {v(MX,2)} op_sel_hi:[1,0] neg_lo:[0,1] neg_hi:[0,1]")
        q = 0
        for r in range(16):
            A(f"v_exp_f32 v{sb+r}, v{sb+r}")
            if d > VD and (r in (1, 6) or (r == 11 and len(mq) > 0 and d < 7)): pv()
            if r == 13:
                if VD and d == VD:
                    cnt_wait(A, 0, 8, KF)
                while d >= VD and st_["nv"] < 9 and st_["nv"] <= d + 2 and st_["nv"] - 4 < min([i for i, u in mq] + [d + 1]):
                    if VD or st_["nv"] >= 2: vreads(st_["nv"])
                    st_["nv"] += 1
            if r % 4 == 3 and side and q < per: side.pop(0)(); q += 1
        for j in range(8): A(f"v_cvt_pk_bf16_f32 v{sb+j}, v{sb+2*j}, v{sb+2*j+1}")
        if d == 0:
            for j in range(8): A(f"v_and_b32 v{S+128+j}, v{sb+j}, v{MSK+j}")
            for j in range(8): A(f"v_bfi_b32 v{sb+j}, v{MSK+j}, 0, v{sb+j}")
            mq += [(0, 0), (0, 1), (1, 0), (1, 1)]
        else:
            mq += [(d + 1, 0), (d + 1, 1)]
    while mq: pv()
    assert not side
    if LEAD: cnt_add(A, 2, KF)
    stamp(A, 9)
    A(f"v_rcp_f32 v{MX}, v{O+12}")
    for k in range(0, 12, 2):
        A(f"v_pk_mul_f32 {v(O+k,2)}, {v(O+k,2)}, {v(MX,2)} op_sel_hi:[1,0]")
    for k in range(6): A(f"v_cvt_pk_bf16_f32 v{PB+k}, v{O+2*k}, v{O+2*k+1}")
    A(f"buffer_store_dwordx4 {v(PB,4)}, v{VO}, s[12:15], 0 offen{STF}")
    A(f"buffer_store_dwordx2 {v(PB+4,2)}, v{VO+1}, s[12:15], 0 offen{STF}")
    if STAG: A("s_setprio 0")
    signal_local(A, 0, 20, 20, 19)
    stamp(A, 10)
    A.fence(); reset(A)

def touch_range(A, off, grp_bytes, nwg, base_idx, depth=8):
    per = nwg * 8 * 1024
    n = -(-grp_bytes // per)
    A(f"s_mul_i32 s21, s18, {grp_bytes}")
    srd(A, 36, SWS, off, grp_bytes, soff=21)
    A(f"s_sub_u32 s31, s19, {base_idx}"); A("s_lshl_b32 s31, s31, 3"); A("s_add_u32 s31, s31, s20"); A("s_lshl_b32 s31, s31, 10")
    A("v_lshlrev_b32 v4, 4, v1")
    A("s_mov_b32 s22, 0")
    lp = A.newlabel("tr")
    A.label(lp)
    A("buffer_load_dwordx4 v[8:11], v4, s[36:39], s31 offen sc1")
    A(f"s_waitcnt vmcnt({depth})"); A.vm = []
    A(f"s_add_u32 s31, s31, {per}")
    A("s_add_u32 s22, s22, 1"); A(f"s_cmp_lt_u32 s22, {n}"); A(f"s_cbranch_scc1 {lp}")

def warm_code(A, thr=31):
    if not env("WARMC", 1): return
    skip = A.newlabel("wc"); here = A.newlabel("pc"); lp = A.newlabel("wcl")
    A(f"s_cmp_lt_u32 s19, {thr}"); A(f"s_cbranch_scc1 {skip}")
    A("s_getpc_b64 s[22:23]")
    A.label(here)
    A(f"s_sub_u32 s22, s22, {here}-{NAME}_kernel"); A("s_subb_u32 s23, s23, 0")
    A("v_lshlrev_b32 v6, 4, v0")
    A.label(lp)
    A(f"v_min_u32 v7, L_code_end-{NAME}_kernel-16, v6")
    A("v_mov_b32 v5, s23"); A("v_add_co_u32 v4, vcc, s22, v7"); A("v_addc_co_u32 v5, vcc, 0, v5, vcc")
    A("global_load_dwordx4 v[8:11], v[4:5], off"); A.vm = []
    A("v_add_u32 v6, 8192, v6")
    A("v_readfirstlane_b32 s21, v6")
    A(f"s_cmp_lt_u32 s21, L_code_end-{NAME}_kernel"); A(f"s_cbranch_scc1 {lp}")
    A("s_waitcnt vmcnt(0)")
    join(A, skip); reset(A)

def warm_tlb(A):
    if not env("WARMT", 0): return
    skip = A.newlabel("wt")
    A("s_cmp_lg_u32 s19, 30"); A(f"s_cbranch_scc1 {skip}")
    A("s_cmp_lg_u32 s20, 0"); A(f"s_cbranch_scc1 {skip}")
    sh = env("WARMT_SH", 20)
    A(f"v_lshlrev_b32 v6, {sh}, v0")
    for base, size in ((SWO, D*D*2), (SWG, D*F*2), (SWU, D*F*2), (SWD, D*F*2), (SOUT, XB)):
        srd(A, 36, base, 0, size)
        A("buffer_load_dword v8, v6, s[36:39], 0 offen")
    srd(A, 36, SWS, 0, 2 * LS)
    for k in range(max(1, (2 * LS) >> (sh + 9))):
        A(f"s_mov_b32 s21, {k << (sh + 9):#x}"); A("buffer_load_dword v8, v6, s[36:39], s21 offen")
    join(A, skip); reset(A)

def warm_stream(A, sbase, size, sstart, step, n, depth, wrap=None):
    srd(A, 36, sbase, 0, size)
    A("v_lshlrev_b32 v4, 4, v0")
    A("s_mov_b32 s22, 0")
    lp = A.newlabel("ws")
    A.label(lp)
    A(f"buffer_load_dwordx4 v[8:11], v4, s[36:39], s{sstart} offen")
    A(f"s_waitcnt vmcnt({depth})"); A.vm = []
    A(f"s_add_u32 s{sstart}, s{sstart}, {step}")
    if wrap:
        A(f"s_cmp_ge_u32 s{sstart}, {wrap}"); A(f"s_cselect_b32 s23, {wrap}, 0"); A(f"s_sub_u32 s{sstart}, s{sstart}, s23")
    A("s_add_u32 s22, s22, 1"); A(f"s_cmp_lt_u32 s22, {n}"); A(f"s_cbranch_scc1 {lp}")

def warm_mall(A):
    n = env("WMALL", 0)
    if not n: return
    for sb, size in ((SWO, D * D * 2), (SWG, D * F * 2), (SWU, D * F * 2))[:n]:
        A("s_lshl_b32 s24, s18, 1"); A("s_add_u32 s24, s24, s19"); A("s_sub_u32 s24, s24, 30"); A("s_lshl_b32 s24, s24, 13")
        warm_stream(A, sb, size, 24, 16 * 8192, -(-size // (16 * 8192)), 8)
    A("s_waitcnt vmcnt(0)")

def idle4(A):
    l0_only(A, lambda: warm_code(A), "wc4")
    if env("WW5", 0):
        rot_init(A, "p5", D * 2, wskip=env("WW5S", 10))
        A("s_sub_u32 s24, s19, 27"); A("s_lshl_b32 s24, s24, 13"); A("s_add_u32 s24, s24, s31")
        warm_stream(A, SWD, F * D * 2, 24, 40960, env("WW5", 0) * 2, env("WW5D", 2), wrap=F * D * 2)
        A("s_waitcnt vmcnt(0)")
    if PLAIN:
        touch_range(A, WS_H, H_B // 8, 5, 27, env("TDEP", 4))
        A("s_waitcnt vmcnt(0)")

def idle5(A):
    def f():
        l = A.newlabel("i5")
        A("s_cmp_lg_u32 s20, 0"); A(f"s_cbranch_scc1 {l}")
        wait_local(A, 2, 0, 27, None, 4, sleep=16)
        join(A, l); reset(A)
        A("s_barrier")
        warm_code(A)
        if env("WW1", 4):
            rot_init(A, "p1", 3840)
            A("s_sub_u32 s24, s19, 30"); A("s_lshl_b32 s24, s24, 13"); A("s_add_u32 s24, s24, s31")
            warm_stream(A, SWQKV, D * 1920 * 2, 24, 16384, env("WW1", 4) * 15, 6, wrap=D * 1920 * 2)
            A("s_waitcnt vmcnt(0)")
    l0_only(A, f, "i5l0")

P4PRE = env("P4PRE", 4)
P4 = dict(PS=2112, RB=128, UOFF=8480, SLOT=16960)
def phase3(A):
    A("s_cmp_ge_u32 s19, 30"); A("s_cbranch_scc1 L_p3_skip")
    p35_ids(A)
    A("s_lshl_b32 s21, s20, 1"); A("s_or_b32 s21, s21, s29"); A("s_cmp_lt_u32 s21, 8"); A("s_cbranch_scc1 L_p3_comp")
    if not LEAD: A("s_barrier")
    A("s_cmp_lt_u32 s20, 4"); A("s_cbranch_scc1 L_p3_noblk")
    A("s_cmp_ge_u32 s19, 27"); A("s_cbranch_scc1 L_p3_skip")
    A("s_lshl_b32 s25, s19, 7")
    wdma_off(A, 6, 2, 8, F * 2, 25, 26, 16)
    A("s_mul_i32 s32, s26, 2112")
    rot_init(A, "p4", F * 2, wskip=S4)
    srd(A, 12, SWG, 0, D * F * 2); srd(A, 36, SWU, 0, D * F * 2)
    g = Gemm(A, 4, 10, 6, 9, 16960, 128, 32, 0, 0, 0, 0, [6, 7, 6, 7], [12, 12, 36, 36], [0, 1024, 8480, 8480 + 1024],
             [], 8, F * 2, 0, 0)
    g.throttle = env("THR3", 3) or None; g.wflags = NT4; g.nland = S4
    if LEAD: cnt_wait(A, 2, 8, 16)
    g.prefetch(P4PRE)
    A.wait_vm_all()
    if LEAD: cnt_add(A, 3, 16)
    A("s_branch L_p3_done")
    A.label("L_p3_noblk")
    if LEAD: cnt_add(A, 4, 16)
    join(A, "L_p3_skip"); reset(A)
    A("s_branch L_p3_done")
    A.label("L_p3_comp"); reset(A)
    rot_init(A, "p3", D * 2)
    p35_compute(A, 10, 10, 10, P3W, WS_O, XB, WS_XIN, WS_X1, WS_STB,
                lambda t0: wait_local(A, 0, 0, 32, 29, t0), 1, False, 11, env("PRE3", 32))
    join(A, "L_p3_done"); reset(A)

B5 = 16960
N5 = env("N5", 10)
N5B = env("N5B", 0)
def phase5(A):
    A("s_cmp_lt_u32 s19, 30"); A("s_cbranch_scc1 L_p5_go")
    idle5(A)
    A("s_branch L_p5_done")
    A.label("L_p5_go"); reset(A)
    WSL = env("WSL5", 17)
    p35_ids(A); rot_init(A, "p5", D * 2)
    A("s_lshl_b32 s21, s20, 1"); A("s_or_b32 s21, s21, s29"); A("s_cmp_lt_u32 s21, 8"); A("s_cbranch_scc1 L_p5_comp")
    A("s_cmp_lt_u32 s20, 4"); A("s_cbranch_scc1 L_p5_idle")
    p35_loader_setup(A, SWD, F, B5)
    A("s_cmp_lt_u32 s19, 27"); A("s_cbranch_scc1 L_p5_pre")
    p35_gemm(A, 27, WSL, 0, 0, 0).prefetch(N5 + N5B)
    A.wait_vm_all()
    join(A, "L_p5_pre"); reset(A)
    rot_init(A, "p5", D * 2, wskip=N5 + N5B)
    A("s_barrier")
    g = p35_gemm(A, 27, WSL, 0, env("LA5", 14), 0); g.nland = N5 + N5B
    g.run_loader()
    A("s_barrier")
    A("s_branch L_p5_done")
    A.label("L_p5_idle"); reset(A)
    if N5B:
        A("s_cmp_lg_u32 s20, 3"); A("s_cbranch_scc1 L_p5_idle2")
        A("s_cmp_ge_u32 s19, 27"); A("s_cbranch_scc1 L_p5_idle2")
        A("s_lshl_b32 s25, s28, 7"); A("s_mov_b32 s26, 0")
        wdma_off(A, 4, 1, 8, D * 2, 25, 26, 16)
        for q in range(1, 8): A(f"v_add_u32 v{4+q}, {((q & 3) + 32 * (q >> 2)) * D * 2}, v4")
        srd(A, 12, SWD, 0, F * D * 2)
        rot_init(A, "p5", D * 2, wskip=N5)
        A(f"s_mov_b32 s32, {B5}")
        A("s_lshl_b32 s24, s16, 3"); A("s_add_u32 s24, s24, 8"); A(f"v_mov_b32 v16, {L_CNT}")
        def body():
            A("ds_read_b32 v17, v16"); A.wait_lg_all()
            A("v_cmp_gt_u32 vcc, s24, v17")
        spin(A, body, "lc", 1)
        g = Gemm(A, 2, 27, 9, WSL, 8448, 128, 64, 0, 0, 0, 0, [4 + q for q in range(8)], [12] * 8,
                 [(q & 3) * 2112 + (q >> 2) * 1024 for q in range(8)], [], 8, D * 2, 0, 0)
        g.nland = N5; g.throttle = env("THR5", 0) or None
        g.prefetch(N5 + N5B)
        join(A, "L_p5_idle2"); reset(A)
    A("s_mov_b32 s21, 0")
    A.label("L_p5_idle_loop")
    A("s_cmp_lg_u32 s21, 6"); A("s_cbranch_scc1 L_p5_idle3"); A("s_waitcnt vmcnt(0)")
    A.label("L_p5_idle3")
    A("s_barrier"); A("s_add_u32 s21, s21, 1"); A("s_cmp_lt_u32 s21, 29"); A("s_cbranch_scc1 L_p5_idle_loop")
    A("s_branch L_p5_done")
    A.label("L_p5_comp"); reset(A)
    p35_compute(A, 27, WSL, 0, B5, WS_H, H_B, WS_X1, WS_XIN + LS, WS_STA + LS,
                lambda t0: wait_local(A, 2, 0, 27, 29, t0), 3, True, 22, env("PRE5", 16))
    join(A, "L_p5_done"); reset(A)

def phase4(A):
    A("s_cmp_lt_u32 s19, 27"); A("s_cbranch_scc1 L_p4_go")
    if DEFER: signal_flush(A, 4)
    A("s_barrier")
    idle4(A)
    A("s_branch L_p4_done")
    A.label("L_p4_go"); reset(A)
    A(f"s_xor_b32 s28, s20, {4 if LEAD else 0}")
    A("s_lshl_b32 s24, s28, 5")
    A("s_lshl_b32 s27, s18, 8"); A("s_add_u32 s27, s27, s24")
    A("s_and_b32 s26, s20, 3"); A("s_lshr_b32 s29, s20, 2")
    PS, RB, UOFF, SLOT = 2112, 128, 8480, 16960
    WSL, XS = 9, 5
    VX, VWD, VTR, VST, VCS, VOUT, VPL = 4, 6, 8, 11, 12, 13, 144
    NM, CA, CB, IR = 14, 16, 18, 20
    TMP = 24; WF = 40; ACC = 72; T = 136; CSA = 148; CSB = 156; CT = 164; V5 = 165; XA = 168
    cl_lane_off(A, VX, 27, 20480, TMP)
    A("s_lshl_b32 s25, s19, 7")
    wdma_off(A, VWD, 2, 8, F * 2, 25, 26, TMP)
    tr_lane_addr(A, VTR, PS, RB, UOFF, TMP)
    A(f"v_add_u32 v{VTR+1}, {3*SLOT}, v{VTR}"); A(f"v_add_u32 v{VTR+2}, {6*SLOT}, v{VTR}")
    stats_off(A, VST, 24, TMP)
    cl_lane_off(A, VOUT, 27, 54 * 1024, TMP)
    A("s_lshl_b32 s21, s19, 11")
    A(f"v_add_u32 v{VOUT}, s21, v{VOUT}")
    A(f"v_lshlrev_b32 v{VCS}, 4, v3"); A(f"v_add_u32 v{VCS}, {CS4}, v{VCS}")
    A(f"s_mul_i32 s32, s26, {PS}"); A(f"s_mul_i32 s21, s29, {UOFF}"); A("s_add_u32 s32, s32, s21")
    A("s_lshl_b32 s21, s26, 5"); A(f"s_mul_i32 s22, s29, {8*RB}"); A("s_add_u32 s21, s21, s22")
    A(f"v_add_u32 v{VPL}, s21, v{VTR}")
    A(f"v_add_u32 v{VPL+1}, {3*SLOT}, v{VPL}"); A(f"v_add_u32 v{VPL+2}, {6*SLOT}, v{VPL}")
    for k in range(2): A(f"v_mov_b32 v{CSA+k}, 0")
    A(f"v_mov_b32 v{CT}, 0x3f803f80")
    NA = 2 if LEAD else 0
    if LEAD:
        rot_init(A, "p4", F * 2, wskip=P4PRE); A("s_mov_b32 s44, s31")
        srd(A, 40, SWG, 0, D * F * 2)
    rot_init(A, "p4", F * 2, wskip=P4PRE + NA)
    A("s_cmp_eq_u32 s29, 0")
    A(f"s_cselect_b32 s22, s{SWG}, s{SWU}"); A(f"s_cselect_b32 s23, s{SWG+1}, s{SWU+1}")
    srd(A, 12, 22, 0, D * F * 2)
    srd(A, 8, SWS, WS_X1, XB)
    srd(A, 36, SWS, WS_STB, ST_B)
    srd(A, 80, SWS, WS_H, H_B)
    def late_setup():
        A("s_mov_b32 s34, s30"); A("s_mov_b32 s25, s31")
        rot_init(A, "p5", D * 2)
        A("s_mov_b32 s33, s31"); A("s_mov_b32 s30, s34"); A("s_mov_b32 s31, s25")
        A("s_mul_i32 s25, s19, 171"); A("s_lshr_b32 s25, s25, 9"); A("s_lshl_b32 s25, s25, 7")
        A(f"s_mul_i32 s21, s29, {32*D*2}"); A("s_add_u32 s25, s25, s21")
        wdma_off(A, V5, 1, 8, D * 2, 25, 26, T)
        A("s_mul_i32 s34, s26, 2112"); A("s_lshl_b32 s21, s29, 10"); A("s_add_u32 s34, s34, s21"); A(f"s_add_u32 s34, s34, {B5}")
        srd(A, 76, SWD, 0, F * D * 2)
    def t5(t):
        def f():
            A(f"s_add_u32 m0, s34, {t*8448}")
            A(f"buffer_load_dwordx4 v{V5}, s[76:79], s33 offen lds", "w5")
            A(f"s_add_u32 s33, s33, {64*D*2}"); A(f"s_cmp_ge_u32 s33, {F*D*2}"); A("s_cselect_b32 s33, 0, s33")
        return f
    if env("PRIO4", 1):
        l = A.newlabel("prio")
        A("s_cmp_ge_u32 s20, 4"); A(f"s_cbranch_scc1 {l}"); A("s_setprio 1"); A.label(l)
    if env("E3POS", 1) == 0: A("s_barrier")
    if DEFER: signal_flush(A, TMP)
    wait_local(A, 1, 0, 10, 28, TMP, sleep=2); reset(A)
    stamp(A, 16)
    g = Gemm(A, 4, 10, XS, WSL, SLOT, RB, 32, ACC, WF, XA, VX, [VWD, VWD + 1], [12, 12],
             [0, 1024], [VTR, VTR + 1, VTR + 2], 8, F * 2, env("PRE4", 6), 0, P4PRE)
    def csum(t):
        slot = t % WSL
        def f():
            for q in range(4):
                A(f"ds_read_b64_tr_b16 {v(CSB + 2*q, 2)}, v{VPL + slot // 3} offset:{(slot % 3) * SLOT + 2 * q * RB}")
            A("s_waitcnt lgkmcnt(0)")
            for q in range(8):
                if env("CSDOT", 1): A(f"v_dot2_f32_bf16 v{CSA + (q & 1)}, v{CSB+q}, v{CT}, v{CSA + (q & 1)}")
                else:
                    A(f"v_lshlrev_b32 v{CSA+2}, 16, v{CSB+q}"); A(f"v_and_b32 v{CSA+3}, 0xffff0000, v{CSB+q}")
                    A(f"v_add_f32 v{CSA}, v{CSA}, v{CSA+2}"); A(f"v_add_f32 v{CSA+1}, v{CSA+1}, v{CSA+3}")
        keep = list(A.lg)
        l0_only(A, f, "p4cs")
        A.lg = keep
    kk = -2.0 * 1.4426950408889634 * 0.7978845608028654
    def mid(t):
        csum(t)
        if t == 2: late_setup()
        if t == 6:
            tt = TMP
            A.wait_vm(lambda g: g == ("S",))
            finish_stats(A, tt, NM, tt + 2, tt + 10)
            A(f"v_mov_b32 v{IR}, v{tt+1}")
            A(f"v_mul_f32 v{CB}, {f32(kk)}, v{tt+2}")
            A(f"v_mul_f32 v{tt+3}, v{tt+2}, v{tt+2}")
            A(f"v_mul_f32 v{tt+3}, {f32(0.044715)}, v{tt+3}")
            A(f"v_mul_f32 v{CA}, v{CB}, v{tt+3}")
    g.wflags = NT4
    g.lastbar = env("LB4", 7)
    if LEAD:
        g.bar_at = env("E3AT", 4); g.bar_fn = lambda: cnt_wait(A, 3, 4, T)
        g.nland = P4PRE + NA; g.wgate = P4PRE
        def gate4():
            l = A.newlabel("g4")
            kv, kl, h = list(A.vm), list(A.lg), None
            A("s_cmp_lt_u32 s20, 4"); A(f"s_cbranch_scc1 {l}")
            h = list(A.hist)
            cnt_wait(A, 4, 4, T)
            for t in range(P4PRE, P4PRE + NA):
                for q in range(4):
                    A(f"s_add_u32 m0, s32, {t * SLOT + (q & 1) * 1024 - (UOFF if q < 2 else 0)}")
                    A(f"buffer_load_dwordx4 v{VWD + (q & 1)}, {s(40 if q < 2 else 12, 4)}, s44 offen lds")
                A(f"s_add_u32 s44, s44, {64*F*2}"); A(f"s_cmp_ge_u32 s44, {640*F*2}"); A("s_cselect_b32 s44, 0, s44")
            A("s_waitcnt vmcnt(0)")
            A.fence(); A.label(l)
            A.vm, A.lg, A.hist = kv, kl, h
        g.pre_bar = {P4PRE: gate4}
    elif env("E3POS", 1): g.bar_at = env("E3AT", 4)
    g.run(extra=stats_items(A, VST, 36, TMP), wlead=env("WLEAD4", -1 if LEAD else 3), sb=16, stage_end=mid, tail=[t5(t) for t in range(N5)], rate=env("RATE4", 7))
    if N5B:
        A(f"v_mov_b32 v{CSB}, {L_CNT}"); A(f"v_mov_b32 v{CSB+1}, 1")
        A("s_mov_b64 exec, 1")
        A(f"ds_add_u32 v{CSB}, v{CSB+1}")
        A("s_mov_b64 exec, -1")
    def cpart():
        A("s_nop 3")
        A(f"v_add_f32 v{CSA}, v{CSA}, v{CSA+1}")
        A(f"v_mov_b32 v{CSA+1}, v{CSA}"); A(f"v_permlane32_swap_b32 v{CSA}, v{CSA+1}"); A(f"v_add_f32 v{CSA}, v{CSA}, v{CSA+1}")
        A(f"v_bfe_u32 v{CSB}, v1, 4, 1"); A(f"v_lshlrev_b32 v{CSB}, 8, v{CSB}")
        A(f"v_and_b32 v{CSB+1}, 15, v1"); A(f"v_lshl_add_u32 v{CSB}, v{CSB+1}, 2, v{CSB}")
        A("s_lshl_b32 s21, s26, 6"); A("s_lshl_b32 s22, s29, 9"); A("s_add_u32 s21, s21, s22"); A(f"s_add_u32 s21, s21, {CS_PART}")
        A(f"v_add_u32 v{CSB}, s21, v{CSB}")
        A(f"ds_write_b32 v{CSB}, v{CSA}")
    l0_only(A, cpart, "p4cp")
    def cfin():
        A.wait_lg_all()
        A("s_barrier")
        A(f"v_lshlrev_b32 v{CSB}, 3, v1"); A(f"v_add_u32 v{CSB}, {CS_PART}, v{CSB}")
        A(f"ds_read_b64 {v(CSB+2,2)}, v{CSB}"); A(f"ds_read_b64 {v(CSB+4,2)}, v{CSB} offset:512")
        A.wait_lg_all()
        A(f"v_pk_add_f32 {v(CSB+2,2)}, {v(CSB+2,2)}, {v(CSB+4,2)}")
        A(f"ds_write_b64 v{CSB}, {v(CSB+2,2)} offset:{CS4 - CS_PART}")
        A.wait_lg_all()
    l0_only(A, cfin, "p4cf")
    csr = lambda nb: WF + (nb & 1) * 16
    def csread(nb):
        for i in range(2):
            A(f"ds_read_b128 {v(csr(nb) + i*4, 4)}, v{VCS} offset:{nb*64 + i*32}", ("C", nb))
            A(f"ds_read_b128 {v(csr(nb) + 8 + i*4, 4)}, v{VCS} offset:{256 + nb*64 + i*32}", ("C", nb))
    csread(0); csread(1)
    for kkb in range(2):
        for e in range(2):
            nb = 2 * kkb + e
            A.wait_lg(lambda g: g == ("C", nb))
            for k in range(0, 16, 2):
                r = ACC + nb * 16 + k
                A(f"v_pk_fma_f32 {v(r,2)}, {v(csr(nb)+k,2)}, {v(NM,2)}, {v(r,2)} op_sel_hi:[1,0,1]")
        if kkb == 0: csread(2); csread(3)
        for half in range(2):
            out = TMP + 4 * ((2 * kkb + half) & 3)
            for e in range(2):
                nb = 2 * kkb + e
                gq = ACC + nb * 16 + 4 * half
                uq = gq + 8
                Tt = T + 4 * e
                for k in (0, 2): A(f"v_pk_mul_f32 {v(Tt+k,2)}, {v(gq+k,2)}, {v(gq+k,2)}")
                for k in (0, 2): A(f"v_pk_fma_f32 {v(Tt+k,2)}, {v(Tt+k,2)}, {v(CA,2)}, {v(CB,2)} op_sel_hi:[1,0,0]")
                for k in (0, 2): A(f"v_pk_mul_f32 {v(Tt+k,2)}, {v(Tt+k,2)}, {v(gq+k,2)}")
                for k in range(4): A(f"v_exp_f32 v{Tt+k}, v{Tt+k}")
                for k in (0, 2): A(f"v_pk_mul_f32 {v(gq+k,2)}, {v(gq+k,2)}, {v(uq+k,2)}")
                for k in (0, 2): A(f"v_pk_fma_f32 {v(Tt+k,2)}, {v(Tt+k,2)}, {v(IR,2)}, {v(IR,2)} op_sel_hi:[1,0,0]")
                for k in range(4): A(f"v_rcp_f32 v{Tt+k}, v{Tt+k}")
                for k in (0, 2): A(f"v_pk_mul_f32 {v(gq+k,2)}, {v(gq+k,2)}, {v(Tt+k,2)}")
                A(f"v_cvt_pk_bf16_f32 v{out+2*e}, v{gq}, v{gq+1}")
                A(f"v_cvt_pk_bf16_f32 v{out+2*e+1}, v{gq+2}, v{gq+3}")
            A(f"buffer_store_dwordx4 {v(out,4)}, v{VOUT}, s[80:83], 0 offen offset:{kkb*1024 + half*512}{STF}")
    stamp(A, 19)
    signal_local(A, 2, T, 28, 19)
    stamp(A, 20)
    A("s_setprio 0")
    join(A, "L_p4_done"); reset(A)

def main(out_path):
    A = Asm(); name = NAME + "_kernel"
    A.raw(kernel_header(name))
    A("s_cmp_ge_u32 s2, 256"); A("s_cbranch_scc1 L_end")
    if STAMP:
        A("s_memtime s[90:91]"); A("v_mov_b32 v255, 0"); A("v_mov_b32 v254, 0")
    if env("DIAGT", 0) or env("HOLDAT", 0): A("s_memrealtime s[90:91]")
    A(f"s_load_dwordx4 s[4:7], s[0:1], 64")
    A(f"s_load_dwordx4 s[84:87], s[0:1], 0")
    A(f"s_load_dwordx2 s[88:89], s[0:1], 16")
    A(f"s_load_dwordx8 s[92:99], s[0:1], 32")
    A("v_lshrrev_b32 v2, 6, v0")
    A("v_and_b32 v1, 63, v0")
    A("v_readfirstlane_b32 s20, v2")
    A("v_and_b32 v2, 31, v0")
    A("v_lshrrev_b32 v3, 5, v1")
    A("s_and_b32 s18, s2, 7")
    A("s_lshr_b32 s19, s2, 3")
    A("s_mov_b32 s16, 0"); A("s_mov_b32 s17, 0"); A(f"s_mov_b32 s3, {OOB:#x}")
    A.wait_lg_all()
    if env("WSBASE", 0):
        A(f"s_add_u32 s{SWS}, s{SWS}, {env('WSBASE', 0) << 20:#x}"); A(f"s_addc_u32 s{SWS+1}, s{SWS+1}, 0")
    srd(A, SFL, SWS, WS_FL, FL_B)
    stamp(A, 0)
    phase1(A, True)
    A.label("L_layer"); reset(A)
    def hold(k):
        if env("HOLDAT", 0) != k: return
        l = A.newlabel("hold")
        A.label(l)
        A("s_memrealtime s[22:23]"); A("s_waitcnt lgkmcnt(0)"); A.lg = []
        A("s_sub_u32 s22, s22, s90"); A(f"s_cmp_lt_u32 s22, {env('HOLDT', 0)}"); A(f"s_cbranch_scc1 {l}")
    phase1(A, False); hold(1); phase2(A); hold(2); phase3(A); hold(3); phase4(A); hold(4); phase5(A); hold(5)
    A("s_cmp_lg_u32 s16, 0"); A("s_cbranch_scc1 L_exit")
    A("s_mov_b32 s16, 1")
    A(f"s_add_u32 s{SWS}, s{SWS}, {LS:#x}"); A(f"s_addc_u32 s{SWS+1}, s{SWS+1}, 0")
    if STAMP: A("v_mov_b32 v254, v255")
    A.fence()
    A("s_branch L_layer")
    A.label("L_exit")
    if env("DIAGT", 0):
        A.label("L_diag")
        A("s_memrealtime s[22:23]"); A("s_waitcnt lgkmcnt(0)"); A.lg = []
        A("s_sub_u32 s22, s22, s90"); A(f"s_cmp_lt_u32 s22, {env('DIAGT', 0)}"); A("s_cbranch_scc1 L_diag")
    if STAMP:
        A("s_waitcnt vmcnt(0)")
        stamp(A, 31)
        srd(A, 76, SWS, WS_DBG - LS, 0x1000000)
        A("s_lshl_b32 s21, s2, 3"); A("s_add_u32 s21, s21, s20"); A("s_lshl_b32 s21, s21, 9")
        A("v_lshlrev_b32 v4, 2, v1"); A("v_add_u32 v4, s21, v4")
        A("buffer_store_dword v254, v4, s[76:79], 0 offen")
        A("buffer_store_dword v255, v4, s[76:79], 0 offen offset:256")
        if env("DBGOUT", 0):
            A("s_add_u32 s21, s2, s20"); A("s_cmp_lg_u32 s21, 0"); A("s_cbranch_scc1 L_end")
            srd(A, 76, SDBG, 0, 256)
            A("v_readlane_b32 s22, v254, 0")
            sel = [(254, 2), (254, 3), (254, 8), (254, 11), (254, 16), (254, 22), (255, 1), (255, 8), (255, 11), (255, 16), (255, 22), (255, 31)]
            slots = [2, 3, 4, 5, 6, 7, 10, 11, 12, 13, 14, 15]
            A("s_mov_b64 exec, 1")
            for (r, l), sl in zip(sel, slots):
                A(f"v_readlane_b32 s23, v{r}, {l}"); A("s_sub_u32 s23, s23, s22"); A("v_mov_b32 v6, s23"); A(f"v_mov_b32 v7, {sl*4}")
                A("buffer_store_dword v6, v7, s[76:79], 0 offen")
                A("s_waitcnt vmcnt(0)"); A.vm = []
    A.label("L_end"); A("s_endpgm")
    A.flush_tail()
    A.raw("    .p2align 4"); A.label("L_code_end")
    hdr = open(os.path.join(os.path.dirname(os.path.abspath(__file__)), "..", "cdna_kernels", NAME + ".s.ref")).read().split("; Override")[0]
    t = hdr + f"; @launch grid=(256,1,1) block=(512,1,1) lds={LDS_TOTAL}\n"
    t += '.amdgcn_target "amdgcn-amd-amdhsa--gfx950"\n.text\n' + A.text()
    t += '.section .rodata,"a"\n.p2align 6\n' + kernel_desc(name, 256, 0, 102)
    open(out_path, "w").write(t)

if __name__ == "__main__":
    main(sys.argv[1] if len(sys.argv) > 1 else f"cdna_kernels/{NAME}.s")
```

```python
import sys, os, struct
sys.path.insert(0, os.path.dirname(os.path.abspath(__file__)))
from asmdsl import *

NAME = "interleave_layers__sliding_block__glu_gated_geglu__prompt"
S_TOK, D, F = 2048, 640, 1728
XB = S_TOK * D * 2
LS = 0x2000000
WS_XIN = 0x0000000
WS_X1 = 0x0300000
WS_O = 0x0600000
WS_H = 0x0900000
H_B = S_TOK * F * 2
WS_QKV = 0x1000000
QKV_B = 480 * 16384
WS_STA = 0x1800000
WS_STB = 0x1840000
ST_B = 10 * S_TOK * 8
WS_FL = 0x1880000
FL_B = 0x20000
WS_CS = 0x18a0000
CS_B = (1920 + 2 * F) * 4
WS_DBG = 0x4000000
OOB = 0x80000000
LDS_TOTAL = 163840
RSV = LDS_TOTAL - 3072
CS_PART, CS1, CS4, L_MODE, L_CNT = RSV, RSV + 1024, RSV + 1536, RSV + 2048, RSV + 2064
P3W = RSV - 10 * 8448
SDBG, SWS, SX, SWQKV, SWO, SWG, SWU, SWD, SOUT = 4, 6, 84, 86, 88, 92, 94, 96, 98
SFL = 72
SPIN_MAX = 1 << 20
def env(n, d): return int(os.environ.get(n, str(d)))
def f32(x): return "0x%08x" % struct.unpack("<I", struct.pack("<f", x))[0]
STAMP = env("STAMP", 0)
FORCE_SLOW = env("FORCE_SLOW", 0)
LEAD = env("LEAD", 0)
O4 = env("O4", 1)
ENG = env("ENG", 0)
DEFER = env("DEFER", 0)
S4 = env("S4", 2); assert S4 <= 2 or not env("RESLDS", 1)
PLAIN = env("PLAIN", 0)
STF = "" if PLAIN else " sc1"
NT4 = " nt" if env("NT4", 0) else ""
NTX = " nt" if env("NTX", 0) else ""

def stamp(A, i):
    if STAMP:
        A("s_memtime s[100:101]" if STAMP == 1 else "s_memrealtime s[100:101]"); A.wait_lg_all()
        if STAMP == 1: A("s_sub_u32 s100, s100, s90")
        A(f"v_writelane_b32 v255, s100, {i}")

def srd(A, d, base, off, size, soff=None):
    A(f"s_add_u32 s{d}, s{base}, {off:#x}")
    A(f"s_addc_u32 s{d+1}, s{base+1}, 0")
    if soff is not None:
        A(f"s_add_u32 s{d}, s{d}, s{soff}")
        A(f"s_addc_u32 s{d+1}, s{d+1}, 0")
    A(f"s_mov_b32 s{d+2}, {size:#x}")
    A(f"s_mov_b32 s{d+3}, 0x20000")

def join(A, label):
    A.fence(); A.label(label)

def spin(A, body, name, sleep=1):
    lp = A.newlabel(name); out = A.newlabel(name + "x")
    A("s_mov_b32 s35, 0")
    A.fence(); A.label(lp)
    body()
    A("s_add_u32 s35, s35, 1")
    A(f"s_cmp_gt_u32 s35, {SPIN_MAX}"); A(f"s_cbranch_scc1 {out}")
    A(f"s_cbranch_vccz {out}")
    if sleep: A(f"s_sleep {sleep}")
    A(f"s_branch {lp}")
    A.fence(); A.label(out)

def acquire_if_slow(A):
    l = A.newlabel("acq")
    A("s_cmp_lg_u32 s17, 0"); A(f"s_cbranch_scc1 {l}")
    A("buffer_inv sc1"); A("s_waitcnt vmcnt(0)")
    A.label(l)

def signal_local(A, k, t0, sblk, sprod, nowait=False):
    A("s_lshl_b32 s21, s16, 3"); A(f"s_add_u32 s21, s21, {k}"); A("s_lshl_b32 s21, s21, 3"); A("s_add_u32 s21, s21, s18")
    A(f"s_lshl_b32 s21, s21, 3"); A(f"s_add_u32 s21, s21, s{sblk}"); A("s_lshl_b32 s21, s21, 5"); A(f"s_add_u32 s21, s21, s{sprod}")
    A(f"v_mov_b32 v{t0}, s21"); A(f"v_mov_b32 v{t0+1}, 1")
    if not nowait: A.wait_vm_all()
    slow = A.newlabel("sigslow"); done = A.newlabel("sigdone")
    A("s_mov_b64 exec, 1")
    A("s_cmp_eq_u32 s17, 0"); A(f"s_cbranch_scc1 {slow}")
    A(f"buffer_store_byte v{t0+1}, v{t0}, {s(SFL,4)}, 0 offen")
    A(f"s_branch {done}")
    A.label(slow)
    A(f"buffer_store_byte v{t0+1}, v{t0}, {s(SFL,4)}, 0 offen sc1")
    A.label(done)
    A("s_mov_b64 exec, -1")
    A.vm = [None]

def signal_defer(A, k, sblk, sprod):
    A("s_lshl_b32 s3, s16, 3"); A(f"s_add_u32 s3, s3, {k}"); A("s_lshl_b32 s3, s3, 3"); A("s_add_u32 s3, s3, s18")
    A(f"s_lshl_b32 s3, s3, 3"); A(f"s_add_u32 s3, s3, s{sblk}"); A("s_lshl_b32 s3, s3, 5"); A(f"s_add_u32 s3, s3, s{sprod}")

def signal_flush(A, t0):
    slow = A.newlabel("sfslow"); done = A.newlabel("sfdone")
    A(f"s_cmp_eq_u32 s3, {OOB:#x}"); A(f"s_cbranch_scc1 {done}")
    A(f"v_mov_b32 v{t0}, s3"); A(f"v_mov_b32 v{t0+1}, 1")
    A("s_waitcnt vmcnt(0)")
    A("s_mov_b64 exec, 1")
    A("s_cmp_eq_u32 s17, 0"); A(f"s_cbranch_scc1 {slow}")
    A(f"buffer_store_byte v{t0+1}, v{t0}, {s(SFL,4)}, 0 offen")
    A("s_mov_b64 exec, -1")
    A(f"s_branch {done}")
    A.label(slow)
    A(f"buffer_store_byte v{t0+1}, v{t0}, {s(SFL,4)}, 0 offen sc1")
    A("s_mov_b64 exec, -1")
    join(A, done)
    A(f"s_mov_b32 s3, {OOB:#x}")
    reset(A)

def wait_local(A, k, p0, p1, sblk, t0, layer_delta=0, sleep=1):
    A(f"v_and_b32 v{t0+1}, 7, v1"); A(f"v_lshlrev_b32 v{t0+2}, 5, v{t0+1}")
    A(f"v_mov_b32 v{t0}, 0")
    for j in range(8):
        m = sum(1 << (8 * q) for q in range(4) if p0 <= 4 * j + q < p1)
        if m == 0x01010101 or m == 0: continue
        A(f"v_cmp_eq_u32 vcc, {j}, v{t0+1}"); A(f"v_mov_b32 v{t0+2}, {m:#x}"); A(f"v_cndmask_b32 v{t0}, v{t0}, v{t0+2}, vcc")
    f0, f1 = (p0 + 3) // 4, p1 // 4
    A(f"v_subrev_u32 v{t0+2}, {f0}, v{t0+1}"); A(f"v_cmp_gt_u32 vcc, {f1 - f0}, v{t0+2}")
    A(f"v_mov_b32 v{t0+2}, 0x01010101"); A(f"v_cndmask_b32 v{t0}, v{t0}, v{t0+2}, vcc")
    A(f"v_lshlrev_b32 v{t0+1}, 2, v{t0+1 if sblk is not None else 1}")
    A(f"s_add_u32 s21, s16, {layer_delta & 0xffffffff:#x}")
    A("s_lshl_b32 s21, s21, 3"); A(f"s_add_u32 s21, s21, {k}"); A("s_lshl_b32 s21, s21, 3"); A("s_add_u32 s21, s21, s18"); A("s_lshl_b32 s21, s21, 3")
    if sblk is not None: A(f"s_add_u32 s21, s21, s{sblk}")
    A("s_lshl_b32 s21, s21, 5")
    def body():
        A(f"buffer_load_dword v{t0+2}, v{t0+1}, {s(SFL,4)}, s21 offen sc1")
        A.wait_vm_all()
        A(f"v_and_b32 v{t0+2}, v{t0+2}, v{t0}")
        A(f"v_cmp_ne_u32 vcc, v{t0+2}, v{t0}")
    spin(A, body, "wl", sleep)
    acquire_if_slow(A)

def census_wait(A, t0, sleep=8):
    srd(A, 76, SDBG, 0, 256)
    A("s_sub_u32 s21, s18, 1"); A("s_max_i32 s21, s21, 0")
    A(f"v_mov_b32 v{t0}, s18"); A(f"v_mov_b32 v{t0+1}, s21")
    A("v_cmp_eq_u32 vcc, 0, v1")
    A(f"v_cndmask_b32 v{t0}, v{t0+1}, v{t0}, vcc")
    A(f"v_lshlrev_b32 v{t0}, 5, v{t0}")
    def body():
        A(f"buffer_load_dwordx2 {v(t0+2,2)}, v{t0}, s[76:79], 0 offen sc1")
        A.wait_vm_all()
        A(f"v_sad_u8 v{t0+1}, v{t0+2}, 0, 0")
        A(f"v_sad_u8 v{t0+1}, v{t0+3}, 0, v{t0+1}")
        A(f"v_cmp_ne_u32 vcc, 32, v{t0+1}")
    spin(A, body, "cen", sleep)
    A(f"v_readfirstlane_b32 s22, v{t0+2}"); A(f"v_readfirstlane_b32 s23, v{t0+3}")
    A("s_bcnt1_i32_b64 s21, s[22:23]")
    A("s_cmp_eq_u32 s21, 1"); A(f"s_cselect_b32 s17, {0 if FORCE_SLOW else 1}, 0")
    A(f"v_mov_b32 v{t0}, {L_MODE}"); A(f"v_mov_b32 v{t0+2}, s17"); A(f"v_mov_b32 v{t0+3}, 0")
    A(f"ds_write_b64 v{t0}, {v(t0+2,2)}")
    A(f"v_mov_b32 v{t0+2}, 0")
    for q in range(3): A(f"ds_write_b64 v{t0}, {v(t0+2,2)} offset:{16 + 8*q}")

def cnt_add(A, k, t0):
    A(f"v_mov_b32 v{t0}, {L_CNT + 4*k}"); A(f"v_mov_b32 v{t0+1}, 1")
    A("s_mov_b64 exec, 1")
    A(f"ds_add_u32 v{t0}, v{t0+1}")
    A("s_mov_b64 exec, -1")

def cnt_wait(A, k, n, t0):
    A(f"s_mul_i32 s21, s16, {n}"); A(f"s_add_u32 s21, s21, {n}"); A(f"v_mov_b32 v{t0}, {L_CNT + 4*k}")
    def body():
        A(f"ds_read_b32 v{t0+1}, v{t0}"); A.wait_lg_all()
        A(f"v_cmp_gt_u32 vcc, s21, v{t0+1}")
    spin(A, body, "lc", 1)

def row_loads(A, b):
    srd(A, 36, SX, 0, XB)
    A("s_lshl_b32 s21, s18, 8"); A("s_lshl_b32 s22, s19, 3"); A("s_add_u32 s21, s21, s22"); A("s_and_b32 s22, s20, 3"); A("s_lshl_b32 s22, s22, 1"); A("s_add_u32 s21, s21, s22")
    A(f"v_add_u32 v{b+12}, s21, v3"); A(f"v_mul_u32_u24 v{b+13}, 1280, v{b+12}"); A(f"v_lshl_add_u32 v{b+13}, v2, 4, v{b+13}")
    A(f"buffer_load_dwordx4 {v(b,4)}, v{b+13}, s[36:39], 0 offen", "row")
    A(f"buffer_load_dwordx4 {v(b+4,4)}, v{b+13}, s[36:39], 0 offen offset:512", "row")
    A(f"v_lshrrev_b32 v{b+8}, 4, v2"); A(f"v_lshl_add_u32 v{b+13}, v{b+8}, 31, v{b+13}")
    A(f"buffer_load_dwordx4 {v(b+8,4)}, v{b+13}, s[36:39], 0 offen offset:1024", "row")

def row_stats(A, b, t):
    A.wait_vm(lambda g: g == "row")
    A(f"v_mov_b32 v{t}, 0"); A(f"v_mov_b32 v{t+1}, 0"); A(f"v_mov_b32 v{t+2}, 0x3f803f80")
    for q in range(12):
        A(f"v_dot2_f32_bf16 v{t}, v{b+q}, v{t+2}, v{t}"); A(f"v_dot2_f32_bf16 v{t+1}, v{b+q}, v{b+q}, v{t+1}")
    A("s_nop 3")
    for r in (1, 2, 4, 8):
        for k in range(2): A(f"v_add_f32_dpp v{t+k}, v{t+k}, v{t+k} row_ror:{r} row_mask:0xf bank_mask:0xf")
    A(f"v_mov_b32 v{t+2}, v{t}"); A(f"v_mov_b32 v{t+3}, v{t+1}")
    A(f"v_permlane16_swap_b32 v{t}, v{t+2}"); A(f"v_permlane16_swap_b32 v{t+1}, v{t+3}")
    A(f"v_add_f32 v{t}, v{t}, v{t+2}"); A(f"v_add_f32 v{t+1}, v{t+1}, v{t+3}")
    ln_finish(A, t, t + 4, t + 5)
    srd(A, 36, SWS, WS_STA, ST_B)
    A(f"v_lshlrev_b32 v{t}, 3, v{b+12}")
    A("s_mov_b32 exec_lo, 1"); A("s_mov_b32 exec_hi, 1")
    A(f"buffer_store_dwordx2 {v(t+4,2)}, v{t}, s[36:39], 0 offen sc1", "rst")
    A("s_mov_b64 exec, -1")

def read_mode(A, t0):
    A(f"v_mov_b32 v{t0}, {L_MODE}")
    A(f"ds_read_b32 v{t0}, v{t0}", "mode")
    A.wait_lg(lambda g: g == "mode")
    A(f"v_readfirstlane_b32 s17, v{t0}")

def flags_zero(A, t0):
    A(f"v_mov_b32 v{t0}, 0"); A(f"v_mov_b32 v{t0+1}, 0")
    A("s_lshl_b32 s21, s18, 8"); A("s_lshl_b32 s22, s19, 3"); A("s_add_u32 s21, s21, s22")
    A(f"v_lshlrev_b32 v{t0+2}, 11, v1"); A(f"v_add_u32 v{t0+2}, s21, v{t0+2}")
    A("s_lshl_b32 s21, s18, 5"); A("s_add_u32 s21, s21, s19"); A("s_lshl_b32 s21, s21, 7"); A(f"s_add_u32 s21, s21, {(0x10000 - 16*32768) & 0xffffffff:#x}")
    A(f"v_lshlrev_b32 v{t0+3}, 15, v1"); A(f"v_add_u32 v{t0+3}, s21, v{t0+3}")
    A("v_cmp_gt_u32 vcc, 16, v1"); A(f"v_cndmask_b32 v{t0+2}, v{t0+3}, v{t0+2}, vcc")
    A("s_lshl_b32 s21, s16, 3"); A("s_add_u32 s21, s21, s20")
    A("s_cmp_eq_u32 s21, 4"); A("s_cselect_b32 s22, 0x3ffff, 0"); A("s_mov_b32 s23, 0")
    A(f"v_mov_b32 v{t0+3}, {OOB:#x}")
    A(f"v_cndmask_b32 v{t0+2}, v{t0+3}, v{t0+2}, s[22:23]")
    A(f"buffer_store_dwordx2 {v(t0,2)}, v{t0+2}, {s(SFL,4)}, 0 offen sc1", "fz")

def census_post(A, t0):
    srd(A, 76, SDBG, 0, 256)
    A("s_getreg_b32 s21, hwreg(HW_REG_XCC_ID)"); A("s_and_b32 s21, s21, 7"); A("s_lshl_b32 s21, s21, 3")
    A("s_mov_b64 s[22:23], 1"); A("s_lshl_b64 s[22:23], s[22:23], s21")
    A(f"v_mov_b32 v{t0}, s22"); A(f"v_mov_b32 v{t0+1}, s23")
    A("s_lshl_b32 s21, s16, 3"); A("s_add_u32 s21, s21, s20"); A("s_lshl_b32 s22, s18, 5")
    A("s_cmp_eq_u32 s21, 4"); A(f"s_cselect_b32 s21, s22, {OOB:#x}")
    A(f"v_mov_b32 v{t0+2}, s21")
    A("s_mov_b64 exec, 1")
    A(f"buffer_atomic_add_x2 {v(t0,2)}, v{t0+2}, s[76:79], 0 offen sc1")
    A("s_mov_b64 exec, -1")

def stats_items(A, vtok_off, srd_st, tmp, sbase=None):
    def mk(i):
        def f():
            A(f"s_mov_b32 s21, {i*2048}" if sbase is None else f"s_add_u32 s21, s{sbase}, {i*2048}")
            A(f"buffer_load_dwordx2 {v(tmp+2*i,2)}, v{vtok_off}, {s(srd_st,4)}, s21 offen sc1", ("S",))
        return f
    return [mk(i) for i in range(5)]

def finish_stats(A, tmp, negmean, rstd, t2, single=False):
    if not single:
        A(f"v_pk_add_f32 {v(tmp,2)}, {v(tmp,2)}, {v(tmp+2,2)}")
        A(f"v_pk_add_f32 {v(tmp+4,2)}, {v(tmp+4,2)}, {v(tmp+6,2)}")
        A(f"v_pk_add_f32 {v(tmp,2)}, {v(tmp,2)}, {v(tmp+8,2)}")
        A(f"v_pk_add_f32 {v(tmp,2)}, {v(tmp,2)}, {v(tmp+4,2)}")
    A(f"v_mov_b32 v{t2}, v{tmp}")
    A(f"v_mov_b32 v{t2+1}, v{tmp+1}")
    A(f"v_permlane32_swap_b32 v{tmp}, v{t2}")
    A(f"v_permlane32_swap_b32 v{tmp+1}, v{t2+1}")
    A(f"v_pk_add_f32 {v(tmp,2)}, {v(tmp,2)}, {v(t2,2)}")
    ln_finish(A, tmp, negmean, rstd)

def bfr(A, r):
    A(f"v_cvt_pk_bf16_f32 v{r}, v{r}, v{r}"); A(f"v_and_b32 v{r}, 0xffff0000, v{r}")

def ln_finish(A, tmp, negmean, rstd):
    A(f"v_mul_f32 v{negmean}, {f32(-1.0/D)}, v{tmp}")
    A(f"v_mul_f32 v{tmp+1}, {f32(1.0/D)}, v{tmp+1}")
    A(f"v_fma_f32 v{tmp+1}, -v{negmean}, v{negmean}, v{tmp+1}")
    A(f"v_max_f32 v{tmp+1}, 0, v{tmp+1}")
    bfr(A, negmean); bfr(A, tmp + 1)
    A(f"v_add_f32 v{tmp+1}, {f32(1e-5)}, v{tmp+1}")
    bfr(A, tmp + 1)
    A(f"v_sqrt_f32 v{tmp+1}, v{tmp+1}")
    bfr(A, tmp + 1)
    A(f"v_rcp_f32 v{rstd}, v{tmp+1}")
    A(f"v_mul_f32 v{tmp+1}, v{tmp+1}, v{tmp+1}")

class Gemm:
    def __init__(self, A, NB, nstage, XS, WSL, slot_bytes, RB, nb_stride, acc, wf, xa,
                 vx, vwd, wd_srds, wd_lds, vtr, srd_x, w_row_stride, PRE, LA, npre=0):
        self.__dict__.update(locals())
        self.nbar = npre; self.issued = set()

    def load_list(self, do_x, do_w, wlead=0):
        L = []
        n = len(self.vwd)
        for t in range(min(0, wlead), self.nstage + max(0, wlead)):
            tw = t
            if do_w and max(self.npre, self.nland) <= tw < self.nstage:
                for j in range(n): L.append(("W", tw, j, j == n - 1))
            tx = t - wlead
            if do_x and 0 <= tx < self.nstage:
                for st in range(4): L.append(("X", tx, st, st == 3))
        return L

    def issue(self, item):
        A = self.A
        if callable(item): return item()
        kind, t, j, last = item
        self.issued.add((kind, t, j))
        if kind == "X" and self.xstage:
            xs = self.xstage
            assert t - xs["nslot"] < self.cur_stage or t < xs["nslot"], (t, self.cur_stage)
            A(f"s_add_u32 m0, s33, {(t % xs['nslot']) * 4096 + j * 1024}")
            A(f"buffer_load_dwordx4 v{xs['vdma'][j]}, {s(self.srd_x,4)}, s30 offen{NTX} lds", ("X", t, j))
            if last and t < self.nstage - 1:
                A("s_add_u32 s30, s30, 128"); A(f"s_cmp_ge_u32 s30, {self.nstage * 128}"); A("s_cselect_b32 s30, 0, s30")
        elif kind == "X":
            st = j
            assert t - self.XS < self.cur_stage or (t - self.XS == self.cur_stage and st < self.cur_step), (t, self.cur_stage)
            r = self.xa + ((t % self.XS) * 4 + st) * 4
            if self.vx4 and t < 2:
                A(f"s_mov_b32 s21, {XB + t * 4096}")
                for e in range(2):
                    A(f"buffer_load_dwordx2 {v(r+2*e,2)}, v{self.vx4}, {s(self.srd_x,4)}, s21 offen offset:{st*1024 + e*256} sc1", ("X", t, st))
            elif self.xdyn:
                A(f"buffer_load_dwordx4 {v(r,4)}, v{self.vx + st}, {s(self.srd_x,4)}, s30 offen", ("X", t, st))
            else:
                A(f"buffer_load_dwordx4 {v(r,4)}, v{self.vx}, {s(self.srd_x,4)}, s30 offen offset:{st*512} sc1", ("X", t, st))
            if last and t < self.nstage - 1:
                A("s_add_u32 s30, s30, s33" if self.xdyn else "s_add_u32 s30, s30, 2048")
                A("s_cmp_ge_u32 s30, s34" if self.xdyn else f"s_cmp_ge_u32 s30, {self.nstage * 2048}")
                A("s_cselect_b32 s30, 0, s30")
        else:
            assert t < self.WSL or self.realbar >= t - self.WSL + 2, (t, self.realbar)
            A(f"s_add_u32 m0, s32, {(t % self.WSL) * self.slot_bytes + self.wd_lds[j]}")
            A(f"buffer_load_dwordx4 v{self.vwd[j]}, {s(self.wd_srds[j],4)}, s31 offen{self.wflags} lds", ("W", t))
            if self.throttle is not None: A(f"s_waitcnt vmcnt({self.throttle})"); A.vm = A.vm[-self.throttle:] if self.throttle else []
            if last and t < self.nstage - 1: self.adv_w()

    def adv_w(self):
        A = self.A
        A(f"s_add_u32 s31, s31, {64 * self.w_row_stride}")
        A(f"s_cmp_ge_u32 s31, {self.nstage * 64 * self.w_row_stride}")
        A("s_cselect_b32 s31, 0, s31")

    def tr_reads(self, t, st, buf):
        out = []
        kb, f = st >> 1, st & 1
        slot = t % self.WSL
        per = 65536 // self.slot_bytes
        va = self.vtr[slot // per]
        base = (slot % per) * self.slot_bytes
        for nb in range(self.NB):
            for rd in range(2):
                off = base + (8 * kb + 4 * rd + 2 * f) * self.RB + nb * self.nb_stride
                r = self.wf + (buf * self.NB + nb) * 4 + rd * 2
                out.append((f"ds_read_b64_tr_b16 {v(r,2)}, v{va} offset:{off}", ("F", t, st, nb)))
        return out

    realbar = -1
    xdyn = False
    vx4 = None
    bar_at = None
    bar_fn = None
    wgate = None
    pre_bar = {}
    LA0 = 0
    FD = 1
    xstage = None
    wflags = ""
    throttle = None
    lastbar = None
    nland = 0
    def barrier(self, t):
        if t < self.npre: return
        if self.lastbar is not None and t > self.lastbar: return
        if t in self.pre_bar: self.pre_bar[t]()
        tw = self.nstage - 1 if t == self.lastbar else t
        assert not self.do_w or tw < self.nland or ("W", tw, len(self.vwd) - 1) in self.issued, (t, tw)
        self.A.wait_vm(lambda g: g == ("W", tw))
        self.A("s_barrier")
        self.realbar = t

    def run_idle(self):
        for t in range(self.npre, self.nstage): self.A("s_barrier")

    def prefetch(self, n):
        self.do_w = True; self.cur_stage, self.cur_step = -1, 0
        for it in self.load_list(False, True):
            if it[1] < n: self.issue(it)

    def run_loader(self, after_bar=None, early=None, first=None):
        L = self.load_list(False, True); self.do_w = True
        self.cur_stage, self.cur_step = -1, 0
        k = 0
        for t in range(self.nstage + 1):
            if early and t > 0: early(t - 1)
            lim = max(self.LA, min(t + self.WSL - 2, t + self.LA))
            if t == 0 and self.LA0: lim = self.LA0
            while k < len(L) and L[k][1] < lim and (L[k][1] < self.WSL or self.realbar >= L[k][1] - self.WSL + 2):
                self.issue(L[k]); k += 1
                if first and k == env("FIRSTN", 8): first()
            if after_bar and t > 0: after_bar(t - 1)
            if t < self.nstage: self.barrier(t)
        assert k == len(L)

    def xread(self, t, st):
        xs = self.xstage
        r = self.xa + ((t % 2) * 4 + st) * 4
        self.A(f"ds_read_b128 {v(r,4)}, v{xs['vrd'][st]} offset:{(t % xs['nslot']) * 4096}", ("XR", t, st))

    def run(self, zero_init=True, do_w=True, extra=(), extra_at=3, wlead=0, sb=0, stage_end=None, per_mfma=None, tail=(), rate=None):
        A = self.A
        tail = list(tail)
        L = self.load_list(True, do_w, wlead); self.do_w = do_w
        pos = next(i for i, it in enumerate(L) if it[0] == "X" and it[1] == extra_at)
        L[pos:pos] = list(extra)
        self.cur_stage, self.cur_step = -1, 0
        k = min(self.PRE, len(L))
        for q, it in enumerate(L[:k]):
            if self.bar_at == q: (self.bar_fn() if self.bar_fn else A("s_barrier"))
            assert self.bar_at is None or q >= self.bar_at or it[0] == "X"
            self.issue(it)
        self.barrier(0)
        stamp(A, sb + 1)
        xs = self.xstage
        if xs:
            A.wait_vm(lambda g: g == ("X", 0, 3))
            for st in range(4): self.xread(0, st)
        FD = self.FD
        for q in range(FD):
            for ins, tag in self.tr_reads(0, q, q): A(ins, tag)
        gstep = 0
        nm = self.NB
        per_stage = 4 + (len(self.vwd) if do_w else 0)
        rate = (rate or per_stage) / (4.0 * nm)
        credit = 0.0
        for t in range(self.nstage):
            for st in range(4):
                self.cur_stage, self.cur_step = t, st
                buf = gstep % (FD + 1)
                if st == 4 - FD and t + 1 < self.nstage: self.barrier(t + 1)
                gn = gstep + FD
                nreads = self.tr_reads(gn // 4, gn % 4, gn % (FD + 1)) if gn < 4 * self.nstage else []
                if xs:
                    xr = self.xa + ((t % 2) * 4 + st) * 4
                    if st >= 2 and t + 1 < self.nstage:
                        if st == 2:
                            assert ("X", t + 1, 3) in self.issued
                            A.wait_vm(lambda g: g == ("X", t + 1, 3))
                        self.xread(t + 1, 2 * (st - 2)); self.xread(t + 1, 2 * (st - 2) + 1)
                else:
                    xr = self.xa + ((t % self.XS) * 4 + st) * 4
                    assert ("X", t, st) in self.issued
                    A.wait_vm(lambda g: g == ("X", t, st))
                for nb in range(self.NB):
                    A.wait_lg(lambda g: g == ("F", t, st, nb) or g == ("XR", t, st))
                    ac = self.acc + nb * 16
                    wr = self.wf + (buf * self.NB + nb) * 4
                    c = "0" if (zero_init and gstep == 0) else v(ac, 16)
                    A(f"v_mfma_f32_32x32x16_bf16 {v(ac,16)}, {v(wr,4)}, {v(xr,4)}, {c}")
                    for ins, tag in nreads[2 * nb:2 * nb + 2]: A(ins, tag)
                    if per_mfma: per_mfma(xr, nb)
                    if tail and self.realbar == self.lastbar and nb == 1: tail.pop(0)()
                    credit += rate
                    while credit >= 1.0 - 1e-9 and k < len(L):
                        it = L[k]
                        if not callable(it):
                            if it[0] == "X" and xs:
                                if not (it[1] - xs["nslot"] < t or it[1] < xs["nslot"]): break
                            elif it[0] == "X" and not (it[1] - self.XS < t or (it[1] - self.XS == t and it[2] < st)): break
                            if it[0] == "W" and not (it[1] < self.WSL or self.realbar >= it[1] - self.WSL + 2): break
                            if it[0] == "W" and self.wgate is not None and self.realbar < self.wgate: break
                            credit -= 1.0
                        else: credit -= 0.25
                        self.issue(it); k += 1
                gstep += 1
            if stage_end: stage_end(t)
        assert k == len(L), (k, len(L))
        assert not tail
        stamp(A, sb + 2)

ROT = env("ROT", 0)
def rot_calc(A, kind):
    n = 27 if kind == "p5" else 10
    if kind == "p3" and O4:
        A("s_mov_b32 s21, 8"); return
    A(f"s_mul_i32 s21, s18, {n}"); A("s_lshr_b32 s21, s21, 3")
    if kind == "p1r":
        A("s_and_b32 s22, s19, 1"); A("s_mul_i32 s22, s22, 5"); A("s_add_u32 s21, s21, s22")
        A("s_cmp_ge_u32 s21, 10"); A("s_cselect_b32 s22, 10, 0"); A("s_sub_u32 s21, s21, s22")
    elif ROT:
        if kind == "p1":
            A("s_lshr_b32 s22, s19, 1"); A("s_add_u32 s21, s21, s22")
            if ROT == 1: A("s_and_b32 s22, s19, 1"); A("s_mul_i32 s22, s22, 5"); A("s_add_u32 s21, s21, s22")
        elif kind == "p4":
            A("s_add_u32 s21, s21, s19")
        else:
            A("s_mul_i32 s22, s19, 171"); A("s_lshr_b32 s22, s22, 9")
            A("s_mul_i32 s23, s22, 3"); A("s_sub_u32 s23, s19, s23")
            if kind == "p5":
                A("s_mul_i32 s22, s22, 11"); A("s_lshr_b32 s22, s22, 2"); A("s_mul_i32 s23, s23, 9")
            else:
                A("s_mul_i32 s23, s23, 3")
            A("s_add_u32 s21, s21, s22")
            if ROT == 1: A("s_add_u32 s21, s21, s23")
        mag = (65536 + n - 1) // n
        A(f"s_mul_i32 s22, s21, {mag}"); A("s_lshr_b32 s22, s22, 16"); A(f"s_mul_i32 s22, s22, {n}"); A("s_sub_u32 s21, s21, s22")

def rot_init(A, kind, w_row_stride, wskip=0):
    nstage = 27 if kind == "p5" else 10
    rot_calc(A, kind)
    A("s_lshl_b32 s30, s21, 11")
    if wskip:
        A(f"s_add_u32 s21, s21, {wskip}"); A(f"s_cmp_ge_u32 s21, {nstage}"); A(f"s_cselect_b32 s22, {nstage}, 0"); A("s_sub_u32 s21, s21, s22")
    A(f"s_mul_i32 s31, s21, {64 * w_row_stride}")

def tr_lane_addr(A, dst, PS, RB, cg_stride, t0, base=0):
    A(f"v_bfe_u32 v{t0}, v1, 2, 2")
    A(f"v_mul_u32_u24 v{dst}, {PS}, v{t0}")
    A(f"v_mul_u32_u24 v{t0}, {RB}, v3")
    A(f"v_add_u32 v{dst}, v{dst}, v{t0}")
    A(f"v_bfe_u32 v{t0}, v1, 4, 1")
    A(f"v_mul_u32_u24 v{t0}, {cg_stride}, v{t0}")
    A(f"v_add_u32 v{dst}, v{dst}, v{t0}")
    A(f"v_and_b32 v{t0}, 3, v1")
    A(f"v_lshl_add_u32 v{dst}, v{t0}, 3, v{dst}")
    if base: A(f"v_add_u32 v{dst}, {base}, v{dst}")

def cl_lane_off(A, dst, stok, tb_stride, t0):
    A(f"v_lshrrev_b32 v{t0}, 4, v2")
    A(f"s_lshr_b32 s21, s{stok}, 4")
    A(f"v_add_u32 v{t0}, s21, v{t0}")
    A(f"s_mov_b32 s21, {tb_stride}")
    A(f"v_mul_lo_u32 v{dst}, v{t0}, s21")
    A(f"v_lshl_add_u32 v{dst}, v3, 8, v{dst}")
    A(f"v_and_b32 v{t0}, 15, v2")
    A(f"v_lshl_add_u32 v{dst}, v{t0}, 4, v{dst}")

def wdma_off(A, dst, n, lanes_per_row, row_stride, scol, splane, t0):
    sh = {8: 3, 16: 4}[lanes_per_row]; R = 64 // lanes_per_row
    A(f"v_lshrrev_b32 v{t0}, {sh}, v1")
    A(f"v_lshlrev_b32 v{t0}, 2, v{t0}")
    A(f"v_add_u32 v{t0}, s{splane}, v{t0}")
    A(f"v_mul_u32_u24 v{t0}, {row_stride}, v{t0}")
    A(f"v_and_b32 v{t0+1}, {lanes_per_row-1}, v1")
    A(f"v_lshl_add_u32 v{t0}, v{t0+1}, 4, v{t0}")
    A(f"v_add_u32 v{dst}, s{scol}, v{t0}")
    for j in range(1, n): A(f"v_add_u32 v{dst+j}, {4*R*j*row_stride}, v{dst}")

def stats_off(A, dst, stok_local, t0):
    A(f"v_add_u32 v{t0}, s{stok_local}, v2")
    A(f"v_lshlrev_b32 v{dst}, 3, v{t0}")
    A(f"v_mul_u32_u24 v{t0}, 10240, v3")
    A(f"v_add_u32 v{dst}, v{dst}, v{t0}")
    A("s_mul_i32 s21, s18, 20480")
    A(f"v_add_u32 v{dst}, s21, v{dst}")

def l0_only(A, fn, name):
    l = A.newlabel(name)
    A("s_cmp_lg_u32 s16, 0"); A(f"s_cbranch_scc1 {l}")
    h = list(A.hist)
    fn()
    A.fence(); A.label(l)
    A.hist = h

def reset(A): A.vm = []; A.lg = []

def phase1(A, L0):
    n = "p1a" if L0 else "p1b"
    PS, RB, SLOT = 4160, 256, 16640
    XSL = env("XSL1A", 4)
    WSL, XS = (9 - XSL, 2) if L0 else (env("WSL1", 9), 6)
    XST = (9 - XSL) * SLOT
    VX, VWD, VTR, VST, VCS, VOUT, NM, RS = 4, 4, 9, 12, 13, 14, 16, 18
    TMP = 20; WF = 32; ACC = 64; CS = 128; XA = 144; SA = 240; ONE = 244; VXR = 248
    A("s_cmp_ge_u32 s19, 30"); A(f"s_cbranch_scc1 L_{n}_idle")
    m0_ = len(A.lines)
    if L0:
        warm_tlb(A)
        l = A.newlabel("ir")
        A("s_cmp_lt_u32 s20, 4"); A(f"s_cbranch_scc1 {l}")
        row_loads(A, 32); flags_zero(A, 4); row_stats(A, 32, 16); A.wait_vm_all()
        join(A, l); reset(A)
        A("s_barrier")
        census_post(A, 4)
        warm_code(A); warm_mall(A)
        l = A.newlabel("cw")
        A("s_cmp_lg_u32 s20, 4"); A(f"s_cbranch_scc1 {l}")
        census_wait(A, 4, 64); A.wait_lg_all()
        join(A, l)
        A("s_barrier")
        read_mode(A, 4)
    A("s_branch L_p1_done")
    A.move_out(m0_, f"L_{n}_idle", jump=False); reset(A)
    A("s_and_b32 s26, s20, 3")
    A("s_and_b32 s24, s19, 1"); A("s_lshl_b32 s24, s24, 7")
    A("s_lshl_b32 s25, s26, 5"); A("s_add_u32 s24, s24, s25")
    A("s_lshl_b32 s27, s18, 8"); A("s_add_u32 s27, s27, s24")
    A("s_lshr_b32 s28, s19, 1")
    rot_init(A, "p1r" if (L0 and env("ROT1A", 0)) else "p1", 3840)
    def mk():
        g = Gemm(A, 4, 10, XS, WSL, SLOT, RB, 64, ACC, WF, XA, VX, [VWD + j for j in range(4)], [12] * 4,
                 [1024 * j for j in range(4)], [VTR, VTR + 1, VTR + 2], 8, 3840,
                 env("PRE1A", 12) if L0 else env("PRE1", 8), env("LA1A", 3) if L0 else env("LA1", 7))
        if L0: g.LA0 = env("LA0", 0)
        if L0: g.xstage = dict(vdma=[VX + j for j in range(4)], vrd=[VXR + j for j in range(4)], nslot=XSL)
        return g
    A("s_cmp_lt_u32 s20, 4"); A(f"s_cbranch_scc1 L_{n}_comp")
    srd(A, 12, SWQKV, 0, D * 1920 * 2)
    A(f"v_lshrrev_b32 v{TMP}, 4, v1"); A(f"v_lshlrev_b32 v{TMP}, {3 if L0 else 2}, v{TMP}"); A(f"v_add_u32 v{TMP}, s26, v{TMP}")
    A(f"v_mul_u32_u24 v{TMP}, 3840, v{TMP}")
    A(f"v_and_b32 v{TMP+1}, 15, v1"); A(f"v_lshl_add_u32 v{TMP}, v{TMP+1}, 4, v{TMP}")
    A("s_lshl_b32 s25, s28, 8"); A(f"v_add_u32 v{VWD}, s25, v{TMP}")
    A(f"v_add_u32 v{VWD+1}, {(4 if L0 else 16)*3840}, v{VWD}"); A(f"v_add_u32 v{VWD+2}, {32*3840}, v{VWD}"); A(f"v_add_u32 v{VWD+3}, {32*3840}, v{VWD+1}")
    A(f"s_mul_i32 s32, s26, {PS}")
    def st_publish(pair):
        A("s_cmp_lt_u32 s28, 5")
        A(f"s_cselect_b32 s21, {f32(20 ** -0.5 * 1.4426950408889634)}, 1.0")
        A(f"v_mul_f32 v{pair+1}, s21, v{pair+1}")
        A("s_lshl_b32 s21, s26, 8"); A(f"s_add_u32 s21, s21, {CS_PART}")
        A(f"v_lshlrev_b32 v{TMP}, 3, v2"); A(f"v_add_u32 v{TMP}, s21, v{TMP}")
        A(f"ds_write_b64 v{TMP}, {v(pair,2)}")
    if not L0:
        stats_off(A, VST, 24, TMP)
        srd(A, 36, SWS, WS_STA, ST_B)
        def after(t):
            if t == 4:
                for f in stats_items(A, VST, 36, TMP): f()
            if t == 7:
                A.wait_vm(lambda g: g == ("S",))
                finish_stats(A, TMP, NM, NM + 1, TMP + 10)
                st_publish(NM)
        mk().run_loader(after_bar=after)
        A.wait_lg_all()
        A("s_barrier")
        A("s_branch L_p1_done")
    else:
        mark = {}
        def first():
            mark["m"] = len(A.lines)
            row_loads(A, ACC)
            flags_zero(A, TMP)
        def early(t):
            if t == 0: row_stats(A, ACC, ACC + 16)
        def after(t):
            if t == 0:
                tr_lane_addr(A, VTR, PS, RB, 32, TMP)
                A("s_lshl_b32 s21, s26, 6"); A(f"v_add_u32 v{VTR}, s21, v{VTR}"); A(f"v_add_u32 v{VTR+1}, {3*SLOT}, v{VTR}")
                A(f"v_mov_b32 v{ONE}, 0x3f803f80")
                for k in range(4): A(f"v_mov_b32 v{SA+k}, 0")
            wm0 = env("WM0", 2)
            if env("WM", 0) and wm0 <= t < wm0 + 4:
                sb_, size = ((SWO, D * D * 2), (SWG, D * F * 2), (SWU, D * F * 2), (SWD, D * F * 2))[t - wm0]
                srd(A, 80, sb_, 0, size)
                A("s_mul_i32 s21, s18, 30"); A("s_add_u32 s21, s21, s19"); A("s_lshl_b32 s21, s21, 2"); A("s_add_u32 s21, s21, s26"); A("s_lshl_b32 s21, s21, 10")
                A(f"v_lshlrev_b32 v{TMP+6}, 4, v1")
                for q in range(-(-size // (960 * 1024))):
                    A(f"buffer_load_dwordx4 {v(ACC+32,4)}, v{TMP+6}, s[80:83], s21 offen", "wm")
                    A(f"s_add_u32 s21, s21, {960*1024}")
            if t == env("CPOST", 3):
                assert "rst" not in A.vm
                census_post(A, TMP)
            slot = t % WSL
            for q in range(8):
                A(f"ds_read_b64_tr_b16 {v(WF + 2*q, 2)}, v{VTR + slot // 3} offset:{(slot % 3) * SLOT + 2 * q * RB}")
            if t == 8:
                A(f"v_add_u32 v{TMP}, s27, v2"); A(f"v_lshlrev_b32 v{TMP}, 3, v{TMP}")
                A(f"buffer_load_dwordx2 {v(NM,2)}, v{TMP}, s[36:39], 0 offen sc1", "S")
            A.wait_lg_all()
            for q in range(16): A(f"v_dot2_f32_bf16 v{SA + (q & 3)}, v{WF+q}, v{ONE}, v{SA + (q & 3)}")
            if t == 7:
                keep = list(A.vm)
                l = A.newlabel("cw")
                A("s_cmp_lg_u32 s20, 4"); A(f"s_cbranch_scc1 {l}")
                census_wait(A, TMP, 4)
                join(A, l)
                A.vm = keep
        mk().run_loader(after_bar=after, early=early, first=first)
        A("s_nop 3")
        A(f"v_add_f32 v{SA}, v{SA}, v{SA+1}"); A(f"v_add_f32 v{SA+2}, v{SA+2}, v{SA+3}"); A(f"v_add_f32 v{SA}, v{SA}, v{SA+2}")
        A(f"v_mov_b32 v{SA+1}, v{SA}"); A(f"v_permlane32_swap_b32 v{SA}, v{SA+1}"); A(f"v_add_f32 v{SA}, v{SA}, v{SA+1}")
        A("s_lshl_b32 s21, s26, 7"); A(f"s_add_u32 s21, s21, {CS1}")
        A(f"v_lshlrev_b32 v{TMP}, 2, v2"); A(f"v_add_u32 v{TMP}, s21, v{TMP}")
        A(f"ds_write_b32 v{TMP}, v{SA}")
        A.wait_vm_all()
        st_publish(NM)
        A.wait_lg_all()
        A("s_barrier")
        read_mode(A, TMP)
        A("s_branch L_p1_done")
        A.move_out(mark["m"], "L_p1a_ld")
    A.label(f"L_{n}_comp"); reset(A)
    if L0:
        srd(A, 8, SX, 0, XB)
        A(f"v_lshrrev_b32 v{TMP}, 3, v1"); A(f"v_add_u32 v{TMP}, s27, v{TMP}"); A(f"v_mul_u32_u24 v{TMP}, 1280, v{TMP}")
        A(f"v_lshrrev_b32 v{TMP+1}, 4, v1"); A(f"v_and_b32 v{TMP+2}, 7, v1"); A(f"v_xor_b32 v{TMP+1}, v{TMP+1}, v{TMP+2}")
        A(f"v_lshl_add_u32 v{VX}, v{TMP+1}, 4, v{TMP}")
        A(f"v_xor_b32 v{TMP+1}, 4, v{TMP+1}"); A(f"v_lshl_add_u32 v{VX+1}, v{TMP+1}, 4, v{TMP}"); A(f"v_add_u32 v{VX+1}, {8*1280}, v{VX+1}")
        A(f"v_add_u32 v{VX+2}, {16*1280}, v{VX}"); A(f"v_add_u32 v{VX+3}, {16*1280}, v{VX+1}")
        A("s_lshr_b32 s30, s30, 4")
        A(f"s_mul_i32 s33, s26, {XSL*4096}"); A(f"s_add_u32 s33, s33, {XST}")
    else:
        cl_lane_off(A, VX, 27, 20480, TMP)
        srd(A, 8, SWS, WS_XIN, XB)
    def setup():
        tr_lane_addr(A, VTR, PS, RB, 32, TMP)
        A(f"v_add_u32 v{VTR+1}, {3*SLOT}, v{VTR}")
        A(f"v_add_u32 v{VTR+2}, {6*SLOT}, v{VTR}")
        A(f"v_and_b32 v{TMP}, 15, v1"); A(f"v_lshlrev_b32 v{VOUT}, 4, v{TMP}"); A(f"v_lshl_add_u32 v{VOUT}, v3, 11, v{VOUT}")
        A(f"v_bfe_u32 v{TMP}, v1, 4, 1"); A(f"v_lshl_add_u32 v{VOUT}, v{TMP}, 12, v{VOUT}")
        A("s_lshl_b32 s21, s24, 3"); A(f"v_add_u32 v{VOUT}, s21, v{VOUT}")
        A(f"v_lshlrev_b32 v{VCS}, 4, v3"); A(f"v_add_u32 v{VCS}, {CS1}, v{VCS}")
        srd(A, 80, SWS, WS_QKV, QKV_B)
        if L0:
            A(f"v_bfe_u32 v{TMP}, v1, 1, 3"); A(f"v_xor_b32 v{TMP}, v{TMP}, v3")
            A(f"v_lshlrev_b32 v{TMP+1}, 7, v2"); A(f"v_add_u32 v{TMP+1}, s33, v{TMP+1}")
            for st in range(4):
                A(f"v_xor_b32 v{TMP+2}, {2*st}, v{TMP}"); A(f"v_lshl_add_u32 v{VXR+st}, v{TMP+2}, 4, v{TMP+1}")
        A("s_lshl_b32 s21, s26, 8"); A(f"s_add_u32 s21, s21, {CS_PART}")
        A(f"v_lshlrev_b32 v{VST}, 3, v2"); A(f"v_add_u32 v{VST}, s21, v{VST}")
    if L0:
        stamp(A, 1)
        g = mk()
        g.PRE += 1
        g.run(do_w=False, extra=[setup], extra_at=(g.PRE - 1) // 4, sb=1, rate=env("RATE1A", 4))
        A("s_branch L_p1_epi")
        return
    setup()
    A("s_lshr_b32 s29, s24, 5")
    if DEFER: signal_flush(A, TMP)
    wait_local(A, 3, 0, 10, 29, TMP, layer_delta=-1)
    reset(A)
    stamp(A, 1)
    mk().run(do_w=False, sb=1)
    A.label("L_p1_epi"); reset(A)
    A("s_barrier")
    A(f"ds_read_b64 {v(NM,2)}, v{VST}", ("C", 0, 0))
    csr = lambda nb: (WF + (nb & 1) * 16) if nb != 0 else CS
    def csread(nb):
        for i in range(4): A(f"ds_read_b128 {v(csr(nb) + i*4, 4)}, v{VCS} offset:{nb*128 + i*32}", ("C", nb, i))
    csread(0); csread(1); csread(2)
    A("s_lshr_b32 s29, s24, 5")
    A("s_mul_i32 s24, s18, 480"); A("s_lshl_b32 s25, s28, 5"); A("s_add_u32 s24, s24, s25"); A("s_lshl_b32 s24, s24, 11")
    for nb in range(4):
        if nb == 2: csread(3)
        for ip in range(2):
            r = ACC + nb * 16 + ip * 8; c = csr(nb) + ip * 8
            A.wait_lg(lambda g: g == ("C", nb, 2 * ip + 1))
            for k in range(0, 8, 2):
                A(f"v_pk_fma_f32 {v(r+k,2)}, {v(c+k,2)}, {v(NM,2)}, {v(r+k,2)} op_sel_hi:[1,0,1]")
            for k in range(0, 8, 2):
                A(f"v_pk_mul_f32 {v(r+k,2)}, {v(r+k,2)}, {v(NM,2)} op_sel:[0,1] op_sel_hi:[1,1]")
            for k in range(4):
                A(f"v_cvt_pk_bf16_f32 v{r+k}, v{r+2*k}, v{r+2*k+1}")
            A(f"s_add_u32 s21, s24, {(8*nb + 4*ip) * 2048}")
            A(f"v_permlane16_swap_b32 v{r}, v{r+2}")
            A(f"v_permlane16_swap_b32 v{r+1}, v{r+3}")
            A(f"buffer_store_dwordx4 {v(r,4)}, v{VOUT}, s[80:83], s21 offen sc1")
    read_mode(A, TMP)
    stamp(A, 4)
    A("s_lshl_b32 s21, s16, 3"); A("s_add_u32 s21, s21, s18"); A("s_lshl_b32 s21, s21, 5"); A("s_add_u32 s21, s21, s19")
    A("s_lshl_b32 s21, s21, 7"); A("s_add_u32 s21, s21, s20"); A("s_add_u32 s21, s21, 0x10000")
    A(f"v_mov_b32 v{TMP}, s21"); A(f"v_mov_b32 v{TMP+1}, 1")
    A.wait_vm_all()
    A("s_mov_b64 exec, 1")
    A(f"buffer_store_byte v{TMP+1}, v{TMP}, {s(SFL,4)}, 0 offen sc1")
    A("s_mov_b64 exec, -1")
    signal_local(A, 4, TMP + 2, 29, 28, nowait=True)
    stamp(A, 5)
    join(A, "L_p1_done"); reset(A)

P35 = dict(PS=2112, RB=128, SLOT=8448)
def p35_ids(A):
    A("s_mul_i32 s28, s19, 171"); A("s_lshr_b32 s28, s28, 9")
    A("s_mul_i32 s25, s28, 3"); A("s_sub_u32 s24, s19, s25")
    A("s_and_b32 s26, s20, 3")
    A("s_lshl_b32 s24, s24, 2"); A("s_add_u32 s24, s24, s26"); A("s_lshl_b32 s24, s24, 2")
    tab = [0, 1, 4, 8, 2, 5, 6, 8, 3, 7, 8, 8]
    t64 = sum(x << (4 * i) for i, x in enumerate(tab))
    A(f"s_mov_b32 s22, {t64 & 0xffffffff:#x}"); A(f"s_mov_b32 s23, {t64 >> 32:#x}")
    A("s_lshr_b64 s[22:23], s[22:23], s24"); A("s_and_b32 s29, s22, 15")
    A("s_lshl_b32 s24, s29, 5")
    A("s_lshl_b32 s27, s18, 8"); A("s_add_u32 s27, s27, s24")

def p35_gemm(A, nstage, WSL, PRE, LA, npre):
    g = Gemm(A, 2, nstage, 9, WSL, 8448, 128, 64, 48, 24, 96, 4, [6, 7], [12] * 2,
             [0, 1024], [8, 9, 13], 8, D * 2, PRE, LA, npre)
    g.FD = env("FD35", 2)
    if O4 and nstage == 10: g.vx4 = 14
    return g

def p35_loader_setup(A, sw, K, base):
    A("s_lshl_b32 s25, s28, 7")
    wdma_off(A, 6, 2, 8, D * 2, 25, 26, 16)
    A(f"s_mul_i32 s32, s26, 2112")
    if base: A(f"s_add_u32 s32, s32, {base}")
    srd(A, 12, sw, 0, K * D * 2)

def p35_compute(A, nstage, WSL, npre, base, ws_x, x_bytes, ws_res, ws_out, ws_st, waitf, sigk, can_final, sb, PRE):
    VX, VTR, VRES, VST, VOUT = 4, 8, 10, 11, 12
    TMP = 16; ACC = 48; RES = 80
    cl_lane_off(A, VX, 27, nstage * 2048, TMP)
    tr_lane_addr(A, VTR, 2112, 128, 32, TMP, base)
    A(f"v_add_u32 v{VTR+1}, {7*8448}, v{VTR}"); A(f"v_add_u32 v13, {14*8448}, v{VTR}")
    cl_lane_off(A, VRES, 27, 20480, TMP)
    A("s_lshl_b32 s21, s28, 11")
    A(f"v_add_u32 v{VRES}, s21, v{VRES}")
    if True:
        A(f"v_add_u32 v{TMP}, s27, v2")
        A(f"v_mul_u32_u24 v{VOUT}, {D*2}, v{TMP}")
        A("s_lshl_b32 s21, s28, 7")
        A(f"v_add_u32 v{VOUT}, s21, v{VOUT}")
        A(f"v_lshl_add_u32 v{VOUT}, v3, {5 if can_final else 3}, v{VOUT}")
    A(f"v_add_u32 v{TMP}, s24, v2"); A(f"v_lshlrev_b32 v{VST}, 3, v{TMP}")
    A("s_mul_i32 s21, s18, 10"); A("s_add_u32 s21, s21, s28"); A("s_lshl_b32 s21, s21, 11")
    A(f"v_add_u32 v{VST}, s21, v{VST}")
    if O4 and not can_final:
        A("s_lshl_b32 s21, s27, 8"); A("v_lshlrev_b32 v14, 3, v2"); A("v_lshl_add_u32 v14, v3, 9, v14"); A("v_add_u32 v14, s21, v14")
    srd(A, 8, SWS, ws_x, x_bytes)
    srd(A, 36, SWS, ws_res, XB)
    srd(A, 76, SWS, ws_out, XB)
    srd(A, 80, SWS, ws_st, ST_B)
    if not can_final:
        A("s_cmp_lg_u32 s16, 0"); A("s_cbranch_scc1 L_p3_rescl")
        srd(A, 36, SX, 0, XB)
        if env("RESLDS", 1):
            A(f"v_lshrrev_b32 v{TMP}, 3, v1"); A(f"v_add_u32 v{TMP}, s27, v{TMP}"); A(f"v_mul_u32_u24 v{TMP}, 1280, v{TMP}")
            A(f"v_and_b32 v{TMP+1}, 7, v1"); A(f"v_lshl_add_u32 v{TMP}, v{TMP+1}, 4, v{TMP}")
            A("s_lshl_b32 s22, s26, 12"); A("s_add_u32 s22, s22, 36864"); A("s_lshl_b32 s21, s28, 7")
            for j in range(4):
                A(f"s_add_u32 m0, s22, {j*1024}")
                A(f"buffer_load_dwordx4 v{TMP}, s[36:39], s21 offen lds")
                A(f"s_add_u32 s21, s21, {8*1280}")
            A(f"v_lshlrev_b32 v{TMP+1}, 7, v2"); A(f"v_lshl_add_u32 v{TMP+1}, v3, 3, v{TMP+1}"); A(f"v_add_u32 v{TMP+1}, s22, v{TMP+1}")
            A.wait_vm_all()
            for nb in range(2):
                for half in range(2):
                    p = RES + (nb * 2 + half) * 4
                    A(f"ds_read_b64 {v(p,2)}, v{TMP+1} offset:{(32*nb + 8*half)*2}")
                    A(f"ds_read_b64 {v(p+2,2)}, v{TMP+1} offset:{(32*nb + 16 + 8*half)*2}")
            A.wait_lg_all()
        else:
            for nb in range(2):
                for half in range(2):
                    p = RES + (nb * 2 + half) * 4
                    A(f"buffer_load_dwordx2 {v(p,2)}, v{VOUT}, s[36:39], 0 offen offset:{(32*nb + 8*half)*2}")
                    A(f"buffer_load_dwordx2 {v(p+2,2)}, v{VOUT}, s[36:39], 0 offen offset:{(32*nb + 16 + 8*half)*2}")
        A("s_branch L_p3_resdone")
        A.label("L_p3_rescl")
    for nb in range(2):
        for half in range(2):
            A(f"buffer_load_dwordx4 {v(RES + (nb*2+half)*4, 4)}, v{VRES}, s[36:39], 0 offen offset:{nb*1024 + half*512} sc1", ("R",))
    if not can_final: A.label("L_p3_resdone")
    CINIT = env("CINIT", 1)
    if CINIT:
        A("s_waitcnt vmcnt(0)")
        for nb in range(2):
            for half in range(2):
                p = RES + (nb * 2 + half) * 4
                for j in range(4):
                    dst = ACC + nb * 16 + 4 * half + (j >> 1) * 8 + (j & 1) * 2
                    A(f"v_lshlrev_b32 v{dst}, 16, v{p+j}")
                    A(f"v_and_b32 v{dst+1}, 0xffff0000, v{p+j}")
    waitf(TMP); reset(A)
    stamp(A, sb)
    gate = (lambda: cnt_wait(A, 1, 8, TMP)) if (LEAD and not can_final) else (lambda: A("s_barrier"))
    p35_gemm(A, nstage, WSL, PRE + 1, 0, npre).run(do_w=False, zero_init=not CINIT, sb=sb, extra=[gate], extra_at=PRE // 4)
    if LEAD and not can_final: cnt_add(A, 4, TMP)
    late = env("E5LATE", 0) if can_final else 0
    if can_final and not late: A("s_barrier")
    for nb in range(2):
        for half in range(2):
            p = RES + (nb * 2 + half) * 4
            for j in range(4):
                src = ACC + nb * 16 + 4 * half + (j >> 1) * 8 + (j & 1) * 2
                if not CINIT:
                    A(f"v_lshlrev_b32 v{TMP}, 16, v{p+j}")
                    A(f"v_and_b32 v{TMP+1}, 0xffff0000, v{p+j}")
                    A(f"v_pk_add_f32 {v(src,2)}, {v(src,2)}, {v(TMP,2)}")
                A(f"v_cvt_pk_bf16_f32 v{p+j}, v{src}, v{src+1}")
    if can_final:
        A("s_cmp_eq_u32 s16, 0"); A("s_cbranch_scc1 L_p5_notfinal")
        srd(A, 76, SOUT, 0, XB)
        for nb in range(2):
            for half in range(2):
                p = RES + (nb * 2 + half) * 4
                A(f"v_permlane32_swap_b32 v{p}, v{p+2}")
                A(f"v_permlane32_swap_b32 v{p+1}, v{p+3}")
                A(f"buffer_store_dwordx4 {v(p,4)}, v{VOUT}, s[76:79], 0 offen offset:{(32*nb + 8*half)*2}{['', ' sc1', ' nt', ' sc0 sc1'][env('FINF', 0)]}")
        A("s_branch L_exit")
        A.label("L_p5_notfinal"); reset(A)
    for nb in range(2):
        for half in range(2):
            p = RES + (nb * 2 + half) * 4
            A(f"buffer_store_dwordx4 {v(p,4)}, v{VRES}, s[76:79], 0 offen offset:{nb*1024 + half*512}{STF}")
    for k in range(4): A(f"v_mov_b32 v{TMP+k}, 0")
    A(f"v_mov_b32 v{TMP+4}, 0x3f803f80")
    for j in range(16):
        o = 2 * (j & 1)
        A(f"v_dot2_f32_bf16 v{TMP+o}, v{RES+j}, v{TMP+4}, v{TMP+o}")
        A(f"v_dot2_f32_bf16 v{TMP+o+1}, v{RES+j}, v{RES+j}, v{TMP+o+1}")
    A("s_nop 3")
    A(f"v_pk_add_f32 {v(TMP,2)}, {v(TMP,2)}, {v(TMP+2,2)}")
    A(f"v_mov_b32 v{TMP+2}, v{TMP}"); A(f"v_mov_b32 v{TMP+3}, v{TMP+1}")
    A(f"v_permlane32_swap_b32 v{TMP}, v{TMP+2}")
    A(f"v_permlane32_swap_b32 v{TMP+1}, v{TMP+3}")
    A(f"v_pk_add_f32 {v(TMP,2)}, {v(TMP,2)}, {v(TMP+2,2)}")
    A(f"buffer_store_dwordx2 {v(TMP,2)}, v{VST}, s[80:83], 0 offen{STF}")
    stamp(A, sb + 3)
    if DEFER: signal_defer(A, sigk, 29, 28)
    else: signal_local(A, sigk, TMP + 4, 29, 28)
    stamp(A, sb + 4)
    if late: A("s_barrier")

def phase2(A):
    PSK, PSV = 4096, 4160
    KOFF, VOFF = 0, 51200
    QOFF = 6 * 4096
    VL16, VQ, VQ2, VK1, VK2, VV, VO, VWA, VWB, VW4 = 4, 5, 6, 7, 8, 9, 10, 12, 13, 252
    TMP = 14; Q1, Q2 = 20, 24; MSK = 26; KF = 34; VF = 52; O = 68; PB = 84; S = 100; MX = 244; DUM = 248
    A("s_mul_i32 s25, s19, 5")
    A(f"v_lshlrev_b32 v{VL16}, 4, v1")
    srd(A, 8, SWS, WS_QKV, QKV_B)
    A("s_lshl_b32 s24, s20, 5")
    A(f"v_and_b32 v{TMP+4}, 15, v1"); A(f"v_bfe_u32 v{TMP+5}, v1, 4, 1")
    A(f"v_lshlrev_b32 v{VK2}, 4, v{TMP+4}"); A(f"v_lshl_add_u32 v{VK2}, v{TMP+5}, 3, v{VK2}")
    A("s_lshl_b32 s21, s20, 8"); A(f"v_add_u32 v{VK2}, s21, v{VK2}")
    A(f"v_lshl_add_u32 v{VK1}, v3, 12, v{VK2}")
    A(f"v_add_u32 v{VQ2}, {QOFF}, v{VK2}"); A(f"v_lshl_add_u32 v{VQ}, v3, 11, v{VQ2}")
    srd(A, 12, SWS, WS_O, XB + 64 * 8192)
    A(f"v_mov_b32 v{TMP+2}, 0x3f803f80"); A(f"v_mov_b32 v{TMP+3}, 0x3f803f80")
    A(f"v_lshlrev_b32 v{TMP+1}, 3, v0")
    A(f"v_add_u32 v{TMP}, {VOFF}, v{TMP+1}")
    A(f"ds_write_b64 v{TMP}, {v(TMP+2,2)} offset:{5*PSV}")
    A("s_lshr_b32 s22, s20, 2"); A("s_add_u32 s22, s22, s18"); A("s_cmp_eq_u32 s22, 0"); A("s_cselect_b32 s22, 0xf149, 0")
    A(f"v_mov_b32 v{Q1}, s22"); A(f"v_mov_b32 v{Q1+1}, 0")
    A(f"ds_write_b64 v{TMP+1}, {v(Q1,2)} offset:{KOFF + 5*PSK}")
    A(f"v_and_b32 v{TMP}, 3, v1")
    A(f"v_lshl_add_u32 v{TMP+1}, v{TMP+5}, 2, v{TMP}"); A(f"v_min_u32 v{TMP+1}, 5, v{TMP+1}")
    A(f"v_mul_u32_u24 v{VV}, {PSV}, v{TMP+1}")
    A(f"v_bfe_u32 v{TMP+1}, v1, 2, 2"); A(f"v_lshl_add_u32 v{TMP+1}, v3, 2, v{TMP+1}")
    A(f"v_lshl_add_u32 v{VV}, v{TMP+1}, 4, v{VV}"); A(f"v_add_u32 v{VV}, s21, v{VV}"); A(f"v_add_u32 v{VV}, {VOFF}, v{VV}")
    A("s_lshl_b32 s21, s18, 4"); A("s_lshl_b32 s22, s20, 1"); A("s_add_u32 s21, s21, s22")
    A(f"v_add_u32 v{TMP+1}, s21, v{TMP+5}"); A(f"v_mul_u32_u24 v{TMP+1}, 20480, v{TMP+1}")
    A(f"v_lshl_add_u32 v{TMP+1}, v{TMP+4}, 4, v{TMP+1}")
    A("s_lshl_b32 s21, s19, 9"); A(f"v_add_u32 v{VO}, s21, v{TMP+1}"); A(f"v_lshl_add_u32 v{VO}, v3, 8, v{VO}")
    A("s_lshr_b32 s21, s19, 1"); A("s_lshl_b32 s21, s21, 8"); A("s_and_b32 s22, s19, 1"); A("s_lshl_b32 s22, s22, 3"); A("s_add_u32 s21, s21, s22"); A(f"s_add_u32 s21, s21, {64*256}")
    if O4:
        A("s_lshl_b32 s21, s18, 3"); A("s_add_u32 s21, s21, s20"); A("s_lshl_b32 s21, s21, 5"); A("s_add_u32 s21, s21, s19"); A("s_lshl_b32 s21, s21, 8"); A(f"s_add_u32 s21, s21, {XB}")
        A(f"v_lshlrev_b32 v{TMP+1}, 3, v2")
    A(f"v_add_u32 v{VO+1}, s21, v{TMP+1}"); A(f"v_lshl_add_u32 v{VO+1}, v3, 31, v{VO+1}")
    A("s_mul_i32 s28, s19, 171"); A("s_lshr_b32 s28, s28, 9")
    A("s_and_b32 s26, s20, 3"); A("s_lshr_b32 s27, s20, 2")
    A(f"v_bfe_u32 v{TMP}, v1, 3, 1"); A(f"v_mul_u32_u24 v{TMP+1}, 5, v{TMP+5}"); A(f"v_add_u32 v{TMP}, v{TMP}, v{TMP+1}")
    A(f"v_lshl_add_u32 v{TMP}, v3, 1, v{TMP}"); A("s_mul_i32 s21, s27, 10"); A(f"v_add_u32 v{TMP}, s21, v{TMP}")
    A(f"v_bfe_u32 v{TMP+1}, v1, 3, 2"); A(f"v_mul_u32_u24 v{TMP+1}, 10, v{TMP+1}"); A(f"v_mul_u32_u24 v{TMP+2}, 5, v3"); A(f"v_add_u32 v{TMP+1}, v{TMP+1}, v{TMP+2}")
    A("s_mul_i32 s21, s27, 40"); A("s_add_u32 s21, s21, 4"); A(f"v_add_u32 v{TMP+1}, s21, v{TMP+1}")
    A(f"v_and_b32 v{TMP+2}, 7, v1"); A(f"v_lshlrev_b32 v{TMP+2}, 4, v{TMP+2}")
    A("s_mul_i32 s21, s26, 1280"); A("s_lshl_b32 s22, s28, 7"); A("s_add_u32 s21, s21, s22")
    A("s_cmp_ge_u32 s19, 30"); A(f"s_cselect_b32 s21, {OOB:#x}, s21")
    A(f"v_add_u32 v{TMP+2}, s21, v{TMP+2}")
    A(f"v_mul_u32_u24 v{VWA}, 5120, v{TMP}"); A(f"v_add_u32 v{VWA}, v{VWA}, v{TMP+2}")
    A(f"v_mul_u32_u24 v{VWB}, 5120, v{TMP+1}"); A(f"v_add_u32 v{VWB}, v{VWB}, v{TMP+2}")
    A("s_mul_i32 s32, s26, 2112"); A("s_lshl_b32 s21, s27, 10"); A("s_add_u32 s32, s32, s21"); A(f"s_add_u32 s32, s32, {P3W}")
    A(f"s_add_u32 s34, s32, {10*8448}")
    rot_calc(A, "p3")
    A("s_sub_u32 s21, 10, s21"); A("s_cmp_eq_u32 s21, 10"); A("s_cselect_b32 s21, 0, s21"); A("s_mul_i32 s21, s21, 8448"); A("s_add_u32 s29, s32, s21")
    srd(A, 36, SWO, 0, D * D * 2)
    if S4:
        A("s_lshl_b32 s25, s19, 7"); A("s_cmp_ge_u32 s19, 27"); A(f"s_cselect_b32 s25, {OOB:#x}, s25")
        wdma_off(A, VW4, 2, 8, F * 2, 25, 26, TMP)
        rot_init(A, "p4", F * 2)
        A("s_cmp_eq_u32 s27, 0")
        A(f"s_cselect_b32 s22, s{SWG}, s{SWU}"); A(f"s_cselect_b32 s23, s{SWG+1}, s{SWU+1}")
        srd(A, 76, 22, 0, D * F * 2)
        A("s_mul_i32 s30, s26, 2112"); A("s_mul_i32 s21, s27, 8480"); A("s_add_u32 s30, s30, s21")
    side = []
    for t in range(10):
        def f(t=t):
            A("s_mov_b32 m0, s29")
            A(f"s_mov_b32 s21, {t*80*1280 if t < 8 else (t-8)*320*1280}")
            A(f"buffer_load_dwordx4 v{VWA if t < 8 else VWB}, s[36:39], s21 offen lds", "wo")
            A("s_add_u32 s29, s29, 8448"); A("s_cmp_ge_u32 s29, s34"); A("s_cselect_b32 s29, s32, s29")
        side.append(f)
    if env("WOEARLY", 0):
        l = A.newlabel("woe")
        A("s_cmp_lt_u32 s20, 4"); A(f"s_cbranch_scc1 {l}")
        for t in range(10):
            for j in range(2):
                A(f"s_sub_u32 m0, s29, {1024 * (1 - j)}")
                off = (t * 80 * 1280 if t < 8 else (t - 8) * 320 * 1280)
                A(f"s_mov_b32 s21, {off}")
                if j == 0: A(f"v_subrev_u32 v{TMP}, {(10 if t < 8 else 40) * 5120}, v{VWA if t < 8 else VWB}")
                A(f"buffer_load_dwordx4 v{TMP if j == 0 else (VWA if t < 8 else VWB)}, s[36:39], s21 offen lds")
            A("s_add_u32 s29, s29, 8448"); A("s_cmp_ge_u32 s29, s34"); A("s_cselect_b32 s29, s32, s29")
        A("s_cmp_lg_u32 s20, 7"); A(f"s_cbranch_scc1 {l}"); A("s_waitcnt vmcnt(0)")
        join(A, l); reset(A)
        side = []
    for t in range(S4):
        for j in range(2):
            def f(t=t, j=j):
                A(f"s_add_u32 m0, s30, {t*16960 + j*1024}")
                A(f"buffer_load_dwordx4 v{VW4+j}, s[76:79], s31 offen lds", "w4")
                if j == 1:
                    A(f"s_add_u32 s31, s31, {64*F*2}"); A(f"s_cmp_ge_u32 s31, {640*F*2}"); A("s_cselect_b32 s31, 0, s31")
            side.append(f)
    for r in range(16):
        k0 = 8 * (r >> 2) + (r & 3)
        A(f"s_mov_b32 s{40+2*r}, {(0xFFFFFFFF << k0) & 0xFFFFFFFF:#x}")
        A(f"s_mov_b32 s{41+2*r}, {(0xFFFFFFFF << (k0+4)) & 0xFFFFFFFF:#x}")
    A(f"v_mov_b32 v{TMP+4}, 0xffff"); A(f"v_mov_b32 v{TMP+5}, 0xffff0000")
    for j in range(8):
        A(f"v_cndmask_b32 v{MSK+j}, 0, v{TMP+4}, {s(40+4*j,2)}")
        A(f"v_cndmask_b32 v{TMP+1}, 0, v{TMP+5}, {s(42+4*j,2)}")
        A(f"v_or_b32 v{MSK+j}, v{MSK+j}, v{TMP+1}")
    stamp(A, 6)
    A("s_sub_u32 s21, s20, 4"); A("s_cmp_ge_u32 s21, 3"); A("s_cbranch_scc1 L_p2_setup")
    A("s_mul_i32 s25, s19, 5"); A("s_mul_i32 s80, s18, 480"); A("s_add_u32 s80, s80, s25"); A("s_lshl_b32 s80, s80, 11")
    A(f"s_add_u32 s81, s80, {320*2048}")
    A("s_cmp_eq_u32 s20, 6"); A("s_cbranch_scc1 L_p2_halo")
    A("s_cmp_eq_u32 s20, 4")
    A(f"s_cselect_b32 s22, 0, {160*2048}"); A(f"s_cselect_b32 s82, {QOFF}, 0"); A("s_cselect_b32 s83, 0, 1")
    A("s_add_u32 s80, s80, s22"); A("s_lshl_b32 s83, s83, 11"); A("s_add_u32 s82, s82, s83"); A("s_add_u32 s83, s83, 2048")
    A(f"s_mov_b32 s33, {VOFF + 2048}")
    wait_local(A, 4, 0, 15, None, KF)
    A("s_branch L_p2_ld")
    A.label("L_p2_halo"); reset(A)
    A(f"s_sub_u32 s80, s80, {320*2048}"); A(f"s_sub_u32 s81, s81, {480*2048}")
    A("s_mov_b32 s82, 0"); A("s_mov_b32 s83, 4096"); A(f"s_mov_b32 s33, {VOFF}")
    A("s_cmp_eq_u32 s18, 0"); A(f"s_cselect_b32 s80, {OOB:#x}, s80"); A(f"s_cselect_b32 s81, {OOB:#x}, s81"); A("s_cbranch_scc1 L_p2_ld")
    A(f"v_min_u32 v{KF}, 19, v1"); A(f"v_lshlrev_b32 v{KF}, 7, v{KF}")
    A("s_lshl_b32 s21, s16, 3"); A("s_add_u32 s21, s21, s18"); A("s_lshl_b32 s21, s21, 12"); A(f"s_add_u32 s21, s21, {0x10000 - 4096 + 10*128}")
    A(f"v_add_u32 v{KF}, s21, v{KF}")
    A(f"v_mov_b32 v{KF+1}, 0x01010101")
    def body():
        A(f"buffer_load_dword v{KF+2}, v{KF}, {s(SFL,4)}, 0 offen sc1")
        A.wait_vm_all()
        A(f"v_cmp_ne_u32 vcc, v{KF+2}, v{KF+1}")
    spin(A, body, "p1w", 1)
    join(A, "L_p2_ld"); reset(A)
    stamp(A, 7)
    for i in range(5):
        for c in range(2):
            A(f"s_add_u32 m0, s82, {c*1024}")
            A(f"buffer_load_dwordx4 v{VL16}, s[8:11], s80 offen sc1 lds")
            A("s_add_u32 s80, s80, 1024")
        A("s_add_u32 s82, s82, s83")
    A("s_cmp_eq_u32 s20, 5"); A("s_cbranch_scc1 L_p2_w5")
    for i in range(5):
        for c in range(2):
            A(f"s_add_u32 m0, s33, {i*PSV + c*1024}")
            A(f"buffer_load_dwordx4 v{VL16}, s[8:11], s81 offen sc1 lds")
            A("s_add_u32 s81, s81, 1024")
    A("s_branch L_p2_setup")
    A.label("L_p2_w5")
    A("s_waitcnt vmcnt(0)")
    join(A, "L_p2_setup"); reset(A)
    A("s_waitcnt vmcnt(10)"); A.wait_lg_all()
    A.vm = ["V"] * 10
    A("s_barrier")
    STAG = env("STAG", 0)
    if STAG:
        l = A.newlabel("pr2")
        A("s_cmp_ge_u32 s20, 4"); A(f"s_cbranch_scc1 {l}"); A("s_setprio 2"); A.label(l)
    stamp(A, 8)
    A(f"ds_read_b64 {v(Q1,2)}, v{VQ}", ("K", 0))
    A(f"ds_read_b64 {v(Q1+2,2)}, v{VQ} offset:4096", ("K", 0))
    A(f"ds_read_b64 {v(Q2,2)}, v{VQ2} offset:8192", ("K", 0))
    qorder = [0, 8, 1, 2, 3, 4, 5, 6, 7]
    def kreads(n):
        d = qorder[n]; b = KF + (n % 3) * 6
        for q in range(3):
            A(f"ds_read_b64 {v(b+2*q,2)}, v{VK1} offset:{KOFF + 2*q*PSK + d*256}", ("K", n))
    work = {}
    work[1] = [f"v_cndmask_b32 v{S+r}, v{S+r}, v{S+128+r}, {s(40+2*r,2)}" for r in range(16)]
    work[1] += [f"v_max_f32 v{MX+c}, v{S+2*c}, v{S+2*c+1}" for c in range(2)]
    work[1] += [f"v_max3_f32 v{MX+(k&1)}, v{MX+(k&1)}, v{S+2*k}, v{S+2*k+1}" for k in range(2, 8)]
    for n in range(2, 9):
        sb = S + 16 * qorder[n]
        work[n] = [f"v_max3_f32 v{MX+(k&1)}, v{MX+(k&1)}, v{sb+2*k}, v{sb+2*k+1}" for k in range(8)]
    pend = []
    kreads(0); kreads(1)
    for n in range(9):
        d = qorder[n]
        if n + 2 < 9: kreads(n + 2)
        A.wait_lg(lambda g: g == ("K", n))
        b = KF + (n % 3) * 6
        if n == 0:
            A("s_mov_b32 s22, -1"); A("s_mov_b32 s23, 0"); A(f"v_mov_b32 v{MX+2}, 0x3f80")
            A(f"v_cndmask_b32 v{Q2}, v{MX+2}, v{Q2}, s[22:23]"); A(f"v_cndmask_b32 v{Q2+1}, 0, v{Q2+1}, s[22:23]")
        if n - 2 in work: pend += work[n - 2]
        A(f"v_mfma_f32_32x32x16_bf16 {v(S+16*d,16)}, {v(b,4)}, {v(Q1,4)}, 0")
        for _ in range(6):
            if pend: A(pend.pop(0))
        A(f"v_mfma_f32_32x32x8_bf16 {v(S+16*d,16)}, {v(b+4,2)}, {v(Q2,2)}, {v(S+16*d,16)}")
        for _ in range(6):
            if pend: A(pend.pop(0))
    for w_ in pend + work[7] + work[8]: A(w_)
    A(f"v_max_f32 v{MX}, v{MX}, v{MX+1}")
    A(f"v_mov_b32 v{MX+1}, v{MX}")
    A(f"v_permlane32_swap_b32 v{MX}, v{MX+1}")
    A(f"v_max_f32 v{MX}, v{MX}, v{MX+1}")
    stamp(A, 27)
    A.wait_vm_all()
    if STAG:
        cnt_add(A, 0, KF)
        if env("STAG", 1) == 2: A("s_setprio 0")
    else: A("s_barrier")
    stamp(A, 28)
    if env("NOSIDE", 0): side = []
    vbuf = lambda k: (VF + 8 * k) if k < 2 else (PB + 8 * (k - 2))
    vseq = [0, 8, 1, 2, 3, 4, 5, 6, 7]
    def vreads(i):
        d = vseq[i]
        for u in range(2):
            for rd in range(2):
                A(f"ds_read_b64_tr_b16 {v(vbuf(i % 4) + u*4 + rd*2, 2)}, v{VV} offset:{d*256 + rd*128 + u*8}", ("V", i))
    mq = []; st_ = dict(first=True, nv=0)
    def pv():
        if not mq: return
        i, u = mq.pop(0)
        A.wait_lg(lambda g: g == ("V", i))
        c = "0" if st_["first"] else v(O, 16); st_["first"] = False
        A(f"v_mfma_f32_32x32x16_bf16 {v(O,16)}, {v(vbuf(i % 4) + u*4, 4)}, {v(S + 16*vseq[i] + u*4, 4)}, {c}")
    VD = env("VD", 1) if STAG else 0
    if not VD: vreads(0); vreads(1)
    per = 4 if LEAD else -(-len(side) // env("SIDET", 6))
    for d in range(8):
        sb = S + 16 * d
        if LEAD and d == 6:
            A.wait_vm_all(); cnt_add(A, 1, KF)
        for r in range(0, 16, 2): A(f"v_pk_add_f32 {v(sb+r,2)}, {v(sb+r,2)}, {v(MX,2)} op_sel_hi:[1,0] neg_lo:[0,1] neg_hi:[0,1]")
        q = 0
        for r in range(16):
            A(f"v_exp_f32 v{sb+r}, v{sb+r}")
            if d > VD and (r in (1, 6) or (r == 11 and len(mq) > 0 and d < 7)): pv()
            if r == 13:
                if VD and d == VD:
                    cnt_wait(A, 0, 8, KF)
                while d >= VD and st_["nv"] < 9 and st_["nv"] <= d + 2 and st_["nv"] - 4 < min([i for i, u in mq] + [d + 1]):
                    if VD or st_["nv"] >= 2: vreads(st_["nv"])
                    st_["nv"] += 1
            if r % 4 == 3 and side and q < per: side.pop(0)(); q += 1
        for j in range(8): A(f"v_cvt_pk_bf16_f32 v{sb+j}, v{sb+2*j}, v{sb+2*j+1}")
        if d == 0:
            for j in range(8): A(f"v_and_b32 v{S+128+j}, v{sb+j}, v{MSK+j}")
            for j in range(8): A(f"v_bfi_b32 v{sb+j}, v{MSK+j}, 0, v{sb+j}")
            mq += [(0, 0), (0, 1), (1, 0), (1, 1)]
        else:
            mq += [(d + 1, 0), (d + 1, 1)]
    while mq: pv()
    assert not side
    if LEAD: cnt_add(A, 2, KF)
    stamp(A, 9)
    A(f"v_rcp_f32 v{MX}, v{O+12}")
    for k in range(0, 12, 2):
        A(f"v_pk_mul_f32 {v(O+k,2)}, {v(O+k,2)}, {v(MX,2)} op_sel_hi:[1,0]")
    for k in range(6): A(f"v_cvt_pk_bf16_f32 v{PB+k}, v{O+2*k}, v{O+2*k+1}")
    A(f"buffer_store_dwordx4 {v(PB,4)}, v{VO}, s[12:15], 0 offen{STF}")
    A(f"buffer_store_dwordx2 {v(PB+4,2)}, v{VO+1}, s[12:15], 0 offen{STF}")
    if STAG: A("s_setprio 0")
    signal_local(A, 0, 20, 20, 19)
    stamp(A, 10)
    A.fence(); reset(A)

def touch_range(A, off, grp_bytes, nwg, base_idx, depth=8):
    per = nwg * 8 * 1024
    n = -(-grp_bytes // per)
    A(f"s_mul_i32 s21, s18, {grp_bytes}")
    srd(A, 36, SWS, off, grp_bytes, soff=21)
    A(f"s_sub_u32 s31, s19, {base_idx}"); A("s_lshl_b32 s31, s31, 3"); A("s_add_u32 s31, s31, s20"); A("s_lshl_b32 s31, s31, 10")
    A("v_lshlrev_b32 v4, 4, v1")
    A("s_mov_b32 s22, 0")
    lp = A.newlabel("tr")
    A.label(lp)
    A("buffer_load_dwordx4 v[8:11], v4, s[36:39], s31 offen sc1")
    A(f"s_waitcnt vmcnt({depth})"); A.vm = []
    A(f"s_add_u32 s31, s31, {per}")
    A("s_add_u32 s22, s22, 1"); A(f"s_cmp_lt_u32 s22, {n}"); A(f"s_cbranch_scc1 {lp}")

def warm_code(A, thr=31):
    if not env("WARMC", 1): return
    skip = A.newlabel("wc"); here = A.newlabel("pc"); lp = A.newlabel("wcl")
    A(f"s_cmp_lt_u32 s19, {thr}"); A(f"s_cbranch_scc1 {skip}")
    A("s_getpc_b64 s[22:23]")
    A.label(here)
    A(f"s_sub_u32 s22, s22, {here}-{NAME}_kernel"); A("s_subb_u32 s23, s23, 0")
    A("v_lshlrev_b32 v6, 4, v0")
    A.label(lp)
    A(f"v_min_u32 v7, L_code_end-{NAME}_kernel-16, v6")
    A("v_mov_b32 v5, s23"); A("v_add_co_u32 v4, vcc, s22, v7"); A("v_addc_co_u32 v5, vcc, 0, v5, vcc")
    A("global_load_dwordx4 v[8:11], v[4:5], off"); A.vm = []
    A("v_add_u32 v6, 8192, v6")
    A("v_readfirstlane_b32 s21, v6")
    A(f"s_cmp_lt_u32 s21, L_code_end-{NAME}_kernel"); A(f"s_cbranch_scc1 {lp}")
    A("s_waitcnt vmcnt(0)")
    join(A, skip); reset(A)

def warm_tlb(A):
    if not env("WARMT", 0): return
    skip = A.newlabel("wt")
    A("s_cmp_lg_u32 s19, 30"); A(f"s_cbranch_scc1 {skip}")
    A("s_cmp_lg_u32 s20, 0"); A(f"s_cbranch_scc1 {skip}")
    sh = env("WARMT_SH", 20)
    A(f"v_lshlrev_b32 v6, {sh}, v0")
    for base, size in ((SWO, D*D*2), (SWG, D*F*2), (SWU, D*F*2), (SWD, D*F*2), (SOUT, XB)):
        srd(A, 36, base, 0, size)
        A("buffer_load_dword v8, v6, s[36:39], 0 offen")
    srd(A, 36, SWS, 0, 2 * LS)
    for k in range(max(1, (2 * LS) >> (sh + 9))):
        A(f"s_mov_b32 s21, {k << (sh + 9):#x}"); A("buffer_load_dword v8, v6, s[36:39], s21 offen")
    join(A, skip); reset(A)

def warm_stream(A, sbase, size, sstart, step, n, depth, wrap=None):
    srd(A, 36, sbase, 0, size)
    A("v_lshlrev_b32 v4, 4, v0")
    A("s_mov_b32 s22, 0")
    lp = A.newlabel("ws")
    A.label(lp)
    A(f"buffer_load_dwordx4 v[8:11], v4, s[36:39], s{sstart} offen")
    A(f"s_waitcnt vmcnt({depth})"); A.vm = []
    A(f"s_add_u32 s{sstart}, s{sstart}, {step}")
    if wrap:
        A(f"s_cmp_ge_u32 s{sstart}, {wrap}"); A(f"s_cselect_b32 s23, {wrap}, 0"); A(f"s_sub_u32 s{sstart}, s{sstart}, s23")
    A("s_add_u32 s22, s22, 1"); A(f"s_cmp_lt_u32 s22, {n}"); A(f"s_cbranch_scc1 {lp}")

def warm_mall(A):
    n = env("WMALL", 0)
    if not n: return
    for sb, size in ((SWO, D * D * 2), (SWG, D * F * 2), (SWU, D * F * 2))[:n]:
        A("s_lshl_b32 s24, s18, 1"); A("s_add_u32 s24, s24, s19"); A("s_sub_u32 s24, s24, 30"); A("s_lshl_b32 s24, s24, 13")
        warm_stream(A, sb, size, 24, 16 * 8192, -(-size // (16 * 8192)), 8)
    A("s_waitcnt vmcnt(0)")

def cs_engine(A, k0, k1, hook=None):
    lp = A.newlabel("cse"); nost = A.newlabel("csn")
    A("s_sub_u32 s24, 31, s19"); A("s_lshl_b32 s24, s24, 3"); A("s_add_u32 s24, s24, s18"); A("s_add_u32 s24, s24, 30")
    A.label(lp)
    for h_ in range(2):
        sel = A.newlabel("css")
        A(f"s_add_u32 s28, s24, {40*h_}")
        srd(A, 12, SWG, 0, D * F * 2); A(f"s_mov_b32 s25, {F*2}"); A("s_sub_u32 s26, s28, 30")
        A("s_cmp_lt_u32 s28, 57"); A(f"s_cbranch_scc1 {sel}")
        srd(A, 12, SWU, 0, D * F * 2); A("s_sub_u32 s26, s28, 57")
        A("s_cmp_ge_u32 s28, 84"); A("s_cselect_b32 s26, 0x1000000, s26")
        A.label(sel)
        A("v_lshrrev_b32 v4, 3, v0"); A("v_mul_lo_u32 v4, v4, s25")
        A("v_and_b32 v5, 7, v0"); A("v_lshl_add_u32 v4, v5, 4, v4")
        A("s_lshl_b32 s27, s26, 7"); A("s_lshl_b32 s25, s25, 6")
        for j in range(10):
            A(f"buffer_load_dwordx4 {v(64+40*h_+4*j,4)}, v4, s[12:15], s27 offen", (h_, j))
            A("s_add_u32 s27, s27, s25")
    if hook:
        keep = list(A.vm)
        hook()
        A.vm = keep; A.lg = []
    srd(A, 76, SDBG, 0, 256)
    srd(A, 80, SWS, WS_CS, CS_B)
    A("s_lshl_b32 s21, s20, 8"); A("v_and_b32 v5, 7, v0"); A("v_lshlrev_b32 v5, 5, v5"); A("v_add_u32 v5, s21, v5")
    for h_ in range(2):
        for k in range(8): A(f"v_mov_b32 v{8+k}, 0")
        for j in range(10):
            A.wait_vm(lambda g: g == (h_, j))
            for k in range(4):
                r = 64 + 40 * h_ + 4 * j + k
                A(f"v_lshlrev_b32 v6, 16, v{r}"); A(f"v_and_b32 v7, 0xffff0000, v{r}")
                A(f"v_pk_add_f32 {v(8+2*k,2)}, {v(8+2*k,2)}, v[6:7]")
        for k in range(8): A(f"v_add_f32_dpp v{8+k}, v{8+k}, v{8+k} row_ror:8 row_mask:0xf bank_mask:0xf")
        for sw in ("v_permlane16_swap_b32", "v_permlane32_swap_b32"):
            for k in range(8): A(f"v_mov_b32 v{16+k}, v{8+k}")
            for k in range(8): A(f"{sw} v{8+k}, v{16+k}")
            for k in range(0, 8, 2): A(f"v_pk_add_f32 {v(8+k,2)}, {v(8+k,2)}, {v(16+k,2)}")
        A(f"ds_write_b128 v5, v[8:11] offset:{2048*h_}"); A(f"ds_write_b128 v5, v[12:15] offset:{2048*h_+16}")
        A.wait_lg_all()
    A("s_barrier")
    A("s_cmp_ge_u32 s20, 2"); A(f"s_cbranch_scc1 {nost}")
    A("s_mul_i32 s28, s20, 40"); A("s_add_u32 s28, s28, s24")
    A("s_cmp_ge_u32 s28, 84"); A(f"s_cbranch_scc1 {nost}")
    A("v_lshlrev_b32 v5, 2, v1"); A("s_lshl_b32 s21, s20, 11"); A("v_add_u32 v6, s21, v5")
    for k in range(8): A(f"ds_read_b32 v{8+k}, v6 offset:{k*256}")
    A.wait_lg_all()
    for k in range(1, 8): A(f"v_add_f32 v8, v8, v{8+k}")
    A("s_lshl_b32 s21, s28, 8")
    A("buffer_store_dword v8, v5, s[80:83], s21 offen sc1")
    A("v_mov_b32 v10, 1"); A("v_mov_b32 v9, 40")
    A.wait_vm_all()
    A("s_mov_b64 exec, 1")
    A("buffer_atomic_add v10, v9, s[76:79], 0 offen sc1")
    A("s_mov_b64 exec, -1")
    join(A, nost); reset(A)
    A.fence(); reset(A)

def count_wait(A, cnt_off, n, t0, sr):
    srd(A, sr, SDBG, 0, 256)
    A(f"v_mov_b32 v{t0}, {cnt_off}")
    def body():
        A(f"buffer_load_dword v{t0+1}, v{t0}, {s(sr,4)}, 0 offen sc1")
        A.wait_vm_all()
        A(f"v_cmp_ne_u32 vcc, {n}, v{t0+1}")
    spin(A, body, "cnt", 4)

def idle4(A):
    if ENG: l0_only(A, lambda: (cs_engine(A, 0, 1), A('s_barrier')), 'eng')
    l0_only(A, lambda: warm_code(A), "wc4")
    if env("WW5", 0):
        rot_init(A, "p5", D * 2, wskip=env("WW5S", 10))
        A("s_sub_u32 s24, s19, 27"); A("s_lshl_b32 s24, s24, 13"); A("s_add_u32 s24, s24, s31")
        warm_stream(A, SWD, F * D * 2, 24, 40960, env("WW5", 0) * 2, env("WW5D", 2), wrap=F * D * 2)
        A("s_waitcnt vmcnt(0)")
    if PLAIN:
        touch_range(A, WS_H, H_B // 8, 5, 27, env("TDEP", 4))
        A("s_waitcnt vmcnt(0)")

def idle5(A):
    def f():
        l = A.newlabel("i5")
        A("s_cmp_lg_u32 s20, 0"); A(f"s_cbranch_scc1 {l}")
        wait_local(A, 2, 0, 27, None, 4, sleep=16)
        join(A, l); reset(A)
        A("s_barrier")
        warm_code(A)
        if env("WW1", 4):
            rot_init(A, "p1", 3840)
            A("s_sub_u32 s24, s19, 30"); A("s_lshl_b32 s24, s24, 13"); A("s_add_u32 s24, s24, s31")
            warm_stream(A, SWQKV, D * 1920 * 2, 24, 16384, env("WW1", 4) * 15, 6, wrap=D * 1920 * 2)
            A("s_waitcnt vmcnt(0)")
    l0_only(A, f, "i5l0")

P4PRE = env("P4PRE", 4)
P4 = dict(PS=2112, RB=128, UOFF=8480, SLOT=16960)
def phase3(A):
    A("s_cmp_ge_u32 s19, 30"); A("s_cbranch_scc1 L_p3_skip")
    p35_ids(A)
    A("s_lshl_b32 s21, s20, 1"); A("s_or_b32 s21, s21, s29"); A("s_cmp_lt_u32 s21, 8"); A("s_cbranch_scc1 L_p3_comp")
    if not LEAD: A("s_barrier")
    A("s_cmp_lt_u32 s20, 4"); A("s_cbranch_scc1 L_p3_noblk")
    A("s_cmp_ge_u32 s19, 27"); A("s_cbranch_scc1 L_p3_skip")
    A("s_lshl_b32 s25, s19, 7")
    wdma_off(A, 6, 2, 8, F * 2, 25, 26, 16)
    A("s_mul_i32 s32, s26, 2112")
    rot_init(A, "p4", F * 2, wskip=S4)
    srd(A, 12, SWG, 0, D * F * 2); srd(A, 36, SWU, 0, D * F * 2)
    g = Gemm(A, 4, 10, 6, 9, 16960, 128, 32, 0, 0, 0, 0, [6, 7, 6, 7], [12, 12, 36, 36], [0, 1024, 8480, 8480 + 1024],
             [], 8, F * 2, 0, 0)
    g.throttle = env("THR3", 3) or None; g.wflags = NT4; g.nland = S4
    if LEAD: cnt_wait(A, 2, 8, 16)
    g.prefetch(P4PRE)
    A.wait_vm_all()
    if LEAD: cnt_add(A, 3, 16)
    A("s_branch L_p3_done")
    A.label("L_p3_noblk")
    if LEAD: cnt_add(A, 4, 16)
    join(A, "L_p3_skip"); reset(A)
    A("s_branch L_p3_done")
    A.label("L_p3_comp"); reset(A)
    rot_init(A, "p3", D * 2)
    p35_compute(A, 10, 10, 10, P3W, WS_O, XB + 64 * 8192, WS_XIN, WS_X1, WS_STB,
                lambda t0: wait_local(A, 0, 0, 32, 29, t0), 1, False, 11, env("PRE3", 32))
    join(A, "L_p3_done"); reset(A)

B5 = 16960
N5 = env("N5", 10)
N5B = env("N5B", 0)
def phase5(A):
    A("s_cmp_lt_u32 s19, 30"); A("s_cbranch_scc1 L_p5_go")
    idle5(A)
    A("s_branch L_p5_done")
    A.label("L_p5_go"); reset(A)
    WSL = env("WSL5", 17)
    p35_ids(A); rot_init(A, "p5", D * 2)
    A("s_lshl_b32 s21, s20, 1"); A("s_or_b32 s21, s21, s29"); A("s_cmp_lt_u32 s21, 8"); A("s_cbranch_scc1 L_p5_comp")
    A("s_cmp_lt_u32 s20, 4"); A("s_cbranch_scc1 L_p5_idle")
    p35_loader_setup(A, SWD, F, B5)
    A("s_cmp_lt_u32 s19, 27"); A("s_cbranch_scc1 L_p5_pre")
    p35_gemm(A, 27, WSL, 0, 0, 0).prefetch(N5 + N5B)
    A.wait_vm_all()
    join(A, "L_p5_pre"); reset(A)
    rot_init(A, "p5", D * 2, wskip=N5 + N5B)
    A("s_barrier")
    g = p35_gemm(A, 27, WSL, 0, env("LA5", 14), 0); g.nland = N5 + N5B
    g.run_loader()
    A("s_barrier")
    A("s_branch L_p5_done")
    A.label("L_p5_idle"); reset(A)
    if N5B:
        A("s_cmp_lg_u32 s20, 3"); A("s_cbranch_scc1 L_p5_idle2")
        A("s_cmp_ge_u32 s19, 27"); A("s_cbranch_scc1 L_p5_idle2")
        A("s_lshl_b32 s25, s28, 7"); A("s_mov_b32 s26, 0")
        wdma_off(A, 4, 1, 8, D * 2, 25, 26, 16)
        for q in range(1, 8): A(f"v_add_u32 v{4+q}, {((q & 3) + 32 * (q >> 2)) * D * 2}, v4")
        srd(A, 12, SWD, 0, F * D * 2)
        rot_init(A, "p5", D * 2, wskip=N5)
        A(f"s_mov_b32 s32, {B5}")
        A("s_lshl_b32 s24, s16, 3"); A("s_add_u32 s24, s24, 8"); A(f"v_mov_b32 v16, {L_CNT}")
        def body():
            A("ds_read_b32 v17, v16"); A.wait_lg_all()
            A("v_cmp_gt_u32 vcc, s24, v17")
        spin(A, body, "lc", 1)
        g = Gemm(A, 2, 27, 9, WSL, 8448, 128, 64, 0, 0, 0, 0, [4 + q for q in range(8)], [12] * 8,
                 [(q & 3) * 2112 + (q >> 2) * 1024 for q in range(8)], [], 8, D * 2, 0, 0)
        g.nland = N5; g.throttle = env("THR5", 0) or None
        g.prefetch(N5 + N5B)
        join(A, "L_p5_idle2"); reset(A)
    A("s_mov_b32 s21, 0")
    A.label("L_p5_idle_loop")
    A("s_cmp_lg_u32 s21, 6"); A("s_cbranch_scc1 L_p5_idle3"); A("s_waitcnt vmcnt(0)")
    A.label("L_p5_idle3")
    A("s_barrier"); A("s_add_u32 s21, s21, 1"); A("s_cmp_lt_u32 s21, 29"); A("s_cbranch_scc1 L_p5_idle_loop")
    A("s_branch L_p5_done")
    A.label("L_p5_comp"); reset(A)
    p35_compute(A, 27, WSL, 0, B5, WS_H, H_B, WS_X1, WS_XIN + LS, WS_STA + LS,
                lambda t0: wait_local(A, 2, 0, 27, 29, t0), 3, True, 22, env("PRE5", 16))
    join(A, "L_p5_done"); reset(A)

def phase4(A):
    A("s_cmp_lt_u32 s19, 27"); A("s_cbranch_scc1 L_p4_go")
    if DEFER: signal_flush(A, 4)
    A("s_barrier")
    idle4(A)
    A("s_branch L_p4_done")
    A.label("L_p4_go"); reset(A)
    A(f"s_xor_b32 s28, s20, {4 if LEAD else 0}")
    A("s_lshl_b32 s24, s28, 5")
    A("s_lshl_b32 s27, s18, 8"); A("s_add_u32 s27, s27, s24")
    A("s_and_b32 s26, s20, 3"); A("s_lshr_b32 s29, s20, 2")
    PS, RB, UOFF, SLOT = 2112, 128, 8480, 16960
    WSL, XS = 9, 5
    VX, VWD, VTR, VST, VCS, VOUT, VPL = 4, 6, 8, 11, 12, 13, 144
    NM, CA, CB, IR = 14, 16, 18, 20
    TMP = 24; WF = 40; ACC = 72; T = 136; CSA = 148; CSB = 156; CT = 164; V5 = 165; XA = 168
    cl_lane_off(A, VX, 27, 20480, TMP)
    A("s_lshl_b32 s25, s19, 7")
    wdma_off(A, VWD, 2, 8, F * 2, 25, 26, TMP)
    tr_lane_addr(A, VTR, PS, RB, UOFF, TMP)
    A(f"v_add_u32 v{VTR+1}, {3*SLOT}, v{VTR}"); A(f"v_add_u32 v{VTR+2}, {6*SLOT}, v{VTR}")
    stats_off(A, VST, 24, TMP)
    cl_lane_off(A, VOUT, 27, 54 * 1024, TMP)
    A("s_lshl_b32 s21, s19, 11")
    A(f"v_add_u32 v{VOUT}, s21, v{VOUT}")
    A(f"v_lshlrev_b32 v{VCS}, 4, v3"); A(f"v_add_u32 v{VCS}, {CS4}, v{VCS}")
    A(f"s_mul_i32 s32, s26, {PS}"); A(f"s_mul_i32 s21, s29, {UOFF}"); A("s_add_u32 s32, s32, s21")
    A("s_lshl_b32 s21, s26, 5"); A(f"s_mul_i32 s22, s29, {8*RB}"); A("s_add_u32 s21, s21, s22")
    A(f"v_add_u32 v{VPL}, s21, v{VTR}")
    A(f"v_add_u32 v{VPL+1}, {3*SLOT}, v{VPL}"); A(f"v_add_u32 v{VPL+2}, {6*SLOT}, v{VPL}")
    for k in range(2): A(f"v_mov_b32 v{CSA+k}, 0")
    A(f"v_mov_b32 v{CT}, 0x3f803f80")
    NA = 2 if LEAD else 0
    if LEAD:
        rot_init(A, "p4", F * 2, wskip=P4PRE); A("s_mov_b32 s44, s31")
        srd(A, 40, SWG, 0, D * F * 2)
    rot_init(A, "p4", F * 2, wskip=P4PRE + NA)
    A("s_cmp_eq_u32 s29, 0")
    A(f"s_cselect_b32 s22, s{SWG}, s{SWU}"); A(f"s_cselect_b32 s23, s{SWG+1}, s{SWU+1}")
    srd(A, 12, 22, 0, D * F * 2)
    srd(A, 8, SWS, WS_X1, XB)
    srd(A, 36, SWS, WS_STB, ST_B)
    srd(A, 80, SWS, WS_H, H_B)
    def late_setup():
        A("s_mov_b32 s34, s30"); A("s_mov_b32 s25, s31")
        rot_init(A, "p5", D * 2)
        A("s_mov_b32 s33, s31"); A("s_mov_b32 s30, s34"); A("s_mov_b32 s31, s25")
        A("s_mul_i32 s25, s19, 171"); A("s_lshr_b32 s25, s25, 9"); A("s_lshl_b32 s25, s25, 7")
        A(f"s_mul_i32 s21, s29, {32*D*2}"); A("s_add_u32 s25, s25, s21")
        wdma_off(A, V5, 1, 8, D * 2, 25, 26, T)
        A("s_mul_i32 s34, s26, 2112"); A("s_lshl_b32 s21, s29, 10"); A("s_add_u32 s34, s34, s21"); A(f"s_add_u32 s34, s34, {B5}")
        srd(A, 76, SWD, 0, F * D * 2)
    def t5(t):
        def f():
            A(f"s_add_u32 m0, s34, {t*8448}")
            A(f"buffer_load_dwordx4 v{V5}, s[76:79], s33 offen lds", "w5")
            A(f"s_add_u32 s33, s33, {64*D*2}"); A(f"s_cmp_ge_u32 s33, {F*D*2}"); A("s_cselect_b32 s33, 0, s33")
        return f
    if env("PRIO4", 1):
        l = A.newlabel("prio")
        A("s_cmp_ge_u32 s20, 4"); A(f"s_cbranch_scc1 {l}"); A("s_setprio 1"); A.label(l)
    if env("E3POS", 1) == 0: A("s_barrier")
    if DEFER: signal_flush(A, TMP)
    wait_local(A, 1, 0, 10, 28, TMP, sleep=2); reset(A)
    stamp(A, 16)
    g = Gemm(A, 4, 10, XS, WSL, SLOT, RB, 32, ACC, WF, XA, VX, [VWD, VWD + 1], [12, 12],
             [0, 1024], [VTR, VTR + 1, VTR + 2], 8, F * 2, env("PRE4", 6), 0, P4PRE)
    def csum(t):
        slot = t % WSL
        def f():
            for q in range(4):
                A(f"ds_read_b64_tr_b16 {v(CSB + 2*q, 2)}, v{VPL + slot // 3} offset:{(slot % 3) * SLOT + 2 * q * RB}")
            A("s_waitcnt lgkmcnt(0)")
            for q in range(8):
                if env("CSDOT", 1): A(f"v_dot2_f32_bf16 v{CSA + (q & 1)}, v{CSB+q}, v{CT}, v{CSA + (q & 1)}")
                else:
                    A(f"v_lshlrev_b32 v{CSA+2}, 16, v{CSB+q}"); A(f"v_and_b32 v{CSA+3}, 0xffff0000, v{CSB+q}")
                    A(f"v_add_f32 v{CSA}, v{CSA}, v{CSA+2}"); A(f"v_add_f32 v{CSA+1}, v{CSA+1}, v{CSA+3}")
        keep = list(A.lg)
        l0_only(A, f, "p4cs")
        A.lg = keep
    kk = -2.0 * 1.4426950408889634 * 0.7978845608028654
    def mid(t):
        if not ENG: csum(t)
        if ENG and t == env("CS4AT", 5):
            def f():
                l = A.newlabel("c4")
                A("s_cmp_lg_u32 s20, 7"); A(f"s_cbranch_scc1 {l}")
                count_wait(A, 40, 54, CSA, 40)
                srd(A, 40, SWS, WS_CS, CS_B)
                A(f"v_and_b32 v{CSA}, 15, v1"); A(f"v_lshlrev_b32 v{CSA}, 4, v{CSA}")
                A(f"v_bfe_u32 v{CSA+1}, v1, 4, 1"); A(f"v_mul_u32_u24 v{CSA+1}, {F*4}, v{CSA+1}"); A(f"v_add_u32 v{CSA}, v{CSA}, v{CSA+1}")
                A("s_lshl_b32 s21, s19, 8"); A(f"s_add_u32 s21, s21, {1920*4}")
                A(f"buffer_load_dwordx4 {v(CSA+4,4)}, v{CSA}, s[40:43], s21 offen sc1")
                A(f"v_lshlrev_b32 v{CSA}, 4, v2"); A(f"v_add_u32 v{CSA}, {CS4}, v{CSA}")
                A("s_waitcnt vmcnt(0)")
                A(f"ds_write_b128 v{CSA}, {v(CSA+4,4)}")
                A("s_waitcnt lgkmcnt(0)")
                join(A, l)
            kv, kl = list(A.vm), list(A.lg)
            l0_only(A, f, "p4cs")
            A.vm, A.lg = kv, kl
        if t == 2: late_setup()
        if t == 6:
            tt = TMP
            A.wait_vm(lambda g: g == ("S",))
            finish_stats(A, tt, NM, tt + 2, tt + 10)
            A(f"v_mov_b32 v{IR}, v{tt+1}")
            A(f"v_mul_f32 v{CB}, {f32(kk)}, v{tt+2}")
            A(f"v_mul_f32 v{tt+3}, v{tt+2}, v{tt+2}")
            A(f"v_mul_f32 v{tt+3}, {f32(0.044715)}, v{tt+3}")
            A(f"v_mul_f32 v{CA}, v{CB}, v{tt+3}")
    g.wflags = NT4
    g.lastbar = env("LB4", 7)
    if LEAD:
        g.bar_at = env("E3AT", 4); g.bar_fn = lambda: cnt_wait(A, 3, 4, T)
        g.nland = P4PRE + NA; g.wgate = P4PRE
        def gate4():
            l = A.newlabel("g4")
            kv, kl, h = list(A.vm), list(A.lg), None
            A("s_cmp_lt_u32 s20, 4"); A(f"s_cbranch_scc1 {l}")
            h = list(A.hist)
            cnt_wait(A, 4, 4, T)
            for t in range(P4PRE, P4PRE + NA):
                for q in range(4):
                    A(f"s_add_u32 m0, s32, {t * SLOT + (q & 1) * 1024 - (UOFF if q < 2 else 0)}")
                    A(f"buffer_load_dwordx4 v{VWD + (q & 1)}, {s(40 if q < 2 else 12, 4)}, s44 offen lds")
                A(f"s_add_u32 s44, s44, {64*F*2}"); A(f"s_cmp_ge_u32 s44, {640*F*2}"); A("s_cselect_b32 s44, 0, s44")
            A("s_waitcnt vmcnt(0)")
            A.fence(); A.label(l)
            A.vm, A.lg, A.hist = kv, kl, h
        g.pre_bar = {P4PRE: gate4}
    elif env("E3POS", 1): g.bar_at = env("E3AT", 4)
    g.run(extra=stats_items(A, VST, 36, TMP), wlead=env("WLEAD4", -1 if LEAD else 3), sb=16, stage_end=mid, tail=[t5(t) for t in range(N5)], rate=env("RATE4", 7))
    if N5B:
        A(f"v_mov_b32 v{CSB}, {L_CNT}"); A(f"v_mov_b32 v{CSB+1}, 1")
        A("s_mov_b64 exec, 1")
        A(f"ds_add_u32 v{CSB}, v{CSB+1}")
        A("s_mov_b64 exec, -1")
    def cpart():
        A("s_nop 3")
        A(f"v_add_f32 v{CSA}, v{CSA}, v{CSA+1}")
        A(f"v_mov_b32 v{CSA+1}, v{CSA}"); A(f"v_permlane32_swap_b32 v{CSA}, v{CSA+1}"); A(f"v_add_f32 v{CSA}, v{CSA}, v{CSA+1}")
        A(f"v_bfe_u32 v{CSB}, v1, 4, 1"); A(f"v_lshlrev_b32 v{CSB}, 8, v{CSB}")
        A(f"v_and_b32 v{CSB+1}, 15, v1"); A(f"v_lshl_add_u32 v{CSB}, v{CSB+1}, 2, v{CSB}")
        A("s_lshl_b32 s21, s26, 6"); A("s_lshl_b32 s22, s29, 9"); A("s_add_u32 s21, s21, s22"); A(f"s_add_u32 s21, s21, {CS_PART}")
        A(f"v_add_u32 v{CSB}, s21, v{CSB}")
        A(f"ds_write_b32 v{CSB}, v{CSA}")
    if not ENG: l0_only(A, cpart, "p4cp")
    def cfin():
        A.wait_lg_all()
        A("s_barrier")
        A(f"v_lshlrev_b32 v{CSB}, 3, v1"); A(f"v_add_u32 v{CSB}, {CS_PART}, v{CSB}")
        A(f"ds_read_b64 {v(CSB+2,2)}, v{CSB}"); A(f"ds_read_b64 {v(CSB+4,2)}, v{CSB} offset:512")
        A.wait_lg_all()
        A(f"v_pk_add_f32 {v(CSB+2,2)}, {v(CSB+2,2)}, {v(CSB+4,2)}")
        A(f"ds_write_b64 v{CSB}, {v(CSB+2,2)} offset:{CS4 - CS_PART}")
        A.wait_lg_all()
    if not ENG: l0_only(A, cfin, "p4cf")
    csr = lambda nb: WF + (nb & 1) * 16
    def csread(nb):
        for i in range(2):
            A(f"ds_read_b128 {v(csr(nb) + i*4, 4)}, v{VCS} offset:{nb*64 + i*32}", ("C", nb))
            A(f"ds_read_b128 {v(csr(nb) + 8 + i*4, 4)}, v{VCS} offset:{256 + nb*64 + i*32}", ("C", nb))
    csread(0); csread(1)
    for kkb in range(2):
        for e in range(2):
            nb = 2 * kkb + e
            A.wait_lg(lambda g: g == ("C", nb))
            for k in range(0, 16, 2):
                r = ACC + nb * 16 + k
                A(f"v_pk_fma_f32 {v(r,2)}, {v(csr(nb)+k,2)}, {v(NM,2)}, {v(r,2)} op_sel_hi:[1,0,1]")
        if kkb == 0: csread(2); csread(3)
        for half in range(2):
            out = TMP + 4 * ((2 * kkb + half) & 3)
            for e in range(2):
                nb = 2 * kkb + e
                gq = ACC + nb * 16 + 4 * half
                uq = gq + 8
                Tt = T + 4 * e
                for k in (0, 2): A(f"v_pk_mul_f32 {v(Tt+k,2)}, {v(gq+k,2)}, {v(gq+k,2)}")
                for k in (0, 2): A(f"v_pk_fma_f32 {v(Tt+k,2)}, {v(Tt+k,2)}, {v(CA,2)}, {v(CB,2)} op_sel_hi:[1,0,0]")
                for k in (0, 2): A(f"v_pk_mul_f32 {v(Tt+k,2)}, {v(Tt+k,2)}, {v(gq+k,2)}")
                for k in range(4): A(f"v_exp_f32 v{Tt+k}, v{Tt+k}")
                for k in (0, 2): A(f"v_pk_mul_f32 {v(gq+k,2)}, {v(gq+k,2)}, {v(uq+k,2)}")
                for k in (0, 2): A(f"v_pk_fma_f32 {v(Tt+k,2)}, {v(Tt+k,2)}, {v(IR,2)}, {v(IR,2)} op_sel_hi:[1,0,0]")
                for k in range(4): A(f"v_rcp_f32 v{Tt+k}, v{Tt+k}")
                for k in (0, 2): A(f"v_pk_mul_f32 {v(gq+k,2)}, {v(gq+k,2)}, {v(Tt+k,2)}")
                A(f"v_cvt_pk_bf16_f32 v{out+2*e}, v{gq}, v{gq+1}")
                A(f"v_cvt_pk_bf16_f32 v{out+2*e+1}, v{gq+2}, v{gq+3}")
            A(f"buffer_store_dwordx4 {v(out,4)}, v{VOUT}, s[80:83], 0 offen offset:{kkb*1024 + half*512}{STF}")
    stamp(A, 19)
    signal_local(A, 2, T, 28, 19)
    stamp(A, 20)
    A("s_setprio 0")
    join(A, "L_p4_done"); reset(A)

def main(out_path):
    A = Asm(); name = NAME + "_kernel"
    A.raw(kernel_header(name))
    A("s_cmp_ge_u32 s2, 256"); A("s_cbranch_scc1 L_end")
    if STAMP:
        A("s_memtime s[90:91]"); A("v_mov_b32 v255, 0"); A("v_mov_b32 v254, 0")
    if env("DIAGT", 0) or env("HOLDAT", 0): A("s_memrealtime s[90:91]")
    A(f"s_load_dwordx4 s[4:7], s[0:1], 64")
    A(f"s_load_dwordx4 s[84:87], s[0:1], 0")
    A(f"s_load_dwordx2 s[88:89], s[0:1], 16")
    A(f"s_load_dwordx8 s[92:99], s[0:1], 32")
    A("v_lshrrev_b32 v2, 6, v0")
    A("v_and_b32 v1, 63, v0")
    A("v_readfirstlane_b32 s20, v2")
    A("v_and_b32 v2, 31, v0")
    A("v_lshrrev_b32 v3, 5, v1")
    A("s_and_b32 s18, s2, 7")
    A("s_lshr_b32 s19, s2, 3")
    A("s_mov_b32 s16, 0"); A("s_mov_b32 s17, 0"); A(f"s_mov_b32 s3, {OOB:#x}")
    A.wait_lg_all()
    if env("WSBASE", 0):
        A(f"s_add_u32 s{SWS}, s{SWS}, {env('WSBASE', 0) << 20:#x}"); A(f"s_addc_u32 s{SWS+1}, s{SWS+1}, 0")
    srd(A, SFL, SWS, WS_FL, FL_B)
    stamp(A, 0)
    phase1(A, True)
    A.label("L_layer"); reset(A)
    def hold(k):
        if env("HOLDAT", 0) != k: return
        l = A.newlabel("hold")
        A.label(l)
        A("s_memrealtime s[22:23]"); A("s_waitcnt lgkmcnt(0)"); A.lg = []
        A("s_sub_u32 s22, s22, s90"); A(f"s_cmp_lt_u32 s22, {env('HOLDT', 0)}"); A(f"s_cbranch_scc1 {l}")
    phase1(A, False); hold(1); phase2(A); hold(2); phase3(A); hold(3); phase4(A); hold(4); phase5(A); hold(5)
    A("s_cmp_lg_u32 s16, 0"); A("s_cbranch_scc1 L_exit")
    A("s_mov_b32 s16, 1")
    A(f"s_add_u32 s{SWS}, s{SWS}, {LS:#x}"); A(f"s_addc_u32 s{SWS+1}, s{SWS+1}, 0")
    if STAMP: A("v_mov_b32 v254, v255")
    A.fence()
    A("s_branch L_layer")
    A.label("L_exit")
    if env("DIAGT", 0):
        A.label("L_diag")
        A("s_memrealtime s[22:23]"); A("s_waitcnt lgkmcnt(0)"); A.lg = []
        A("s_sub_u32 s22, s22, s90"); A(f"s_cmp_lt_u32 s22, {env('DIAGT', 0)}"); A("s_cbranch_scc1 L_diag")
    if STAMP:
        A("s_waitcnt vmcnt(0)")
        stamp(A, 31)
        srd(A, 76, SWS, WS_DBG - LS, 0x1000000)
        A("s_lshl_b32 s21, s2, 3"); A("s_add_u32 s21, s21, s20"); A("s_lshl_b32 s21, s21, 9")
        A("v_lshlrev_b32 v4, 2, v1"); A("v_add_u32 v4, s21, v4")
        A("buffer_store_dword v254, v4, s[76:79], 0 offen")
        A("buffer_store_dword v255, v4, s[76:79], 0 offen offset:256")
        if env("DBGOUT", 0):
            A("s_add_u32 s21, s2, s20"); A("s_cmp_lg_u32 s21, 0"); A("s_cbranch_scc1 L_end")
            srd(A, 76, SDBG, 0, 256)
            A("v_readlane_b32 s22, v254, 0")
            sel = [(254, 2), (254, 3), (254, 8), (254, 11), (254, 16), (254, 22), (255, 1), (255, 8), (255, 11), (255, 16), (255, 22), (255, 31)]
            slots = [2, 3, 4, 5, 6, 7, 10, 11, 12, 13, 14, 15]
            A("s_mov_b64 exec, 1")
            for (r, l), sl in zip(sel, slots):
                A(f"v_readlane_b32 s23, v{r}, {l}"); A("s_sub_u32 s23, s23, s22"); A("v_mov_b32 v6, s23"); A(f"v_mov_b32 v7, {sl*4}")
                A("buffer_store_dword v6, v7, s[76:79], 0 offen")
                A("s_waitcnt vmcnt(0)"); A.vm = []
    A.label("L_end"); A("s_endpgm")
    A.flush_tail()
    A.raw("    .p2align 4"); A.label("L_code_end")
    hdr = open(os.path.join(os.path.dirname(os.path.abspath(__file__)), "..", "cdna_kernels", NAME + ".s.ref")).read().split("; Override")[0]
    t = hdr + f"; @launch grid=(256,1,1) block=(512,1,1) lds={LDS_TOTAL}\n"
    t += '.amdgcn_target "amdgcn-amd-amdhsa--gfx950"\n.text\n' + A.text()
    t += '.section .rodata,"a"\n.p2align 6\n' + kernel_desc(name, 256, 0, 102)
    open(out_path, "w").write(t)

if __name__ == "__main__":
    main(sys.argv[1] if len(sys.argv) > 1 else f"cdna_kernels/{NAME}.s")
```
